```python
import torch

def _softmax(x, axis=-1):
    return torch.softmax(x, dim=axis)

def _gelu(x):
    return torch.nn.functional.gelu(x, approximate='tanh')

def _silu(x):
    return torch.nn.functional.silu(x)

def _sigmoid(x):
    return torch.sigmoid(x)

def _layernorm(x, axis=-1, eps=1e-05):
    m = x.mean(dim=axis, keepdim=True)
    v = x.var(dim=axis, keepdim=True, unbiased=False)
    return (x - m) / torch.sqrt(v + eps)

def _scatter_add(tgt, idx, src, axis=0):
    return tgt.clone().index_add_(axis, idx, src)

def _segment_sum(src, seg, n):
    out = torch.zeros((n,) + src.shape[1:], dtype=src.dtype)
    return out.index_add_(0, seg, src)

def _pad(x, pw):
    flat = tuple((v for pair in reversed(pw) for v in pair))
    return torch.nn.functional.pad(x, flat)
kernel_name = 'concat_heads__memory_aug_recurrent_mem_tr__sliding_local_dilated__prompt'

def setup_inputs():

    _w = lambda a: (lambda t: t.to(torch.bfloat16) if t.is_floating_point() else t)(torch.as_tensor(a))

    def _A_setup():
        B, S, Dm = (1, 2048, 1024)
        H, Dh = (32, 128)
        M, seg = (8, 32)
        seg = min(seg, S)
        S = S // seg * seg
        return {'x': _w((lambda *s: torch.randn(*s, dtype=torch.bfloat16) * 0.05)(B, S, Dm)), 'mem0': _w((lambda *s: torch.randn(*s, dtype=torch.bfloat16) * 1.6)(B, M, Dm)), 'Wq': _w((lambda *s: torch.randn(*s, dtype=torch.bfloat16) * 0.8)(Dm, H, Dh) * Dm ** (-0.5)), 'Wk': _w((lambda *s: torch.randn(*s, dtype=torch.bfloat16) * 0.8)(Dm, H, Dh) * Dm ** (-0.5)), 'Wv': _w((lambda *s: torch.randn(*s, dtype=torch.bfloat16) * 1.6)(Dm, H, Dh) * Dm ** (-0.5)), 'Wo': _w((lambda *s: torch.randn(*s, dtype=torch.bfloat16) * 1.6)(H, Dh, Dm) * (H * Dh) ** (-0.5)), 'seg_len': seg}
    _A_in = _A_setup()

    def _B_setup():
        B, S, D = (1, 2048, 1024)
        return {'x': _w((lambda *s: torch.randn(*s, dtype=torch.bfloat16) * 0.2)(B, S, D)), 'wqkv': _w((lambda *s: torch.randn(*s, dtype=torch.bfloat16) * 0.2)(D, 3 * D)), 'wo': _w((lambda *s: torch.randn(*s, dtype=torch.bfloat16) * 0.05)(D, D))}
    _B_in = _B_setup()
    return {'A_x': _A_in['x'], 'A_mem0': _A_in['mem0'], 'A_Wq': _A_in['Wq'], 'A_Wk': _A_in['Wk'], 'A_Wv': _A_in['Wv'], 'A_Wo': _A_in['Wo'], 'A_seg_len': _A_in['seg_len'], 'B_x': _B_in['x'], 'B_wqkv': _B_in['wqkv'], 'B_wo': _B_in['wo']}

def reference(A_x, A_mem0, A_Wq, A_Wk, A_Wv, A_Wo, A_seg_len, B_x, B_wqkv, B_wo):

    def _A_ref(x, mem0, Wq, Wk, Wv, Wo, seg_len):
        B, S, Dm = x.shape
        H, Dh = (Wq.shape[1], Wq.shape[2])
        M = mem0.shape[1]
        scale = Dh ** (-0.5)
        n_seg = S // seg_len
        L = M + seg_len
        idx = torch.arange(L)
        mask = (idx[:, None] < M) | (idx[:, None] >= idx[None, :])
        mem = mem0
        outs = []
        for s in range(n_seg):
            xs = x[:, s * seg_len:(s + 1) * seg_len, :].clone()
            h = torch.concatenate([mem, xs], axis=1)
            q = torch.einsum('btd,dhe->bhte', h, Wq)
            k = torch.einsum('btd,dhe->bhte', h, Wk)
            v = torch.einsum('btd,dhe->bhte', h, Wv)
            scores = torch.einsum('bhqe,bhke->bhqk', q, k) * scale
            scores = torch.where(mask[None, None], scores, -1000000000.0)
            p = _softmax(scores, axis=-1)
            o = torch.einsum('bhqk,bhke->bhqe', p, v)
            o = torch.einsum('bhte,hed->btd', o, Wo)
            mem = o[:, :M, :].clone()
            outs.append(o[:, M:, :])
        return torch.concatenate(outs, axis=1)

    def _B_ref(x, wqkv, wo):
        B, S, D = x.shape
        H = 32
        Dh = D // H
        W, dil = (8, 2)
        qkv = (lambda x, *d: x.permute(*d))((x @ wqkv).reshape(B, S, 3, H, Dh), 2, 0, 3, 1, 4)
        q, k, v = (qkv[0], qkv[1], qkv[2])
        scale = Dh ** (-0.5)
        pos = torch.arange(S)
        off = torch.arange(W) * dil
        idx = pos[:, None] - off[None, :]
        mask = idx >= 0
        idx_c = torch.where(mask, idx, 0).reshape(-1)
        kg = k[:, :, idx_c, :].reshape(B, H, S, W, Dh)
        vg = v[:, :, idx_c, :].reshape(B, H, S, W, Dh)
        logits = torch.einsum('bhsd,bhswd->bhsw', q, kg) * scale
        logits = torch.where(mask[None, None, :, :], logits, -1000000000.0)
        attn = _softmax(logits, axis=-1)
        o = torch.einsum('bhsw,bhswd->bhsd', attn, vg)
        return (lambda x, *d: x.permute(*d))(o, 0, 2, 1, 3).reshape(B, S, D) @ wo
    a = _A_ref(A_x, A_mem0, A_Wq, A_Wk, A_Wv, A_Wo, A_seg_len)
    b = _B_ref(B_x, B_wqkv, B_wo)
    return torch.concatenate([a, b], axis=-1)
```

```python
import re

REG_RE = re.compile(r'\b([vas])(\d+)\b|\b([vas])\[(\d+):(\d+)\]|\b(vcc|exec|m0|scc)(_lo|_hi)?\b')

def regs_of(op):
    out = set()
    for m in REG_RE.finditer(op):
        if m.group(1):
            out.add((m.group(1), int(m.group(2))))
        elif m.group(3):
            for i in range(int(m.group(4)), int(m.group(5)) + 1):
                out.add((m.group(3), i))
        else:
            out.add((m.group(6), 0))
    return out

def split_ops(s):
    ops, cur, d = [], '', 0
    for ch in s:
        if ch == '[': d += 1
        if ch == ']': d -= 1
        if ch == ',' and d == 0:
            ops.append(cur.strip()); cur = ''
        else:
            cur += ch
    if cur.strip(): ops.append(cur.strip())
    return ops

TRANS = ('v_exp_f32', 'v_log_f32', 'v_rcp_f32', 'v_rsq_f32', 'v_sqrt_f32', 'v_sin_f32', 'v_cos_f32', 'v_rcp_iflag_f32')

class Ins:
    __slots__ = ('text', 'op', 'kind', 'wr', 'rd', 'passes', 'srcc', 'ab', 'dpp', 'label', 'target', 'states', 'stdata', 'sgpr_rd', 'uncond')
    def __init__(self, text):
        self.text = text
        self.label = None; self.target = None; self.uncond = False
        self.wr = set(); self.rd = set(); self.passes = 0; self.srcc = set(); self.ab = set(); self.dpp = False
        self.states = 1; self.stdata = set()
        t = text.split(';')[0].strip()
        if t.endswith(':'):
            self.kind = 'label'; self.label = t[:-1]; self.op = ''; self.states = 0; return
        if not t or t.startswith('.'):
            self.kind = 'dir'; self.op = ''; self.states = 0; return
        parts = t.split(None, 1)
        self.op = op = parts[0]
        rest = parts[1] if len(parts) > 1 else ''
        ops = split_ops(rest)
        if op == 's_nop':
            self.kind = 'salu'; self.states = int(rest, 0) + 1; return
        if op.startswith('s_cbranch') or op == 's_branch':
            self.kind = 'branch'; self.target = rest.strip(); self.uncond = (op == 's_branch'); return
        if op == 's_endpgm':
            self.kind = 'end'; return
        if op.startswith('v_mfma') or op.startswith('v_smfmac'):
            self.kind = 'mfma'
            self.passes = 8 if '32x32' in op else 4
            self.wr = regs_of(ops[0])
            if op.startswith('v_smfmac'):
                self.srcc = set(self.wr); self.ab = regs_of(ops[1]) | regs_of(ops[2]) | regs_of(ops[3])
            else:
                self.srcc = regs_of(ops[3]); self.ab = regs_of(ops[1]) | regs_of(ops[2])
            self.rd = self.srcc | self.ab
            return
        if op.startswith('v_'):
            self.kind = 'valu'
            self.dpp = ('dpp' in op) or ('row_' in rest) or ('quad_perm' in rest)
            if op.startswith('v_cmp'):
                self.wr = regs_of(ops[0]); self.rd = set().union(*[regs_of(o) for o in ops[1:]])
                if op.startswith('v_cmpx'): self.wr |= {('exec', 0)}
            elif op.startswith('v_permlane') and 'swap' in op:
                self.wr = regs_of(ops[0]) | regs_of(ops[1]); self.rd = set(self.wr)
            elif '_co_' in op or op.startswith('v_mad_u64') or op.startswith('v_div_scale'):
                self.wr = regs_of(ops[0]) | regs_of(ops[1]); self.rd = set().union(*[regs_of(o) for o in ops[2:]])
            else:
                self.wr = regs_of(ops[0]); self.rd = set().union(*[regs_of(o) for o in ops[1:]]) if len(ops) > 1 else set()
                if op.startswith('v_fmac') or op.startswith('v_dot2c') or op.startswith('v_writelane') or self.dpp: self.rd |= self.wr
            return
        if op.startswith('ds_'):
            self.kind = 'ds'
            if op.startswith('ds_read') or op.startswith('ds_bpermute') or op.startswith('ds_permute') or op.startswith('ds_swizzle') or '_rtn' in op:
                self.wr = regs_of(ops[0]); self.rd = set().union(*[regs_of(o) for o in ops[1:]])
            else:
                self.rd = set().union(*[regs_of(o) for o in ops])
            return
        if op.startswith('buffer_') or op.startswith('global_') or op.startswith('flat_'):
            self.kind = 'vmem'
            if op in ('buffer_wbl2', 'buffer_inv'): return
            is_lds = (' lds' in (' ' + rest)) or ('load_lds' in op)
            if is_lds:
                self.rd = set().union(*[regs_of(o) for o in ops]) | {('m0', 0)}
            elif '_load' in op:
                self.wr = regs_of(ops[0]); self.rd = set().union(*[regs_of(o) for o in ops[1:]])
            elif 'atomic' in op:
                self.rd = set().union(*[regs_of(o) for o in ops])
                if ' sc0' in rest: self.wr = regs_of(ops[0])
            else:
                self.rd = set().union(*[regs_of(o) for o in ops])
                if 'x4' in op or 'x3' in op:
                    self.stdata = regs_of(ops[0]) if op.startswith('buffer_') else regs_of(ops[1])
            return
        if op.startswith('s_'):
            self.kind = 'salu'
            if op.startswith('s_cmp') or op.startswith('s_bitcmp') or op in ('s_waitcnt', 's_barrier', 's_setprio', 's_sleep', 's_setreg_b32'):
                self.rd = set().union(*[regs_of(o) for o in ops]) if ops else set()
            elif op.startswith('s_load') or op.startswith('s_memtime') or op.startswith('s_memrealtime') or op.startswith('s_buffer_load'):
                self.kind = 'smem'; self.wr = regs_of(ops[0]); self.rd = set().union(*[regs_of(o) for o in ops[1:]]) if len(ops) > 1 else set()
            else:
                self.wr = regs_of(ops[0]); self.rd = set().union(*[regs_of(o) for o in ops[1:]]) if len(ops) > 1 else set()
                if 'saveexec' in op: self.wr |= {('exec', 0)}
            return
        raise ValueError('unknown instruction: ' + text)

def isv(r): return r[0] in ('v', 'a')
def iss(r): return r[0] in ('s', 'vcc')

def need(p, c):
    n = 0
    if p.kind == 'valu':
        pv = {r for r in p.wr if isv(r)}
        ps = {r for r in p.wr if iss(r)}
        if c.kind == 'mfma':
            if pv & c.rd: n = max(n, 2)
            if ('exec', 0) in p.wr: n = max(n, 4)
        if c.kind == 'valu':
            if pv & c.rd:
                if c.dpp or c.op.startswith('v_permlane'): n = max(n, 2)
                if c.op.startswith('v_readlane') or c.op.startswith('v_readfirstlane'): n = max(n, 1)
                if p.op.split('_e')[0] in TRANS and c.op.split('_e')[0] not in TRANS: n = max(n, 1)
                if 'op_sel' in p.text or 'sdwa' in p.text: n = max(n, 1)
            if ps & c.rd:
                n = max(n, 4 if (c.op.startswith('v_readlane') or c.op.startswith('v_writelane') or c.op.startswith('v_div_fmas')) else 2)
            if ('exec', 0) in p.wr:
                if c.dpp: n = max(n, 5)
                if c.op.startswith('v_read') or c.op.startswith('v_writelane') or c.op.startswith('v_permlane'): n = max(n, 4)
                if ('exec', 0) in c.rd: n = max(n, 2)
        if c.kind == 'vmem' and (ps & c.rd): n = max(n, 5)
    elif p.kind == 'mfma':
        far = 12 if p.passes == 8 else 8
        if c.kind == 'mfma':
            if p.wr & c.ab: n = max(n, far)
            if p.wr & c.srcc:
                if not (p.wr == c.srcc and p.op == c.op): n = max(n, 10 if p.passes == 8 else 6)
            elif p.wr & c.wr:
                n = max(n, 10 if p.passes == 8 else 6)
        elif c.kind in ('valu', 'ds', 'vmem'):
            if p.wr & (c.rd | c.wr): n = max(n, far)
            if c.kind == 'valu' and (p.srcc & c.wr): n = max(n, 7 if p.passes == 8 else 3)
    elif p.kind == 'salu':
        if ('m0', 0) in p.wr and c.kind in ('vmem', 'ds') and ('m0', 0) in c.rd: n = max(n, 1)
    elif p.kind == 'vmem':
        if p.stdata & c.wr: n = max(n, 2)
    return n

class Asm:
    def __init__(self):
        self.lines = []
        self.uid = 0
    def __call__(self, text):
        for l in text.split('\n'):
            l = l.strip()
            if l: self.lines.append(l)
    def label(self, name): self.lines.append(name + ':')
    def newlabel(self, base='L'):
        self.uid += 1
        return '%s_%d' % (base, self.uid)
    def comment(self, t): self.lines.append('; ' + t)

    def finalize(self, verbose=False):
        ins = [Ins(l) if not l.startswith(';') else None for l in self.lines]
        items = [(l, i) for l, i in zip(self.lines, ins)]
        MAXW = 20
        inserted = 0
        changed = True
        for _pass in range(4):
            code = [i for _, i in items if i is not None and i.kind != 'dir']
            idx_of_label = {c.label: k for k, c in enumerate(code) if c.kind == 'label'}
            srcs = {}
            for k, c in enumerate(code):
                if c.kind == 'branch' and c.target in idx_of_label:
                    srcs.setdefault(idx_of_label[c.target], []).append(k)
            pads = {}
            for k, c in enumerate(code):
                if c.kind in ('label', 'branch', 'end', 'smem'): continue
                if c.kind == 'salu': continue
                best = 0
                stack = [(k - 1, 0)]
                seen = set()
                while stack:
                    j, dist = stack.pop()
                    if j < 0 or dist >= MAXW or (j, dist) in seen: continue
                    seen.add((j, dist))
                    p = code[j]
                    if p.kind == 'label':
                        for s in srcs.get(j, []): stack.append((s, dist))
                        if j - 1 >= 0 and not (code[j - 1].kind == 'end' or (code[j - 1].kind == 'branch' and code[j - 1].uncond)):
                            stack.append((j - 1, dist))
                        continue
                    n = need(p, c)
                    if n > dist: best = max(best, n - dist)
                    stack.append((j - 1, dist + p.states + pads.get(id(p), 0)))
                if best: pads[id(c)] = best
            if not pads: break
            new = []
            for l, i in items:
                if i is not None and id(i) in pads:
                    n = pads[id(i)]
                    inserted += n
                    while n > 0:
                        m = min(n, 16)
                        t = 's_nop %d' % (m - 1)
                        new.append((t, Ins(t))); n -= m
                new.append((l, i))
            items = new
        if verbose: print('nop states inserted:', inserted)
        out = []
        for l, i in items:
            if i is not None and i.kind == 'label': out.append(l)
            elif l.startswith('.') : out.append(l)
            else: out.append('    ' + l)
        return '\n'.join(out) + '\n'

def vr(base, n=1):
    return 'v%d' % base if n == 1 else 'v[%d:%d]' % (base, base + n - 1)
def ar(base, n=1):
    return 'a%d' % base if n == 1 else 'a[%d:%d]' % (base, base + n - 1)
def sr(base, n=1):
    return 's%d' % base if n == 1 else 's[%d:%d]' % (base, base + n - 1)
```

```python
from asmlib import *
from layout import *
from rec import srd, lane, sexpr
import math, struct

G_WS = 4
G_W = 8
G_X = 12
G_W2 = 16
G_OUT = 20
G_ID, G_WV, G_SEG = 28, 29, 30
G_T0, G_T1, G_T2 = 31, 32, 33
G_LW = 34
G_XO = 35
G_PO = 36
G_PS = 37
G_WSO, G_WST = 38, 39
G_SPIN = 41
G_C = 42
G_SEEN = 43
G_J, G_R = 44, 45
G_KMO, G_OAO, G_OBO, G_OUO = 46, 47, 48, 49
G_FO = 50
G_END, G_XMAX = 51, 52
G_SA, G_SB, G_FA, G_FB, G_FR, G_C2 = 53, 54, 55, 56, 57, 58
G_PTR = 72
G_WSP = 90
G_DBG = 92
WS = f's[{G_WS}:{G_WS+3}]'
V_L, V_T0, V_T1, V_T2, V_L16 = 1, 2, 3, 4, 5

def f32(x): return '0x%08x' % struct.unpack('<I', struct.pack('<f', x))[0]

class Gem:
    def __init__(self, a, sync=True, prof=False):
        self.a = a; self.sync = sync; self.prof = prof
    def L(self, dst, terms, add=None): lane(self.a, dst, V_T2, V_L, terms, add)
    def S(self, dst, terms, const=0): sexpr(self.a, dst, G_T2, terms, const)
    def spin_guard(self, lgive):
        a = self.a
        a(f's_add_u32 s{G_SPIN}, s{G_SPIN}, 1')
        a(f's_cmp_ge_u32 s{G_SPIN}, 0x200000')
        a(f's_cbranch_scc1 {lgive}')
    def keep(self, reg, cond):
        a = self.a
        a(cond)
        a(f'v_mov_b32 v{V_T2}, {OOB}')
        a(f'v_cndmask_b32 v{reg}, v{V_T2}, v{reg}, vcc')

    def mark(self, k):
        if not self.prof: return
        a = self.a
        a(f's_memrealtime s[{G_PTR+14}:{G_PTR+15}]')
        a('s_waitcnt lgkmcnt(0)')
        a(f's_mov_b32 s{94+k}, s{G_PTR+14}')
        if k in (2, 3):
            a(f's_memtime s[{G_PTR+14}:{G_PTR+15}]')
            a('s_waitcnt lgkmcnt(0)')
            a(f's_mov_b32 s{98+k}, s{G_PTR+14}')
    def acc(self, k):
        if not self.prof: return
        a = self.a
        a(f's_memtime s[{G_PTR+14}:{G_PTR+15}]')
        a('s_waitcnt lgkmcnt(0)')
        if k is not None:
            a(f's_sub_u32 s{G_PTR+15}, s{G_PTR+14}, s60')
            a(f's_add_u32 s{61+k}, s{61+k}, s{G_PTR+15}')
        a(f's_mov_b32 s60, s{G_PTR+14}')
    def dump(self):
        if not self.prof: return
        a = self.a
        self.S(G_T0, [(G_ID, 0, None, 7), (G_WV, 0, None, 5)], TRACE + 4 * MB)
        a(f'v_mov_b32 v{V_T1}, 0')
        for k in range(8):
            a(f'v_mov_b32 v{V_T0}, s{94+k}')
            a(f'buffer_store_dword v{V_T0}, v{V_T1}, {WS}, s{G_T0} offen offset:{4*k}')
        a(f's_add_u32 s{G_T0}, s{G_T0}, {MB}')
        for k in range(8):
            a(f'v_mov_b32 v{V_T0}, s{61+k}')
            a(f'buffer_store_dword v{V_T0}, v{V_T1}, {WS}, s{G_T0} offen offset:{4*k}')

    def setup(self):
        a = self.a
        a(f's_load_dwordx2 s[{G_WSP}:{G_WSP+1}], s[0:1], {K_WS}')
        a(f's_load_dwordx2 s[{G_DBG}:{G_DBG+1}], s[0:1], {K_DBG}')
        a(f'v_and_b32 v{V_L}, 63, v0')
        a(f'v_lshrrev_b32 v{V_T0}, 6, v0')
        a(f'v_readfirstlane_b32 s{G_WV}, v{V_T0}')
        a(f'v_lshlrev_b32 v{V_L16}, 4, v{V_L}')
        a(f's_mov_b32 s{G_SPIN}, 0')
        a(f's_lshl_b32 s{G_LW}, s{G_WV}, 10')
        a('s_waitcnt lgkmcnt(0)')
        srd(a, G_WS, G_WSP, WS_BYTES)
        if self.prof:
            for k in range(8): a(f's_mov_b32 s{94+k}, 0'); a(f's_mov_b32 s{61+k}, 0')
        self.mark(0)

    def load_weights(self, jobs):
        a = self.a
        LB = G_T1
        a(f's_lshl_b32 s{LB}, s{G_WV}, 15')
        pairs = []
        for (sd, vg, n, reads, so0, sst) in jobs:
            for p in range(n): pairs.append((sd, vg, reads(p), so0 if p == 0 else None, sst))
        NSL = 16
        def issue(p):
            sd, vg, _, so0, sst = pairs[p]
            for j in range(2):
                a(f's_add_u32 m0, s{LB}, {(p % NSL) * 2048 + j * 1024}')
                if so0 is not None and j == 0: a(f's_mov_b32 s{G_WSO}, {so0}')
                else: a(f's_add_u32 s{G_WSO}, s{G_WSO}, {sst}')
                a(f'buffer_load_dwordx4 v{vg}, s[{sd}:{sd+3}], s{G_WSO} offen lds')
        issued = 0
        for p in range(min(NSL, len(pairs))):
            issue(p); issued += 1
        for p in range(len(pairs)):
            a(f's_waitcnt vmcnt({2 * (issued - p - 1)})')
            for dst, va, off in pairs[p][2]:
                a(f'ds_read_b64_tr_b16 {dst}, v{va} offset:{(p % NSL) * 2048 + off}')
            if p >= 1 and issued < len(pairs):
                a(f's_waitcnt lgkmcnt({len(pairs[p][2])})')
                issue(issued); issued += 1
        a('s_waitcnt lgkmcnt(0)')

    def slab(self, LNEXT, **opt):
        a = self.a; L = self.L; S = self.S
        P = G_PTR
        V_G, V_TR, V_XG, V_ST, V_FL, V_FV = 6, 7, 8, 9, 10, 11
        V_RA = 12
        V_F = 32
        V_ACC = 64
        V_PK = 96
        lB = a.newlabel('sl_b'); lC = a.newlabel('sl_c')
        G_M = G_J
        a(f's_cmp_ge_u32 s{G_ID}, 96')
        a(f's_cbranch_scc1 {lB}')
        a(f's_lshr_b32 s{G_T0}, s{G_ID}, 5')
        a(f's_add_u32 s{G_T0}, s{G_T0}, 1')
        a(f's_cmp_eq_u32 s{G_T0}, 3')
        a(f's_cselect_b32 s{G_M}, 0, s{G_T0}')
        S(G_T0, [(G_M, 0, None, 3)], K_WQ)
        a(f's_load_dwordx2 s[{P}:{P+1}], s[0:1], s{G_T0}')
        a(f's_load_dwordx2 s[{P+2}:{P+3}], s[0:1], {K_AX}')
        a(f's_mov_b32 s{P+4}, {8*MB}')
        a(f's_mov_b32 s{G_WST}, 8192')
        S(G_T0, [(G_ID, 0, 5, 8)])
        S(G_PO, [(G_M, 0, None, 24), (G_ID, 0, 5, 13)], PA)
        a(f's_mov_b32 s{G_PS}, {256*1024}')
        S(G_FO, [(G_ID, 0, 5, 7), (G_M, 0, None, 2)], FLG + F_SLA)
        a(f's_branch {lC}')
        a.label(lB)
        a(f's_sub_u32 s{G_T1}, s{G_ID}, 96')
        a(f's_lshr_b32 s{G_M}, s{G_T1}, 3')
        a(f's_load_dwordx2 s[{P}:{P+1}], s[0:1], {K_WQKV}')
        a(f's_load_dwordx2 s[{P+2}:{P+3}], s[0:1], {K_BX}')
        a(f's_mov_b32 s{P+4}, {6*MB}')
        a(f's_mov_b32 s{G_WST}, 6144')
        S(G_T0, [(G_T1, 0, None, 8)])
        S(G_PO, [(G_M, 0, None, 22), (G_T1, 0, 3, 13)], PB)
        a(f's_mov_b32 s{G_PS}, {64*1024}')
        S(G_FO, [(G_T1, 0, 3, 7), (G_M, 0, None, 2)], FLG + F_SLB)
        a.label(lC)
        a('s_waitcnt lgkmcnt(0)')
        if self.sync:
            li = a.newlabel('sl_i')
            a(f's_cmp_lg_u32 s{G_WV}, 0')
            a(f's_cbranch_scc1 {li}')
            a(f'v_mov_b32 v{V_T0}, 0')
            a('s_mov_b64 exec, 1')
            a(f'buffer_store_dword v{V_T0}, v{V_T0}, {WS}, s{G_FO} offen sc1')
            self.arrive()
            a.label(li)
        srd(a, G_W, P, f's{P+4}')
        srd(a, G_X, P + 2, 4 * MB)
        a(f'v_lshrrev_b32 v{V_T0}, 2, v{V_L}')
        a(f'v_mul_lo_u32 v{V_G}, v{V_T0}, s{G_WST}')
        S(G_T0, [(G_T0, 0, None, 0), (G_WV, 0, None, 6)])
        L(V_T0, [(0, 2, 4)], f's{G_T0}')
        a(f'v_add_u32 v{V_G}, v{V_G}, v{V_T0}')
        a(f's_lshl_b32 s{G_WST}, s{G_WST}, 4')
        a(f's_mov_b32 s{G_SEG}, 0')
        a(f's_mov_b32 s{G_END}, {NSEG}')
        a(f's_mov_b32 s{G_XMAX}, {63*65536}')
        self.stream(LNEXT, [0, 1], **opt)

    def stream(self, LNEXT, variants, RD=6):
        a = self.a; L = self.L; S = self.S
        V_G, V_TR, V_XG, V_ST, V_FL, V_FV = 6, 7, 8, 9, 10, 11
        V_RA = 12
        V_F = 32
        V_ACC = 64
        V_PK = 96
        G_M = G_J
        ob = 2 in variants
        a(f's_lshl_b32 s{G_T0}, s{G_WV}, 15')
        if ob:
            L(V_TR, [(4, 2, 9), (2, 2, 6), (0, 2, 4)], f's{G_T0}')
        else:
            L(V_TR, [(4, 2, 9), (2, 2, 6), (1, 1, 5), (0, 1, 3)], f's{G_T0}')
        eo = 8 if ob else 16
        def wreads(p):
            return [(f'a[{8*p+4*et+2*q}:{8*p+4*et+2*q+1}]', V_TR, et * eo + q * 256) for et in range(2) for q in range(2)]
        self.load_weights([(G_W, V_G, 32, wreads, '0', f's{G_WST}')])
        self.mark(4 if ob else 1)
        S(G_T0, [(G_WV, 1, 1, 2)])
        L(V_T0, [(4, 2, 0)], f's{G_T0}')
        a(f'v_and_b32 v{V_T1}, 7, v{V_L}')
        a(f'v_xor_b32 v{V_T0}, v{V_T0}, v{V_T1}')
        a(f's_lshl_b32 s{G_T0}, s{G_WV}, 14')
        L(V_XG, [(3, 3, 11)], f's{G_T0}')
        a(f'v_lshl_add_u32 v{V_XG}, v{V_T0}, 4, v{V_XG}')
        L(V_T0, [(1, 3, 0)])
        a(f'v_lshrrev_b32 v{V_T1}, 4, v{V_L}')
        a(f'v_xor_b32 v{V_T0}, v{V_T0}, v{V_T1}')
        L(V_T1, [(3, 1, 11), (0, 3, 7)])
        for j in range(2):
            a(f'v_xor_b32 v{V_RA+j}, {4*j}, v{V_T0}')
            a(f'v_lshl_add_u32 v{V_RA+j}, v{V_RA+j}, 4, v{V_T1}')
            a(f'v_add_u32 v{V_RA+2+j}, 65536, v{V_RA+j}')
        if ob:
            a(f's_lshl_b32 s{G_T0}, s{G_WV}, 6')
            L(V_ST, [(3, 1, 16), (0, 3, 12), (4, 2, 4)], f's{G_T0}')
            self.wait_dbg(D_INIT, NWG)
            self.wait_lines(F_ATB, f's{G_END}')
        else:
            a(f's_lshl_b32 s{G_T0}, s{G_WV}, 11')
            L(V_ST, [(4, 2, 9), (3, 1, 8), (0, 3, 4)], f's{G_T0}')
            a(f'v_mov_b32 v{V_FL}, s{G_FO}')
            a(f's_cmp_eq_u32 s{G_WV}, 0')
            self.keep(V_FL, 's_cselect_b64 vcc, 1, 0')
            a(f'v_mov_b32 v{V_FV}, 0')
        a(f's_lshl_b32 s{G_XO}, s{G_SEG}, 16')
        a(f's_sub_u32 s{G_PO}, s{G_PO}, s{G_PS}')
        a('s_barrier')
        XS = f's[{G_X}:{G_X+3}]'
        SC = ' sc1' if ob else ''
        def dma(u, i, part=2):
            kb = (u & 1) * 8 + i
            if part != 1: a(f's_add_u32 m0, s{G_LW}, {(u >> 1) * 65536 + kb * 4096 - kb * 128}')
            if part != 0: a(f'buffer_load_dwordx4 v{V_XG}, {XS}, s{G_XO} offen offset:{kb*128}{SC} lds')
        for u in range(3):
            for i in range(8 if u < 2 else 4): dma(u, i)
            if u == 1: a(f's_add_u32 s{G_XO}, s{G_XO}, 65536')
        a('s_waitcnt vmcnt(12)')
        a('s_barrier')
        if not ob: self.mark(2)
        def rd(T):
            T %= 128
            p, t = T >> 6, T & 63
            ks, tt = t >> 1, t & 1
            a(f'ds_read_b128 {vr(V_F+4*(T%8),4)}, v{V_RA+2*p+(ks&1)} offset:{(ks>>1)*4096+tt*1024}')
        def epi(p, k, var):
            A = V_ACC + 16 * p
            if k < 8:
                o, inn, h = k >> 2, (k >> 1) & 1, k & 1
                tt, et = (inn, o) if var == 1 else (o, inn)
                r = A + 4 * (2 * tt + et) + 2 * h
                a(f'v_cvt_pk_bf16_f32 v{V_PK+k}, v{r}, v{r+1}')
            elif k == 8:
                if ob:
                    a(f'buffer_store_dwordx4 {vr(V_PK,4)}, v{V_ST}, s[{G_OUT}:{G_OUT+3}], s{G_PO} offen')
                    a(f's_add_u32 s{G_T0}, s{G_PO}, 32768')
                else: a(f'buffer_store_dwordx4 {vr(V_PK,4)}, v{V_ST}, {WS}, s{G_PO} offen sc1')
            elif k == 9:
                if ob: a(f'buffer_store_dwordx4 {vr(V_PK+4,4)}, v{V_ST}, s[{G_OUT}:{G_OUT+3}], s{G_T0} offen')
                else: a(f'buffer_store_dwordx4 {vr(V_PK+4,4)}, v{V_ST}, {WS}, s{G_PO} offen offset:128 sc1')
                a(f's_add_u32 s{G_PO}, s{G_PO}, s{G_PS}')
        for T in range(RD): rd(T)
        lV = a.newlabel('sl_v'); lE = a.newlabel('sl_e')
        a(f'v_add_u32 v{V_ST}, {OOB}, v{V_ST}')
        if len(variants) > 1:
            a(f's_cmp_eq_u32 s{G_M}, 2')
            a(f's_cbranch_scc1 {lV}')
        for var in variants:
            if var == 1: a.label(lV)
            lp = a.newlabel('sl_loop')
            a.label(lp)
            for T in range(128):
                p, t = T >> 6, T & 63
                u = T >> 5; tu = T & 31
                if tu == 16:
                    a('s_waitcnt vmcnt(8)')
                    a('s_barrier')
                if T % 2 == 0: a(f's_waitcnt lgkmcnt({RD-2})')
                A = V_ACC + 16 * p
                x = vr(V_F + 4 * (T % 8), 4)
                ks, tt = t >> 1, t & 1
                ph = (tu - 16) % 32
                isd = ph % 4 == 1
                if isd:
                    un = (u + 3) if tu >= 16 else (u + 2)
                    i = ph // 4
                for et in range(2):
                    w = f'a[{8*ks+4*et}:{8*ks+4*et+3}]'
                    D = vr(A + 4 * (2 * tt + et), 4)
                    c = D if ks else '0'
                    if var == 1: a(f'v_mfma_f32_16x16x32_bf16 {D}, {x}, {w}, {c}')
                    else: a(f'v_mfma_f32_16x16x32_bf16 {D}, {w}, {x}, {c}')
                    if et == 0:
                        rd(T + RD)
                        if isd: dma(un % 4, i, 0)
                    elif isd: dma(un % 4, i, 1)
                if isd and (un & 1) == 1 and i == 7:
                    a(f's_add_u32 s{G_XO}, s{G_XO}, 65536')
                    a(f's_min_u32 s{G_XO}, s{G_XO}, s{G_XMAX}')
                if tu == 18 and (u & 1) and not ob:
                    a(f'buffer_store_dword v{V_FV}, v{V_FL}, {WS}, 0 offen sc1')
                    a(f'v_add_u32 v{V_FV}, 1, v{V_FV}')
                if 4 <= t < 12: epi(p ^ 1, t - 4, var)
                if t == 11: epi(p ^ 1, 8, var)
                if t == 15: epi(p ^ 1, 9, var)
                if t == 20 and p == 0: a(f'v_and_b32 v{V_ST}, 0xffffff, v{V_ST}')
            a(f's_add_u32 s{G_SEG}, s{G_SEG}, 2')
            a(f's_cmp_lt_u32 s{G_SEG}, s{G_END}')
            a(f's_cbranch_scc1 {lp}')
            for k in range(8): epi(1, k, var)
            a(f's_branch {lE}')
        a.label(lE)
        for k in (8, 9): epi(1, k, 0)
        a('s_waitcnt vmcnt(0) lgkmcnt(0)')
        a('s_barrier')
        if not ob: a(f'buffer_store_dword v{V_FV}, v{V_FL}, {WS}, 0 offen sc1')
        self.mark(5 if ob else 3)
        a(f's_branch {LNEXT}')

    def outb(self, LNEXT):
        a = self.a; L = self.L; S = self.S
        P = G_PTR
        V_G = 6
        a(f's_load_dwordx4 s[{P}:{P+3}], s[0:1], {K_BWO}')
        a(f's_add_u32 s{P+4}, s{G_WSP}, {OB}')
        a(f's_addc_u32 s{P+5}, s{G_WSP+1}, 0')
        a(f's_sub_u32 s{G_T1}, s{G_ID}, 96')
        a(f's_lshr_b32 s{G_T1}, s{G_T1}, 3')
        a(f's_mul_i32 s{G_SEG}, s{G_T1}, 22')
        a(f's_add_u32 s{G_END}, s{G_SEG}, 22')
        a(f's_min_u32 s{G_END}, s{G_END}, {NSEG}')
        a(f's_sub_u32 s{G_XMAX}, s{G_END}, 1')
        a(f's_lshl_b32 s{G_XMAX}, s{G_XMAX}, 16')
        a('s_waitcnt lgkmcnt(0)')
        srd(a, G_W, P, 2 * MB)
        srd(a, G_OUT, P + 2, 8 * MB)
        srd(a, G_X, P + 4, 4 * MB)
        S(G_T0, [(G_ID, 0, 3, 8), (G_WV, 0, None, 6)])
        L(V_G, [(2, 4, 11), (0, 2, 4)], f's{G_T0}')
        a(f's_mov_b32 s{G_WST}, 32768')
        S(G_PO, [(G_SEG, 0, None, 17), (G_ID, 0, 3, 8)], 2048)
        a(f's_mov_b32 s{G_PS}, 131072')
        self.stream(LNEXT, [2])

    def wait_flags_s(self, off_sreg, nwords, idx, target, seen=None):
        a = self.a
        if not self.sync: return
        T = G_PTR
        lp = a.newlabel('g_wf'); ld = a.newlabel('g_wfd')
        if seen is not None:
            a(f's_cmp_ge_u32 s{seen}, {target}')
            a(f's_cbranch_scc1 {ld}')
        a.label(lp)
        a(f's_load_dwordx4 s[{T}:{T+3}], s[{G_WSP}:{G_WSP+1}], s{off_sreg} glc')
        self.spin_guard(ld)
        a('s_waitcnt lgkmcnt(0)')
        m = seen if seen is not None else T + 4
        a(f's_min_u32 s{m}, s{T+idx[0]}, s{T+idx[1]}')
        for i in idx[2:]: a(f's_min_u32 s{m}, s{m}, s{T+i}')
        a(f's_cmp_ge_u32 s{m}, {target}')
        a(f's_cbranch_scc1 {ld}')
        a('s_sleep 4')
        a(f's_branch {lp}')
        a.label(ld)
        a('s_waitcnt lgkmcnt(0)')

    def arrive(self):
        a = self.a
        a(f'v_mov_b32 v{V_T0}, 0')
        a(f'v_mov_b32 v{V_T1}, 1')
        a('s_waitcnt vmcnt(0)')
        a(f'global_atomic_add v{V_T0}, v{V_T1}, s[{G_DBG}:{G_DBG+1}] offset:{4*D_INIT} sc1')
        a('s_mov_b64 exec, -1')

    def wait_lines(self, fo, target, seen=None):
        a = self.a
        if not self.sync: return
        lp = a.newlabel('g_wl'); ld = a.newlabel('g_wld')
        self.L(V_T0, [(0, 5, 7)], FLG + fo)
        a.label(lp)
        a(f'buffer_load_dword v{V_T1}, v{V_T0}, {WS}, 0 offen sc1')
        self.spin_guard(ld)
        a('s_waitcnt vmcnt(0)')
        a(f'v_cmp_gt_u32 vcc, {target}, v{V_T1}')
        a(f's_cbranch_vccz {ld}')
        a('s_sleep 8')
        a(f's_branch {lp}')
        a.label(ld)
        a('s_waitcnt vmcnt(0)')

    def wait_dbg(self, word, target):
        a = self.a
        if not self.sync: return
        lp = a.newlabel('g_wd'); ld = a.newlabel('g_wdd')
        a(f'v_mov_b32 v{V_T0}, 0')
        a.label(lp)
        a(f'global_load_dword v{V_T1}, v{V_T0}, s[{G_DBG}:{G_DBG+1}] offset:{4*word} sc1')
        self.spin_guard(ld)
        a('s_waitcnt vmcnt(0)')
        a(f'v_cmp_le_u32 vcc, {target}, v{V_T1}')
        a(f's_cbranch_vccnz {ld}')
        a('s_sleep 4')
        a(f's_branch {lp}')
        a.label(ld)
        a('s_waitcnt vmcnt(0)')

    def softmax(self, regs, V_M, V_M2, V_SUM, G_C=G_C):
        a = self.a
        a(f'v_max3_f32 v{V_M}, v{regs[0]}, v{regs[1]}, v{regs[2]}')
        r = regs[3:]
        while len(r) >= 2:
            a(f'v_max3_f32 v{V_M}, v{V_M}, v{r[0]}, v{r[1]}'); r = r[2:]
        if r: a(f'v_max_f32 v{V_M}, v{V_M}, v{r[0]}')
        a(f'v_mov_b32 v{V_M2}, v{V_M}')
        a(f'v_permlane32_swap_b32 v{V_M}, v{V_M2}')
        a(f'v_max_f32 v{V_M}, v{V_M}, v{V_M2}')
        a(f'v_mul_f32 v{V_M}, s{G_C}, v{V_M}')
        for x in regs: a(f'v_fma_f32 v{x}, v{x}, s{G_C}, -v{V_M}')
        for x in regs: a(f'v_exp_f32 v{x}, v{x}')
        a(f'v_add_f32 v{V_SUM}, v{regs[0]}, v{regs[1]}')
        a(f'v_add_f32 v{V_M2}, v{regs[2]}, v{regs[3]}')
        for i in range(4, len(regs), 2):
            a(f'v_add_f32 v{V_SUM}, v{V_SUM}, v{regs[i]}')
            a(f'v_add_f32 v{V_M2}, v{V_M2}, v{regs[i+1]}')
        a(f'v_add_f32 v{V_SUM}, v{V_SUM}, v{V_M2}')
        a(f'v_mov_b32 v{V_M2}, v{V_SUM}')
        a(f'v_permlane32_swap_b32 v{V_SUM}, v{V_M2}')
        a(f'v_add_f32 v{V_SUM}, v{V_SUM}, v{V_M2}')
        a(f'v_rcp_f32 v{V_SUM}, v{V_SUM}')

    def att(self, LNEXT):
        a = self.a; L = self.L; S = self.S
        V_BL, V_BS, V_AL, V_KML, V_VML, V_D0, V_FLA, V_FLB = 6, 7, 8, 9, 10, 11, 12, 13
        V_M, V_M2, V_SUM = 14, 15, 26
        V_PP = 16
        V_PP = 28
        V_PM = 40
        V_PK = 44
        V_BC, V_BP, V_BA = 64, 80, 96
        V_SC, V_SP = 112, 128
        V_O = 144
        A_Q, A_K, A_KM, A_V, A_VM = 0, 32, 64, 96, 128
        B_Q, B_K, B_V, B_KP, B_VP = 160, 168, 176, 184, 192
        NEG = f32(-1e30)
        T = G_PTR
        a(f's_mov_b32 s{G_C}, {f32(128 ** -0.5 * math.log2(math.e))}')
        a(f's_mov_b32 s{G_C2}, {f32(32 ** -0.5 * math.log2(math.e))}')
        a(f's_sub_u32 s{G_T0}, s{G_ID}, 120')
        S(G_J, [(G_T0, 0, None, 2), (G_WV, 0, None, 0)])
        a(f's_lshl_b32 s{G_T0}, s{G_J}, 11')
        a(f'v_add_u32 v{V_BL}, s{G_T0}, v{V_L16}')
        L(V_KML, [(5, 1, 7), (0, 3, 4)], f's{G_T0}')
        a(f's_add_u32 s{G_T0}, s{G_T0}, {VM - KM}')
        L(V_VML, [(0, 5, 4), (5, 1, 3)], f's{G_T0}')
        a(f's_lshl_b32 s{G_T0}, s{G_J}, 13')
        a(f'v_add_u32 v{V_AL}, s{G_T0}, v{V_L16}')
        a(f's_lshl_b32 s{G_T0}, s{G_J}, 6')
        L(V_BS, [(0, 5, 11), (5, 1, 4)], f's{G_T0}')
        S(G_FA, [(G_J, 0, None, 7)], FLG + F_SLA)
        S(G_FB, [(G_J, 2, None, 7)], FLG + F_SLB)
        S(G_FR, [(G_J, 0, None, 7)], FLG + F_REC)
        S(G_T0, [(G_J, 0, None, 7)], FLG + F_ATA)
        a(f'v_mov_b32 v{V_FLA}, s{G_T0}')
        self.keep(V_FLA, 's_mov_b64 vcc, 1')
        a(f'v_add_u32 v{V_FLB}, {F_ATB - F_ATA}, v{V_FLA}')
        if self.sync:
            li = a.newlabel('at_i')
            a(f'v_mov_b32 v{V_T0}, 0')
            a(f'buffer_store_dword v{V_T0}, v{V_FLA}, {WS}, 0 offen sc1')
            a(f'buffer_store_dword v{V_T0}, v{V_FLB}, {WS}, 0 offen sc1')
            a('s_waitcnt vmcnt(0)')
            a('s_barrier')
            a(f's_cmp_lg_u32 s{G_WV}, 0')
            a(f's_cbranch_scc1 {li}')
            a('s_mov_b64 exec, 1')
            self.arrive()
            a.label(li)
        L(V_D0, [(0, 5, 0)])
        L(V_T1, [(5, 1, 2)])
        a(f'v_sub_u32 v{V_D0}, v{V_D0}, v{V_T1}')
        def bias(dst, add):
            a(f'v_mov_b32 v{V_M}, {NEG}')
            for j in range(16):
                a(f'v_add_u32 v{V_T1}, {add - (8*(j>>2)+(j&3))}, v{V_D0}')
                a(f'v_and_b32 v{V_T1}, 0xfffffff1, v{V_T1}')
                a(f'v_cmp_ne_u32 vcc, 0, v{V_T1}')
                a(f'v_cndmask_b32 v{dst+j}, 0, v{V_M}, vcc')
        bias(V_BC, 0)
        for j in range(16):
            a(f'v_cmp_gt_i32 vcc, {8*(j>>2)+(j&3)}, v{V_D0}')
            a(f'v_cndmask_b32 v{V_BA+j}, 0, v{V_M}, vcc')
        for j in range(16): a(f'v_mov_b32 v{V_BP+j}, {NEG}')
        for j in range(12): a(f'v_accvgpr_write_b32 a{B_KP+j}, 0')
        for j in range(16): a(f'v_accvgpr_write_b32 a{A_VM+j}, 0')
        for j in range(4): a(f'v_mov_b32 v{V_PM+j}, 0')
        a(f's_mov_b32 s{G_SA}, 0')
        a(f's_mov_b32 s{G_SB}, 0')
        self.wait_dbg(D_INIT, NWG)
        top = a.newlabel('at_top'); la = a.newlabel('at_a'); lb = a.newlabel('at_b'); lend = a.newlabel('at_end'); lnb = a.newlabel('at_nb')
        a.label(top)
        if self.sync:
            a(f's_load_dwordx4 s[{T}:{T+3}], s[{G_WSP}:{G_WSP+1}], s{G_FR} glc')
            a(f's_load_dwordx4 s[{T+4}:{T+7}], s[{G_WSP}:{G_WSP+1}], s{G_FA} glc')
            a(f's_load_dwordx4 s[{T+8}:{T+11}], s[{G_WSP}:{G_WSP+1}], s{G_FB} glc')
            a('s_waitcnt lgkmcnt(0)')
            for i in (1, 2, 3, 4, 5, 6): a(f's_min_u32 s{T}, s{T}, s{T+i}')
            for i in (9, 10): a(f's_min_u32 s{T+8}, s{T+8}, s{T+i}')
            a(f's_min_u32 s{T}, s{T}, {NSEG}')
            a(f's_min_u32 s{T+8}, s{T+8}, {NSEG}')
        else:
            a(f's_mov_b32 s{T}, {NSEG}'); a(f's_mov_b32 s{T+8}, {NSEG}')
        a(f's_cmp_lt_u32 s{G_SA}, s{T}')
        a(f's_cbranch_scc1 {la}')
        a(f's_cmp_lt_u32 s{G_SB}, s{T+8}')
        a(f's_cbranch_scc1 {lb}')
        a(f's_add_u32 s{G_T0}, s{G_SA}, s{G_SB}')
        a(f's_cmp_ge_u32 s{G_T0}, {2*NSEG}')
        a(f's_cbranch_scc1 {lend}')
        self.spin_guard(lend)
        a('s_sleep 2')
        a(f's_branch {top}')
        a.label(la)
        a(f's_lshl_b32 s{G_PO}, s{G_SA}, 18')
        S(G_KMO, [(G_SA, 0, None, 16)], KM)
        def ld8(dst, base):
            for t in range(8):
                if t % 4 == 0: a(f's_add_u32 s{G_T0}, s{G_PO}, {base + t*1024}')
                a(f'buffer_load_dwordx4 {ar(dst+4*t,4)}, v{V_AL}, {WS}, s{G_T0} offen offset:{(t&3)*1024} sc1')
        ld8(A_Q, PA); ld8(A_K, PA + PA_M)
        for t in range(8): a(f'buffer_load_dwordx4 {ar(A_KM+4*t,4)}, v{V_KML}, {WS}, s{G_KMO} offen offset:{t*256} sc1')
        ld8(A_V, PA + 2 * PA_M)
        for e in range(4): a(f'buffer_load_dwordx2 {ar(A_VM+4*e,2)}, v{V_VML}, {WS}, s{G_KMO} offen offset:{e*512} sc1')
        NL = 36
        for t in range(8):
            a(f's_waitcnt vmcnt({NL-9-t})')
            a(f'v_mfma_f32_32x32x16_bf16 {vr(V_SC,16)}, {ar(A_K+4*t,4)}, {ar(A_Q+4*t,4)}, {vr(V_SC if t else V_BA,16)}')
        for t in range(8):
            a(f's_waitcnt vmcnt({NL-17-t})')
            a(f'v_mfma_f32_32x32x16_bf16 {vr(V_SP,16)}, {ar(A_KM+4*t,4)}, {ar(A_Q+4*t,4)}, {vr(V_SP,16) if t else 0}')
        self.softmax([V_SC + j for j in range(16)] + [V_SP + j for j in range(4)], V_M, V_M2, V_SUM)
        for j in range(8): a(f'v_cvt_pk_bf16_f32 v{V_PP+j}, v{V_SC+2*j}, v{V_SC+2*j+1}')
        for j in range(2): a(f'v_cvt_pk_bf16_f32 v{V_PM+j}, v{V_SP+2*j}, v{V_SP+2*j+1}')
        a('s_waitcnt vmcnt(0)')
        def fin(e):
            O = V_O + 16 * e; PK = V_PK + 8 * (e & 1)
            for j in range(16): a(f'v_mul_f32 v{O+j}, v{O+j}, v{V_SUM}')
            for j in range(8): a(f'v_cvt_pk_bf16_f32 v{PK+j}, v{O+2*j}, v{O+2*j+1}')
            if e % 2 == 0: a(f's_add_u32 s{G_T0}, s{G_PO}, {OA + e*2048}')
            for t in range(2): a(f'buffer_store_dwordx4 {vr(PK+4*t,4)}, v{V_AL}, {WS}, s{G_T0} offen offset:{(e&1)*2048+t*1024} sc1')
        for e in range(4):
            O = vr(V_O + 16 * e, 16)
            a(f'v_mfma_f32_32x32x16_bf16 {O}, {ar(A_V+8*e,4)}, {vr(V_PP,4)}, 0')
            a(f'v_mfma_f32_32x32x16_bf16 {O}, {ar(A_V+8*e+4,4)}, {vr(V_PP+4,4)}, {O}')
            a(f'v_mfma_f32_32x32x16_bf16 {O}, {ar(A_VM+4*e,4)}, {vr(V_PM,4)}, {O}')
        for e in range(4): fin(e)
        a(f's_add_u32 s{G_SA}, s{G_SA}, 1')
        a(f'v_mov_b32 v{V_T0}, s{G_SA}')
        a('s_waitcnt vmcnt(0)')
        a(f'buffer_store_dword v{V_T0}, v{V_FLA}, {WS}, 0 offen sc1')
        a(f's_branch {top}')
        a.label(lb)
        S(G_PO, [(G_SB, 0, None, 16)], PB)
        for m, dst in enumerate((B_Q, B_K, B_V)):
            if m: a(f's_add_u32 s{G_PO}, s{G_PO}, {PB_M}')
            for t in range(2): a(f'buffer_load_dwordx4 {ar(dst+4*t,4)}, v{V_BL}, {WS}, s{G_PO} offen offset:{t*1024} sc1')
        S(G_OBO, [(G_SB, 0, None, 16)], OB)
        a('s_waitcnt vmcnt(4)')
        a(f'v_mfma_f32_32x32x16_bf16 {vr(V_SP,16)}, {ar(B_KP,4)}, {ar(B_Q,4)}, {vr(V_BP,16)}')
        a(f'v_mfma_f32_32x32x16_bf16 {vr(V_SP,16)}, {ar(B_KP+4,4)}, {ar(B_Q+4,4)}, {vr(V_SP,16)}')
        a('s_waitcnt vmcnt(2)')
        a(f'v_mfma_f32_32x32x16_bf16 {vr(V_SC,16)}, {ar(B_K,4)}, {ar(B_Q,4)}, {vr(V_BC,16)}')
        a(f'v_mfma_f32_32x32x16_bf16 {vr(V_SC,16)}, {ar(B_K+4,4)}, {ar(B_Q+4,4)}, {vr(V_SC,16)}')
        for j in range(8): a(f'v_accvgpr_mov_b32 a{B_KP+j}, a{B_K+j}')
        self.softmax([V_SP + 8 + j for j in range(8)] + [V_SC + j for j in range(16)], V_M, V_M2, V_SUM, G_C2)
        for j in range(8): a(f'v_cvt_pk_bf16_f32 v{V_PP+j}, v{V_SC+2*j}, v{V_SC+2*j+1}')
        for j in range(4): a(f'v_cvt_pk_bf16_f32 v{V_PP+8+j}, v{V_SP+8+2*j}, v{V_SP+8+2*j+1}')
        a('s_waitcnt vmcnt(0)')
        O = vr(V_O, 16)
        a(f'v_mfma_f32_32x32x16_bf16 {O}, {ar(B_V,4)}, {vr(V_PP,4)}, 0')
        a(f'v_mfma_f32_32x32x16_bf16 {O}, {ar(B_V+4,4)}, {vr(V_PP+4,4)}, {O}')
        a(f'v_mfma_f32_32x32x16_bf16 {O}, {ar(B_VP,4)}, {vr(V_PP+8,4)}, {O}')
        for j in range(4): a(f'v_accvgpr_mov_b32 a{B_VP+j}, a{B_V+4+j}')
        a(f's_cmp_lg_u32 s{G_SB}, 0')
        a(f's_cbranch_scc1 {lnb}')
        bias(V_BP, 32)
        a.label(lnb)
        for j in range(16): a(f'v_mul_f32 v{V_O+j}, v{V_O+j}, v{V_SUM}')
        for j in range(8): a(f'v_cvt_pk_bf16_f32 v{V_PK+j}, v{V_O+2*j}, v{V_O+2*j+1}')
        for t in range(2):
            for j in range(2): a(f'v_permlane32_swap_b32 v{V_PK+4*t+j}, v{V_PK+4*t+2+j}')
        for t in range(2): a(f'buffer_store_dwordx4 {vr(V_PK+4*t,4)}, v{V_BS}, {WS}, s{G_OBO} offen offset:{t*32} sc1')
        a(f's_add_u32 s{G_SB}, s{G_SB}, 1')
        a(f'v_mov_b32 v{V_T0}, s{G_SB}')
        a('s_waitcnt vmcnt(0)')
        a(f'buffer_store_dword v{V_T0}, v{V_FLB}, {WS}, 0 offen sc1')
        a(f's_branch {top}')
        a.label(lend)
        self.mark(3)
        a(f's_branch {LNEXT}')

    def out64(self, LNEXT, NF=16):
        a = self.a; L = self.L; S = self.S
        P = G_PTR
        V_G, V_TR, V_FA, V_RW, V_RR, V_OUT, V_FP = 6, 7, 8, 9, 10, 11, 12
        V_PK = 14
        V_LW = 16
        V_AC = 32
        V_F = 64
        V_W = 128
        RB = 131072
        a(f's_load_dwordx2 s[{P}:{P+1}], s[0:1], {K_WO}')
        a(f's_load_dwordx2 s[{P+2}:{P+3}], s[0:1], {K_OUT}')
        a(f's_and_b32 s{G_J}, s{G_ID}, 15')
        a(f's_lshr_b32 s{G_SEG}, s{G_ID}, 4')
        a('s_waitcnt lgkmcnt(0)')
        srd(a, G_W, P, 8 * MB)
        srd(a, G_OUT, P + 2, 8 * MB)
        S(G_T0, [(G_WV, 0, None, 21), (G_J, 0, None, 7)])
        L(V_G, [(2, 4, 11), (0, 2, 4)], f's{G_T0}')
        a(f's_lshl_b32 s{G_T0}, s{G_WV}, 15')
        L(V_TR, [(5, 1, 8), (2, 2, 6), (4, 1, 5), (0, 2, 3)], f's{G_T0}')
        def rdA(p): return [(f'a[{8*p+4*j+2*q}:{8*p+4*j+2*q+1}]', V_TR, j * 1024 + q * 512) for j in range(2) for q in range(2)]
        def rdV(p): return [(f'v[{V_W+8*p+4*j+2*q}:{V_W+8*p+4*j+2*q+1}]', V_TR, j * 1024 + q * 512) for j in range(2) for q in range(2)]
        self.load_weights([(G_W, V_G, 32, rdA, '0', '32768'), (G_W, V_G, 16, rdV, '64', '65536'), (G_W, V_G, 16, lambda p: [], str(64 + 32768), '65536')])
        self.mark(4)
        a(f's_lshl_b32 s{G_T0}, s{G_WV}, 16')
        a(f'v_add_u32 v{V_FA}, s{G_T0}, v{V_L16}')
        S(G_T0, [(G_WV, 0, None, 13)], RB)
        a(f'v_add_u32 v{V_RW}, s{G_T0}, v{V_L16}')
        S(G_T0, [(G_WV, 0, None, 7)], RB)
        L(V_RR, [(1, 2, 10), (0, 1, 9), (3, 3, 4)], f's{G_T0}')
        S(G_T0, [(G_WV, 0, None, 15), (G_J, 0, None, 7)])
        L(V_OUT, [(3, 3, 12), (0, 3, 3)], f's{G_T0}')
        self.wait_dbg(D_INIT, NWG)
        lp = a.newlabel('o6_loop')
        self.acc(None)
        a.label(lp)
        a(f's_add_u32 s{G_XO}, s{G_SEG}, 1')
        self.wait_lines(F_ATA, f's{G_XO}')
        self.acc(0)
        S(G_OAO, [(G_SEG, 0, None, 18)], OA)
        a(f's_lshl_b32 s{G_OUO}, s{G_SEG}, 17')
        def ldA(t):
            if t % 4 == 0: a(f's_add_u32 s{G_T0}, s{G_OAO}, {t*1024}')
            a(f'buffer_load_dwordx4 {vr(V_F+4*(t%NF),4)}, v{V_FA}, {WS}, s{G_T0} offen offset:{(t&3)*1024} sc1')
        def ldW(i):
            for q in range(2):
                r = V_LW + 4 * (i % 4) + 2 * q
                a(f'ds_read_b64_tr_b16 v[{r}:{r+1}], v{V_TR} offset:{i*1024+q*512}')
        for t in range(NF): ldA(t)
        for i in range(3): ldW(i)
        for t in range(64):
            a(f's_waitcnt vmcnt({min(NF-1, 63-t) if t == 0 else min(NF-2, 63-t)})')
            x = vr(V_F + 4 * (t % NF), 4)
            a(f'v_mfma_f32_32x32x16_bf16 {vr(V_AC,16)}, a[{4*t}:{4*t+3}], {x}, {vr(V_AC,16) if t else 0}')
            if t >= 1 and t - 1 + NF < 64: ldA(t - 1 + NF)
            if t & 1:
                i = t >> 1
                a(f's_waitcnt lgkmcnt({2*min(2, 31-i)})')
                w = vr(V_LW + 4 * (i % 4), 4)
            else: w = vr(V_W + 4 * (t >> 1), 4)
            a(f'v_mfma_f32_32x32x16_bf16 {vr(V_AC+16,16)}, {w}, {x}, {vr(V_AC+16,16) if t else 0}')
            if (t & 1) and (t >> 1) + 3 < 32: ldW((t >> 1) + 3)
        self.acc(1)
        a('s_barrier')
        for b in range(8): a(f'ds_write_b128 v{V_RW}, {vr(V_AC+4*b,4)} offset:{b*1024}')
        a('s_waitcnt lgkmcnt(0)')
        a('s_barrier')
        for h in range(2):
            for w in range(4): a(f'ds_read_b128 {vr(V_F+16*h+4*w,4)}, v{V_RR} offset:{h*4096+w*8192}')
        for h in range(2):
            R = V_F + 16 * h
            a(f's_waitcnt lgkmcnt({4-4*h})')
            for j in (0, 2): a(f'v_pk_add_f32 {vr(R+j,2)}, {vr(R+j,2)}, {vr(R+4+j,2)}')
            for j in (0, 2): a(f'v_pk_add_f32 {vr(R+8+j,2)}, {vr(R+8+j,2)}, {vr(R+12+j,2)}')
            for j in (0, 2): a(f'v_pk_add_f32 {vr(R+j,2)}, {vr(R+j,2)}, {vr(R+8+j,2)}')
            for j in range(2): a(f'v_cvt_pk_bf16_f32 v{V_LW+2*h+j}, v{R+2*j}, v{R+2*j+1}')
            a(f'buffer_store_dwordx2 {vr(V_LW+2*h,2)}, v{V_OUT}, s[{G_OUT}:{G_OUT+3}], s{G_OUO} offen offset:{h*64}')
        self.acc(2)
        a(f's_add_u32 s{G_SEG}, s{G_SEG}, 6')
        a(f's_cmp_lt_u32 s{G_SEG}, {NSEG}')
        a(f's_cbranch_scc1 {lp}')
        self.mark(5)
        a(f's_branch {LNEXT}')
```

```python
MB = 1 << 20
NSEG = 64
PA = 0
PA_M = 16 * MB
PB = 48 * MB
PB_M = 4 * MB
OA = 64 * MB
OB = 80 * MB
KM = 84 * MB
VM = 88 * MB
SCB = 92 * MB
FLG = 110 * MB
HOFF = 112 * MB
NPAGE = 9
SLOT = 256 * 1024
TRACE = 140 * MB
WS_BYTES = 268435456
K_AX, K_MEM0, K_WQ, K_WK, K_WV, K_WO, K_SEG, K_BX, K_WQKV, K_BWO, K_OUT, K_DBG, K_WS = [8 * i for i in range(13)]
OOB = 0x7f000000
D_INIT = 0
D_PAR = 16
F_SLA = 0
F_SLB = 4096
F_REC = 8192
F_ATA = 12288
F_ATB = 16384
NWG = 256
```

```python
from asmlib import *
from layout import *
import math, struct

def srd(a, s, ptr, nbytes):
    a(f's_mov_b32 s{s}, s{ptr}')
    a(f's_and_b32 s{s+1}, s{ptr+1}, 0xffff')
    a(f's_mov_b32 s{s+2}, {nbytes}')
    a(f's_mov_b32 s{s+3}, 0x00020000')

def lane(a, dst, tmp, VL, terms, add=None):
    first = True
    for sh, w, out in terms:
        t = dst if first else tmp
        if sh + w >= 6: a(f'v_lshrrev_b32 v{t}, {sh}, v{VL}')
        elif sh == 0: a(f'v_and_b32 v{t}, {(1 << w) - 1}, v{VL}')
        else: a(f'v_bfe_u32 v{t}, v{VL}, {sh}, {w}')
        if first:
            if out: a(f'v_lshlrev_b32 v{dst}, {out}, v{dst}')
        else: a(f'v_lshl_add_u32 v{dst}, v{tmp}, {out}, v{dst}')
        first = False
    if add is not None: a(f'v_add_u32 v{dst}, {add}, v{dst}')

def sexpr(a, dst, tmp, terms, const=0):
    first = True
    for sreg, sh, w, out in terms:
        t = dst if first else tmp
        src = sreg
        if sh: a(f's_lshr_b32 s{t}, s{src}, {sh}'); src = t
        if w is not None: a(f's_and_b32 s{t}, s{src}, {(1 << w) - 1}'); src = t
        if out: a(f's_lshl_b32 s{t}, s{src}, {out}'); src = t
        if first:
            if src != dst: a(f's_mov_b32 s{dst}, s{src}')
        else: a(f's_add_u32 s{dst}, s{dst}, s{src}')
        first = False
    if const: a(f's_add_u32 s{dst}, s{dst}, {const}')

S_PFL = 3
S_WS = 4
S_WQ = 8
S_WO = 20
S_M0 = 24
S_RID, S_H, S_I, S_W, S_STEP = 28, 29, 30, 31, 32
S_SL0, S_SL1, S_SL2 = 33, 34, 35
S_SC, S_KV = 36, 37
S_T0, S_T1, S_T2 = 38, 39, 40
S_SPIN = 41
S_MLO8 = 42
S_MHI = 44
S_MHI8 = 46
S_PAR = 48
S_HB = 49
S_C = 50
S_KXB = 51
S_TS = 52
S_TAG = 54
S_MBO = 55
S_MK = 56
S_PTR = 72
S_NSO = 88
S_WSP = 90
S_DBG = 92
S_SEEN, S_FKV, S_FAST, S_FRO = 94, 95, 96, 97

L_QK = 0
L_V = 10240
L_OP = 14336
L_X = 15360
L_KX = 16384

def gen_rec(a, prof=0, nsteps=NSEG, sync=False, DA=0, DB=0, DC=0, PLAINB=1, TPOS=1, TA=0, NEAR=1, ILA=0, ILC=0, SEP=0):
    V_L, V_T0, V_T1, V_T2 = 1, 2, 3, 4
    V_IDX = 5
    V_MEMST, V_AOFF, V_COFF, V_COFF2 = 6, 7, 12, 13
    V_FF = 8
    V_QKW, V_QKW2, V_L16, V_VW, V_QKR, V_SCST, V_SCST2, V_SCLM = 14, 15, 16, 17, 18, 19, 20, 21
    V_SCL = [22, 23, 24]
    V_VR, V_VR2, V_OST, V_OPW, V_OPR, V_PFG, V_CK = 25, 26, 27, 28, 29, 30, 31
    V_ONE = 32
    V_MA = 36
    V_VX, V_KX = 52, 60
    V_D = 68
    V_S = 68
    V_PTG, V_NSA, V_SCCL, V_OCL = 92, 93, 94, 95
    V_X = 96
    V_R = 100
    V_TKST, V_TKSA, V_TG, V_M, V_M2 = 132, 133, 134, 135, 136
    V_VM = 138
    V_ZZ = 144
    V_TR = 148
    V_P = 156
    V_LD = 164
    V_NS = 180
    V_GQ, V_GO, V_TRQ, V_TRO = 184, 185, 186, 187
    V_FRA, V_FRV = 188, 189
    TRMAP = {0: 0, 2: 1, 5: 3, 8: 4, 10: 5, 'b': 2, 7: 6, 11: 7}
    def stamp(k):
        if not prof: return
        e = TRMAP[k]
        if prof == 2 and k not in (5, 10, 7, 11): return
        lsk = a.newlabel('st')
        a(f's_cmp_eq_u32 s{S_W}, 3')
        a(f's_cbranch_scc1 {lsk}')
        a(f's_memrealtime s[{S_TS}:{S_TS+1}]')
        a('s_waitcnt lgkmcnt(0)')
        if k in (10, 11):
            a(f's_sub_u32 s{S_TS+1}, s{S_STEP}, 1')
            a(f's_mov_b32 m0, s{S_TS+1}')
        else:
            a(f's_mov_b32 m0, s{S_STEP}')
        a(f's_lshl_b32 s{S_TS}, s{S_TS}, 8')
        a(f's_and_b32 s{S_TS+1}, s{S_SPIN}, 0xff')
        a(f's_or_b32 s{S_TS}, s{S_TS}, s{S_TS+1}')
        a(f'v_writelane_b32 v{V_TR+e}, s{S_TS}, m0')
        a.label(lsk)
    def L(dst, terms, add=None): lane(a, dst, V_T2, V_L, terms, add)
    def S(dst, terms, const=0): sexpr(a, dst, S_T2, terms, const)
    def spin_guard(lgive):
        a(f's_add_u32 s{S_SPIN}, s{S_SPIN}, 1')
        a(f's_cmp_ge_u32 s{S_SPIN}, 0x80000')
        a(f's_cbranch_scc1 {lgive}')
    def keep(reg, cond):
        a(cond)
        a(f'v_mov_b32 v{V_T2}, {OOB}')
        a(f'v_cndmask_b32 v{reg}, v{V_T2}, v{reg}, vcc')

    P = S_PTR
    a(f's_load_dwordx2 s[{P}:{P+1}], s[0:1], {K_MEM0}')
    a(f's_load_dwordx4 s[{P+4}:{P+7}], s[0:1], {K_WQ}')
    a(f's_load_dwordx4 s[{P+8}:{P+11}], s[0:1], {K_WV}')
    a(f's_load_dwordx2 s[{S_WSP}:{S_WSP+1}], s[0:1], {K_WS}')
    a(f's_load_dwordx2 s[{S_DBG}:{S_DBG+1}], s[0:1], {K_DBG}')
    a(f'v_and_b32 v{V_L}, 63, v0')
    a(f'v_lshrrev_b32 v{V_T0}, 6, v0')
    a(f'v_readfirstlane_b32 s{S_W}, v{V_T0}')
    a(f's_lshr_b32 s{S_H}, s{S_RID}, 2')
    a(f's_and_b32 s{S_I}, s{S_RID}, 3')
    a(f's_mov_b32 s{S_SPIN}, 0')
    a('s_waitcnt lgkmcnt(0)')
    srd(a, S_M0, P, 16384)
    srd(a, S_WQ, P + 4, 8 * MB)
    srd(a, S_WQ + 4, P + 6, 8 * MB)
    srd(a, S_WQ + 8, P + 8, 8 * MB)
    srd(a, S_WO, P + 10, 8 * MB)
    srd(a, S_WS, S_WSP, WS_BYTES)
    WS = f's[{S_WS}:{S_WS+3}]'
    a(f's_sub_u32 s{S_HB}, 0, s{S_WSP}')
    a(f's_and_b32 s{S_HB}, s{S_HB}, {2*MB-1}')
    a(f's_add_u32 s{S_HB}, s{S_HB}, {HOFF}')

    lsk = a.newlabel('rec_cal')
    a(f's_cmp_lg_u32 s{S_W}, 3')
    a(f's_cbranch_scc1 {lsk}')
    a(f's_cmp_ge_u32 s{S_RID}, {NPAGE}')
    a(f's_cbranch_scc1 {lsk}')
    S(S_T0, [(S_RID, 0, None, 21), (S_HB, 0, None, 0)], 15 * 16384)
    a(f's_add_u32 s{S_T1}, s{S_T0}, 8192')
    a(f's_mov_b32 s{P}, -1')
    a(f's_mov_b32 s{P+1}, -1')
    for r in range(5):
        for k in range(2):
            a(f's_memtime s[{P+4}:{P+5}]')
            a('s_waitcnt lgkmcnt(0)')
            a(f's_load_dword s{P+8}, s[{S_WSP}:{S_WSP+1}], s{S_T0+k} glc')
            a('s_waitcnt lgkmcnt(0)')
            a(f's_memtime s[{P+6}:{P+7}]')
            a('s_waitcnt lgkmcnt(0)')
            a(f's_sub_u32 s{P+6}, s{P+6}, s{P+4}')
            a(f's_min_u32 s{P+k}, s{P+k}, s{P+6}')
    a(f's_cmp_lt_u32 s{P+1}, s{P}')
    if NEAR == 1: a(f's_cselect_b32 s{S_T0}, 2, 1')
    else: a(f's_cselect_b32 s{S_T0}, 1, 2')
    a(f'v_mov_b32 v{V_T0}, s{S_T0}')
    S(S_T1, [(S_RID, 0, None, 2)], 4 * D_PAR)
    a(f'v_mov_b32 v{V_T1}, s{S_T1}')
    a('s_mov_b64 exec, 1')
    a(f'global_store_dword v{V_T1}, v{V_T0}, s[{S_DBG}:{S_DBG+1}] sc1')
    a('s_mov_b64 exec, -1')
    a('s_waitcnt vmcnt(0)')
    a.label(lsk)

    S(S_T0, [(S_W, 0, None, 21), (S_RID, 0, None, 6)])
    L(V_GQ, [(2, 4, 13), (0, 2, 4)], f's{S_T0}')
    S(S_T0, [(S_W, 0, None, 21), (S_RID, 1, None, 5)])
    L(V_GO, [(1, 5, 11), (0, 1, 4)], f's{S_T0}')
    S_LB = S_T1
    a(f's_lshl_b32 s{S_LB}, s{S_W}, 15')
    L(V_TRQ, [(4, 2, 9), (2, 2, 6), (0, 2, 3)], f's{S_LB}')
    L(V_TRO, [(4, 2, 8), (2, 2, 5), (0, 2, 3)], f's{S_LB}')
    pairs = []
    def wq_reg(kb, tile): return ('a', (kb * 6 + tile) * 8)
    def wo_reg(kb):
        return ('a', 192 + kb * 8) if kb < 8 else ('v', 192 + (kb - 8) * 8)
    for kb in range(4):
        for hf32 in range(2):
            for m in range(3):
                k0 = kb * 64 + hf32 * 32
                ld = [(S_WQ + 4 * m, V_GQ, (k0 + 16 * j) * 8192) for j in range(2)]
                rd = []
                for t in range(2):
                    f, b = wq_reg(kb, m * 2 + t)
                    for q in range(2):
                        r0 = b + hf32 * 4 + q * 2
                        rd.append((f'{f}[{r0}:{r0+1}]', V_TRQ, t * 32 + q * 256))
                pairs.append((ld, rd))
    for kb in range(16):
        ld = [(S_WO, V_GO, (kb * 64 + 32 * j) * 2048) for j in range(2)]
        rd = []
        f, b = wo_reg(kb)
        for j in range(2):
            for q in range(2):
                r0 = b + j * 4 + q * 2
                rd.append((f'{f}[{r0}:{r0+1}]', V_TRO, j * 1024 + q * 128))
        pairs.append((ld, rd))
    NSL = 16
    def issue(p):
        ld, _ = pairs[p]
        for j, (sd, vo, so) in enumerate(ld):
            a(f's_add_u32 m0, s{S_LB}, {(p % NSL) * 2048 + j * 1024}')
            a(f's_mov_b32 s{S_T0}, {so}')
            a(f'buffer_load_dwordx4 v{vo}, s[{sd}:{sd+3}], s{S_T0} offen lds')
    issued = 0
    for p in range(NSL):
        issue(p); issued += 1
    for p in range(len(pairs)):
        a(f's_waitcnt vmcnt({2 * (issued - p - 1)})')
        for dst, va, off in pairs[p][1]:
            a(f'ds_read_b64_tr_b16 {dst}, v{va} offset:{(p % NSL) * 2048 + off}')
        if p >= 1 and issued < len(pairs):
            a('s_waitcnt lgkmcnt(4)')
            issue(issued); issued += 1
    a('s_waitcnt lgkmcnt(0)')

    L(V_T0, [(2, 1, 0)])
    a(f'v_mov_b32 v{V_T1}, 0xaaaa')
    a(f'v_mul_u32_u24 v{V_T0}, v{V_T0}, v{V_T1}')
    a(f'v_add_u32 v{V_IDX}, 0x4444, v{V_T0}')
    a(f'v_lshlrev_b32 v{V_L16}, 4, v{V_L}')
    BLK = 16384
    S(S_T0, [(S_RID, 6, None, 14), (S_RID, 0, 6, 7)], 8 * BLK)
    a(f'v_lshl_add_u32 v{V_MEMST}, v{V_L}, 2, s{S_T0}')
    S(S_T0, [(S_W, 1, None, 14), (S_W, 0, 1, 12)], 8 * BLK)
    a(f'v_add_u32 v{V_AOFF}, s{S_T0}, v{V_L16}')
    S(S_T0, [(S_RID, 0, 1, 16), (S_W, 0, None, 14)])
    a(f'v_add_u32 v{V_COFF}, s{S_T0}, v{V_L16}')
    a(f'v_add_u32 v{V_COFF2}, 4096, v{V_COFF}')
    a(f'v_lshrrev_b32 v{V_T0}, 5, v{V_L}')
    a(f'v_mul_u32_u24 v{V_T0}, 640, v{V_T0}')
    a(f'v_and_b32 v{V_T1}, 31, v{V_L}')
    a(f'v_lshl_add_u32 v{V_T0}, v{V_T1}, 2, v{V_T0}')
    a(f's_mul_i32 s{S_T0}, s{S_W}, 2560')
    a(f'v_add_u32 v{V_QKW}, s{S_T0}, v{V_T0}')
    a(f'v_add_u32 v{V_QKW2}, 1280, v{V_QKW}')
    S(S_T0, [(S_W, 0, None, 10)], L_V)
    a(f'v_add_u32 v{V_VW}, s{S_T0}, v{V_L16}')
    L(V_T0, [(5, 1, 6), (4, 1, 4)])
    a(f'v_and_b32 v{V_T1}, 15, v{V_L}')
    a(f'v_mul_u32_u24 v{V_T1}, 160, v{V_T1}')
    a(f'v_add_u32 v{V_QKR}, v{V_T0}, v{V_T1}')
    a(f's_lshl_b32 s{S_T0}, s{S_RID}, 11')
    a(f'v_add_u32 v{V_SCST}, s{S_T0}, v{V_L16}')
    L(V_SCST2, [(4, 1, 7), (0, 3, 4)], f's{S_T0}')
    for k in range(3):
        a(f's_add_u32 s{S_T1}, s{S_I}, {k+1}')
        S(S_T0, [(S_T1, 0, 2, 11), (S_H, 0, None, 13)])
        a(f'v_add_u32 v{V_SCL[k]}, s{S_T0}, v{V_L16}')
    a(f's_lshl_b32 s{S_T0}, s{S_H}, 13')
    L(V_SCLM, [(4, 2, 11), (0, 4, 4)], f's{S_T0}')
    E0 = [(3, 1, 8), (1, 1, 6), (2, 1, 5), (0, 1, 4)]
    L(V_VR, E0 + [(4, 2, 2)], L_V)
    a(f'v_add_u32 v{V_VR2}, 128, v{V_VR}')
    S(S_T0, [(S_RID, 0, None, 11), (S_W, 0, 1, 7)], PA + PA_M)
    L(V_T0, [(3, 1, 8), (0, 3, 4), (4, 1, 9), (5, 1, 10)], f's{S_T0}')
    a(f's_add_u32 s{S_T0}, s{S_T0}, {PA_M}')
    L(V_T1, E0 + [(4, 1, 9), (5, 1, 10)], f's{S_T0}')
    a(f's_cmp_lt_u32 s{S_W}, 2')
    a(f's_cselect_b64 vcc, -1, 0')
    a(f'v_cndmask_b32 v{V_PFG}, v{V_T1}, v{V_T0}, vcc')
    a(f's_lshl_b32 s{S_PFL}, s{S_W}, 10')
    S(S_T0, [(S_H, 3, None, 14), (S_H, 0, 3, 10), (S_I, 0, 1, 9), (S_I, 1, None, 7)])
    L(V_OST, [(2, 1, 16), (5, 1, 8), (4, 1, 6), (0, 2, 4)], f's{S_T0}')
    S(S_T1, [(S_W, 1, None, 16), (S_W, 0, 1, 8), (S_T0, 0, None, 0)])
    a(f'v_add_u32 v{V_OCL}, s{S_T1}, v{V_L16}')
    keep(V_OCL, f'v_cmp_gt_u32 vcc, 8, v{V_L}')
    S(S_T0, [(S_W, 0, None, 8)], L_OP)
    a(f'v_lshl_add_u32 v{V_OPW}, v{V_L}, 2, s{S_T0}')
    L(V_OPR, [(0, 4, 4), (4, 1, 3)], L_OP)
    a(f's_mul_i32 s{S_T1}, s{S_W}, 320')
    S(S_T0, [(S_RID, 0, None, 11), (S_T1, 0, None, 0)])
    a(f'v_add_u32 v{V_SCCL}, s{S_T0}, v{V_L16}')
    keep(V_SCCL, f'v_cmp_gt_u32 vcc, 20, v{V_L}')
    a(f's_mul_i32 s{S_T0}, s{S_W}, 3')
    a(f'v_min_u32 v{V_T0}, 2, v{V_L}')
    a(f'v_add_u32 v{V_T0}, s{S_T0}, v{V_T0}')
    a(f'v_min_u32 v{V_T0}, 9, v{V_T0}')
    S(S_T0, [(S_RID, 0, None, 11)], 128 * 2048)
    a(f'v_lshl_add_u32 v{V_PTG}, v{V_T0}, 7, s{S_T0}')
    lw = a.newlabel('rec_ns')
    a(f's_lshl_b32 s{S_T0}, s{S_RID}, 9')
    L(V_NSA, [(4, 2, 7), (0, 3, 4)], f's{S_T0}')
    a('s_mov_b32 vcc_lo, 0xff00ff00'); a('s_mov_b32 vcc_hi, 0xff00ff00')
    a(f's_cmp_eq_u32 s{S_W}, 1')
    a(f's_cbranch_scc1 {lw}')
    a(f's_add_u32 s{S_T0}, s{S_T0}, {VM - KM}')
    a(f'v_add_u32 v{V_NSA}, s{S_T0}, v{V_L16}')
    a('s_mov_b32 vcc_lo, -1'); a('s_mov_b32 vcc_hi, 0')
    a(f's_cmp_eq_u32 s{S_W}, 2')
    a(f's_cbranch_scc1 {lw}')
    S(S_T0, [(S_RID, 6, None, 14), (S_RID, 0, 6, 7)], 8 * BLK)
    a(f'v_add_u32 v{V_NSA}, s{S_T0}, v{V_L16}')
    a(f's_cmp_eq_u32 s{S_W}, 3')
    a('s_cselect_b32 vcc_lo, 0xff, 0')
    a.label(lw)
    keep(V_NSA, 's_nop 0')
    for j in range(4): a(f'v_mov_b32 v{V_ONE+j}, 0x3f803f80')
    for j in range(4): a(f'v_mov_b32 v{V_FF+j}, -1')
    for j in range(4): a(f'v_mov_b32 v{V_ZZ+j}, 0')
    for j in range(4): a(f'v_mov_b32 v{V_NS+j}, 0')
    for j in range(5, 8): a(f'v_mov_b32 v{V_P+j}, 0')
    for j in range(6): a(f'v_mov_b32 v{V_VM+j}, 0')
    a(f's_mov_b32 s{S_MLO8}, 0x00ff00ff'); a(f's_mov_b32 s{S_MLO8+1}, 0x00ff00ff')
    a(f's_mov_b32 s{S_MHI}, 0'); a(f's_mov_b32 s{S_MHI+1}, -1')
    a(f's_mov_b32 s{S_MHI8}, 0'); a(f's_mov_b32 s{S_MHI8+1}, 0x00ff00ff')
    c = (128 ** -0.5) * math.log2(math.e)
    a(f's_mov_b32 s{S_C}, 0x{struct.unpack("<I", struct.pack("<f", c))[0]:08x}')
    a(f's_mov_b32 s{S_SC}, {SCB}')
    a(f's_mov_b32 s{S_KV}, 0')
    a(f's_mov_b32 s{S_STEP}, 0')
    a(f's_mov_b32 s{S_KXB}, {L_KX}')
    a(f's_mov_b32 s{S_TAG}, 1')
    a(f's_add_u32 s{S_T0}, s{S_W}, 1')
    a(f'v_mov_b32 v{V_TG}, s{S_T0}')
    for j in range(16): a(f's_mov_b32 s{P+j}, 0')
    if prof:
        for e in range(8): a(f'v_mov_b32 v{V_TR+e}, 0')

    S(S_FKV, [(S_H, 0, None, 7), (S_W, 1, None, 2)], FLG + F_SLA + 4)
    S(S_FRO, [(S_H, 0, None, 7)], FLG + F_REC)
    S(S_T0, [(S_I, 0, None, 2), (S_FRO, 0, None, 0)])
    a(f'v_mov_b32 v{V_FRA}, s{S_T0}')
    a(f's_cmp_eq_u32 s{S_W}, 2')
    keep(V_FRA, 's_cselect_b64 vcc, 1, 0')
    a(f'v_mov_b32 v{V_FRV}, 0')
    a(f's_mov_b32 s{S_SEEN}, 0')
    def wait_kv(target):
        if not sync: return
        lp = a.newlabel('rec_kv'); ld = a.newlabel('rec_kvd')
        a(f's_cmp_gt_u32 s{S_SEEN}, {target}')
        a(f's_cbranch_scc0 {lp}')
        a.label(ld)
        def tl():
            a.label(lp)
            a(f's_load_dword s{S_SEEN}, s[{S_WSP}:{S_WSP+1}], s{S_FKV} glc')
            spin_guard(ld)
            a('s_waitcnt lgkmcnt(0)')
            a(f's_cmp_gt_u32 s{S_SEEN}, {target}')
            a(f's_cbranch_scc1 {ld}')
            a('s_sleep 2')
            a(f's_branch {lp}')
        tails.append(tl)
    tails = []
    lp = a.newlabel('rec_par'); ld = a.newlabel('rec_pard')
    a(f'v_min_u32 v{V_T0}, {NPAGE-1}, v{V_L}')
    a(f'v_lshlrev_b32 v{V_T0}, 2, v{V_T0}')
    a.label(lp)
    a(f'global_load_dword v{V_T1}, v{V_T0}, s[{S_DBG}:{S_DBG+1}] offset:{4*D_PAR} sc1')
    spin_guard(ld)
    a('s_waitcnt vmcnt(0)')
    a(f'v_cmp_eq_u32 vcc, 0, v{V_T1}')
    a(f's_cbranch_vccnz {lp}')
    a.label(ld)
    a(f'v_cmp_eq_u32 vcc, 2, v{V_T1}')
    a(f's_and_b32 s{S_PAR}, vcc_lo, {(1 << NPAGE) - 1}')
    S(S_SL0, [(S_PAR, 0, 1, 13), (S_HB, 0, None, 0)])
    a(f's_add_u32 s{S_SL1}, s{S_SL0}, {SLOT}')
    a(f's_add_u32 s{S_SL2}, s{S_SL0}, {2*SLOT}')
    a(f's_lshr_b32 s{S_T1}, s{S_RID}, 5')
    a(f'v_subrev_u32 v{V_T0}, s{S_T1}, v{V_L}')
    a(f'v_and_b32 v{V_T0}, 3, v{V_T0}')
    a(f'v_mul_u32_u24 v{V_T0}, 6, v{V_T0}')
    a(f's_add_u32 s{S_T0}, s{S_RID}, 5')
    a(f'v_add_u32 v{V_T0}, s{S_T0}, v{V_T0}')
    a(f'v_and_b32 v{V_T0}, 31, v{V_T0}')
    a(f'v_lshlrev_b32 v{V_T0}, 8, v{V_T0}')
    a(f'v_lshl_add_u32 v{V_T0}, v{V_L}, 14, v{V_T0}')
    S(S_T0, [(S_RID, 5, None, 6 if SEP else 4), (S_SL0, 0, None, 0)], 10 * BLK)
    a(f'v_add_u32 v{V_TKST}, s{S_T0}, v{V_T0}')
    keep(V_TKST, 's_mov_b64 vcc, 15')
    a(f'v_add_u32 v{V_TKSA}, {SLOT if SEP else 128}, v{V_TKST}')
    a(f's_cmp_eq_u32 s{S_W}, 1')
    keep(V_TKSA, 's_cselect_b64 vcc, 15, 0')
    S(S_MBO, [(S_RID, 5, None, 14), (S_RID, 0, 5, 8), (S_SL0, 0, None, 0)], 10 * BLK)
    a(f's_cmp_eq_u32 s{S_W}, 3')
    a(f's_cselect_b32 s{S_NSO}, s{S_SL2}, {KM}')

    for sl in (S_SL0, S_SL1):
        a(f'buffer_store_dwordx4 {vr(V_ZZ,4)}, v{V_OCL}, {WS}, s{sl} offen sc1')
    a(f'buffer_store_dwordx4 {vr(V_FF,4)}, v{V_SCCL}, {WS}, s{S_SC} offen sc1')
    a(f'v_add_u32 v{V_SCCL}, {128*2048}, v{V_SCCL}')
    a(f'buffer_store_dwordx4 {vr(V_FF,4)}, v{V_SCCL}, {WS}, s{S_SC} offen sc1')
    a(f'v_add_u32 v{V_SCCL}, {128*2048}, v{V_SCCL}')
    a(f'buffer_store_dword v{V_FRV}, v{V_FRA}, {WS}, 0 offen sc1')
    a(f's_getreg_b32 s{S_T0}, hwreg(HW_REG_XCC_ID)')
    a(f'v_mov_b32 v{V_T0}, s{S_T0}')
    a(f'buffer_store_dword v{V_T0}, v{V_FRA}, {WS}, 0 offen offset:16 sc1')
    l3 = a.newlabel('rec_i3'); l0 = a.newlabel('rec_i0')
    a(f's_cmp_lg_u32 s{S_W}, 3')
    a(f's_cbranch_scc1 {l3}')
    a(f'buffer_store_dwordx4 {vr(V_ZZ,4)}, v{V_NSA}, {WS}, s{S_SL1} offen sc1')
    a('s_mov_b64 exec, 0xffff')
    a(f'buffer_store_dwordx4 {vr(V_ZZ,4)}, v{V_L16}, {WS}, s{S_MBO} offen sc1')
    a(f's_add_u32 s{S_T0}, s{S_MBO}, {SLOT}')
    a(f'buffer_store_dwordx4 {vr(V_ZZ,4)}, v{V_L16}, {WS}, s{S_T0} offen sc1')
    a('s_mov_b64 exec, -1')
    a.label(l3)
    a(f's_cmp_lg_u32 s{S_W}, 0')
    a(f's_cbranch_scc1 {l0}')
    L(V_T0, [(2, 2, 11), (0, 2, 3), (4, 1, 2)])
    S(S_T0, [(S_RID, 0, 1, 13), (S_RID, 1, None, 5)])
    a('s_mov_b32 exec_hi, 0')
    a(f'buffer_load_dword v{V_T1}, v{V_T0}, s[{S_M0}:{S_M0+3}], s{S_T0} offen')
    a('s_waitcnt vmcnt(0)')
    a(f'v_max_u32 v{V_T1}, 1, v{V_T1}')
    a(f'buffer_store_dword v{V_T1}, v{V_MEMST}, {WS}, s{S_SL0} offen sc1')
    a('s_mov_b64 exec, -1')
    a.label(l0)
    a('s_waitcnt vmcnt(0)')
    a('s_barrier')
    lb = a.newlabel('rec_ib'); lbp = a.newlabel('rec_ibp')
    a(f's_cmp_lg_u32 s{S_W}, 0')
    a(f's_cbranch_scc1 {lb}')
    a(f'v_mov_b32 v{V_T0}, 0')
    a(f'v_mov_b32 v{V_T1}, 1')
    a('s_mov_b64 exec, 1')
    a(f'global_atomic_add v{V_T0}, v{V_T1}, s[{S_DBG}:{S_DBG+1}] offset:{4*D_INIT} sc1')
    a.label(lbp)
    a(f'global_load_dword v{V_T1}, v{V_T0}, s[{S_DBG}:{S_DBG+1}] offset:{4*D_INIT} sc1')
    spin_guard(lb)
    a('s_waitcnt vmcnt(0)')
    a(f'v_cmp_gt_u32 vcc, {NWG if sync else 128}, v{V_T1}')
    a(f's_cbranch_vccnz {lbp}')
    a.label(lb)
    a('s_mov_b64 exec, -1')
    a('s_barrier')
    a(f's_load_dwordx4 s[{P}:{P+3}], s[{S_WSP}:{S_WSP+1}], s{S_FRO} offset:16 glc')
    a('s_waitcnt lgkmcnt(0)')
    for i in range(1, 4): a(f's_xor_b32 s{P+i}, s{P+i}, s{P}')
    a(f's_or_b32 s{P+1}, s{P+1}, s{P+2}')
    a(f's_or_b32 s{S_FAST}, s{P+1}, s{P+3}')
    if not PLAINB: a(f's_mov_b32 s{S_FAST}, 1')
    for j in range(4): a(f's_mov_b32 s{P+j}, 0')
    wait_kv(0)
    a(f's_add_u32 m0, s{S_KXB}, s{S_PFL}')
    a(f'buffer_load_dwordx4 v{V_PFG}, {WS}, s{S_KV} offen sc1 lds')

    def gather(name, n, load, mf, nacc, noise, nn, ilv, mid=None, midc=99):
        ok = a.newlabel(name + 'ok'); fix = a.newlabel(name + 'fix')
        def M(c): return f's[{S_MK+2*c}:{S_MK+2*c+1}]'
        z = 0
        for c in range(n):
            load(c, V_MA + 4 * c)
            for j in range(nacc // n): a(f'v_mov_b32 v{V_D+z}, 0'); z += 1
            if ilv and c < n - 1: a(f's_nop {ilv-1}')
        for c in range(n):
            b = V_MA + 4 * c
            a(f's_waitcnt vmcnt({n-1-c+(nn if c else 0)+(1 if c > midc else 0)})')
            if c == 0: noise()
            if c == midc: a(mid)
            ms = mf(c)
            seq = [f'v_min3_u32 v{V_CK}, v{b}, v{b+1}, v{b+2}', f'v_min_u32 v{V_CK}, v{V_CK}, v{b+3}', f'v_cmp_eq_u32 {M(c)}, 0, v{V_CK}']
            if c == 1: seq.append(f's_mov_b64 vcc, {M(0)}')
            if c >= 2: seq.append(f's_or_b64 vcc, vcc, {M(c-1)}')
            k = 0
            for m in ms:
                a(m)
                for _ in range(2):
                    if k < len(seq): a(seq[k]); k += 1
            while k < len(seq): a(seq[k]); k += 1
        a(f's_or_b64 vcc, vcc, {M(n-1)}')
        a(f's_cbranch_scc1 {fix}')
        a.label(ok)
        def tl():
            a.label(fix)
            for c in range(n):
                sk = a.newlabel(name + 'sk')
                a(f's_cmp_eq_u64 {M(c)}, 0')
                a(f's_cbranch_scc1 {sk}')
                load(c, V_R + 4 * c)
                a.label(sk)
            lp = a.newlabel(name + 'lp')
            a.label(lp)
            spin_guard(ok)
            a('s_mov_b64 vcc, 0')
            a('s_waitcnt vmcnt(0)')
            for c in range(n):
                sk = a.newlabel(name + 'sk')
                b = V_MA + 4 * c; t = V_R + 4 * c
                a(f's_cmp_eq_u64 {M(c)}, 0')
                a(f's_cbranch_scc1 {sk}')
                a(f'v_min3_u32 v{V_CK}, v{t}, v{t+1}, v{t+2}')
                a(f'v_min_u32 v{V_CK}, v{V_CK}, v{t+3}')
                a(f'v_cmp_eq_u32 {M(c)}, 0, v{V_CK}')
                for j in range(4): a(f'v_xor_b32 v{b+j}, v{b+j}, v{t+j}')
                for m in mf(c): a(m)
                for j in range(4): a(f'v_mov_b32 v{b+j}, v{t+j}')
                a(f's_or_b64 vcc, vcc, {M(c)}')
                a(f's_cmp_eq_u64 {M(c)}, 0')
                a(f's_cbranch_scc1 {sk}')
                load(c, t)
                a.label(sk)
            a('s_cmp_eq_u64 vcc, 0')
            a(f's_cbranch_scc1 {ok}')
            a(f's_branch {lp}')
        tails.append(tl)

    def halves(m):
        for j in range(4): a(f'v_permlane16_swap_b32 v{V_D+8*m+j}, v{V_D+8*m+4+j}')
        for j in range(0, 4, 2): a(f'v_pk_add_f32 {vr(V_D+8*m+j,2)}, {vr(V_D+8*m+j,2)}, {vr(V_D+8*m+4+j,2)}')
    def tickwait(off, extra):
        lp = a.newlabel('rec_tk'); ld = a.newlabel('rec_tkd')
        T = S_PTR
        if off: a(f's_add_u32 s{S_T2}, s{S_MBO}, {off}')
        a.label(lp)
        if SEP:
            for k in range(4): a(f's_load_dword s{T+4*k}, s[{S_WSP}:{S_WSP+1}], s{S_T2 if off else S_MBO} offset:{64*k} glc')
        else: a(f's_load_dwordx16 s[{T}:{T+15}], s[{S_WSP}:{S_WSP+1}], s{S_T2 if off else S_MBO} glc')
        spin_guard(ld)
        a(f's_sleep {TPOS}')
        a(f's_min_u32 s{S_T0}, s{T}, s{T+4}')
        a(f's_min_u32 s{S_T1}, s{T+8}, s{T+12}')
        a(f's_min_u32 s{S_T0}, s{S_T0}, s{S_T1}')
        a(f's_cmp_lt_u32 s{S_T0}, s{S_TAG}')
        a(f's_cbranch_scc1 {lp}')
        a.label(ld)
        a(f's_add_u32 s{S_TAG}, s{S_TAG}, 1')
        if extra: a(f's_sleep {extra}')
    def vmf():
        for c in range(4):
            for t in (4, 5):
                f, b = wq_reg(c, t)
                a(f'v_smfmac_f32_16x16x64_bf16 {vr(V_D+4*t,4)}, {vr(V_MA+4*c,4)}, {f}[{b}:{b+7}], v{V_IDX}')
    def red4(n):
        for j in range(0, n, 2): a(f'v_pk_add_f32 {vr(V_R+j,2)}, {vr(V_R+j,2)}, {vr(V_R+n+j,2)}')
        for j in range(0, n, 2): a(f'v_pk_add_f32 {vr(V_R+2*n+j,2)}, {vr(V_R+2*n+j,2)}, {vr(V_R+3*n+j,2)}')
        for j in range(0, n, 2): a(f'v_pk_add_f32 {vr(V_R+j,2)}, {vr(V_R+j,2)}, {vr(V_R+2*n+j,2)}')

    LOOP = a.newlabel('rec_loop'); DONE = a.newlabel('rec_done')
    a.label(LOOP)
    def loadA(c, r): a(f'buffer_load_dwordx4 {vr(r,4)}, v{V_AOFF}, {WS}, s{S_SL0} offen offset:{c*1024} sc1')
    def mfA(c):
        r = []
        for t in range(4):
            f, b = wq_reg(c, t)
            r.append(f'v_smfmac_f32_16x16x64_bf16 {vr(V_D+4*t,4)}, {vr(V_MA+4*c,4)}, {f}[{b}:{b+7}], v{V_IDX}')
        return r
    def noiseA():
        a(f'buffer_store_dwordx4 {vr(V_FF,4)}, v{V_SCCL}, {WS}, s{S_SC} offen sc1')
    gather('rec_ga', 4, loadA, mfA, 24, noiseA, 1, ILA)
    a(f'v_add_u32 v{V_T0}, s{S_KXB}, v{V_L16}')
    stamp(0)
    for m in range(2):
        halves(m)
        va = V_QKW if m == 0 else V_QKW2
        a(f'ds_write2_b32 v{va}, v{V_D+8*m}, v{V_D+8*m+1} offset0:0 offset1:40')
        a(f'ds_write2_b32 v{va}, v{V_D+8*m+2}, v{V_D+8*m+3} offset0:80 offset1:120')
    LB2 = a.newlabel('rec_b2'); LW1 = a.newlabel('rec_w1')
    a(f's_cmp_lg_u32 s{S_W}, 0')
    a(f's_cbranch_scc1 {LW1}')
    a('s_waitcnt lgkmcnt(0)')
    a('s_barrier')
    for w in range(4):
        for q in range(2):
            a(f'ds_read_b128 {vr(V_R+8*w+4*q,4)}, v{V_QKR} offset:{L_QK+w*2560+q*32}')
    for t in range(2): a(f'ds_read_b128 {vr(V_KX+4*t,4)}, v{V_T0} offset:{t*1024}')
    for t in range(2): a(f'ds_read_b128 {vr(V_VX+4*t,4)}, v{V_T0} offset:{2048+t*1024}')
    vmf()
    a('s_waitcnt lgkmcnt(2)')
    red4(8)
    for j in range(4): a(f'v_cvt_pk_bf16_f32 v{V_X+j}, v{V_R+2*j}, v{V_R+2*j+1}')
    a(f'v_mfma_f32_16x16x32_bf16 {vr(V_S,4)}, {vr(V_KX,4)}, {vr(V_X,4)}, 0')
    a(f'v_mfma_f32_16x16x32_bf16 {vr(V_S+4,4)}, {vr(V_KX+4,4)}, {vr(V_X,4)}, 0')
    a(f'v_mfma_f32_16x16x32_bf16 {vr(V_S+8,4)}, {vr(V_X,4)}, {vr(V_X,4)}, 0')
    a(f's_cmp_lg_u32 s{S_FAST}, 0')
    halves(2)
    def scst(f):
        a(f's_mov_b64 exec, s[{S_MLO8}:{S_MLO8+1}]')
        a(f'buffer_store_dwordx4 {vr(V_S,4)}, v{V_SCST}, {WS}, s{S_SC} offen{f}')
        a(f'buffer_store_dwordx4 {vr(V_S+4,4)}, v{V_SCST}, {WS}, s{S_SC} offen offset:128{f}')
        a(f's_mov_b64 exec, s[{S_MHI8}:{S_MHI8+1}]')
        a(f'buffer_store_dwordx4 {vr(V_S+8,4)}, v{V_SCST2}, {WS}, s{S_SC} offen offset:1024{f}')
        a('s_mov_b64 exec, -1')
    lsl = a.newlabel('rec_slow'); lsr = a.newlabel('rec_slowr')
    a(f's_cbranch_scc1 {lsl}')
    scst('')
    a.label(lsr)
    tails.append(lambda: (a.label(lsl), scst(' sc1'), a(f's_branch {lsr}')))
    a(f'ds_write_b128 v{V_VW}, {vr(V_D+16,4)}')
    a(f'ds_write_b128 v{V_L16}, {vr(V_X,4)} offset:{L_X}')
    stamp(2)
    LBR = a.newlabel('rec_gbr'); LBO = a.newlabel('rec_gbo'); LBW = a.newlabel('rec_gbw')
    V_LM = V_LD + 12
    V_Q = V_R + 20
    def loadB():
        a(f'buffer_load_dwordx4 {vr(V_LM,4)}, v{V_SCLM}, {WS}, s{S_SC} offen offset:1024 sc1')
        for k in range(3):
            a(f'buffer_load_dwordx4 {vr(V_LD+4*k,4)}, v{V_SCL[k]}, {WS}, s{S_SC} offen sc1')
    a('s_waitcnt lgkmcnt(0)')
    a('s_barrier')
    for w in range(4):
        for t in range(2):
            a(f'ds_read2st64_b32 {vr(V_R+4*w+2*t,2)}, v{V_VR2 if t else V_VR} offset0:{4*w} offset1:{4*w+2}')
    if DB: a(f's_sleep {DB}')
    loadB()
    for j in range(4): a(f'v_mov_b32_dpp v{V_S+j}, v{V_S+4+j} row_ror:8 row_mask:0xf bank_mask:0xc')
    a('s_waitcnt lgkmcnt(0)')
    red4(4)
    for t in range(2): a(f'v_cvt_pk_bf16_f32 v{V_VM+2*t}, v{V_R+2*t}, v{V_R+2*t+1}')
    a(f's_cmp_eq_u32 s{S_STEP}, {nsteps-1}')
    a(f's_cbranch_scc1 {LB2}')
    a.label(LBW)
    a('s_waitcnt vmcnt(3)')
    a(f'v_max3_u32 v{V_CK}, v{V_LM}, v{V_LM+1}, v{V_LM+2}')
    a(f'v_max_u32 v{V_CK}, v{V_CK}, v{V_LM+3}')
    a(f'v_permlane32_swap_b32 v{V_LM}, v{V_LM+2}')
    a(f'v_permlane32_swap_b32 v{V_LM+1}, v{V_LM+3}')
    a(f'v_pk_add_f32 {vr(V_Q+4,2)}, {vr(V_LM,2)}, {vr(V_LM+2,2)}')
    a('s_waitcnt vmcnt(2)')
    for j in range(0, 4, 2): a(f'v_pk_add_f32 {vr(V_Q+j,2)}, {vr(V_S+j,2)}, {vr(V_LD+j,2)}')
    a(f'v_permlane16_swap_b32 v{V_Q+4}, v{V_Q+5}')
    a('s_waitcnt vmcnt(1)')
    for j in range(0, 4, 2): a(f'v_pk_add_f32 {vr(V_Q+j,2)}, {vr(V_Q+j,2)}, {vr(V_LD+4+j,2)}')
    a(f'v_add_f32 v{V_Q+4}, v{V_Q+4}, v{V_Q+5}')
    a('s_waitcnt vmcnt(0)')
    for j in range(0, 4, 2): a(f'v_pk_add_f32 {vr(V_Q+j,2)}, {vr(V_Q+j,2)}, {vr(V_LD+8+j,2)}')
    a(f'v_maximum3_f32 v{V_M}, v{V_Q}, v{V_Q+1}, v{V_Q+4}')
    a(f'v_maximum3_f32 v{V_M}, v{V_M}, v{V_Q+2}, v{V_Q+3}')
    a(f'v_cmp_u_f32 vcc, v{V_M}, v{V_M}')
    a(f'v_max_f32_dpp v{V_M}, v{V_M}, v{V_M} row_ror:8 row_mask:0xf bank_mask:0xf')
    a(f'v_mov_b32 v{V_M2}, v{V_M}')
    a(f's_cbranch_vccnz {LBR}')
    a.label(LBO)
    def tlB():
        a.label(LBR)
        for j in range(0, 12, 2): a(f'v_max3_u32 v{V_CK}, v{V_CK}, v{V_LD+j}, v{V_LD+j+1}')
        loadB()
        a(f'v_cmp_eq_u32 vcc, -1, v{V_CK}')
        spin_guard(LBO)
        a(f's_cbranch_vccnz {LBW}')
        a('s_waitcnt vmcnt(0)')
        a(f's_branch {LBO}')
    tails.append(tlB)
    a(f'buffer_store_dword v{V_TG}, v{V_TKST}, {WS}, 0 offen sc1')
    stamp('b')
    a(f'v_permlane16_swap_b32 v{V_M}, v{V_M2}')
    a(f'v_max_f32 v{V_M}, v{V_M}, v{V_M2}')
    a(f'v_mov_b32 v{V_M2}, v{V_M}')
    a(f'v_permlane32_swap_b32 v{V_M}, v{V_M2}')
    a(f'v_max_f32 v{V_M}, v{V_M}, v{V_M2}')
    a(f'v_mul_f32 v{V_M}, s{S_C}, v{V_M}')
    for j in (4, 0, 1, 2, 3): a(f'v_fma_f32 v{V_Q+j}, v{V_Q+j}, s{S_C}, -v{V_M}')
    for j in (4, 0, 1, 2, 3): a(f'v_exp_f32 v{V_Q+j}, v{V_Q+j}')
    a(f'v_mov_b32_dpp v{V_Q+5}, v{V_Q+4} row_ror:8 row_mask:0xf bank_mask:0xf')
    for j in range(2): a(f'v_cvt_pk_bf16_f32 v{V_P+j}, v{V_Q+2*j}, v{V_Q+2*j+1}')
    a(f'v_cvt_pk_bf16_f32 v{V_P+4}, v{V_Q+4}, v{V_Q+5}')
    for j in range(2): a(f'v_mov_b32_dpp v{V_P+2+j}, v{V_P+j} row_ror:8 row_mask:0xf bank_mask:0xf')
    V_O = V_R + 8
    a(f'v_mfma_f32_16x16x32_bf16 {vr(V_O+8,4)}, {vr(V_ONE,4)}, {vr(V_P+4,4)}, 0')
    a(f'v_mfma_f32_16x16x32_bf16 {vr(V_O+8,4)}, {vr(V_ONE,4)}, {vr(V_P,4)}, {vr(V_O+8,4)}')
    for t in range(2):
        a(f'v_mfma_f32_16x16x32_bf16 {vr(V_O+4*t,4)}, {vr(V_VX+4*t,4)}, {vr(V_P,4)}, 0')
        a(f'v_mfma_f32_16x16x32_bf16 {vr(V_O+4*t,4)}, {vr(V_VM+2*t,4)}, {vr(V_P+4,4)}, {vr(V_O+4*t,4)}')
    a(f'v_rcp_f32 v{V_M}, v{V_O+8}')
    for j in range(8): a(f'v_mul_f32 v{V_O+j}, v{V_O+j}, v{V_M}')
    for j in range(4): a(f'v_cvt_pk_bf16_f32 v{V_O+j}, v{V_O+2*j}, v{V_O+2*j+1}')
    for j in range(4): a(f'v_max_u32 v{V_O+j}, 1, v{V_O+j}')
    a(f's_mov_b64 exec, s[{S_MLO8}:{S_MLO8+1}]')
    a(f'buffer_store_dwordx4 {vr(V_O,4)}, v{V_OST}, {WS}, s{S_SL0} offen sc1')
    a('s_mov_b64 exec, -1')
    stamp(5)
    a('s_barrier')
    LCS = a.newlabel('rec_cs')
    a.label(LCS)
    def w123():
        a.label(LW1)
        a('s_waitcnt lgkmcnt(0)')
        a('s_barrier')
        vmf()
        halves(2)
        a(f'ds_write_b128 v{V_VW}, {vr(V_D+16,4)}')
        a('s_waitcnt lgkmcnt(0)')
        a('s_barrier')
        LW2 = a.newlabel('rec_w2'); LW3 = a.newlabel('rec_w3')
        a(f's_cmp_eq_u32 s{S_W}, 3')
        a(f's_cbranch_scc1 {LW3}')
        a(f's_cmp_eq_u32 s{S_W}, 2')
        a(f's_cbranch_scc1 {LW2}')
        a(f'ds_read_b128 {vr(V_NS,4)}, v{V_L16} offset:{L_X}')
        a(f's_branch {LB2}')
        a.label(LW2)
        for w in range(4): a(f'ds_read_b128 {vr(V_R+4*w,4)}, v{V_L16} offset:{L_V+w*1024}')
        a('s_waitcnt lgkmcnt(0)')
        red4(4)
        for j in range(2): a(f'v_cvt_pk_bf16_f32 v{V_NS+j}, v{V_R+2*j}, v{V_R+2*j+1}')
        for j in range(2): a(f'v_permlane32_swap_b32 v{V_NS+j}, v{V_NS+2+j}')
        a.label(LB2)
        a('s_waitcnt lgkmcnt(0)')
        a(f's_cmp_eq_u32 s{S_STEP}, {nsteps-1}')
        a(f's_cbranch_scc1 {DONE}')
        a('s_barrier')
        a(f's_branch {LCS}')
        a.label(LW3)
        a(f's_cmp_eq_u32 s{S_STEP}, {nsteps-1}')
        a(f's_cbranch_scc1 {DONE}')
        tickwait(0, DC)
        a('s_barrier')
        a(f's_branch {LCS}')
    tails.append(w123)
    stamp(7)
    def loadC(c, r):
        va = V_COFF if c < 4 else V_COFF2
        a(f'buffer_load_dwordx4 {vr(r,4)}, v{va}, {WS}, s{S_SL0} offen offset:{(c%4)*1024} sc1')
    def mfC(c):
        r = []
        for sel in range(2):
            f, b = wo_reg(2 * c + sel)
            r.append(f'v_smfmac_f32_16x16x64_bf16 {vr(V_D+4*sel,4)}, {vr(V_MA+4*c,4)}, {f}[{b}:{b+7}], v{V_IDX}')
        return r
    def noiseC():
        a(f'buffer_store_dwordx4 {vr(V_NS,4)}, v{V_NSA}, {WS}, s{S_NSO} offen sc1')
        a(f'buffer_store_dwordx4 {vr(V_ZZ,4)}, v{V_OCL}, {WS}, s{S_SL2} offen sc1')
        a(f'buffer_load_dword v{V_T1}, v{V_PTG}, {WS}, s{S_SC} offen sc1')
        a(f's_add_u32 s{S_T0}, s{S_STEP}, 1')
        wait_kv(f's{S_T0}')
        a(f's_xor_b32 s{S_KXB}, s{S_KXB}, 4096')
        a(f's_add_u32 m0, s{S_KXB}, s{S_PFL}')
        a(f's_add_u32 s{S_KV}, s{S_KV}, {256*1024}')
        a(f'buffer_load_dwordx4 v{V_PFG}, {WS}, s{S_KV} offen sc1 lds')
    TKA = f'buffer_store_dword v{V_TG}, v{V_TKSA}, {WS}, 0 offen sc1'
    gather('rec_gc', 8, loadC, mfC, 8, noiseC, 4, ILC, TKA, (8 - TA) if TA else 99)
    a(f's_add_u32 s{S_STEP}, s{S_STEP}, 1')
    a(f's_mov_b32 s{S_SL0}, s{S_SL1}')
    a(f's_mov_b32 s{S_SL1}, s{S_SL2}')
    a(f's_add_u32 s{S_T0}, s{S_STEP}, 2')
    a(f's_lshr_b32 s{S_T1}, s{S_T0}, 3')
    a(f's_lshr_b32 s{S_T1}, s{S_PAR}, s{S_T1}')
    stamp_c = True
    if prof:
        a(f's_sub_u32 s{S_STEP}, s{S_STEP}, 1'); stamp(8); a(f's_add_u32 s{S_STEP}, s{S_STEP}, 1')
    for j in range(4): a(f'v_cndmask_b32 v{V_D+j}, v{V_D+j}, v{V_D+4+j}, s[{S_MHI}:{S_MHI+1}]')
    a(f'v_permlane32_swap_b32 v{V_D}, v{V_D+2}')
    a(f'v_permlane32_swap_b32 v{V_D+1}, v{V_D+3}')
    a(f'v_pk_add_f32 {vr(V_D,2)}, {vr(V_D,2)}, {vr(V_D+2,2)}')
    a(f'v_permlane16_swap_b32 v{V_D}, v{V_D+1}')
    a(f'v_add_f32 v{V_D}, v{V_D}, v{V_D+1}')
    a(f'ds_write_b32 v{V_OPW}, v{V_D}')
    S(S_SL2, [(S_T1, 0, 1, 13), (S_T0, 0, None, 18), (S_HB, 0, None, 0)])
    a(f's_add_u32 s{S_SC}, s{S_SC}, {128*2048}')
    a(f's_add_u32 s{S_NSO}, s{S_NSO}, 65536')
    a(f's_cmp_eq_u32 s{S_W}, 3')
    a(f's_cselect_b32 s{S_NSO}, s{S_SL2}, s{S_NSO}')
    LB4 = a.newlabel('rec_b4')
    a(f's_cmp_lg_u32 s{S_W}, 0')
    a(f's_cbranch_scc1 {LB4}')
    a('s_waitcnt lgkmcnt(0)')
    a('s_barrier')
    for w in range(4): a(f'ds_read_b64 {vr(V_R+2*w,2)}, v{V_OPR} offset:{w*256}')
    a(f'v_add_u32 v{V_TG}, 2, v{V_TG}')
    a('s_waitcnt lgkmcnt(0)')
    red4(2)
    a(f'v_cvt_pk_bf16_f32 v{V_R}, v{V_R}, v{V_R+1}')
    a(f'v_max_u32 v{V_R}, 1, v{V_R}')
    for j in range(1, 4): a(f'v_mov_b32_dpp v{V_R+j}, v{V_R} quad_perm:[{j},{j},{j},{j}] row_mask:0xf bank_mask:0xf')
    a('s_mov_b64 exec, 0x11111111')
    a(f'buffer_store_dwordx4 {vr(V_R,4)}, v{V_MEMST}, {WS}, s{S_SL0} offen sc1')
    a('s_mov_b64 exec, -1')
    stamp(10)
    a('s_barrier')
    stamp(11)
    a(f's_branch {LOOP}')
    a.label(LB4)
    a('s_waitcnt vmcnt(3) lgkmcnt(0)')
    a('s_barrier')
    if not TA: a(TKA)
    a(f'v_add_u32 v{V_FRV}, 1, v{V_FRV}')
    a(f'buffer_store_dword v{V_FRV}, v{V_FRA}, {WS}, 0 offen sc1')
    a(f'v_add_u32 v{V_TG}, 2, v{V_TG}')
    l4 = a.newlabel('rec_b4b')
    a(f's_cmp_lg_u32 s{S_W}, 3')
    a(f's_cbranch_scc1 {l4}')
    tickwait(SLOT if SEP else 128, DA)
    a.label(l4)
    a('s_barrier')
    stamp(11)
    a(f's_branch {LOOP}')
    for t in tails: t()
    a.label(DONE)
    a(f'buffer_store_dwordx4 {vr(V_NS,4)}, v{V_NSA}, {WS}, s{S_NSO} offen sc1')
    a('s_waitcnt vmcnt(0)')
    a('s_barrier')
    a(f'v_add_u32 v{V_FRV}, 1, v{V_FRV}')
    a(f'buffer_store_dword v{V_FRV}, v{V_FRA}, {WS}, 0 offen sc1')
    if prof:
        S(S_T0, [(S_RID, 0, None, 13), (S_W, 0, None, 11)], TRACE)
        a(f'v_lshlrev_b32 v{V_T0}, 2, v{V_L}')
        for e in range(8):
            a(f'buffer_store_dword v{V_TR+e}, v{V_T0}, {WS}, s{S_T0} offen offset:{e*256}')
```

```python
from asmlib import *
from layout import *
from rec import srd, lane, sexpr
import math, struct

G_WS = 4
G_W = 8
G_X = 12
G_W2 = 16
G_OUT = 20
G_ID, G_WV, G_SEG = 28, 29, 30
G_T0, G_T1, G_T2 = 31, 32, 33
G_LW = 34
G_XO = 35
G_PO = 36
G_PS = 37
G_WSO, G_WST = 38, 39
G_SPIN = 41
G_C = 42
G_SEEN = 43
G_J, G_R = 44, 45
G_KMO, G_OAO, G_OBO, G_OUO = 46, 47, 48, 49
G_FO = 50
G_END, G_XMAX = 51, 52
G_SA, G_SB, G_FA, G_FB, G_FR, G_C2 = 53, 54, 55, 56, 57, 58
G_PTR = 72
G_WSP = 90
G_DBG = 92
WS = f's[{G_WS}:{G_WS+3}]'
V_L, V_T0, V_T1, V_T2, V_L16 = 1, 2, 3, 4, 5

def f32(x): return '0x%08x' % struct.unpack('<I', struct.pack('<f', x))[0]

class Gem:
    def __init__(self, a, sync=True, prof=False):
        self.a = a; self.sync = sync; self.prof = prof; self.ost = ''
    def L(self, dst, terms, add=None): lane(self.a, dst, V_T2, V_L, terms, add)
    def S(self, dst, terms, const=0): sexpr(self.a, dst, G_T2, terms, const)
    def spin_guard(self, lgive):
        a = self.a
        a(f's_add_u32 s{G_SPIN}, s{G_SPIN}, 1')
        a(f's_cmp_ge_u32 s{G_SPIN}, 0x200000')
        a(f's_cbranch_scc1 {lgive}')
    def keep(self, reg, cond):
        a = self.a
        a(cond)
        a(f'v_mov_b32 v{V_T2}, {OOB}')
        a(f'v_cndmask_b32 v{reg}, v{V_T2}, v{reg}, vcc')

    def mark(self, k):
        if not self.prof: return
        a = self.a
        a(f's_memrealtime s[{G_PTR+14}:{G_PTR+15}]')
        a('s_waitcnt lgkmcnt(0)')
        a(f's_mov_b32 s{94+k}, s{G_PTR+14}')
        if False:
            a(f's_memtime s[{G_PTR+14}:{G_PTR+15}]')
            a('s_waitcnt lgkmcnt(0)')
            a(f's_mov_b32 s{98+k}, s{G_PTR+14}')
    def acc(self, k):
        if self.prof != 2: return
        a = self.a
        a(f's_memtime s[{G_PTR+14}:{G_PTR+15}]')
        a('s_waitcnt lgkmcnt(0)')
        if k is not None:
            a(f's_sub_u32 s{G_PTR+15}, s{G_PTR+14}, s60')
            a(f's_add_u32 s{61+k}, s{61+k}, s{G_PTR+15}')
        a(f's_mov_b32 s60, s{G_PTR+14}')
    def dump(self):
        if not self.prof: return
        a = self.a
        self.S(G_T0, [(G_ID, 0, None, 7), (G_WV, 0, None, 5)], TRACE + 4 * MB)
        a(f'v_mov_b32 v{V_T1}, 0')
        for k in range(8):
            a(f'v_mov_b32 v{V_T0}, s{94+k}')
            a(f'buffer_store_dword v{V_T0}, v{V_T1}, {WS}, s{G_T0} offen offset:{4*k}')
        a(f's_add_u32 s{G_T0}, s{G_T0}, {MB}')
        for k in range(8):
            a(f'v_mov_b32 v{V_T0}, s{61+k}')
            a(f'buffer_store_dword v{V_T0}, v{V_T1}, {WS}, s{G_T0} offen offset:{4*k}')

    def setup(self):
        a = self.a
        a(f's_load_dwordx2 s[{G_WSP}:{G_WSP+1}], s[0:1], {K_WS}')
        a(f's_load_dwordx2 s[{G_DBG}:{G_DBG+1}], s[0:1], {K_DBG}')
        a(f'v_and_b32 v{V_L}, 63, v0')
        a(f'v_lshrrev_b32 v{V_T0}, 6, v0')
        a(f'v_readfirstlane_b32 s{G_WV}, v{V_T0}')
        a(f'v_lshlrev_b32 v{V_L16}, 4, v{V_L}')
        a(f's_mov_b32 s{G_SPIN}, 0')
        a(f's_lshl_b32 s{G_LW}, s{G_WV}, 10')
        a('s_waitcnt lgkmcnt(0)')
        srd(a, G_WS, G_WSP, WS_BYTES)
        if self.prof:
            for k in range(8): a(f's_mov_b32 s{94+k}, 0'); a(f's_mov_b32 s{61+k}, 0')
        self.mark(0)

    def load_weights(self, jobs, hook=None):
        a = self.a
        LB = G_T1
        a(f's_lshl_b32 s{LB}, s{G_WV}, 15')
        pairs = []
        for (sd, vg, n, reads, so0, sst) in jobs:
            for p in range(n): pairs.append((sd, vg, reads(p), so0 if p == 0 else None, sst))
        NSL = 16
        def issue(p):
            sd, vg, _, so0, sst = pairs[p]
            for j in range(2):
                a(f's_add_u32 m0, s{LB}, {(p % NSL) * 2048 + j * 1024}')
                if so0 is not None and j == 0: a(f's_mov_b32 s{G_WSO}, {so0}')
                else: a(f's_add_u32 s{G_WSO}, s{G_WSO}, {sst}')
                a(f'buffer_load_dwordx4 v{vg}, s[{sd}:{sd+3}], s{G_WSO} offen lds')
        issued = 0
        for p in range(min(NSL, len(pairs))):
            issue(p); issued += 1
        for p in range(len(pairs)):
            a(f's_waitcnt vmcnt({2 * (issued - p - 1)})')
            if p == 0 and hook: hook()
            for dst, va, off in pairs[p][2]:
                a(f'ds_read_b64_tr_b16 {dst}, v{va} offset:{(p % NSL) * 2048 + off}')
            if p >= 1 and issued < len(pairs):
                a(f's_waitcnt lgkmcnt({len(pairs[p][2])})')
                issue(issued); issued += 1
        a('s_waitcnt lgkmcnt(0)')

    def touch_wo(self):
        a = self.a
        P = G_PTR
        lsk = a.newlabel('tw_skip')
        a(f's_cmp_lt_u32 s{G_ID}, 96')
        a(f's_cbranch_scc1 {lsk}')
        a(f's_load_dwordx2 s[{P}:{P+1}], s[0:1], {K_WO}')
        self.S(G_T0, [(G_ID, 0, 5, 13), (G_WV, 0, None, 21)])
        a(f'v_lshl_add_u32 v{V_T0}, v{V_L}, 7, s{G_T0}')
        a('s_waitcnt lgkmcnt(0)')
        srd(a, G_W, P, 8 * MB)
        for i in range(8):
            a(f's_mov_b32 s{G_T0}, {i * 262144}')
            a(f'buffer_load_dword v{128+i}, v{V_T0}, s[{G_W}:{G_W+3}], s{G_T0} offen')
        a.label(lsk)

    def slab(self, LNEXT, **opt):
        a = self.a; L = self.L; S = self.S
        P = G_PTR
        V_G, V_TR, V_XG, V_ST, V_FL, V_FV = 6, 7, 8, 9, 10, 11
        V_RA = 12
        V_F = 32
        V_ACC = 64
        V_PK = 96
        lB = a.newlabel('sl_b'); lC = a.newlabel('sl_c')
        G_M = G_J
        a(f's_cmp_ge_u32 s{G_ID}, 96')
        a(f's_cbranch_scc1 {lB}')
        a(f's_lshr_b32 s{G_T0}, s{G_ID}, 5')
        a(f's_add_u32 s{G_T0}, s{G_T0}, 1')
        a(f's_cmp_eq_u32 s{G_T0}, 3')
        a(f's_cselect_b32 s{G_M}, 0, s{G_T0}')
        S(G_T0, [(G_M, 0, None, 3)], K_WQ)
        a(f's_load_dwordx2 s[{P}:{P+1}], s[0:1], s{G_T0}')
        a(f's_load_dwordx2 s[{P+2}:{P+3}], s[0:1], {K_AX}')
        a(f's_mov_b32 s{P+4}, {8*MB}')
        a(f's_mov_b32 s{G_WST}, 8192')
        S(G_T0, [(G_ID, 0, 5, 8)])
        S(G_PO, [(G_M, 0, None, 24), (G_ID, 0, 5, 13)], PA)
        a(f's_mov_b32 s{G_PS}, {256*1024}')
        S(G_FO, [(G_ID, 0, 5, 7), (G_M, 0, None, 2)], FLG + F_SLA)
        a(f's_branch {lC}')
        a.label(lB)
        a(f's_sub_u32 s{G_T1}, s{G_ID}, 96')
        a(f's_lshr_b32 s{G_M}, s{G_T1}, 3')
        a(f's_load_dwordx2 s[{P}:{P+1}], s[0:1], {K_WQKV}')
        a(f's_load_dwordx2 s[{P+2}:{P+3}], s[0:1], {K_BX}')
        a(f's_mov_b32 s{P+4}, {6*MB}')
        a(f's_mov_b32 s{G_WST}, 6144')
        S(G_T0, [(G_T1, 0, None, 8)])
        S(G_PO, [(G_M, 0, None, 22), (G_T1, 0, 3, 13)], PB)
        a(f's_mov_b32 s{G_PS}, {64*1024}')
        S(G_FO, [(G_T1, 0, 3, 7), (G_M, 0, None, 2)], FLG + F_SLB)
        a.label(lC)
        a('s_waitcnt lgkmcnt(0)')
        if self.sync:
            li = a.newlabel('sl_i')
            a(f's_cmp_lg_u32 s{G_WV}, 0')
            a(f's_cbranch_scc1 {li}')
            a(f'v_mov_b32 v{V_T0}, 0')
            a('s_mov_b64 exec, 1')
            a(f'buffer_store_dword v{V_T0}, v{V_T0}, {WS}, s{G_FO} offen sc1')
            a('s_mov_b64 exec, -1')
            a.label(li)
        srd(a, G_W, P, f's{P+4}')
        srd(a, G_X, P + 2, 4 * MB)
        a(f's_mov_b64 s[{P+8}:{P+9}], s[{P}:{P+1}]')
        a(f's_mov_b32 s{G_R}, s{G_T0}')
        if self.sync:
            lg = a.newlabel('sl_go'); l2 = a.newlabel('sl_a2')
            a(f's_cmp_lt_u32 s{G_ID}, 96')
            a(f's_cbranch_scc1 {lg}')
            a(f's_cmp_lg_u32 s{G_WV}, 0')
            a(f's_cbranch_scc1 {l2}')
            a('s_mov_b64 exec, 1')
            self.arrive()
            a.label(l2)
            self.touch_wo()
            srd(a, G_W, P + 8, f's{P+4}')
            self.wait_start()
            a.label(lg)
        a(f'v_lshrrev_b32 v{V_T0}, 2, v{V_L}')
        a(f'v_mul_lo_u32 v{V_G}, v{V_T0}, s{G_WST}')
        S(G_T0, [(G_R, 0, None, 0), (G_WV, 0, None, 6)])
        L(V_T0, [(0, 2, 4)], f's{G_T0}')
        a(f'v_add_u32 v{V_G}, v{V_G}, v{V_T0}')
        a(f's_lshl_b32 s{G_WST}, s{G_WST}, 4')
        a(f's_mov_b32 s{G_SEG}, 0')
        a(f's_mov_b32 s{G_END}, {NSEG}')
        a(f's_mov_b32 s{G_XMAX}, {63*65536}')
        self.stream(LNEXT, [0, 1], **opt)

    def stream(self, LNEXT, variants, RD=6):
        a = self.a; L = self.L; S = self.S
        V_G, V_TR, V_XG, V_ST, V_FL, V_FV = 6, 7, 8, 9, 10, 11
        V_RA = 12
        V_F = 32
        V_ACC = 64
        V_PK = 96
        G_M = G_J
        ob = 2 in variants
        a(f's_lshl_b32 s{G_T0}, s{G_WV}, 15')
        if ob:
            L(V_TR, [(4, 2, 9), (2, 2, 6), (0, 2, 4)], f's{G_T0}')
        else:
            L(V_TR, [(4, 2, 9), (2, 2, 6), (1, 1, 5), (0, 1, 3)], f's{G_T0}')
        eo = 8 if ob else 16
        def wreads(p):
            return [(f'a[{8*p+4*et+2*q}:{8*p+4*et+2*q+1}]', V_TR, et * eo + q * 256) for et in range(2) for q in range(2)]
        def hook():
            li = a.newlabel('sl_ar')
            self.mark(7)
            a(f's_cmp_lg_u32 s{G_WV}, 0')
            a(f's_cbranch_scc1 {li}')
            a(f's_cmp_ge_u32 s{G_ID}, 96')
            a(f's_cbranch_scc1 {li}')
            a('s_mov_b64 exec, 1')
            self.arrive(False)
            a.label(li)
        self.load_weights([(G_W, V_G, 32, wreads, '0', f's{G_WST}')], hook if (self.sync and not ob) else None)
        self.mark(4 if ob else 1)
        S(G_T0, [(G_WV, 1, 1, 2)])
        L(V_T0, [(4, 2, 0)], f's{G_T0}')
        a(f'v_and_b32 v{V_T1}, 7, v{V_L}')
        a(f'v_xor_b32 v{V_T0}, v{V_T0}, v{V_T1}')
        a(f's_lshl_b32 s{G_T0}, s{G_WV}, 14')
        L(V_XG, [(3, 3, 11)], f's{G_T0}')
        a(f'v_lshl_add_u32 v{V_XG}, v{V_T0}, 4, v{V_XG}')
        L(V_T0, [(1, 3, 0)])
        a(f'v_lshrrev_b32 v{V_T1}, 4, v{V_L}')
        a(f'v_xor_b32 v{V_T0}, v{V_T0}, v{V_T1}')
        L(V_T1, [(3, 1, 11), (0, 3, 7)])
        for j in range(2):
            a(f'v_xor_b32 v{V_RA+j}, {4*j}, v{V_T0}')
            a(f'v_lshl_add_u32 v{V_RA+j}, v{V_RA+j}, 4, v{V_T1}')
            a(f'v_add_u32 v{V_RA+2+j}, 65536, v{V_RA+j}')
        if ob:
            a(f's_lshl_b32 s{G_T0}, s{G_WV}, 6')
            L(V_ST, [(0, 4, 12), (4, 2, 4)], f's{G_T0}')
            a(f'v_add_u32 v{V_XG}, s{G_LW}, v{V_L16}')
            L(V_RA, [(4, 2, 9), (0, 4, 4)])
            a(f'v_add_u32 v{V_RA+2}, 65536, v{V_RA}')
            self.wait_dbg(D_INIT, NWG)
            self.wait_lines(F_ATB, f's{G_END}')
        else:
            a(f's_lshl_b32 s{G_T0}, s{G_WV}, 11')
            L(V_ST, [(4, 2, 9), (3, 1, 8), (0, 3, 4)], f's{G_T0}')
            a(f'v_mov_b32 v{V_FL}, s{G_FO}')
            a(f's_cmp_eq_u32 s{G_WV}, 0')
            self.keep(V_FL, 's_cselect_b64 vcc, 1, 0')
            a(f'v_mov_b32 v{V_FV}, 0')
        a(f's_lshl_b32 s{G_XO}, s{G_SEG}, 16')
        a(f's_sub_u32 s{G_PO}, s{G_PO}, s{G_PS}')
        a('s_barrier')
        XS = f's[{G_X}:{G_X+3}]'
        SC = ' sc1' if ob else ''
        def dma(u, i, part=2):
            kb = (u & 1) * 8 + i
            if ob:
                if part != 1:
                    a(f's_add_u32 m0, s{G_LW}, {(u >> 1) * 65536 + kb * 4096}')
                    a(f's_add_u32 s{G_T1}, s{G_XO}, {kb * 4096}')
                if part != 0: a(f'buffer_load_dwordx4 v{V_XG}, {XS}, s{G_T1} offen sc1 lds')
                return
            if part != 1: a(f's_add_u32 m0, s{G_LW}, {(u >> 1) * 65536 + kb * 4096 - kb * 128}')
            if part != 0: a(f'buffer_load_dwordx4 v{V_XG}, {XS}, s{G_XO} offen offset:{kb*128} lds')
        for u in range(3):
            for i in range(8 if u < 2 else 4): dma(u, i)
            if u == 1: a(f's_add_u32 s{G_XO}, s{G_XO}, 65536')
        a('s_waitcnt vmcnt(12)')
        a('s_barrier')
        if not ob: self.mark(2)
        def rd(T):
            T %= 128
            p, t = T >> 6, T & 63
            ks, tt = t >> 1, t & 1
            if ob: a(f'ds_read_b128 {vr(V_F+4*(T%8),4)}, v{V_RA+2*p} offset:{ks*2048+tt*256}')
            else: a(f'ds_read_b128 {vr(V_F+4*(T%8),4)}, v{V_RA+2*p+(ks&1)} offset:{(ks>>1)*4096+tt*1024}')
        def epi(p, k, var):
            A = V_ACC + 16 * p
            if k < 8:
                o, inn, h = k >> 2, (k >> 1) & 1, k & 1
                tt, et = (inn, o) if var == 1 else (o, inn)
                r = A + 4 * (2 * tt + et) + 2 * h
                a(f'v_cvt_pk_bf16_f32 v{V_PK+k}, v{r}, v{r+1}')
            elif k == 8:
                if ob:
                    a(f'buffer_store_dwordx4 {vr(V_PK,4)}, v{V_ST}, s[{G_OUT}:{G_OUT+3}], s{G_PO} offen{self.ost}')
                    a(f's_add_u32 s{G_T0}, s{G_PO}, 65536')
                else: a(f'buffer_store_dwordx4 {vr(V_PK,4)}, v{V_ST}, {WS}, s{G_PO} offen sc1')
            elif k == 9:
                if ob: a(f'buffer_store_dwordx4 {vr(V_PK+4,4)}, v{V_ST}, s[{G_OUT}:{G_OUT+3}], s{G_T0} offen{self.ost}')
                else: a(f'buffer_store_dwordx4 {vr(V_PK+4,4)}, v{V_ST}, {WS}, s{G_PO} offen offset:128 sc1')
                a(f's_add_u32 s{G_PO}, s{G_PO}, s{G_PS}')
        for T in range(RD): rd(T)
        lV = a.newlabel('sl_v'); lE = a.newlabel('sl_e')
        a(f'v_add_u32 v{V_ST}, {OOB}, v{V_ST}')
        if len(variants) > 1:
            a(f's_cmp_eq_u32 s{G_M}, 2')
            a(f's_cbranch_scc1 {lV}')
        for var in variants:
            if var == 1: a.label(lV)
            lp = a.newlabel('sl_loop')
            a.label(lp)
            for T in range(128):
                p, t = T >> 6, T & 63
                u = T >> 5; tu = T & 31
                if tu == 16:
                    a('s_waitcnt vmcnt(8)')
                    a('s_barrier')
                if T % 2 == 0: a(f's_waitcnt lgkmcnt({RD-2})')
                A = V_ACC + 16 * p
                x = vr(V_F + 4 * (T % 8), 4)
                ks, tt = t >> 1, t & 1
                ph = (tu - 16) % 32
                isd = ph % 4 == 1
                if isd:
                    un = (u + 3) if tu >= 16 else (u + 2)
                    i = ph // 4
                for et in range(2):
                    w = f'a[{8*ks+4*et}:{8*ks+4*et+3}]'
                    D = vr(A + 4 * (2 * tt + et), 4)
                    c = D if ks else '0'
                    if var == 1: a(f'v_mfma_f32_16x16x32_bf16 {D}, {x}, {w}, {c}')
                    else: a(f'v_mfma_f32_16x16x32_bf16 {D}, {w}, {x}, {c}')
                    if et == 0:
                        rd(T + RD)
                        if isd: dma(un % 4, i, 0)
                    elif isd: dma(un % 4, i, 1)
                if isd and (un & 1) == 1 and i == 7:
                    a(f's_add_u32 s{G_XO}, s{G_XO}, 65536')
                    a(f's_min_u32 s{G_XO}, s{G_XO}, s{G_XMAX}')
                if tu == 18 and (u & 1) and not ob:
                    a(f'buffer_store_dword v{V_FV}, v{V_FL}, {WS}, 0 offen sc1')
                    a(f'v_add_u32 v{V_FV}, 1, v{V_FV}')
                if 4 <= t < 12: epi(p ^ 1, t - 4, var)
                if t == 11: epi(p ^ 1, 8, var)
                if t == 15: epi(p ^ 1, 9, var)
                if t == 20 and p == 0: a(f'v_and_b32 v{V_ST}, 0xffffff, v{V_ST}')
            a(f's_add_u32 s{G_SEG}, s{G_SEG}, 2')
            a(f's_cmp_lt_u32 s{G_SEG}, s{G_END}')
            a(f's_cbranch_scc1 {lp}')
            for k in range(8): epi(1, k, var)
            a(f's_branch {lE}')
        a.label(lE)
        for k in (8, 9): epi(1, k, 0)
        a('s_waitcnt vmcnt(0) lgkmcnt(0)')
        a('s_barrier')
        if not ob: a(f'buffer_store_dword v{V_FV}, v{V_FL}, {WS}, 0 offen sc1')
        self.mark(5 if ob else 3)
        a(f's_branch {LNEXT}')

    def outb(self, LNEXT):
        a = self.a; L = self.L; S = self.S
        P = G_PTR
        V_G = 6
        a(f's_load_dwordx4 s[{P}:{P+3}], s[0:1], {K_BWO}')
        a(f's_add_u32 s{P+4}, s{G_WSP}, {OB}')
        a(f's_addc_u32 s{P+5}, s{G_WSP+1}, 0')
        a(f's_sub_u32 s{G_T1}, s{G_ID}, 96')
        a(f's_lshr_b32 s{G_T1}, s{G_T1}, 3')
        a(f's_mul_i32 s{G_SEG}, s{G_T1}, 22')
        a(f's_add_u32 s{G_END}, s{G_SEG}, 22')
        a(f's_min_u32 s{G_END}, s{G_END}, {NSEG}')
        a(f's_sub_u32 s{G_XMAX}, s{G_END}, 1')
        a(f's_lshl_b32 s{G_XMAX}, s{G_XMAX}, 16')
        a('s_waitcnt lgkmcnt(0)')
        srd(a, G_W, P, 2 * MB)
        srd(a, G_OUT, P + 2, 8 * MB)
        srd(a, G_X, P + 4, 4 * MB)
        S(G_T0, [(G_ID, 0, 3, 8), (G_WV, 0, None, 6)])
        L(V_G, [(2, 4, 11), (0, 2, 4)], f's{G_T0}')
        a(f's_mov_b32 s{G_WST}, 32768')
        S(G_PO, [(G_SEG, 0, None, 17), (G_ID, 0, 3, 8)], 2048)
        a(f's_mov_b32 s{G_PS}, 131072')
        self.stream(LNEXT, [2])

    def wait_flags_s(self, off_sreg, nwords, idx, target, seen=None):
        a = self.a
        if not self.sync: return
        T = G_PTR
        lp = a.newlabel('g_wf'); ld = a.newlabel('g_wfd')
        if seen is not None:
            a(f's_cmp_ge_u32 s{seen}, {target}')
            a(f's_cbranch_scc1 {ld}')
        a.label(lp)
        a(f's_load_dwordx4 s[{T}:{T+3}], s[{G_WSP}:{G_WSP+1}], s{off_sreg} glc')
        self.spin_guard(ld)
        a('s_waitcnt lgkmcnt(0)')
        m = seen if seen is not None else T + 4
        a(f's_min_u32 s{m}, s{T+idx[0]}, s{T+idx[1]}')
        for i in idx[2:]: a(f's_min_u32 s{m}, s{m}, s{T+i}')
        a(f's_cmp_ge_u32 s{m}, {target}')
        a(f's_cbranch_scc1 {ld}')
        a('s_sleep 4')
        a(f's_branch {lp}')
        a.label(ld)
        a('s_waitcnt lgkmcnt(0)')

    def arrive(self, wait=True):
        a = self.a
        a(f'v_mov_b32 v{V_T0}, 0')
        a(f'v_mov_b32 v{V_T1}, 1')
        if wait: a('s_waitcnt vmcnt(0)')
        a(f'global_atomic_add v{V_T0}, v{V_T1}, s[{G_DBG}:{G_DBG+1}] offset:{4*D_INIT} sc1')
        a('s_mov_b64 exec, -1')

    def wait_lines(self, fo, target, seen=None):
        a = self.a
        if not self.sync: return
        lp = a.newlabel('g_wl'); ld = a.newlabel('g_wld')
        self.L(V_T0, [(0, 5, 7)], FLG + fo)
        a(f's_cmp_lg_u32 s{G_WV}, 0')
        a(f's_cbranch_scc1 {ld}')
        a.label(lp)
        a(f'buffer_load_dword v{V_T1}, v{V_T0}, {WS}, 0 offen sc1')
        self.spin_guard(ld)
        a('s_waitcnt vmcnt(0)')
        a(f'v_cmp_gt_u32 vcc, {target}, v{V_T1}')
        a(f's_cbranch_vccz {ld}')
        a('s_sleep 8')
        a(f's_branch {lp}')
        a.label(ld)
        a('s_barrier')

    def wait_start(self):
        self.wait_dbg(D_RDY, 96, G_PTR + 12)

    def wait_dbg(self, word, target, T=G_PTR):
        a = self.a
        if not self.sync: return
        lp = a.newlabel('g_wd'); ld = a.newlabel('g_wdd')
        a(f's_cmp_lg_u32 s{G_WV}, 0')
        a(f's_cbranch_scc1 {ld}')
        a.label(lp)
        a(f's_load_dword s{T}, s[{G_DBG}:{G_DBG+1}], {4*word} glc')
        self.spin_guard(ld)
        a('s_waitcnt lgkmcnt(0)')
        a(f's_and_b32 s{T}, s{T}, 0xffff')
        a(f's_cmp_ge_u32 s{T}, {target}')
        a(f's_cbranch_scc1 {ld}')
        a('s_sleep 32')
        a(f's_branch {lp}')
        a.label(ld)
        a('s_waitcnt lgkmcnt(0)')
        a('s_barrier')

    def softmax(self, regs, V_M, V_M2, V_SUM, G_C=G_C):
        a = self.a
        a(f'v_max3_f32 v{V_M}, v{regs[0]}, v{regs[1]}, v{regs[2]}')
        r = regs[3:]
        while len(r) >= 2:
            a(f'v_max3_f32 v{V_M}, v{V_M}, v{r[0]}, v{r[1]}'); r = r[2:]
        if r: a(f'v_max_f32 v{V_M}, v{V_M}, v{r[0]}')
        a(f'v_mov_b32 v{V_M2}, v{V_M}')
        a(f'v_permlane32_swap_b32 v{V_M}, v{V_M2}')
        a(f'v_max_f32 v{V_M}, v{V_M}, v{V_M2}')
        a(f'v_mul_f32 v{V_M}, s{G_C}, v{V_M}')
        for x in regs: a(f'v_fma_f32 v{x}, v{x}, s{G_C}, -v{V_M}')
        for x in regs: a(f'v_exp_f32 v{x}, v{x}')
        a(f'v_add_f32 v{V_SUM}, v{regs[0]}, v{regs[1]}')
        a(f'v_add_f32 v{V_M2}, v{regs[2]}, v{regs[3]}')
        for i in range(4, len(regs), 2):
            a(f'v_add_f32 v{V_SUM}, v{V_SUM}, v{regs[i]}')
            a(f'v_add_f32 v{V_M2}, v{V_M2}, v{regs[i+1]}')
        a(f'v_add_f32 v{V_SUM}, v{V_SUM}, v{V_M2}')
        a(f'v_mov_b32 v{V_M2}, v{V_SUM}')
        a(f'v_permlane32_swap_b32 v{V_SUM}, v{V_M2}')
        a(f'v_add_f32 v{V_SUM}, v{V_SUM}, v{V_M2}')
        a(f'v_rcp_f32 v{V_SUM}, v{V_SUM}')

    def att(self, LNEXT):
        a = self.a; L = self.L; S = self.S
        V_BL, V_BS, V_AL, V_KML, V_VML, V_D0, V_FLA, V_FLB = 6, 7, 8, 9, 10, 11, 12, 13
        V_M, V_M2, V_SUM = 14, 15, 26
        V_PP = 16
        V_PP = 28
        V_PM = 40
        V_PK = 208
        V_BC, V_BP, V_BA = 64, 80, 96
        V_SC, V_SP = 112, 128
        V_O = 144
        A_Q, A_K, A_KM, A_V, A_VM = 0, 32, 64, 96, 128
        B_Q, B_K, B_V, B_KP, B_VP, B_VC = 160, 168, 176, 184, 192, 196
        NEG = f32(-1e30)
        T = G_PTR
        a(f's_mov_b32 s{G_C}, {f32(128 ** -0.5 * math.log2(math.e))}')
        a(f's_mov_b32 s{G_C2}, {f32(32 ** -0.5 * math.log2(math.e))}')
        G_STR, G_AEND, G_S2 = G_PS, G_WSO, G_WST
        G_NX = G_OUO
        S(G_J, [(G_ID, 0, 3, 2), (G_WV, 0, None, 0)])
        a(f's_lshl_b32 s{G_T0}, s{G_J}, 11')
        a(f'v_add_u32 v{V_BL}, s{G_T0}, v{V_L16}')
        L(V_KML, [(5, 1, 7), (0, 3, 4)], f's{G_T0}')
        a(f's_add_u32 s{G_T0}, s{G_T0}, {VM - KM}')
        L(V_VML, [(0, 5, 4), (5, 1, 3)], f's{G_T0}')
        a(f's_lshl_b32 s{G_T0}, s{G_J}, 13')
        a(f'v_add_u32 v{V_AL}, s{G_T0}, v{V_L16}')
        S(G_FA, [(G_J, 0, None, 7)], FLG + F_SLA)
        S(G_FB, [(G_J, 2, None, 7)], FLG + F_SLB)
        S(G_FR, [(G_J, 0, None, 7)], FLG + F_REC)
        S(G_T0, [(G_J, 0, None, 7)], FLG)
        a(f'v_mov_b32 v{V_FLA}, s{G_T0}')
        a(f'v_lshl_add_u32 v{V_FLB}, v{V_L}, 12, s{G_T0}')
        self.keep(V_FLA, 's_mov_b64 vcc, 1')
        lhelp = a.newlabel('at_help'); lcom = a.newlabel('at_com')
        a(f's_cmp_lt_u32 s{G_ID}, 120')
        a(f's_cbranch_scc1 {lhelp}')
        a(f's_mov_b32 s{G_SA}, 0')
        a(f's_mov_b32 s{G_SB}, 0')
        a(f's_mov_b32 s{G_STR}, 1')
        a(f's_mov_b32 s{G_AEND}, {N0}')
        a(f's_mov_b32 s{G_S2}, {N1 + 2}')
        if self.sync:
            li = a.newlabel('at_i')
            a(f'v_mov_b32 v{V_T0}, 0')
            a(f's_mov_b32 s{G_T0}, {F_ATB}')
            a(f'buffer_store_dword v{V_T0}, v{V_FLA}, {WS}, s{G_T0} offen sc1')
            a(f's_mov_b32 s{G_T0}, {F_ATA}')
            a(f'buffer_store_dword v{V_T0}, v{V_FLB}, {WS}, s{G_T0} offen sc1')
            a('s_waitcnt vmcnt(0)')
            a('s_barrier')
            self.mark(7)
            a(f's_cmp_lg_u32 s{G_WV}, 0')
            a(f's_cbranch_scc1 {li}')
            a('s_mov_b64 exec, 1')
            self.arrive()
            a.label(li)
        self.touch_wo()
        a(f's_load_dwordx2 s[{T}:{T+1}], s[0:1], {K_AX}')
        a(f's_load_dwordx2 s[{T+2}:{T+3}], s[0:1], {K_BX}')
        a(f's_load_dwordx2 s[{T+4}:{T+5}], s[0:1], {K_BWO}')
        a('s_waitcnt lgkmcnt(0)')
        srd(a, G_W, T, 4 * MB)
        srd(a, G_X, T + 2, 4 * MB)
        srd(a, G_W2, T + 4, 2 * MB)
        a(f's_lshl_b32 s{G_T0}, s{G_J}, 13')
        a(f'v_lshl_add_u32 v{V_D0}, v{V_L}, 7, s{G_T0}')
        a(f'buffer_load_dword v{V_O}, v{V_D0}, s[{G_W}:{G_W+3}], 0 offen')
        self.wait_start()
        for i in range(16):
            a(f's_mov_b32 s{G_T0}, {i * 262144}')
            a(f'buffer_load_dword v{V_O+2*i}, v{V_D0}, s[{G_W}:{G_W+3}], s{G_T0} offen')
            a(f'buffer_load_dword v{V_O+2*i+1}, v{V_D0}, s[{G_X}:{G_X+3}], s{G_T0} offen')
        for i in range(8):
            a(f's_mov_b32 s{G_T0}, {i * 262144}')
            a(f'buffer_load_dword v{V_O+32+i}, v{V_D0}, s[{G_W2}:{G_W2+3}], s{G_T0} offen')
        a(f's_branch {lcom}')
        a.label(lhelp)
        S(G_SA, [(G_ID, 3, None, 0)], N0)
        a(f's_mov_b32 s{G_SB}, {NSEG}')
        a(f's_mov_b32 s{G_STR}, 12')
        a(f's_mov_b32 s{G_AEND}, {N1}')
        S(G_S2, [(G_ID, 3, 1, 0)], N1)
        a(f's_cmp_lt_u32 s{G_ID}, {NOUT}')
        a(f's_cselect_b32 s{G_S2}, {NSEG}, s{G_S2}')
        a.label(lcom)
        L(V_D0, [(0, 5, 0)])
        L(V_T1, [(5, 1, 2)])
        a(f'v_sub_u32 v{V_D0}, v{V_D0}, v{V_T1}')
        def bias(dst, add):
            a(f'v_mov_b32 v{V_M}, {NEG}')
            for j in range(16):
                a(f'v_add_u32 v{V_T1}, {add - (8*(j>>2)+(j&3))}, v{V_D0}')
                a(f'v_and_b32 v{V_T1}, 0xfffffff1, v{V_T1}')
                a(f'v_cmp_ne_u32 vcc, 0, v{V_T1}')
                a(f'v_cndmask_b32 v{dst+j}, 0, v{V_M}, vcc')
        bias(V_BC, 0)
        for j in range(16):
            a(f'v_cmp_gt_i32 vcc, {8*(j>>2)+(j&3)}, v{V_D0}')
            a(f'v_cndmask_b32 v{V_BA+j}, 0, v{V_M}, vcc')
        for j in range(16): a(f'v_mov_b32 v{V_BP+j}, {NEG}')
        for j in range(12): a(f'v_accvgpr_write_b32 a{B_KP+j}, 0')
        for j in range(16): a(f'v_accvgpr_write_b32 a{A_VM+j}, 0')
        for j in range(4): a(f'v_mov_b32 v{V_PM+j}, 0')
        self.wait_dbg(D_INIT, NWG)
        top = a.newlabel('at_top'); la = a.newlabel('at_a'); lb = a.newlabel('at_b'); lend = a.newlabel('at_end'); lnb = a.newlabel('at_nb')
        lpoll = a.newlabel('at_poll'); lnf = a.newlabel('at_nf')
        G_DIRTY = G_SEEN
        def poll():
            if not self.sync: return
            a(f's_load_dwordx4 s[{T}:{T+3}], s[{G_WSP}:{G_WSP+1}], s{G_FR} glc')
            a(f's_load_dwordx4 s[{T+4}:{T+7}], s[{G_WSP}:{G_WSP+1}], s{G_FA} glc')
            a(f's_load_dwordx4 s[{T+8}:{T+11}], s[{G_WSP}:{G_WSP+1}], s{G_FB} glc')
        G_PV = G_R
        def post():
            a(f'v_mov_b32 v{V_T0}, s{G_PV}')
            a(f'buffer_store_dword v{V_T0}, v{V_FLA}, {WS}, s{G_DIRTY} offen sc1')
        def ld8(dst, base):
            for t in range(8):
                if t % 4 == 0: a(f's_add_u32 s{G_T0}, s{G_PO}, {base + t*1024}')
                a(f'buffer_load_dwordx4 {ar(dst+4*t,4)}, v{V_AL}, {WS}, s{G_T0} offen offset:{(t&3)*1024} sc1')
        def ldB(m, dst):
            a(f's_add_u32 s{G_T0}, s{G_XO}, {PB + m * PB_M}')
            for t in range(2): a(f'buffer_load_dwordx4 {ar(dst+4*t,4)}, v{V_BL}, {WS}, s{G_T0} offen offset:{t*1024} sc1')
        def nextseg():
            ln = a.newlabel('at_nx')
            a(f's_add_u32 s{G_NX}, s{G_SA}, s{G_STR}')
            a(f's_cmp_lt_u32 s{G_NX}, s{G_AEND}')
            a(f's_cbranch_scc1 {ln}')
            a(f's_max_u32 s{G_NX}, s{G_NX}, s{G_S2}')
            a(f's_cmp_eq_u32 s{G_AEND}, 255')
            a(f's_cselect_b32 s{G_NX}, s{G_NX}, s{G_S2}')
            a(f's_mov_b32 s{G_STR}, 3')
            a(f's_mov_b32 s{G_AEND}, 255')
            a.label(ln)
        nextseg()
        self.wait_flags_s(G_FB, 4, [0, 1, 2], 1)
        a(f's_mov_b32 s{G_XO}, 0')
        for m, dst in enumerate((B_Q, B_K, B_V)): ldB(m, dst)
        a(f's_add_u32 s{G_T1}, s{G_SA}, 1')
        self.wait_flags_s(G_FA, 4, [0, 1, 2], f's{G_T1}')
        a(f's_lshl_b32 s{G_PO}, s{G_SA}, 18')
        ld8(A_Q, PA); ld8(A_K, PA + PA_M); ld8(A_V, PA + 2 * PA_M)
        a(f's_mov_b32 s{G_DIRTY}, {F_DUM}')
        a(f's_mov_b32 s{G_PV}, 0')
        a(f's_mov_b32 s{G_END}, 0')
        a('s_waitcnt vmcnt(0)')
        self.acc(None)
        a.label(lpoll)
        poll()
        a.label(top)
        if self.sync:
            a('s_waitcnt lgkmcnt(0)')
            for i in (1, 2, 3): a(f's_min_u32 s{T}, s{T}, s{T+i}')
            for b in (4, 8):
                for i in (1, 2): a(f's_min_u32 s{T+b}, s{T+b}, s{T+b+i}')
            a(f's_min_u32 s{T+5}, s{G_NX}, {NSEG-1}')
            a(f's_cmp_gt_u32 s{T+4}, s{T+5}')
            a(f's_cselect_b32 s{T}, s{T}, 0')
            a(f's_min_u32 s{T}, s{T}, {NSEG}')
            a(f's_sub_u32 s{T+9}, s{T+8}, 1')
            a(f's_cmp_ge_u32 s{T+8}, {NSEG}')
            a(f's_cselect_b32 s{T+8}, {NSEG}, s{T+9}')
        else:
            a(f's_mov_b32 s{T}, {NSEG}'); a(f's_mov_b32 s{T+8}, {NSEG}')
        a(f's_cmp_lt_u32 s{G_SB}, s{T+8}')
        a(f's_cbranch_scc1 {lb}')
        a(f's_cmp_lt_u32 s{G_SA}, s{T}')
        a(f's_cbranch_scc1 {la}')
        a(f's_cmp_eq_u32 s{G_DIRTY}, {F_DUM}')
        a(f's_cbranch_scc1 {lnf}')
        a('s_waitcnt vmcnt(0)')
        post()
        a(f's_mov_b32 s{G_DIRTY}, {F_DUM}')
        a.label(lnf)
        a(f's_cmp_ge_u32 s{G_SA}, {NSEG}')
        a(f's_cselect_b32 s{G_T0}, s{G_SB}, 0')
        a(f's_cmp_ge_u32 s{G_T0}, {NSEG}')
        a(f's_cbranch_scc1 {lend}')
        self.spin_guard(lend)
        a('s_sleep 1')
        a(f's_branch {lpoll}')
        a.label(la)
        self.acc(0)
        G_KOK = G_END
        def ldkm():
            a('s_mov_b32 exec_lo, 0xff'); a('s_mov_b32 exec_hi, 0xff')
            for t in range(8): a(f'buffer_load_dwordx4 {ar(A_KM+4*t,4)}, v{V_KML}, {WS}, s{G_KMO} offen offset:{t*256} sc1')
            a('s_mov_b64 exec, -1')
        def ldvm():
            for e in range(4): a(f'buffer_load_dwordx2 {ar(A_VM+4*e,2)}, v{V_VML}, {WS}, s{G_KMO} offen offset:{e*512} sc1')
        lk1 = a.newlabel('at_k1'); lk2 = a.newlabel('at_k2'); lk3 = a.newlabel('at_k3'); lk4 = a.newlabel('at_k4')
        S(G_KMO, [(G_SA, 0, None, 16)], KM)
        a(f's_cmp_lg_u32 s{G_KOK}, 0')
        a(f's_cbranch_scc1 {lk1}')
        ldkm(); ldvm()
        a.label(lk1)
        S(G_OAO, [(G_SA, 0, None, 18)], OA)
        a(f's_cmp_lt_u32 s{G_NX}, s{T}')
        a(f's_cselect_b32 s{G_XMAX}, 1, 0')
        a(f's_cmp_lt_u32 s{G_NX}, {NSEG}')
        a(f's_cselect_b32 s{G_T1}, s{G_NX}, s{G_SA}')
        a(f's_lshl_b32 s{G_PO}, s{G_T1}, 18')
        S(G_KMO, [(G_T1, 0, None, 16)], KM)
        poll()
        for t in range(8):
            a(f'v_mfma_f32_32x32x16_bf16 {vr(V_SC,16)}, {ar(A_K+4*t,4)}, {ar(A_Q+4*t,4)}, {vr(V_SC if t else V_BA,16)}')
        a(f's_cmp_lg_u32 s{G_KOK}, 0')
        a(f's_cbranch_scc1 {lk2}')
        a('s_waitcnt vmcnt(4)')
        a.label(lk2)
        ld8(A_K, PA + PA_M)
        for t in range(8):
            a(f'v_mfma_f32_32x32x16_bf16 {vr(V_SP,16)}, {ar(A_KM+4*t,4)}, {ar(A_Q+4*t,4)}, {vr(V_SP,16) if t else 0}')
        self.acc(1)
        a(f's_mov_b32 s{G_KOK}, s{G_XMAX}')
        ld8(A_Q, PA)
        a(f's_cmp_eq_u32 s{G_KOK}, 0')
        a(f's_cbranch_scc1 {lk3}')
        ldkm()
        a.label(lk3)
        self.softmax([V_SC + j for j in range(16)] + [V_SP + j for j in range(4)], V_M, V_M2, V_SUM)
        for j in range(8): a(f'v_cvt_pk_bf16_f32 v{V_PP+j}, v{V_SC+2*j}, v{V_SC+2*j+1}')
        for j in range(2): a(f'v_cvt_pk_bf16_f32 v{V_PM+j}, v{V_SP+2*j}, v{V_SP+2*j+1}')
        def fin(e):
            O = V_O + 16 * e; PK = V_PK + 8 * e
            r = [f'v_mul_f32 v{O+j}, v{O+j}, v{V_SUM}' for j in range(16)]
            r += [f'v_cvt_pk_bf16_f32 v{PK+j}, v{O+2*j}, v{O+2*j+1}' for j in range(8)]
            return r
        def pv(e):
            O = vr(V_O + 16 * e, 16)
            return [f'v_mfma_f32_32x32x16_bf16 {O}, {ar(A_V+8*e,4)}, {vr(V_PP,4)}, 0',
                    f'v_mfma_f32_32x32x16_bf16 {O}, {ar(A_V+8*e+4,4)}, {vr(V_PP+4,4)}, {O}',
                    f'v_mfma_f32_32x32x16_bf16 {O}, {ar(A_VM+4*e,4)}, {vr(V_PM,4)}, {O}']
        a('s_waitcnt vmcnt(16)')
        post()
        for m in pv(0) + pv(1): a(m)
        q = fin(0) + fin(1)
        for m in pv(2) + pv(3):
            a(m)
            for _ in range(6): a(q.pop(0))
        ld8(A_V, PA + 2 * PA_M)
        a(f's_cmp_eq_u32 s{G_KOK}, 0')
        a(f's_cbranch_scc1 {lk4}')
        ldvm()
        a.label(lk4)
        for x in q + fin(2) + fin(3): a(x)
        for e in range(4):
            if e % 2 == 0: a(f's_add_u32 s{G_T0}, s{G_OAO}, {e*2048}')
            for t in range(2): a(f'buffer_store_dwordx4 {vr(V_PK+8*e+4*t,4)}, v{V_AL}, {WS}, s{G_T0} offen offset:{(e&1)*2048+t*1024} sc1')
        a(f's_mov_b32 s{G_PV}, 1')
        S(G_DIRTY, [(G_SA, 0, None, 12)], F_ATA)
        a(f's_mov_b32 s{G_SA}, s{G_NX}')
        nextseg()
        self.acc(2)
        a('s_waitcnt vmcnt(17)')
        self.acc(3)
        a(f's_branch {top}')
        a.label(lb)
        self.acc(0)
        poll()
        S(G_OBO, [(G_SB, 0, None, 16)], OB)
        a(f's_add_u32 s{G_T1}, s{G_SB}, 1')
        a(f's_min_u32 s{G_T1}, s{G_T1}, {NSEG-1}')
        a(f's_lshl_b32 s{G_XO}, s{G_T1}, 16')
        a(f'v_mfma_f32_32x32x16_bf16 {vr(V_SP,16)}, {ar(B_KP,4)}, {ar(B_Q,4)}, {vr(V_BP,16)}')
        a(f'v_mfma_f32_32x32x16_bf16 {vr(V_SP,16)}, {ar(B_KP+4,4)}, {ar(B_Q+4,4)}, {vr(V_SP,16)}')
        a(f'v_mfma_f32_32x32x16_bf16 {vr(V_SC,16)}, {ar(B_K,4)}, {ar(B_Q,4)}, {vr(V_BC,16)}')
        a(f'v_mfma_f32_32x32x16_bf16 {vr(V_SC,16)}, {ar(B_K+4,4)}, {ar(B_Q+4,4)}, {vr(V_SC,16)}')
        for j in range(8): a(f'v_accvgpr_mov_b32 a{B_KP+j}, a{B_K+j}')
        for j in range(8): a(f'v_accvgpr_mov_b32 a{B_VC+j}, a{B_V+j}')
        for m, dst in enumerate((B_Q, B_K, B_V)): ldB(m, dst)
        self.softmax([V_SP + 8 + j for j in range(8)] + [V_SC + j for j in range(16)], V_M, V_M2, V_SUM, G_C2)
        for j in range(8): a(f'v_cvt_pk_bf16_f32 v{V_PP+j}, v{V_SC+2*j}, v{V_SC+2*j+1}')
        for j in range(4): a(f'v_cvt_pk_bf16_f32 v{V_PP+8+j}, v{V_SP+8+2*j}, v{V_SP+8+2*j+1}')
        O = vr(V_O, 16)
        a(f'v_mfma_f32_32x32x16_bf16 {O}, {ar(B_VC,4)}, {vr(V_PP,4)}, 0')
        a(f'v_mfma_f32_32x32x16_bf16 {O}, {ar(B_VC+4,4)}, {vr(V_PP+4,4)}, {O}')
        a(f'v_mfma_f32_32x32x16_bf16 {O}, {ar(B_VP,4)}, {vr(V_PP+8,4)}, {O}')
        for j in range(4): a(f'v_accvgpr_mov_b32 a{B_VP+j}, a{B_VC+4+j}')
        self.acc(4)
        a('s_waitcnt vmcnt(6)')
        self.acc(5)
        post()
        a(f's_cmp_lg_u32 s{G_SB}, 0')
        a(f's_cbranch_scc1 {lnb}')
        bias(V_BP, 32)
        a.label(lnb)
        for j in range(16): a(f'v_mul_f32 v{V_O+j}, v{V_O+j}, v{V_SUM}')
        for j in range(8): a(f'v_cvt_pk_bf16_f32 v{V_PK+j}, v{V_O+2*j}, v{V_O+2*j+1}')
        for t in range(2):
            for j in range(2): a(f'v_permlane32_swap_b32 v{V_PK+4*t+j}, v{V_PK+4*t+2+j}')
        for t in range(2): a(f'buffer_store_dwordx4 {vr(V_PK+4*t,4)}, v{V_BL}, {WS}, s{G_OBO} offen offset:{t*1024} sc1')
        a(f's_add_u32 s{G_SB}, s{G_SB}, 1')
        a(f's_mov_b32 s{G_DIRTY}, {F_ATB}')
        a(f's_mov_b32 s{G_PV}, s{G_SB}')
        if self.prof:
            lm = a.newlabel('at_m')
            a(f's_cmp_lg_u32 s{G_SB}, {NSEG}')
            a(f's_cbranch_scc1 {lm}')
            self.mark(1)
            a.label(lm)
        self.acc(6)
        a('s_waitcnt vmcnt(3)')
        self.acc(7)
        a(f's_branch {top}')
        a.label(lend)
        a('s_waitcnt vmcnt(0) lgkmcnt(0)')
        self.mark(5)
        self.mark(6)
        a(f's_branch {LNEXT}')

    def out64(self, LNEXT, NF=16, SLP=10):
        a = self.a; L = self.L; S = self.S
        P = G_PTR
        NR = NOUT // 16
        V_G, V_TR, V_FA, V_RW, V_RR, V_OUT, V_FP, V_FR = 6, 7, 8, 9, 10, 11, 12, 13
        V_LW = 16
        V_AC = 32
        V_F = 64
        V_W = 128
        RB = 131072
        G_NXT, G_NOK, G_FSO = G_XO, G_END, G_XMAX
        a(f's_load_dwordx2 s[{P}:{P+1}], s[0:1], {K_WO}')
        a(f's_load_dwordx2 s[{P+2}:{P+3}], s[0:1], {K_OUT}')
        a(f's_mul_i32 s{G_J}, s{G_ID}, {-(-1024 // NR)}')
        a(f's_lshr_b32 s{G_J}, s{G_J}, 10')
        assert all((i * -(-1024 // NR)) >> 10 == i // NR for i in range(NOUT))
        a(f's_mul_i32 s{G_T0}, s{G_J}, {NR}')
        a(f's_sub_u32 s{G_SEG}, s{G_ID}, s{G_T0}')
        a('s_waitcnt lgkmcnt(0)')
        srd(a, G_W, P, 8 * MB)
        srd(a, G_OUT, P + 2, 8 * MB)
        S(G_T0, [(G_WV, 0, None, 21), (G_J, 0, None, 7)])
        L(V_G, [(3, 3, 11), (0, 3, 4)], f's{G_T0}')
        a(f's_lshl_b32 s{G_T0}, s{G_WV}, 15')
        L(V_TR, [(5, 1, 9), (2, 2, 7), (4, 1, 5), (0, 2, 3)], f's{G_T0}')
        def wreg(t, tile):
            return f'a[{8*t+4*tile}:{8*t+4*tile+3}]' if t < 32 else vr(V_W + 8 * (t - 32) + 4 * tile, 4)
        def rds(p):
            if p >= 48: return []
            f, b = ('a', 8 * p) if p < 32 else ('v', V_W + 8 * (p - 32))
            return [(f'{f}[{b+4*tl+2*q}:{b+4*tl+2*q+1}]', V_TR, tl * 64 + q * 1024) for tl in range(2) for q in range(2)]
        self.load_weights([(G_W, V_G, 64, rds, '0', '16384')])
        self.mark(4)
        a(f's_lshl_b32 s{G_T0}, s{G_WV}, 16')
        a(f'v_add_u32 v{V_FA}, s{G_T0}, v{V_L16}')
        S(G_T0, [(G_WV, 0, None, 13)], RB)
        a(f'v_add_u32 v{V_RW}, s{G_T0}, v{V_L16}')
        S(G_T0, [(G_WV, 0, None, 7)], RB)
        L(V_RR, [(1, 2, 10), (0, 1, 9), (3, 3, 4)], f's{G_T0}')
        S(G_T0, [(G_WV, 0, None, 15), (G_J, 0, None, 7)])
        L(V_OUT, [(3, 3, 12), (0, 3, 3)], f's{G_T0}')
        L(V_FP, [(0, 5, 7)], FLG)
        self.wait_dbg(D_INIT, NWG)
        def flagoff(seg):
            S(G_FSO, [(seg, 0, 6, 12)], F_ATA)
        order = []
        for i in range(16): order += [3 * i, 3 * i + 1, 3 * i + 2, 48 + i]
        def ldA(n, base):
            t = order[n]
            a(f's_add_u32 s{G_T0}, s{base}, {t*1024}')
            a(f'buffer_load_dwordx4 {vr(V_F+4*(n%NF),4)}, v{V_FA}, {WS}, s{G_T0} offen sc1')
        def ldW(i):
            for tl in range(2):
                for q in range(2):
                    r = V_LW + 8 * (i % 2) + 4 * tl + 2 * q
                    a(f'ds_read_b64_tr_b16 v[{r}:{r+1}], v{V_TR} offset:{i*2048+tl*64+q*1024}')
        lp = a.newlabel('o6_loop'); lgo = a.newlabel('o6_go'); lw = a.newlabel('o6_w'); lwd = a.newlabel('o6_wd')
        self.acc(None)
        a.label(lp)
        S(G_OAO, [(G_SEG, 0, None, 18)], OA)
        if self.sync:
            flagoff(G_SEG)
            a.label(lw)
            a(f'buffer_load_dword v{V_FR}, v{V_FP}, {WS}, s{G_FSO} offen sc1')
            self.spin_guard(lwd)
            a('s_waitcnt vmcnt(0)')
            a(f'v_cmp_eq_u32 vcc, 0, v{V_FR}')
            a(f's_cbranch_vccz {lwd}')
            a(f's_sleep {SLP}')
            a(f's_branch {lw}')
            a.label(lwd)
        for n in range(NF - 1): ldA(n, G_OAO)
        a.label(lgo)
        self.acc(0)
        a(f's_lshl_b32 s{G_OUO}, s{G_SEG}, 17')
        a(f's_add_u32 s{G_NXT}, s{G_SEG}, {NR}')
        flagoff(G_NXT)
        ldW(0)
        FL = 24
        for n in range(64):
            t = order[n]
            extra = 1 if (FL < n <= FL + NF - 1) else 0
            a(f's_waitcnt vmcnt({NF - 2 + extra})')
            x = vr(V_F + 4 * (n % NF), 4)
            if t >= 48: a('s_waitcnt lgkmcnt(0)')
            for tl in range(2):
                w = wreg(t, tl) if t < 48 else vr(V_LW + 8 * ((t - 48) % 2) + 4 * tl, 4)
                D = vr(V_AC + 16 * tl, 16)
                a(f'v_mfma_f32_32x32x16_bf16 {D}, {w}, {x}, {D if n else 0}')
                if tl == 0:
                    m = n + NF - 1
                    if m == 64:
                        a(f'v_cmp_eq_u32 vcc, 0, v{V_FR}')
                        S(G_KMO, [(G_NXT, 0, None, 18)], OA)
                        a(f's_cmp_eq_u64 vcc, 0')
                        a(f's_cselect_b32 s{G_NOK}, 1, 0')
                        a(f's_cmp_ge_u32 s{G_NXT}, {NSEG}')
                        a(f's_cselect_b32 s{G_NOK}, 0, s{G_NOK}')
                        a(f's_cmp_eq_u32 s{G_NOK}, 0')
                        a(f's_cselect_b32 s{G_KMO}, s{G_OAO}, s{G_KMO}')
                    ldA(m % 64, G_OAO if m < 64 else G_KMO)
                    if n == FL:
                        if self.sync: a(f'buffer_load_dword v{V_FR}, v{V_FP}, {WS}, s{G_FSO} offen sc1')
                        else: a(f'buffer_load_dword v{V_T1}, v{V_FP}, {WS}, s{G_FSO} offen sc1'); a(f'v_mov_b32 v{V_FR}, 127')
            if t >= 48 and t < 63: ldW(t - 48 + 1)
        self.acc(1)
        a('s_barrier')
        for b in range(8): a(f'ds_write_b128 v{V_RW}, {vr(V_AC+4*b,4)} offset:{b*1024}')
        a('s_waitcnt lgkmcnt(0)')
        a('s_barrier')
        for h in range(2):
            for w in range(4): a(f'ds_read_b128 {vr(V_AC+16*h+4*w,4)}, v{V_RR} offset:{h*4096+w*8192}')
        for h in range(2):
            R = V_AC + 16 * h
            a(f's_waitcnt lgkmcnt({4-4*h})')
            for j in (0, 2): a(f'v_pk_add_f32 {vr(R+j,2)}, {vr(R+j,2)}, {vr(R+4+j,2)}')
            for j in (0, 2): a(f'v_pk_add_f32 {vr(R+8+j,2)}, {vr(R+8+j,2)}, {vr(R+12+j,2)}')
            for j in (0, 2): a(f'v_pk_add_f32 {vr(R+j,2)}, {vr(R+j,2)}, {vr(R+8+j,2)}')
            for j in range(2): a(f'v_cvt_pk_bf16_f32 v{V_LW+8+2*h+j}, v{R+2*j}, v{R+2*j+1}')
            a(f'buffer_store_dwordx2 {vr(V_LW+8+2*h,2)}, v{V_OUT}, s[{G_OUT}:{G_OUT+3}], s{G_OUO} offen offset:{h*64}{self.ost}')
        self.acc(2)
        a(f's_mov_b32 s{G_SEG}, s{G_NXT}')
        a(f's_mov_b32 s{G_OAO}, s{G_KMO}')
        a(f's_cmp_lg_u32 s{G_NOK}, 0')
        a(f's_cbranch_scc1 {lgo}')
        a(f's_cmp_lt_u32 s{G_SEG}, {NSEG}')
        a(f's_cbranch_scc1 {lp}')
        self.mark(5)
        a(f's_branch {LNEXT}')
```

```python
MB = 1 << 20
NSEG = 64
PA = 0
PA_M = 16 * MB
PB = 48 * MB
PB_M = 4 * MB
OA = 64 * MB
OB = 80 * MB
KM = 84 * MB
VM = 88 * MB
SCB = 92 * MB
FLG = 110 * MB
HOFF = 112 * MB
NPAGE = 9
SLOT = 256 * 1024
WOF = 132 * MB
TRACE = 140 * MB
WS_BYTES = 268435456
K_AX, K_MEM0, K_WQ, K_WK, K_WV, K_WO, K_SEG, K_BX, K_WQKV, K_BWO, K_OUT, K_DBG, K_WS = [8 * i for i in range(13)]
OOB = 0x7f000000
D_INIT = 0
D_RDY = 32
F_SLA = 0
F_SLB = 4096
F_REC = 8192
F_ATB = 16384
F_DUM = 20480
F_ATA = 32768
N0 = 6
N1 = 30
NOUT = 80
NWG = 256
D_ROT = 48
```

```python
from asmlib import *
from layout import *
import math, struct

def srd(a, s, ptr, nbytes):
    a(f's_mov_b32 s{s}, s{ptr}')
    a(f's_and_b32 s{s+1}, s{ptr+1}, 0xffff')
    a(f's_mov_b32 s{s+2}, {nbytes}')
    a(f's_mov_b32 s{s+3}, 0x00020000')

def lane(a, dst, tmp, VL, terms, add=None):
    first = True
    for sh, w, out in terms:
        t = dst if first else tmp
        if sh + w >= 6: a(f'v_lshrrev_b32 v{t}, {sh}, v{VL}')
        elif sh == 0: a(f'v_and_b32 v{t}, {(1 << w) - 1}, v{VL}')
        else: a(f'v_bfe_u32 v{t}, v{VL}, {sh}, {w}')
        if first:
            if out: a(f'v_lshlrev_b32 v{dst}, {out}, v{dst}')
        else: a(f'v_lshl_add_u32 v{dst}, v{tmp}, {out}, v{dst}')
        first = False
    if add is not None: a(f'v_add_u32 v{dst}, {add}, v{dst}')

def sexpr(a, dst, tmp, terms, const=0):
    first = True
    for sreg, sh, w, out in terms:
        t = dst if first else tmp
        src = sreg
        if sh: a(f's_lshr_b32 s{t}, s{src}, {sh}'); src = t
        if w is not None: a(f's_and_b32 s{t}, s{src}, {(1 << w) - 1}'); src = t
        if out: a(f's_lshl_b32 s{t}, s{src}, {out}'); src = t
        if first:
            if src != dst: a(f's_mov_b32 s{dst}, s{src}')
        else: a(f's_add_u32 s{dst}, s{dst}, s{src}')
        first = False
    if const: a(f's_add_u32 s{dst}, s{dst}, {const}')

S_PFL = 3
S_WS = 4
S_WQ = 8
S_WO = 20
S_M0 = 24
S_RID, S_H, S_I, S_W, S_STEP = 28, 29, 30, 31, 32
S_SL0, S_SL1, S_SL2 = 33, 34, 35
S_SC, S_KV = 36, 37
S_T0, S_T1, S_T2 = 38, 39, 40
S_SPIN = 41
S_MLO8 = 42
S_MHI = 44
S_MHI8 = 46
S_PAR = 48
S_HB = 49
S_C = 50
S_KXB = 51
S_TS = 52
S_TAG = 54
S_MBO = 55
S_MK = 56
S_PTR = 72
S_NSO = 88
S_WSP = 90
S_DBG = 92
S_SEEN, S_FKV, S_FAST, S_FRO = 94, 95, 96, 97
S_SC1, S_SC3 = 98, 99

L_QK = 0
L_V = 10240
L_OP = 14336
L_X = 15360
L_KX = 16384

def gen_rec(a, prof=0, nsteps=NSEG, sync=False, DA=0, DB=2, DC=0, PLAINB=1, TPOS=1, TA=0, NEAR=1, ILA=4, ILC=4, SEP=0, ROT=0, OMAP=0, RDYP=26, MIX=0, TW=1, KC=2, CJ=3, LB=1, RING=0, XP=0):
    V_L, V_T0, V_T1, V_T2 = 1, 2, 3, 4
    V_IDX = 5
    V_MEMST, V_AOFF, V_COFF, V_COFF2 = 6, 7, 12, 13
    V_FF = 8
    V_QKW, V_QKW2, V_L16, V_VW, V_QKR, V_SCST, V_SCST2, V_SCLM = 14, 15, 16, 17, 18, 19, 20, 21
    V_SCL = [22, 23, 24]
    V_VR, V_VR2, V_OST, V_OPW, V_OPR, V_PFG, V_CK = 25, 26, 27, 28, 29, 30, 31
    V_ONE = 32
    V_MA = 36
    V_VX, V_KX = 52, 60
    V_D = 68
    V_S = 68
    V_PTG, V_NSA, V_SCCL, V_OCL = 92, 93, 94, 95
    V_X = 96
    V_R = 100
    V_TKST, V_TKSA, V_TG, V_M, V_M2 = 132, 133, 134, 135, 136
    V_VM = 138
    V_ZZ = 144
    V_TR = 148
    V_P = 156
    V_LD = 164
    V_NS = 180
    V_GQ, V_GO, V_TRQ, V_TRO = 184, 185, 186, 187
    V_FRA, V_FRV = 188, 189
    V_CK2 = 4
    TRMAP = {0: 0, 2: 1, 5: 3, 8: 4, 10: 5, 'b': 2, 7: 6, 11: 7}
    def ts(k):
        if prof == 3: a(f's_memtime s[{8+2*k}:{9+2*k}]')
    def harvest():
        if prof != 3: return
        a('s_waitcnt lgkmcnt(0)')
        lh = a.newlabel('hv')
        a(f's_cmp_le_u32 s{S_STEP}, 3')
        a(f's_cbranch_scc1 {lh}')
        for k in range(1, 10):
            a(f's_sub_u32 s{S_TS}, s{8+2*k}, s{6+2*k}')
            a(f'v_readlane_b32 s{S_TS+1}, v{V_TR}, {k}')
            a(f's_add_u32 s{S_TS}, s{S_TS}, s{S_TS+1}')
            a(f'v_writelane_b32 v{V_TR}, s{S_TS}, {k}')
        a.label(lh)
    def stamp(k):
        if prof not in (1, 2): return
        e = TRMAP[k]
        if prof == 2 and k not in (5, 10, 7, 11): return
        lsk = a.newlabel('st')
        a(f's_cmp_eq_u32 s{S_W}, 3')
        a(f's_cbranch_scc1 {lsk}')
        a(f's_memrealtime s[{S_TS}:{S_TS+1}]')
        a('s_waitcnt lgkmcnt(0)')
        if k in (10, 11):
            a(f's_sub_u32 s{S_TS+1}, s{S_STEP}, 1')
            a(f's_mov_b32 m0, s{S_TS+1}')
        else:
            a(f's_mov_b32 m0, s{S_STEP}')
        a(f's_lshl_b32 s{S_TS}, s{S_TS}, 8')
        a(f's_and_b32 s{S_TS+1}, s{S_SPIN}, 0xff')
        a(f's_or_b32 s{S_TS}, s{S_TS}, s{S_TS+1}')
        a(f'v_writelane_b32 v{V_TR+e}, s{S_TS}, m0')
        a.label(lsk)
    def pmark(e):
        if not prof: return
        a(f's_memrealtime s[{S_TS}:{S_TS+1}]')
        a('s_waitcnt lgkmcnt(0)')
        a(f's_lshl_b32 s{S_TS}, s{S_TS}, 8')
        a(f'v_writelane_b32 v{V_TR+e}, s{S_TS}, 63')
    def L(dst, terms, add=None): lane(a, dst, V_T2, V_L, terms, add)
    def S(dst, terms, const=0): sexpr(a, dst, S_T2, terms, const)
    def spin_guard(lgive):
        a(f's_add_u32 s{S_SPIN}, s{S_SPIN}, 1')
        a(f's_cmp_ge_u32 s{S_SPIN}, 0x80000')
        a(f's_cbranch_scc1 {lgive}')
    def keep(reg, cond):
        a(cond)
        a(f'v_mov_b32 v{V_T2}, {OOB}')
        a(f'v_cndmask_b32 v{reg}, v{V_T2}, v{reg}, vcc')

    P = S_PTR
    a(f's_load_dwordx2 s[{P}:{P+1}], s[0:1], {K_MEM0}')
    a(f's_load_dwordx4 s[{P+4}:{P+7}], s[0:1], {K_WQ}')
    a(f's_load_dwordx4 s[{P+8}:{P+11}], s[0:1], {K_WV}')
    a(f's_load_dwordx2 s[{S_WSP}:{S_WSP+1}], s[0:1], {K_WS}')
    a(f's_load_dwordx2 s[{S_DBG}:{S_DBG+1}], s[0:1], {K_DBG}')
    a(f'v_and_b32 v{V_L}, 63, v0')
    a(f'v_lshrrev_b32 v{V_T0}, 6, v0')
    a(f'v_readfirstlane_b32 s{S_W}, v{V_T0}')
    a(f's_lshr_b32 s{S_H}, s{S_RID}, 2')
    a(f's_and_b32 s{S_I}, s{S_RID}, 3')
    a(f's_mov_b32 s{S_SPIN}, 0')
    if prof: a('s_mov_b32 s100, 0'); a('s_mov_b32 s101, 0')
    a('s_waitcnt lgkmcnt(0)')
    srd(a, S_M0, P, 16384)
    srd(a, S_WQ, P + 4, 8 * MB)
    srd(a, S_WQ + 4, P + 6, 8 * MB)
    srd(a, S_WQ + 8, P + 8, 8 * MB)
    srd(a, S_WO, P + 10, 8 * MB)
    srd(a, S_WS, S_WSP, WS_BYTES)
    WS = f's[{S_WS}:{S_WS+3}]'
    a(f's_sub_u32 s{S_HB}, 0, s{S_WSP}')
    a(f's_and_b32 s{S_HB}, s{S_HB}, {2*MB-1}')
    a(f's_add_u32 s{S_HB}, s{S_HB}, {HOFF}')

    if prof:
        for e in range(8): a(f'v_mov_b32 v{V_TR+e}, 0')
    lsk = a.newlabel('rec_cal')
    a(f's_mov_b32 s{S_PAR}, 1')
    a(f's_cmp_lg_u32 s{S_W}, 3')
    a(f's_cbranch_scc1 {lsk}')
    S(S_T0, [(S_RID, 0, 3, 21), (S_RID, 3, 1, 13), (S_RID, 4, 3, 8), (S_HB, 0, None, 0)], 15 * 16384)
    S(S_T1, [(S_RID, 3, 1, 14)])
    a(f's_sub_u32 s{S_T1}, s{S_T0}, s{S_T1}')
    a(f's_add_u32 s{S_T1}, s{S_T1}, 8192')
    a(f's_load_dword s{P+8}, s[{S_WSP}:{S_WSP+1}], s{S_T0} glc')
    a(f's_load_dword s{P+9}, s[{S_WSP}:{S_WSP+1}], s{S_T1} glc')
    for k in range(2):
        a('s_waitcnt lgkmcnt(0)')
        a(f's_memtime s[{P+4}:{P+5}]')
        a('s_waitcnt lgkmcnt(0)')
        a(f's_load_dword s{P+8}, s[{S_WSP}:{S_WSP+1}], s{S_T0+k} glc')
        a('s_waitcnt lgkmcnt(0)')
        a(f's_memtime s[{P+6}:{P+7}]')
        a('s_waitcnt lgkmcnt(0)')
        a(f's_sub_u32 s{P+k}, s{P+6}, s{P+4}')
    a(f's_cmp_lt_u32 s{P+1}, s{P}')
    a(f's_cselect_b32 s{S_T0}, 1, 0')
    a(f's_lshr_b32 s{S_T1}, s{S_RID}, 3')
    a(f's_xor_b32 s{S_T0}, s{S_T0}, s{S_T1}')
    a(f's_xor_b32 s{S_T0}, s{S_T0}, s{S_RID}')
    S(S_PAR, [(S_T0, 0, 1, 16)], 1)
    a.label(lsk)
    pmark(2)
    S(S_T0, [(S_W, 0, None, 21), (S_RID, 0, None, 6)])
    L(V_GQ, [(2, 4, 13), (0, 2, 4)], f's{S_T0}')
    S(S_T0, [(S_W, 0, None, 21), (S_RID, 1, None, 5)])
    L(V_GO, [(1, 5, 11), (0, 1, 4)], f's{S_T0}')
    S_LB = S_SL0
    a(f's_lshl_b32 s{S_LB}, s{S_W}, 15')
    L(V_TRQ, [(4, 2, 9), (2, 2, 6), (0, 2, 3)], f's{S_LB}')
    L(V_TRO, [(4, 2, 8), (2, 2, 5), (0, 2, 3)], f's{S_LB}')
    pairs = []
    def wq_reg(kb, tile): return ('a', (kb * 6 + tile) * 8)
    def wo_reg(kb):
        return ('a', 192 + kb * 8) if kb < 8 else ('v', 192 + (kb - 8) * 8)
    for kb in range(4):
        for hf32 in range(2):
            for m in range(3):
                k0 = kb * 64 + hf32 * 32
                ld = [(S_WQ + 4 * m, V_GQ, (k0 + 16 * j) * 8192) for j in range(2)]
                rd = []
                for t in range(2):
                    f, b = wq_reg(kb, m * 2 + t)
                    for q in range(2):
                        r0 = b + hf32 * 4 + q * 2
                        rd.append((f'{f}[{r0}:{r0+1}]', V_TRQ, t * 32 + q * 256))
                pairs.append((ld, rd))
    NW = 0
    wop = []
    for kb in range(16):
        ld = [(S_WO, V_GO, (kb * 64 + 32 * j) * 2048) for j in range(2)]
        rd = []
        f, b = wo_reg(kb)
        for j in range(2):
            for q in range(2):
                r0 = b + j * 4 + q * 2
                rd.append((f'{f}[{r0}:{r0+1}]', V_TRO, j * 1024 + q * 128))
        wop.append((ld, rd))
    mix = []
    for g in range(8): mix += [wop[2*g], pairs[3*g], pairs[3*g+1], wop[2*g+1], pairs[3*g+2]]
    pairs = mix if MIX else pairs + wop
    NSL = 16
    def issue(p):
        ld, _ = pairs[p]
        for j, (sd, vo, so) in enumerate(ld):
            a(f's_add_u32 m0, s{S_LB}, {(p % NSL) * 2048 + j * 1024}')
            a(f's_mov_b32 s{S_T0}, {so}')
            a(f'buffer_load_dwordx4 v{vo}, s[{sd}:{sd+3}], s{S_T0} offen lds')
    issued = 0
    FB = NSL if NW else 6
    for p in range(FB):
        issue(p); issued += 1
    L(V_T0, [(1, 1, 0)])
    a(f'v_mov_b32 v{V_T1}, 0xaaaa')
    a(f'v_mul_u32_u24 v{V_T0}, v{V_T0}, v{V_T1}')
    a(f'v_add_u32 v{V_IDX}, 0x4444, v{V_T0}')
    a(f'v_lshlrev_b32 v{V_L16}, 4, v{V_L}')
    BLK = 16384
    S(S_T0, [(S_RID, 6, None, 14), (S_RID, 0, 6, 7)], 8 * BLK)
    a(f'v_lshl_add_u32 v{V_MEMST}, v{V_L}, 2, s{S_T0}')
    S(S_T0, [(S_W, 1, None, 14), (S_W, 0, 1, 12)], 8 * BLK)
    a(f'v_add_u32 v{V_AOFF}, s{S_T0}, v{V_L16}')
    S(S_T0, [(S_RID, 0, 1, 16), (S_W, 0, None, 14)])
    a(f'v_add_u32 v{V_COFF}, s{S_T0}, v{V_L16}')
    a(f'v_add_u32 v{V_COFF2}, 4096, v{V_COFF}')
    a(f'v_lshrrev_b32 v{V_T0}, 4, v{V_L}')
    a(f'v_mul_u32_u24 v{V_T0}, 320, v{V_T0}')
    a(f'v_and_b32 v{V_T1}, 15, v{V_L}')
    a(f'v_lshl_add_u32 v{V_T0}, v{V_T1}, 2, v{V_T0}')
    a(f's_mul_i32 s{S_T0}, s{S_W}, 2560')
    a(f'v_add_u32 v{V_QKW}, s{S_T0}, v{V_T0}')
    a(f'v_add_u32 v{V_QKW2}, 1280, v{V_QKW}')
    S(S_T0, [(S_W, 0, None, 10)], L_V)
    a(f'v_add_u32 v{V_VW}, s{S_T0}, v{V_L16}')
    L(V_T0, [(0, 2, 1), (2, 1, 0)], 8)
    a(f'v_and_b32 v{V_T1}, 15, v{V_L}')
    a(f'v_cmp_gt_u32 vcc, 8, v{V_T1}')
    a(f'v_cndmask_b32 v{V_T1}, v{V_T0}, v{V_T1}, vcc')
    a(f'v_mul_u32_u24 v{V_T1}, 160, v{V_T1}')
    L(V_T0, [(5, 1, 6), (4, 1, 4)])
    a(f'v_add_u32 v{V_QKR}, v{V_T0}, v{V_T1}')
    a(f's_lshl_b32 s{S_T0}, s{S_RID}, 11')
    a(f'v_add_u32 v{V_SCST}, s{S_T0}, v{V_L16}')
    L(V_SCST2, [(4, 1, 7), (0, 3, 4)], f's{S_T0}')
    for k in range(3):
        a(f's_add_u32 s{S_T1}, s{S_I}, {k+1}')
        S(S_T0, [(S_T1, 0, 2, 11), (S_H, 0, None, 13)])
        a(f'v_add_u32 v{V_SCL[k]}, s{S_T0}, v{V_L16}')
    a(f's_lshl_b32 s{S_T0}, s{S_H}, 13')
    L(V_SCLM, [(4, 2, 11), (0, 4, 4)], f's{S_T0}')
    E0 = [(3, 1, 8), (1, 1, 6), (2, 1, 5), (0, 1, 4)]
    L(V_VR, [(4, 2, 8), (3, 1, 3)] + E0[1:], L_V)
    S(S_T0, [(S_RID, 0, None, 11), (S_W, 0, 1, 7)], PA + PA_M)
    L(V_T0, [(3, 1, 8), (0, 3, 4), (4, 1, 9), (5, 1, 10)], f's{S_T0}')
    a(f's_add_u32 s{S_T0}, s{S_T0}, {PA_M}')
    L(V_T1, E0 + [(4, 1, 9), (5, 1, 10)], f's{S_T0}')
    a(f's_cmp_lt_u32 s{S_W}, 2')
    a(f's_cselect_b64 vcc, -1, 0')
    a(f'v_cndmask_b32 v{V_PFG}, v{V_T1}, v{V_T0}, vcc')
    a(f's_lshl_b32 s{S_PFL}, s{S_W}, 10')
    S(S_T0, [(S_H, 3, None, 14), (S_H, 0, 3, 10), (S_I, 0, 1, 9), (S_I, 1, None, 7)])
    L(V_OST, [(2, 1, 16), (5, 1, 8), (1, 1, 6), (4, 1, 5), (0, 1, 4)], f's{S_T0}')
    S(S_T1, [(S_W, 1, None, 16), (S_W, 0, 1, 8), (S_T0, 0, None, 0)])
    a(f'v_add_u32 v{V_OCL}, s{S_T1}, v{V_L16}')
    keep(V_OCL, f'v_cmp_gt_u32 vcc, 8, v{V_L}')
    S(S_T0, [(S_W, 0, None, 8)], L_OP)
    a(f'v_lshl_add_u32 v{V_OPW}, v{V_L}, 2, s{S_T0}')
    L(V_OPR, [(2, 1, 7), (4, 1, 6), (0, 2, 4), (3, 1, 3)], L_OP)
    a(f's_mul_i32 s{S_T1}, s{S_W}, 320')
    S(S_T0, [(S_RID, 0, None, 11), (S_T1, 0, None, 0)])
    a(f'v_add_u32 v{V_SCCL}, s{S_T0}, v{V_L16}')
    keep(V_SCCL, f'v_cmp_gt_u32 vcc, 20, v{V_L}')
    a(f's_mul_i32 s{S_T0}, s{S_W}, 3')
    a(f'v_min_u32 v{V_T0}, 2, v{V_L}')
    a(f'v_add_u32 v{V_T0}, s{S_T0}, v{V_T0}')
    a(f'v_min_u32 v{V_T0}, 9, v{V_T0}')
    S(S_T0, [(S_RID, 0, None, 11)], 0 if RING else 128 * 2048)
    a(f'v_lshl_add_u32 v{V_PTG}, v{V_T0}, 7, s{S_T0}')
    lw = a.newlabel('rec_ns')
    a(f's_lshl_b32 s{S_T0}, s{S_RID}, 9')
    L(V_NSA, [(4, 2, 7), (0, 2, 5), (2, 1, 4)], f's{S_T0}')
    a('s_mov_b32 vcc_lo, 0xff00ff00'); a('s_mov_b32 vcc_hi, 0xff00ff00')
    a(f's_cmp_eq_u32 s{S_W}, 1')
    a(f's_cbranch_scc1 {lw}')
    a(f's_add_u32 s{S_T0}, s{S_T0}, {VM - KM}')
    a(f'v_add_u32 v{V_NSA}, s{S_T0}, v{V_L16}')
    a('s_mov_b32 vcc_lo, -1'); a('s_mov_b32 vcc_hi, 0')
    a(f's_cmp_eq_u32 s{S_W}, 2')
    a(f's_cbranch_scc1 {lw}')
    S(S_T0, [(S_RID, 6, None, 14), (S_RID, 0, 6, 7)], 8 * BLK)
    a(f'v_add_u32 v{V_NSA}, s{S_T0}, v{V_L16}')
    a(f's_cmp_eq_u32 s{S_W}, 3')
    a('s_cselect_b32 vcc_lo, 0xff, 0')
    a.label(lw)
    keep(V_NSA, 's_nop 0')
    for j in range(4): a(f'v_mov_b32 v{V_ONE+j}, 0x3f803f80')
    for j in range(4): a(f'v_mov_b32 v{V_FF+j}, -1')
    for j in range(4): a(f'v_mov_b32 v{V_ZZ+j}, 0')
    for j in range(4): a(f'v_mov_b32 v{V_NS+j}, 0')
    for j in range(5, 8): a(f'v_mov_b32 v{V_P+j}, 0')
    for j in range(6): a(f'v_mov_b32 v{V_VM+j}, 0')
    a(f's_mov_b32 s{S_MLO8}, 0x00ff00ff'); a(f's_mov_b32 s{S_MLO8+1}, 0x00ff00ff')
    a(f's_mov_b32 s{S_MHI}, 0'); a(f's_mov_b32 s{S_MHI+1}, -1')
    a(f's_mov_b32 s{S_MHI8}, 0'); a(f's_mov_b32 s{S_MHI8+1}, 0x00ff00ff')
    c = (128 ** -0.5) * math.log2(math.e)
    a(f's_mov_b32 s{S_C}, 0x{struct.unpack("<I", struct.pack("<f", c))[0]:08x}')
    a(f's_mov_b32 s{S_SC}, {SCB}')
    a(f's_mov_b32 s{S_KV}, 0')
    a(f's_mov_b32 s{S_STEP}, 0')
    a(f's_mov_b32 s{S_KXB}, {L_KX}')
    a(f's_mov_b32 s{S_TAG}, 1')
    a(f's_min_u32 s{S_T0}, s{S_W}, 1')
    a(f's_add_u32 s{S_T0}, s{S_T0}, 1')
    a(f'v_mov_b32 v{V_TG}, s{S_T0}')

    S(S_FKV, [(S_H, 0, None, 7), (S_W, 1, None, 2)], FLG + F_SLA + 4)
    S(S_FRO, [(S_H, 0, None, 7)], FLG + F_REC)
    S(S_T0, [(S_I, 0, None, 2), (S_FRO, 0, None, 0)])
    a(f'v_mov_b32 v{V_FRA}, s{S_T0}')
    a(f's_cmp_eq_u32 s{S_W}, 2')
    keep(V_FRA, 's_cselect_b64 vcc, 1, 0')
    a(f'v_mov_b32 v{V_FRV}, 0')
    a(f's_mov_b32 s{S_SEEN}, 0')
    def wait_kv(target):
        if not sync: return
        lp = a.newlabel('rec_kv'); ld = a.newlabel('rec_kvd')
        a(f's_cmp_gt_u32 s{S_SEEN}, {target}')
        a(f's_cbranch_scc0 {lp}')
        a.label(ld)
        def tl():
            a.label(lp)
            a(f's_load_dword s{S_SEEN}, s[{S_WSP}:{S_WSP+1}], s{S_FKV} glc')
            spin_guard(ld)
            a('s_waitcnt lgkmcnt(0)')
            a(f's_cmp_gt_u32 s{S_SEEN}, {target}')
            a(f's_cbranch_scc1 {ld}')
            a('s_sleep 2')
            a(f's_branch {lp}')
        tails.append(tl)
    tails = []
    for par in range(2):
        for sl in range(2):
            a(f's_add_u32 s{S_T0}, s{S_HB}, {par*8192 + sl*SLOT}')
            a(f'buffer_store_dwordx4 {vr(V_ZZ,4)}, v{V_OCL}, {WS}, s{S_T0} offen sc1')
    a(f'buffer_store_dwordx4 {vr(V_FF,4)}, v{V_SCCL}, {WS}, s{S_SC} offen sc1')
    a(f'v_add_u32 v{V_SCCL}, {128*2048}, v{V_SCCL}')
    a(f'buffer_store_dwordx4 {vr(V_FF,4)}, v{V_SCCL}, {WS}, s{S_SC} offen sc1')
    a(f'v_add_u32 v{V_SCCL}, {128*2048}, v{V_SCCL}')
    a(f'buffer_store_dwordx4 {vr(V_FF,4)}, v{V_SCCL}, {WS}, s{S_SC} offen sc1')
    if RING:
        a(f'v_subrev_u32 v{V_SCCL}, {2*128*2048}, v{V_SCCL}')
        a(f's_mov_b32 s{S_SC1}, {SCB + 128*2048}')
    a(f'buffer_store_dword v{V_FRV}, v{V_FRA}, {WS}, 0 offen sc1')
    a(f's_getreg_b32 s{S_T0}, hwreg(HW_REG_XCC_ID)')
    a(f'v_mov_b32 v{V_T0}, s{S_T0}')
    a(f'buffer_store_dword v{V_T0}, v{V_FRA}, {WS}, 0 offen offset:16 sc1')
    l3 = a.newlabel('rec_i3')
    a(f's_cmp_lg_u32 s{S_W}, 3')
    a(f's_cbranch_scc1 {l3}')
    for par in range(2):
        a(f's_add_u32 s{S_T0}, s{S_HB}, {par*8192 + SLOT}')
        a(f'buffer_store_dwordx4 {vr(V_ZZ,4)}, v{V_NSA}, {WS}, s{S_T0} offen sc1')
    S(S_T1, [(S_RID, 5, None, 14), (S_RID, 0, 5, 8), (S_HB, 0, None, 0)], 10 * BLK)
    a('s_mov_b64 exec, 0xffff')
    for par in range(2):
        a(f's_add_u32 s{S_T0}, s{S_T1}, {par*8192}')
        a(f'buffer_store_dwordx4 {vr(V_ZZ,4)}, v{V_L16}, {WS}, s{S_T0} offen sc1')
    a('s_mov_b64 exec, -1')
    a.label(l3)
    a(f's_lshl_b32 s{S_T0}, s{S_W}, 9')
    L(V_T0, [(2, 2, 12), (0, 1, 11), (4, 2, 5), (1, 1, 2)], f's{S_T0}')
    for c in range(4):
        for p in range(4):
            a(f'buffer_load_dword v{V_MA+4*c+p}, v{V_T0}, s[{S_M0}:{S_M0+3}], 0 offen offset:{c*128+p*8}')
    for p in range(FB, NSL):
        issue(p); issued += 1
    for p in range(NW, len(pairs)):
        a(f's_waitcnt vmcnt({min(63, 2 * (issued - p - 1) + ((40 if NW else 24) if p < FB else 0))})')
        if p == FB:
            lar = a.newlabel('rec_arr')
            a('s_barrier')
            pmark(1)
            a(f's_cmp_lg_u32 s{S_W}, 3')
            a(f's_cbranch_scc1 {lar}')
            a(f'v_mov_b32 v{V_T0}, 0')
            a(f'v_mov_b32 v{V_T1}, s{S_PAR}')
            a('s_mov_b64 exec, 1')
            a(f'global_atomic_add v{V_T0}, v{V_T1}, s[{S_DBG}:{S_DBG+1}] offset:{4*D_INIT} sc1')
            a('s_mov_b64 exec, -1')
            a.label(lar)
        if p == RDYP and sync:
            lar = a.newlabel('rec_rdy')
            a(f's_cmp_lg_u32 s{S_W}, 0')
            a(f's_cbranch_scc1 {lar}')
            a(f'v_mov_b32 v{V_T0}, 0')
            a(f'v_mov_b32 v{V_T1}, 1')
            a('s_mov_b64 exec, 1')
            a(f'global_atomic_add v{V_T0}, v{V_T1}, s[{S_DBG}:{S_DBG+1}] offset:{4*D_RDY} sc1')
            a('s_mov_b64 exec, -1')
            a.label(lar)
        for dst, va, off in pairs[p][1]:
            a(f'ds_read_b64_tr_b16 {dst}, v{va} offset:{(p % NSL) * 2048 + off}')
        if p >= NW + 1 and issued < len(pairs):
            a('s_waitcnt lgkmcnt(4)')
            issue(issued); issued += 1
    a('s_waitcnt lgkmcnt(0)')

    pmark(3)
    for j in range(16): a(f'v_max_u32 v{V_MA+j}, 1, v{V_MA+j}')
    for j in range(24): a(f'v_mov_b32 v{V_D+j}, 0')
    for j in range(16): a(f's_mov_b32 s{P+j}, 0')
    lb = a.newlabel('rec_ib'); lbp = a.newlabel('rec_ibp'); lbq = a.newlabel('rec_ibq')
    a(f'v_mov_b32 v{V_T0}, 0')
    a(f's_branch {lbq}')
    a.label(lbp)
    a('s_sleep 16')
    a.label(lbq)
    a(f'global_load_dword v{V_T1}, v{V_T0}, s[{S_DBG}:{S_DBG+1}] offset:{4*D_INIT} sc1')
    spin_guard(lb)
    a('s_waitcnt vmcnt(0)')
    a(f'v_readfirstlane_b32 s{S_T0}, v{V_T1}')
    a(f's_and_b32 s{S_T1}, s{S_T0}, 0xffff')
    a(f's_cmp_lt_u32 s{S_T1}, {NWG if sync else 128}')
    a(f's_cbranch_scc1 {lbp}')
    a.label(lb)
    a(f's_cmp_ge_u32 s{S_T0}, {(64 << 16) if NEAR else 0x7fffffff}')
    a(f's_cselect_b32 s{S_PAR}, -1, 0')
    a(f's_xor_b32 s{S_PAR}, s{S_PAR}, 0xaaa')
    pmark(4)
    S(S_SL0, [(S_PAR, 0, 1, 13), (S_HB, 0, None, 0)])
    a(f's_add_u32 s{S_SL1}, s{S_SL0}, {SLOT}')
    a(f's_add_u32 s{S_SL2}, s{S_SL0}, {2*SLOT}')
    S(S_T0, [(S_RID, 5, None, 4), (S_I, 0, None, 14), (S_SL0, 0, None, 0)], 10 * BLK)
    L(V_TKST, [(0, 5, 8)], f's{S_T0}')
    a(f's_and_b32 s{S_T1}, s{S_H}, { {4: 7, 2: 23, 1: 31}[KC] }')
    a(f's_cmp_eq_u32 s{S_T1}, {CJ}')
    a('s_mov_b32 vcc_hi, 0')
    keep(V_TKST, 's_cselect_b32 vcc_lo, -1, 0')
    a(f'v_add_u32 v{V_TKSA}, 128, v{V_TKST}')
    a(f's_cmp_eq_u32 s{S_W}, {TW}')
    keep(V_TKSA, 's_cselect_b64 vcc, -1, 0')
    S(S_MBO, [(S_RID, 5, None, 14), (S_RID, 0, 5, 8), (S_SL0, 0, None, 0)], 10 * BLK)
    a(f's_cmp_eq_u32 s{S_W}, 3')
    a(f's_cselect_b32 s{S_NSO}, s{S_SL2}, {KM}')

    pmark(5)
    a('s_barrier')
    pmark(6)
    a(f's_load_dwordx4 s[{P}:{P+3}], s[{S_WSP}:{S_WSP+1}], s{S_FRO} offset:16 glc')
    a('s_waitcnt lgkmcnt(0)')
    for i in range(1, 4): a(f's_xor_b32 s{P+i}, s{P+i}, s{P}')
    a(f's_or_b32 s{P+1}, s{P+1}, s{P+2}')
    a(f's_or_b32 s{S_FAST}, s{P+1}, s{P+3}')
    if not PLAINB: a(f's_mov_b32 s{S_FAST}, 1')
    for j in range(4): a(f's_mov_b32 s{P+j}, 0')
    wait_kv(0)
    pmark(7)
    a(f's_add_u32 m0, s{S_KXB}, s{S_PFL}')
    a(f'buffer_load_dwordx4 v{V_PFG}, {WS}, s{S_KV} offen sc1 lds')
    a('s_waitcnt vmcnt(0)')
    a('s_barrier')
    ENTRY = a.newlabel('rec_entry')
    ts(0)
    a(f's_branch {ENTRY}')

    def gather(name, n, load, mf, nacc, noise, ilv, entry=None, pre=None, post=None):
        ok = a.newlabel(name + 'ok'); fix = a.newlabel(name + 'fix')
        def body(first):
            for c in range(n):
                load(c, V_MA + 4 * c)
                if first and ilv and c < n - 1: a(f's_nop {ilv-1}')
            if not first:
                for j in range(nacc): a(f'v_mov_b32 v{V_D+j}, 0')
            if first and entry: a.label(entry)
            if first and pre: pre()
            iss = 0
            for c in range(n):
                b = V_MA + 4 * c
                a(f's_waitcnt vmcnt({n-1-c+iss})')
                if first and c == 0: ts(1 if n == 4 else 7)
                ms = mf(c)
                if c == 0: seq = [f'v_min_u32 v{V_CK}, v{b}, v{b+1}', f'v_min_u32 v{V_CK2}, v{b+2}, v{b+3}']
                elif c < n - 1: seq = [f'v_min3_u32 v{V_CK}, v{V_CK}, v{b}, v{b+1}', f'v_min3_u32 v{V_CK2}, v{V_CK2}, v{b+2}, v{b+3}']
                else:
                    a(f'v_min3_u32 v{V_CK}, v{V_CK}, v{b}, v{b+1}')
                    seq = [f'v_min3_u32 v{V_CK}, v{V_CK}, v{b+2}, v{b+3}', f'v_cmp_eq_u32 vcc, 0, v{V_CK}']
                if c == n - 2: seq.append(f'v_min_u32 v{V_CK}, v{V_CK}, v{V_CK2}')
                k = 0
                for m in ms:
                    a(m)
                    if k < len(seq): a(seq[k]); k += 1
                while k < len(seq): a(seq[k]); k += 1
                if first and c < len(noise): noise[c](); iss += 1
            if first and post: post()
        body(True)
        a(f's_cbranch_vccnz {fix}')
        a.label(ok)
        def tl():
            a.label(fix)
            if prof: a(f's_add_u32 s{100 if nacc == 16 else 101}, s{100 if nacc == 16 else 101}, 1')
            spin_guard(ok)
            body(False)
            a(f's_cbranch_vccnz {fix}')
            a(f's_branch {ok}')
        tails.append(tl)

    def halves(m):
        b = V_D + 8 * m
        a(f'v_pk_add_f32 {vr(b,2)}, {vr(b,2)}, {vr(b+2,2)}')
        a(f'v_pk_add_f32 {vr(b+2,2)}, {vr(b+4,2)}, {vr(b+6,2)}')
    def tickwait(off, extra):
        lp = a.newlabel('rec_tk'); ld = a.newlabel('rec_tkd')
        T = S_PTR
        if off: a(f's_add_u32 s{S_T2}, s{S_MBO}, {off}')
        a.label(lp)
        if KC == 2: a(f's_load_dwordx8 s[{T}:{T+7}], s[{S_WSP}:{S_WSP+1}], s{S_T2 if off else S_MBO} glc')
        elif KC == 4: a(f's_load_dwordx16 s[{T}:{T+15}], s[{S_WSP}:{S_WSP+1}], s{S_T2 if off else S_MBO} glc')
        else: a(f's_load_dword s{T}, s[{S_WSP}:{S_WSP+1}], s{S_T2 if off else S_MBO} glc')
        spin_guard(ld)
        a(f's_sleep {TPOS}' if TPOS else 's_nop 7')
        if KC == 4:
            a(f's_min_u32 s{S_T0}, s{T}, s{T+4}')
            a(f's_min_u32 s{S_T1}, s{T+8}, s{T+12}')
            a(f's_min_u32 s{S_T0}, s{S_T0}, s{S_T1}')
        elif KC == 2: a(f's_min_u32 s{S_T0}, s{T}, s{T+4}')
        else: a(f's_mov_b32 s{S_T0}, s{T}')
        a(f's_cmp_lt_u32 s{S_T0}, s{S_TAG}')
        a(f's_cbranch_scc1 {lp}')
        a.label(ld)
        a(f's_add_u32 s{S_TAG}, s{S_TAG}, 1')
        if extra: a(f's_sleep {extra}')
    def vmfl():
        r = []
        for c in range(4):
            for t in (4, 5):
                f, b = wq_reg(c, t)
                r.append(f'v_smfmac_f32_16x16x64_bf16 {vr(V_D+4*t,4)}, {vr(V_MA+4*c,4)}, {f}[{b}:{b+7}], v{V_IDX}')
        return r
    def vmf():
        for m in vmfl(): a(m)
    def red4(n):
        for j in range(0, n, 2): a(f'v_pk_add_f32 {vr(V_R+j,2)}, {vr(V_R+j,2)}, {vr(V_R+n+j,2)}')
        for j in range(0, n, 2): a(f'v_pk_add_f32 {vr(V_R+2*n+j,2)}, {vr(V_R+2*n+j,2)}, {vr(V_R+3*n+j,2)}')
        for j in range(0, n, 2): a(f'v_pk_add_f32 {vr(V_R+j,2)}, {vr(V_R+j,2)}, {vr(V_R+2*n+j,2)}')

    LOOP = a.newlabel('rec_loop'); DONE = a.newlabel('rec_done')
    a.label(LOOP)
    a('s_barrier')
    stamp(11)
    ts(0)
    def loadA(c, r): a(f'buffer_load_dwordx4 {vr(r,4)}, v{V_AOFF}, {WS}, s{S_SL0} offen offset:{c*1024} sc1')
    def mfA(c):
        r = []
        for t in range(4):
            f, b = wq_reg(c, t)
            r.append(f'v_smfmac_f32_16x16x64_bf16 {vr(V_D+4*t,4)}, {vr(V_MA+4*c,4)}, {f}[{b}:{b+7}], v{V_IDX}')
        return r
    def noiseA():
        a(f'buffer_store_dwordx4 {vr(V_FF,4)}, v{V_SCCL}, {WS}, s{S_SC} offen sc1')
    def preA():
        a(f'v_add_u32 v{V_T0}, s{S_KXB}, v{V_L16}')
        for t in range(2): a(f'ds_read_b128 {vr(V_KX+4*t,4)}, v{V_T0} offset:{t*1024}')
        for t in range(2): a(f'ds_read_b128 {vr(V_VX+4*t,4)}, v{V_T0} offset:{2048+t*1024}')
    gather('rec_ga', 4, loadA, mfA, 16, [], ILA, entry=ENTRY, pre=preA)
    stamp(0)
    ts(2)
    for m in range(2):
        halves(m)
        va = V_QKW if m == 0 else V_QKW2
        a(f'ds_write2_b32 v{va}, v{V_D+8*m}, v{V_D+8*m+1} offset0:0 offset1:40')
        a(f'ds_write2_b32 v{va}, v{V_D+8*m+2}, v{V_D+8*m+3} offset0:16 offset1:56')
    LB2 = a.newlabel('rec_b2'); LW1 = a.newlabel('rec_w1')
    a(f's_cmp_lg_u32 s{S_W}, 0')
    a(f's_cbranch_scc1 {LW1}')
    a('s_waitcnt lgkmcnt(0)')
    a('s_barrier')
    ts(3)
    vm = vmfl()
    for w in range(4):
        for q in range(2):
            a(f'ds_read_b128 {vr(V_R+8*w+4*q,4)}, v{V_QKR} offset:{L_QK+w*2560+q*32}')
            a(vm.pop(0))
    a('s_waitcnt lgkmcnt(4)')
    for j in range(0, 8, 2): a(f'v_pk_add_f32 {vr(V_R+j,2)}, {vr(V_R+j,2)}, {vr(V_R+8+j,2)}')
    a('s_waitcnt lgkmcnt(2)')
    for j in range(0, 8, 2): a(f'v_pk_add_f32 {vr(V_R+j,2)}, {vr(V_R+j,2)}, {vr(V_R+16+j,2)}')
    a('s_waitcnt lgkmcnt(0)')
    for j in range(0, 8, 2): a(f'v_pk_add_f32 {vr(V_R+j,2)}, {vr(V_R+j,2)}, {vr(V_R+24+j,2)}')
    for j in range(4): a(f'v_cvt_pk_bf16_f32 v{V_X+j}, v{V_R+2*j}, v{V_R+2*j+1}')
    a(f'v_mfma_f32_16x16x32_bf16 {vr(V_S,4)}, {vr(V_KX,4)}, {vr(V_X,4)}, 0')
    a(f'v_mfma_f32_16x16x32_bf16 {vr(V_S+4,4)}, {vr(V_KX+4,4)}, {vr(V_X,4)}, 0')
    a(f'v_mfma_f32_16x16x32_bf16 {vr(V_S+8,4)}, {vr(V_X,4)}, {vr(V_X,4)}, 0')
    a(f's_cmp_lg_u32 s{S_FAST}, 0')
    halves(2)
    def scst(f):
        a(f's_mov_b64 exec, s[{S_MLO8}:{S_MLO8+1}]')
        a(f'buffer_store_dwordx4 {vr(V_S,4)}, v{V_SCST}, {WS}, s{S_SC} offen{f}')
        a(f'buffer_store_dwordx4 {vr(V_S+4,4)}, v{V_SCST}, {WS}, s{S_SC} offen offset:128{f}')
        a(f's_mov_b64 exec, s[{S_MHI8}:{S_MHI8+1}]')
        a(f'buffer_store_dwordx4 {vr(V_S+8,4)}, v{V_SCST2}, {WS}, s{S_SC} offen offset:1024{f}')
        a('s_mov_b64 exec, -1')
    lsl = a.newlabel('rec_slow'); lsr = a.newlabel('rec_slowr')
    a(f's_cbranch_scc1 {lsl}')
    scst('')
    a.label(lsr)
    tails.append(lambda: (a.label(lsl), scst(' sc1'), a(f's_branch {lsr}')))
    a(f'ds_write_b128 v{V_VW}, {vr(V_D+16,4)}')
    a(f'ds_write_b128 v{V_L16}, {vr(V_X,4)} offset:{L_X}')
    stamp(2)
    ts(4)
    LBR = a.newlabel('rec_gbr'); LBO = a.newlabel('rec_gbo'); LBW = a.newlabel('rec_gbw')
    V_Q = V_R + 20
    SETS = [V_LD, V_MA]
    def loadB(LD):
        a(f'buffer_load_dwordx4 {vr(LD+12,4)}, v{V_SCLM}, {WS}, s{S_SC} offen offset:1024 sc1')
        for k in range(3):
            a(f'buffer_load_dwordx4 {vr(LD+4*k,4)}, v{V_SCL[k]}, {WS}, s{S_SC} offen sc1')
    def sumB(LD, base):
        LM = LD + 12
        a(f's_waitcnt vmcnt({base+3})')
        a(f'v_permlane32_swap_b32 v{LM}, v{LM+2}')
        a(f'v_permlane32_swap_b32 v{LM+1}, v{LM+3}')
        a(f'v_pk_add_f32 {vr(V_Q+4,2)}, {vr(LM,2)}, {vr(LM+2,2)}')
        a(f's_waitcnt vmcnt({base+2})')
        for j in range(0, 4, 2): a(f'v_pk_add_f32 {vr(V_Q+j,2)}, {vr(V_S+j,2)}, {vr(LD+j,2)}')
        a(f'v_permlane16_swap_b32 v{V_Q+4}, v{V_Q+5}')
        a(f's_waitcnt vmcnt({base+1})')
        for j in range(0, 4, 2): a(f'v_pk_add_f32 {vr(V_Q+j,2)}, {vr(V_Q+j,2)}, {vr(LD+4+j,2)}')
        a(f'v_add_f32 v{V_Q+4}, v{V_Q+4}, v{V_Q+5}')
        a(f's_waitcnt vmcnt({base})')
        for j in range(0, 4, 2): a(f'v_pk_add_f32 {vr(V_Q+j,2)}, {vr(V_Q+j,2)}, {vr(LD+8+j,2)}')
        a(f'v_maximum3_f32 v{V_M}, v{V_Q}, v{V_Q+1}, v{V_Q+4}')
        a(f'v_maximum3_f32 v{V_M}, v{V_M}, v{V_Q+2}, v{V_Q+3}')
        a(f'v_cmp_u_f32 vcc, v{V_M}, v{V_M}')
        a(f'v_max_f32_dpp v{V_M}, v{V_M}, v{V_M} row_ror:8 row_mask:0xf bank_mask:0xf')
        a(f'v_mov_b32 v{V_M2}, v{V_M}')
    if DB == 0: loadB(SETS[0])
    a('s_waitcnt lgkmcnt(0)')
    a('s_barrier')
    if DB == 1: loadB(SETS[0])
    for w in range(4):
        for t in range(2):
            a(f'ds_read_b64 {vr(V_R+4*w+2*t,2)}, v{V_VR} offset:{w*1024+t*128}')
    for j in range(4): a(f'v_mov_b32_dpp v{V_S+j}, v{V_S+4+j} row_ror:8 row_mask:0xf bank_mask:0xc')
    if DB == 0: loadB(SETS[1])
    if DB == 2: loadB(SETS[0])
    a('s_waitcnt lgkmcnt(0)')
    red4(4)
    if DB == 1: loadB(SETS[1])
    for t in range(2): a(f'v_cvt_pk_bf16_f32 v{V_VM+2*t}, v{V_R+2*t}, v{V_R+2*t+1}')
    if DB == 2: a('s_nop 15'); loadB(SETS[1])
    a(f's_cmp_eq_u32 s{S_STEP}, {nsteps-1}')
    a(f's_cbranch_scc1 {LB2}')
    sumB(SETS[0], 4)
    a(f's_cbranch_vccnz {LBR}')
    a.label(LBO)
    def tlB():
        a.label(LBR)
        for k in range(2):
            LD = SETS[k]
            a(f'v_max3_u32 v{V_CK}, v{LD}, v{LD+1}, v{LD+2}')
            for j in range(3, 15, 2): a(f'v_max3_u32 v{V_CK}, v{V_CK}, v{LD+j}, v{LD+j+1}')
            a(f'v_max_u32 v{V_CK}, v{V_CK}, v{LD+15}')
            loadB(LD)
            a(f'v_cmp_eq_u32 vcc, -1, v{V_CK}')
            spin_guard(LBO)
            a(f's_cbranch_vccz {LBO}')
            sumB(SETS[k ^ 1], 4)
            a(f's_cbranch_vccz {LBO}')
        a(f's_branch {LBR}')
    tails.append(tlB)
    a(f'buffer_store_dword v{V_TG}, v{V_TKST}, {WS}, 0 offen sc1')
    stamp('b')
    ts(5)
    a(f'v_permlane16_swap_b32 v{V_M}, v{V_M2}')
    a(f'v_max_f32 v{V_M}, v{V_M}, v{V_M2}')
    a(f'v_mov_b32 v{V_M2}, v{V_M}')
    a(f'v_permlane32_swap_b32 v{V_M}, v{V_M2}')
    a(f'v_max_f32 v{V_M}, v{V_M}, v{V_M2}')
    a(f'v_mul_f32 v{V_M}, s{S_C}, v{V_M}')
    for j in (4, 0, 1, 2, 3): a(f'v_fma_f32 v{V_Q+j}, v{V_Q+j}, s{S_C}, -v{V_M}')
    for j in (4, 0, 1, 2, 3): a(f'v_exp_f32 v{V_Q+j}, v{V_Q+j}')
    a(f'v_mov_b32_dpp v{V_Q+5}, v{V_Q+4} row_ror:8 row_mask:0xf bank_mask:0xf')
    for j in range(2): a(f'v_cvt_pk_bf16_f32 v{V_P+j}, v{V_Q+2*j}, v{V_Q+2*j+1}')
    a(f'v_cvt_pk_bf16_f32 v{V_P+4}, v{V_Q+4}, v{V_Q+5}')
    for j in range(2): a(f'v_mov_b32_dpp v{V_P+2+j}, v{V_P+j} row_ror:8 row_mask:0xf bank_mask:0xf')
    V_O = V_R + 8
    a(f'v_mfma_f32_16x16x32_bf16 {vr(V_O+8,4)}, {vr(V_ONE,4)}, {vr(V_P+4,4)}, 0')
    a(f'v_mfma_f32_16x16x32_bf16 {vr(V_O+8,4)}, {vr(V_ONE,4)}, {vr(V_P,4)}, {vr(V_O+8,4)}')
    for t in range(2):
        a(f'v_mfma_f32_16x16x32_bf16 {vr(V_O+4*t,4)}, {vr(V_VX+4*t,4)}, {vr(V_P,4)}, 0')
        a(f'v_mfma_f32_16x16x32_bf16 {vr(V_O+4*t,4)}, {vr(V_VM+2*t,4)}, {vr(V_P+4,4)}, {vr(V_O+4*t,4)}')
    V_RC = V_R
    a(f'v_rcp_f32 v{V_RC}, v{V_O+8}')
    a(f'v_mov_b32 v{V_RC+1}, v{V_RC}')
    for j in range(0, 8, 2): a(f'v_pk_mul_f32 {vr(V_O+j,2)}, {vr(V_O+j,2)}, {vr(V_RC,2)}')
    for j in range(4): a(f'v_cvt_pk_bf16_f32 v{V_O+j}, v{V_O+2*j}, v{V_O+2*j+1}')
    for j in range(4): a(f'v_max_u32 v{V_O+j}, 1, v{V_O+j}')
    a(f's_mov_b64 exec, s[{S_MLO8}:{S_MLO8+1}]')
    a(f'buffer_store_dwordx4 {vr(V_O,4)}, v{V_OST}, {WS}, s{S_SL0} offen sc1')
    a('s_mov_b64 exec, -1')
    stamp(5)
    for j in range(8): a(f'v_mov_b32 v{V_D+j}, 0')
    LCS = a.newlabel('rec_cs')
    a.label(LCS)
    a('s_barrier')
    def w123():
        a.label(LW1)
        a('s_waitcnt lgkmcnt(0)')
        a('s_barrier')
        vmf()
        halves(2)
        a(f'ds_write_b128 v{V_VW}, {vr(V_D+16,4)}')
        a('s_waitcnt lgkmcnt(0)')
        a('s_barrier')
        for j in range(8): a(f'v_mov_b32 v{V_D+j}, 0')
        LW2 = a.newlabel('rec_w2'); LW3 = a.newlabel('rec_w3')
        a(f's_cmp_eq_u32 s{S_W}, 3')
        a(f's_cbranch_scc1 {LW3}')
        a(f's_cmp_eq_u32 s{S_W}, 2')
        a(f's_cbranch_scc1 {LW2}')
        a(f'ds_read_b128 {vr(V_NS,4)}, v{V_L16} offset:{L_X}')
        a(f's_branch {LB2}')
        a.label(LW2)
        for w in range(4): a(f'ds_read_b128 {vr(V_R+4*w,4)}, v{V_L16} offset:{L_V+w*1024}')
        a('s_waitcnt lgkmcnt(0)')
        red4(4)
        for j in range(2): a(f'v_cvt_pk_bf16_f32 v{V_NS+j}, v{V_R+2*j}, v{V_R+2*j+1}')
        for j in range(2): a(f'v_permlane32_swap_b32 v{V_NS+j}, v{V_NS+2+j}')
        for j in (0, 2): a(f'v_permlane16_swap_b32 v{V_NS+j}, v{V_NS+j+1}')
        a.label(LB2)
        a('s_waitcnt lgkmcnt(0)')
        a(f's_cmp_eq_u32 s{S_STEP}, {nsteps-1}')
        a(f's_cbranch_scc1 {DONE}')
        a(f's_branch {LCS}')
        a.label(LW3)
        a(f's_cmp_eq_u32 s{S_STEP}, {nsteps-1}')
        a(f's_cbranch_scc1 {DONE}')
        tickwait(0, DC)
        a(f's_branch {LCS}')
    tails.append(w123)
    stamp(7)
    ts(6)
    def loadC(c, r):
        a(f'buffer_load_dwordx4 {vr(r,4)}, v{V_COFF if c < 4 else V_COFF2}, {WS}, s{S_SL0} offen offset:{(c&3)*1024} sc1')
    def mfC(c):
        r = []
        for sel in range(2):
            f, b = wo_reg(2 * c + sel)
            r.append(f'v_smfmac_f32_16x16x64_bf16 {vr(V_D+4*sel,4)}, {vr(V_MA+4*c,4)}, {f}[{b}:{b+7}], v{V_IDX}')
        return r
    def nC3():
        a(f's_add_u32 s{S_T0}, s{S_STEP}, 1')
        wait_kv(f's{S_T0}')
        a(f's_xor_b32 s{S_KXB}, s{S_KXB}, 4096')
        a(f's_add_u32 m0, s{S_KXB}, s{S_PFL}')
        a(f's_add_u32 s{S_KV}, s{S_KV}, {256*1024}')
        a(f'buffer_load_dwordx4 v{V_PFG}, {WS}, s{S_KV} offen sc1 lds')
    noiseC = [nC3, lambda: a(f'buffer_load_dword v{V_T1}, v{V_PTG}, {WS}, s{S_SC1 if RING else S_SC} offen sc1')]
    def late_stores():
        a(f'buffer_store_dword v{V_FRV}, v{V_FRA}, {WS}, 0 offen sc1')
        a(f'buffer_store_dwordx4 {vr(V_NS,4)}, v{V_NSA}, {WS}, s{S_NSO} offen sc1')
        a(f'buffer_store_dwordx4 {vr(V_ZZ,4)}, v{V_OCL}, {WS}, s{S_SL1} offen sc1')
        a(f'buffer_store_dwordx4 {vr(V_FF,4)}, v{V_SCCL}, {WS}, s{S_SC3 if RING else S_SC} offen sc1')
        a(f'v_add_u32 v{V_FRV}, 1, v{V_FRV}')
        a(f's_add_u32 s{S_NSO}, s{S_NSO}, 65536')
        a(f's_cmp_eq_u32 s{S_W}, 3')
        a(f's_cselect_b32 s{S_NSO}, s{S_SL2}, s{S_NSO}')
    TKA = f'buffer_store_dword v{V_TG}, v{V_TKSA}, {WS}, 0 offen sc1'
    def postC():
        a(f's_add_u32 s{S_STEP}, s{S_STEP}, 1')
        a(f's_add_u32 s{S_T0}, s{S_STEP}, 2')
        a(f's_lshr_b32 s{S_T1}, s{S_T0}, 3')
        a(f's_lshr_b32 s{S_T1}, s{S_PAR}, s{S_T1}')
    gather('rec_gc', 8, loadC, mfC, 8, noiseC, ILC, post=postC)
    if TA == 9: a(TKA)
    ts(8)
    a(f's_mov_b32 s{S_SL0}, s{S_SL1}')
    a(f's_mov_b32 s{S_SL1}, s{S_SL2}')
    stamp_c = True
    if prof == 1:
        a(f's_sub_u32 s{S_STEP}, s{S_STEP}, 1'); stamp(8); a(f's_add_u32 s{S_STEP}, s{S_STEP}, 1')
    a(f'v_pk_add_f32 {vr(V_D,2)}, {vr(V_D,2)}, {vr(V_D+2,2)}')
    for r1 in range(2): a(f'v_add_f32_dpp v{V_D+r1}, v{V_D+4+r1}, v{V_D+6+r1} quad_perm:[0,1,2,3] row_mask:0xc bank_mask:0xf')
    a(f'v_permlane32_swap_b32 v{V_D}, v{V_D+1}')
    a(f'v_add_f32 v{V_D}, v{V_D}, v{V_D+1}')
    a(f'ds_write_b32 v{V_OPW}, v{V_D}')
    S(S_SL2, [(S_T1, 0, 1, 13), (S_T0, 0, None, 18), (S_HB, 0, None, 0)])
    if RING:
        a(f's_mov_b32 s{S_SC}, s{S_SC1}')
        a(f's_add_u32 s{S_SC1}, s{S_SC1}, {128*2048}')
        a(f's_bitset0_b32 s{S_SC1}, 20')
        a(f's_xor_b32 s{S_SC3}, s{S_SC}, {2*128*2048}')
    else: a(f's_add_u32 s{S_SC}, s{S_SC}, {128*2048}')
    LB4 = a.newlabel('rec_b4')
    a(f's_cmp_lg_u32 s{S_W}, 0')
    a(f's_cbranch_scc1 {LB4}')
    a('s_waitcnt lgkmcnt(0)')
    a('s_barrier')
    for w in range(4): a(f'ds_read_b64 {vr(V_R+2*w,2)}, v{V_OPR} offset:{w*256}')
    a(f'v_add_u32 v{V_TG}, 2, v{V_TG}')
    a('s_waitcnt lgkmcnt(0)')
    red4(2)
    a(f'v_cvt_pk_bf16_f32 v{V_R}, v{V_R}, v{V_R+1}')
    a(f'v_max_u32 v{V_R}, 1, v{V_R}')
    for j in range(1, 4): a(f'v_mov_b32_dpp v{V_R+j}, v{V_R} quad_perm:[{j},{j},{j},{j}] row_mask:0xf bank_mask:0xf')
    a('s_mov_b64 exec, 0x11111111')
    a(f'buffer_store_dwordx4 {vr(V_R,4)}, v{V_MEMST}, {WS}, s{S_SL0} offen sc1')
    a('s_mov_b64 exec, -1')
    stamp(10)
    ts(9)
    if LB: a('s_barrier')
    late_stores()
    harvest()
    for j in range(24): a(f'v_mov_b32 v{V_D+j}, 0')
    a('s_waitcnt vmcnt(5)')
    a(f's_branch {LOOP}')
    a.label(LB4)
    a('s_waitcnt lgkmcnt(0)')
    a('s_barrier')
    if not TA: a(TKA)
    a(f'v_add_u32 v{V_TG}, 2, v{V_TG}')
    for j in range(24): a(f'v_mov_b32 v{V_D+j}, 0')
    if LB: a('s_barrier')
    late_stores()
    a(f's_waitcnt vmcnt({4 if TA else 5})')
    a(f's_cmp_lg_u32 s{S_W}, 3')
    a(f's_cbranch_scc1 {LOOP}')
    tickwait(128, DA)
    a(f's_branch {LOOP}')
    for t in tails: t()
    a.label(DONE)
    if prof >= 3:
        a(f'v_writelane_b32 v{V_TR}, s100, 10'); a(f'v_writelane_b32 v{V_TR}, s101, 11'); a(f'v_writelane_b32 v{V_TR}, s{S_SPIN}, 12')
    if prof == 4: pmark(0)
    a(f'buffer_store_dwordx4 {vr(V_NS,4)}, v{V_NSA}, {WS}, s{S_NSO} offen sc1')
    a('s_waitcnt vmcnt(0)')
    a('s_barrier')
    a(f'v_add_u32 v{V_FRV}, 1, v{V_FRV}')
    a(f'buffer_store_dword v{V_FRV}, v{V_FRA}, {WS}, 0 offen sc1')
    if prof:
        S(S_T0, [(S_RID, 0, None, 13), (S_W, 0, None, 11)], TRACE)
        a(f'v_lshlrev_b32 v{V_T0}, 2, v{V_L}')
        for e in range(8):
            a(f'buffer_store_dword v{V_TR+e}, v{V_T0}, {WS}, s{S_T0} offen offset:{e*256}')
```

```python
from asmlib import *
from layout import *
from rec import srd, lane, sexpr
import math, struct

G_WS = 4
G_W = 8
G_X = 12
G_W2 = 16
G_OUT = 20
G_ID, G_WV, G_SEG = 28, 29, 30
G_T0, G_T1, G_T2 = 31, 32, 33
G_LW = 34
G_XO = 35
G_PO = 36
G_PS = 37
G_WSO, G_WST = 38, 39
G_SPIN = 41
G_C = 42
G_SEEN = 43
G_J, G_R = 44, 45
G_KMO, G_OAO, G_OBO, G_OUO = 46, 47, 48, 49
G_FO = 50
G_END, G_XMAX = 51, 52
G_SA, G_SB, G_FA, G_FB, G_FR, G_C2 = 53, 54, 55, 56, 57, 58
G_PTR = 72
G_WSP = 90
G_DBG = 92
WS = f's[{G_WS}:{G_WS+3}]'
V_L, V_T0, V_T1, V_T2, V_L16 = 1, 2, 3, 4, 5

def f32(x): return '0x%08x' % struct.unpack('<I', struct.pack('<f', x))[0]

class Gem:
    def __init__(self, a, sync=True, prof=False):
        self.a = a; self.sync = sync; self.prof = prof; self.ost = ''
    def L(self, dst, terms, add=None): lane(self.a, dst, V_T2, V_L, terms, add)
    def S(self, dst, terms, const=0): sexpr(self.a, dst, G_T2, terms, const)
    def spin_guard(self, lgive):
        a = self.a
        a(f's_add_u32 s{G_SPIN}, s{G_SPIN}, 1')
        a(f's_cmp_ge_u32 s{G_SPIN}, 0x200000')
        a(f's_cbranch_scc1 {lgive}')
    def keep(self, reg, cond):
        a = self.a
        a(cond)
        a(f'v_mov_b32 v{V_T2}, {OOB}')
        a(f'v_cndmask_b32 v{reg}, v{V_T2}, v{reg}, vcc')

    def mark(self, k):
        if not self.prof: return
        a = self.a
        a(f's_memrealtime s[{G_PTR+14}:{G_PTR+15}]')
        a('s_waitcnt lgkmcnt(0)')
        a(f's_mov_b32 s{94+k}, s{G_PTR+14}')
        if False:
            a(f's_memtime s[{G_PTR+14}:{G_PTR+15}]')
            a('s_waitcnt lgkmcnt(0)')
            a(f's_mov_b32 s{98+k}, s{G_PTR+14}')
    def acc(self, k):
        if self.prof != 2: return
        a = self.a
        a(f's_memtime s[{G_PTR+14}:{G_PTR+15}]')
        a('s_waitcnt lgkmcnt(0)')
        if k is not None:
            a(f's_sub_u32 s{G_PTR+15}, s{G_PTR+14}, s60')
            a(f's_add_u32 s{61+k}, s{61+k}, s{G_PTR+15}')
        a(f's_mov_b32 s60, s{G_PTR+14}')
    def dump(self):
        if not self.prof: return
        a = self.a
        self.S(G_T0, [(G_ID, 0, None, 7), (G_WV, 0, None, 5)], TRACE + 4 * MB)
        a(f'v_mov_b32 v{V_T1}, 0')
        for k in range(8):
            a(f'v_mov_b32 v{V_T0}, s{94+k}')
            a(f'buffer_store_dword v{V_T0}, v{V_T1}, {WS}, s{G_T0} offen offset:{4*k}')
        a(f's_add_u32 s{G_T0}, s{G_T0}, {MB}')
        for k in range(8):
            a(f'v_mov_b32 v{V_T0}, s{61+k}')
            a(f'buffer_store_dword v{V_T0}, v{V_T1}, {WS}, s{G_T0} offen offset:{4*k}')

    def setup(self):
        a = self.a
        a(f's_load_dwordx2 s[{G_WSP}:{G_WSP+1}], s[0:1], {K_WS}')
        a(f's_load_dwordx2 s[{G_DBG}:{G_DBG+1}], s[0:1], {K_DBG}')
        a(f'v_and_b32 v{V_L}, 63, v0')
        a(f'v_lshrrev_b32 v{V_T0}, 6, v0')
        a(f'v_readfirstlane_b32 s{G_WV}, v{V_T0}')
        a(f'v_lshlrev_b32 v{V_L16}, 4, v{V_L}')
        a(f's_mov_b32 s{G_SPIN}, 0')
        a(f's_lshl_b32 s{G_LW}, s{G_WV}, 10')
        a('s_waitcnt lgkmcnt(0)')
        srd(a, G_WS, G_WSP, WS_BYTES)
        if self.prof:
            for k in range(8): a(f's_mov_b32 s{94+k}, 0'); a(f's_mov_b32 s{61+k}, 0')
        self.mark(0)

    def load_weights(self, jobs, hook=None):
        a = self.a
        LB = G_T1
        a(f's_lshl_b32 s{LB}, s{G_WV}, 15')
        pairs = []
        for (sd, vg, n, reads, so0, sst) in jobs:
            for p in range(n): pairs.append((sd, vg, reads(p), so0 if p == 0 else None, sst))
        NSL = 16
        def issue(p):
            sd, vg, _, so0, sst = pairs[p]
            for j in range(2):
                a(f's_add_u32 m0, s{LB}, {(p % NSL) * 2048 + j * 1024}')
                if so0 is not None and j == 0: a(f's_mov_b32 s{G_WSO}, {so0}')
                else: a(f's_add_u32 s{G_WSO}, s{G_WSO}, {sst}')
                a(f'buffer_load_dwordx4 v{vg}, s[{sd}:{sd+3}], s{G_WSO} offen lds')
        issued = 0
        for p in range(min(NSL, len(pairs))):
            issue(p); issued += 1
        for p in range(len(pairs)):
            a(f's_waitcnt vmcnt({2 * (issued - p - 1)})')
            if p == 0 and hook: hook()
            for dst, va, off in pairs[p][2]:
                a(f'ds_read_b64_tr_b16 {dst}, v{va} offset:{(p % NSL) * 2048 + off}')
            if p >= 1 and issued < len(pairs):
                a(f's_waitcnt lgkmcnt({len(pairs[p][2])})')
                issue(issued); issued += 1
        a('s_waitcnt lgkmcnt(0)')

    def touch_wo(self):
        a = self.a
        P = G_PTR
        lsk = a.newlabel('tw_skip')
        a(f's_cmp_lt_u32 s{G_ID}, 96')
        a(f's_cbranch_scc1 {lsk}')
        a(f's_load_dwordx2 s[{P}:{P+1}], s[0:1], {K_WO}')
        self.S(G_T0, [(G_ID, 0, 5, 13), (G_WV, 0, None, 21)])
        a(f'v_lshl_add_u32 v{V_T0}, v{V_L}, 7, s{G_T0}')
        a('s_waitcnt lgkmcnt(0)')
        srd(a, G_W, P, 8 * MB)
        for i in range(8):
            a(f's_mov_b32 s{G_T0}, {i * 262144}')
            a(f'buffer_load_dword v{128+i}, v{V_T0}, s[{G_W}:{G_W+3}], s{G_T0} offen')
        a.label(lsk)

    def slab(self, LNEXT, **opt):
        a = self.a; L = self.L; S = self.S
        P = G_PTR
        V_G, V_TR, V_XG, V_ST, V_FL, V_FV = 6, 7, 8, 9, 10, 11
        V_RA = 12
        V_F = 32
        V_ACC = 64
        V_PK = 96
        lB = a.newlabel('sl_b'); lC = a.newlabel('sl_c')
        G_M = G_J
        a(f's_cmp_ge_u32 s{G_ID}, 96')
        a(f's_cbranch_scc1 {lB}')
        a(f's_lshr_b32 s{G_T0}, s{G_ID}, 5')
        a(f's_add_u32 s{G_T0}, s{G_T0}, 1')
        a(f's_cmp_eq_u32 s{G_T0}, 3')
        a(f's_cselect_b32 s{G_M}, 0, s{G_T0}')
        S(G_T0, [(G_M, 0, None, 3)], K_WQ)
        a(f's_load_dwordx2 s[{P}:{P+1}], s[0:1], s{G_T0}')
        a(f's_load_dwordx2 s[{P+2}:{P+3}], s[0:1], {K_AX}')
        a(f's_mov_b32 s{P+4}, {8*MB}')
        a(f's_mov_b32 s{G_WST}, 8192')
        S(G_T0, [(G_ID, 0, 5, 8)])
        S(G_PO, [(G_M, 0, None, 24), (G_ID, 0, 5, 13)], PA)
        a(f's_mov_b32 s{G_PS}, {256*1024}')
        S(G_FO, [(G_ID, 0, 5, 7), (G_M, 0, None, 2)], FLG + F_SLA)
        a(f's_branch {lC}')
        a.label(lB)
        a(f's_sub_u32 s{G_T1}, s{G_ID}, 96')
        a(f's_lshr_b32 s{G_M}, s{G_T1}, 3')
        a(f's_load_dwordx2 s[{P}:{P+1}], s[0:1], {K_WQKV}')
        a(f's_load_dwordx2 s[{P+2}:{P+3}], s[0:1], {K_BX}')
        a(f's_mov_b32 s{P+4}, {6*MB}')
        a(f's_mov_b32 s{G_WST}, 6144')
        S(G_T0, [(G_T1, 0, None, 8)])
        S(G_PO, [(G_M, 0, None, 22), (G_T1, 0, 3, 13)], PB)
        a(f's_mov_b32 s{G_PS}, {64*1024}')
        S(G_FO, [(G_T1, 0, 3, 7), (G_M, 0, None, 2)], FLG + F_SLB)
        a.label(lC)
        a('s_waitcnt lgkmcnt(0)')
        if self.sync:
            li = a.newlabel('sl_i')
            a(f's_cmp_lg_u32 s{G_WV}, 0')
            a(f's_cbranch_scc1 {li}')
            a(f'v_mov_b32 v{V_T0}, 0')
            a('s_mov_b64 exec, 1')
            a(f'buffer_store_dword v{V_T0}, v{V_T0}, {WS}, s{G_FO} offen sc1')
            a('s_mov_b64 exec, -1')
            a.label(li)
        srd(a, G_W, P, f's{P+4}')
        srd(a, G_X, P + 2, 4 * MB)
        a(f's_mov_b64 s[{P+8}:{P+9}], s[{P}:{P+1}]')
        a(f's_mov_b32 s{G_R}, s{G_T0}')
        if self.sync:
            lg = a.newlabel('sl_go'); l2 = a.newlabel('sl_a2')
            a(f's_cmp_lt_u32 s{G_ID}, 96')
            a(f's_cbranch_scc1 {lg}')
            a(f's_cmp_lg_u32 s{G_WV}, 0')
            a(f's_cbranch_scc1 {l2}')
            a('s_mov_b64 exec, 1')
            self.arrive()
            a.label(l2)
            self.touch_wo()
            srd(a, G_W, P + 8, f's{P+4}')
            self.wait_start()
            a.label(lg)
        a(f'v_lshrrev_b32 v{V_T0}, 2, v{V_L}')
        a(f'v_mul_lo_u32 v{V_G}, v{V_T0}, s{G_WST}')
        S(G_T0, [(G_R, 0, None, 0), (G_WV, 0, None, 6)])
        L(V_T0, [(0, 2, 4)], f's{G_T0}')
        a(f'v_add_u32 v{V_G}, v{V_G}, v{V_T0}')
        a(f's_lshl_b32 s{G_WST}, s{G_WST}, 4')
        a(f's_mov_b32 s{G_SEG}, 0')
        a(f's_mov_b32 s{G_END}, {NSEG}')
        a(f's_mov_b32 s{G_XMAX}, {63*65536}')
        self.stream(LNEXT, [0, 1], **opt)

    def stream(self, LNEXT, variants, RD=6):
        a = self.a; L = self.L; S = self.S
        V_G, V_TR, V_XG, V_ST, V_FL, V_FV = 6, 7, 8, 9, 10, 11
        V_RA = 12
        V_F = 32
        V_ACC = 64
        V_PK = 96
        G_M = G_J
        ob = 2 in variants
        a(f's_lshl_b32 s{G_T0}, s{G_WV}, 15')
        if ob:
            L(V_TR, [(4, 2, 9), (2, 2, 6), (0, 2, 4)], f's{G_T0}')
        else:
            L(V_TR, [(4, 2, 9), (2, 2, 6), (1, 1, 5), (0, 1, 3)], f's{G_T0}')
        eo = 8 if ob else 16
        def wreads(p):
            return [(f'a[{8*p+4*et+2*q}:{8*p+4*et+2*q+1}]', V_TR, et * eo + q * 256) for et in range(2) for q in range(2)]
        def hook():
            li = a.newlabel('sl_ar')
            self.mark(7)
            a(f's_cmp_lg_u32 s{G_WV}, 0')
            a(f's_cbranch_scc1 {li}')
            a(f's_cmp_ge_u32 s{G_ID}, 96')
            a(f's_cbranch_scc1 {li}')
            a('s_mov_b64 exec, 1')
            self.arrive(False)
            a.label(li)
        self.load_weights([(G_W, V_G, 32, wreads, '0', f's{G_WST}')], hook if (self.sync and not ob) else None)
        self.mark(4 if ob else 1)
        S(G_T0, [(G_WV, 1, 1, 2)])
        L(V_T0, [(4, 2, 0)], f's{G_T0}')
        a(f'v_and_b32 v{V_T1}, 7, v{V_L}')
        a(f'v_xor_b32 v{V_T0}, v{V_T0}, v{V_T1}')
        a(f's_lshl_b32 s{G_T0}, s{G_WV}, 14')
        L(V_XG, [(3, 3, 11)], f's{G_T0}')
        a(f'v_lshl_add_u32 v{V_XG}, v{V_T0}, 4, v{V_XG}')
        L(V_T0, [(1, 3, 0)])
        a(f'v_lshrrev_b32 v{V_T1}, 4, v{V_L}')
        a(f'v_xor_b32 v{V_T0}, v{V_T0}, v{V_T1}')
        L(V_T1, [(3, 1, 11), (0, 3, 7)])
        for j in range(2):
            a(f'v_xor_b32 v{V_RA+j}, {4*j}, v{V_T0}')
            a(f'v_lshl_add_u32 v{V_RA+j}, v{V_RA+j}, 4, v{V_T1}')
            a(f'v_add_u32 v{V_RA+2+j}, 65536, v{V_RA+j}')
        if ob:
            a(f's_lshl_b32 s{G_T0}, s{G_WV}, 6')
            L(V_ST, [(0, 4, 12), (4, 2, 4)], f's{G_T0}')
            a(f'v_add_u32 v{V_XG}, s{G_LW}, v{V_L16}')
            L(V_RA, [(4, 2, 9), (0, 4, 4)])
            a(f'v_add_u32 v{V_RA+2}, 65536, v{V_RA}')
            self.wait_dbg(D_INIT, NWG)
            self.wait_lines(F_ATB, f's{G_END}')
        else:
            a(f's_lshl_b32 s{G_T0}, s{G_WV}, 11')
            L(V_ST, [(4, 2, 9), (3, 1, 8), (0, 3, 4)], f's{G_T0}')
            a(f'v_mov_b32 v{V_FL}, s{G_FO}')
            a(f's_cmp_eq_u32 s{G_WV}, 0')
            self.keep(V_FL, 's_cselect_b64 vcc, 1, 0')
            a(f'v_mov_b32 v{V_FV}, 0')
        a(f's_lshl_b32 s{G_XO}, s{G_SEG}, 16')
        a(f's_sub_u32 s{G_PO}, s{G_PO}, s{G_PS}')
        a('s_barrier')
        XS = f's[{G_X}:{G_X+3}]'
        SC = ' sc1' if ob else ''
        def dma(u, i, part=2):
            kb = (u & 1) * 8 + i
            if ob:
                if part != 1:
                    a(f's_add_u32 m0, s{G_LW}, {(u >> 1) * 65536 + kb * 4096}')
                    a(f's_add_u32 s{G_T1}, s{G_XO}, {kb * 4096}')
                if part != 0: a(f'buffer_load_dwordx4 v{V_XG}, {XS}, s{G_T1} offen sc1 lds')
                return
            if part != 1: a(f's_add_u32 m0, s{G_LW}, {(u >> 1) * 65536 + kb * 4096 - kb * 128}')
            if part != 0: a(f'buffer_load_dwordx4 v{V_XG}, {XS}, s{G_XO} offen offset:{kb*128} lds')
        for u in range(3):
            for i in range(8 if u < 2 else 4): dma(u, i)
            if u == 1: a(f's_add_u32 s{G_XO}, s{G_XO}, 65536')
        a('s_waitcnt vmcnt(12)')
        a('s_barrier')
        if not ob: self.mark(2)
        def rd(T):
            T %= 128
            p, t = T >> 6, T & 63
            ks, tt = t >> 1, t & 1
            if ob: a(f'ds_read_b128 {vr(V_F+4*(T%8),4)}, v{V_RA+2*p} offset:{ks*2048+tt*256}')
            else: a(f'ds_read_b128 {vr(V_F+4*(T%8),4)}, v{V_RA+2*p+(ks&1)} offset:{(ks>>1)*4096+tt*1024}')
        def epi(p, k, var):
            A = V_ACC + 16 * p
            if k < 8:
                o, inn, h = k >> 2, (k >> 1) & 1, k & 1
                tt, et = (inn, o) if var == 1 else (o, inn)
                r = A + 4 * (2 * tt + et) + 2 * h
                a(f'v_cvt_pk_bf16_f32 v{V_PK+k}, v{r}, v{r+1}')
            elif k == 8:
                if ob:
                    a(f'buffer_store_dwordx4 {vr(V_PK,4)}, v{V_ST}, s[{G_OUT}:{G_OUT+3}], s{G_PO} offen{self.ost}')
                    a(f's_add_u32 s{G_T0}, s{G_PO}, 65536')
                else: a(f'buffer_store_dwordx4 {vr(V_PK,4)}, v{V_ST}, {WS}, s{G_PO} offen sc1')
            elif k == 9:
                if ob: a(f'buffer_store_dwordx4 {vr(V_PK+4,4)}, v{V_ST}, s[{G_OUT}:{G_OUT+3}], s{G_T0} offen{self.ost}')
                else: a(f'buffer_store_dwordx4 {vr(V_PK+4,4)}, v{V_ST}, {WS}, s{G_PO} offen offset:128 sc1')
                a(f's_add_u32 s{G_PO}, s{G_PO}, s{G_PS}')
        for T in range(RD): rd(T)
        lV = a.newlabel('sl_v'); lE = a.newlabel('sl_e')
        a(f'v_add_u32 v{V_ST}, {OOB}, v{V_ST}')
        if len(variants) > 1:
            a(f's_cmp_eq_u32 s{G_M}, 2')
            a(f's_cbranch_scc1 {lV}')
        for var in variants:
            if var == 1: a.label(lV)
            lp = a.newlabel('sl_loop')
            a.label(lp)
            for T in range(128):
                p, t = T >> 6, T & 63
                u = T >> 5; tu = T & 31
                if tu == 16:
                    a('s_waitcnt vmcnt(8)')
                    a('s_barrier')
                if T % 2 == 0: a(f's_waitcnt lgkmcnt({RD-2})')
                A = V_ACC + 16 * p
                x = vr(V_F + 4 * (T % 8), 4)
                ks, tt = t >> 1, t & 1
                ph = (tu - 16) % 32
                isd = ph % 4 == 1
                if isd:
                    un = (u + 3) if tu >= 16 else (u + 2)
                    i = ph // 4
                for et in range(2):
                    w = f'a[{8*ks+4*et}:{8*ks+4*et+3}]'
                    D = vr(A + 4 * (2 * tt + et), 4)
                    c = D if ks else '0'
                    if var == 1: a(f'v_mfma_f32_16x16x32_bf16 {D}, {x}, {w}, {c}')
                    else: a(f'v_mfma_f32_16x16x32_bf16 {D}, {w}, {x}, {c}')
                    if et == 0:
                        rd(T + RD)
                        if isd: dma(un % 4, i, 0)
                    elif isd: dma(un % 4, i, 1)
                if isd and (un & 1) == 1 and i == 7:
                    a(f's_add_u32 s{G_XO}, s{G_XO}, 65536')
                    a(f's_min_u32 s{G_XO}, s{G_XO}, s{G_XMAX}')
                if tu == 18 and (u & 1) and not ob:
                    a(f'buffer_store_dword v{V_FV}, v{V_FL}, {WS}, 0 offen sc1')
                    a(f'v_add_u32 v{V_FV}, 1, v{V_FV}')
                if 4 <= t < 12: epi(p ^ 1, t - 4, var)
                if t == 11: epi(p ^ 1, 8, var)
                if t == 15: epi(p ^ 1, 9, var)
                if t == 20 and p == 0: a(f'v_and_b32 v{V_ST}, 0xffffff, v{V_ST}')
            a(f's_add_u32 s{G_SEG}, s{G_SEG}, 2')
            a(f's_cmp_lt_u32 s{G_SEG}, s{G_END}')
            a(f's_cbranch_scc1 {lp}')
            for k in range(8): epi(1, k, var)
            a(f's_branch {lE}')
        a.label(lE)
        for k in (8, 9): epi(1, k, 0)
        a('s_waitcnt vmcnt(0) lgkmcnt(0)')
        a('s_barrier')
        if not ob: a(f'buffer_store_dword v{V_FV}, v{V_FL}, {WS}, 0 offen sc1')
        self.mark(5 if ob else 3)
        a(f's_branch {LNEXT}')

    def outb(self, LNEXT):
        a = self.a; L = self.L; S = self.S
        P = G_PTR
        V_G = 6
        a(f's_load_dwordx4 s[{P}:{P+3}], s[0:1], {K_BWO}')
        a(f's_add_u32 s{P+4}, s{G_WSP}, {OB}')
        a(f's_addc_u32 s{P+5}, s{G_WSP+1}, 0')
        a(f's_sub_u32 s{G_T1}, s{G_ID}, 96')
        a(f's_lshr_b32 s{G_T1}, s{G_T1}, 3')
        a(f's_mul_i32 s{G_SEG}, s{G_T1}, 22')
        a(f's_add_u32 s{G_END}, s{G_SEG}, 22')
        a(f's_min_u32 s{G_END}, s{G_END}, {NSEG}')
        a(f's_sub_u32 s{G_XMAX}, s{G_END}, 1')
        a(f's_lshl_b32 s{G_XMAX}, s{G_XMAX}, 16')
        a('s_waitcnt lgkmcnt(0)')
        srd(a, G_W, P, 2 * MB)
        srd(a, G_OUT, P + 2, 8 * MB)
        srd(a, G_X, P + 4, 4 * MB)
        S(G_T0, [(G_ID, 0, 3, 8), (G_WV, 0, None, 6)])
        L(V_G, [(2, 4, 11), (0, 2, 4)], f's{G_T0}')
        a(f's_mov_b32 s{G_WST}, 32768')
        S(G_PO, [(G_SEG, 0, None, 17), (G_ID, 0, 3, 8)], 2048)
        a(f's_mov_b32 s{G_PS}, 131072')
        self.stream(LNEXT, [2])

    def wait_flags_s(self, off_sreg, nwords, idx, target, seen=None):
        a = self.a
        if not self.sync: return
        T = G_PTR
        lp = a.newlabel('g_wf'); ld = a.newlabel('g_wfd')
        if seen is not None:
            a(f's_cmp_ge_u32 s{seen}, {target}')
            a(f's_cbranch_scc1 {ld}')
        a.label(lp)
        a(f's_load_dwordx4 s[{T}:{T+3}], s[{G_WSP}:{G_WSP+1}], s{off_sreg} glc')
        self.spin_guard(ld)
        a('s_waitcnt lgkmcnt(0)')
        m = seen if seen is not None else T + 4
        a(f's_min_u32 s{m}, s{T+idx[0]}, s{T+idx[1]}')
        for i in idx[2:]: a(f's_min_u32 s{m}, s{m}, s{T+i}')
        a(f's_cmp_ge_u32 s{m}, {target}')
        a(f's_cbranch_scc1 {ld}')
        a('s_sleep 4')
        a(f's_branch {lp}')
        a.label(ld)
        a('s_waitcnt lgkmcnt(0)')

    def arrive(self, wait=True):
        a = self.a
        a(f'v_mov_b32 v{V_T0}, 0')
        a(f'v_mov_b32 v{V_T1}, 1')
        if wait: a('s_waitcnt vmcnt(0)')
        a(f'global_atomic_add v{V_T0}, v{V_T1}, s[{G_DBG}:{G_DBG+1}] offset:{4*D_INIT} sc1')
        a('s_mov_b64 exec, -1')

    def wait_lines(self, fo, target, seen=None):
        a = self.a
        if not self.sync: return
        lp = a.newlabel('g_wl'); ld = a.newlabel('g_wld')
        self.L(V_T0, [(0, 5, 7)], FLG + fo)
        a(f's_cmp_lg_u32 s{G_WV}, 0')
        a(f's_cbranch_scc1 {ld}')
        a.label(lp)
        a(f'buffer_load_dword v{V_T1}, v{V_T0}, {WS}, 0 offen sc1')
        self.spin_guard(ld)
        a('s_waitcnt vmcnt(0)')
        a(f'v_cmp_gt_u32 vcc, {target}, v{V_T1}')
        a(f's_cbranch_vccz {ld}')
        a('s_sleep 8')
        a(f's_branch {lp}')
        a.label(ld)
        a('s_barrier')

    def wait_start(self):
        self.wait_dbg(D_RDY, 96, G_PTR + 12)

    def wait_dbg(self, word, target, T=G_PTR):
        a = self.a
        if not self.sync: return
        lp = a.newlabel('g_wd'); ld = a.newlabel('g_wdd')
        a(f's_cmp_lg_u32 s{G_WV}, 0')
        a(f's_cbranch_scc1 {ld}')
        a.label(lp)
        a(f's_load_dword s{T}, s[{G_DBG}:{G_DBG+1}], {4*word} glc')
        self.spin_guard(ld)
        a('s_waitcnt lgkmcnt(0)')
        a(f's_and_b32 s{T}, s{T}, 0xffff')
        a(f's_cmp_ge_u32 s{T}, {target}')
        a(f's_cbranch_scc1 {ld}')
        a('s_sleep 32')
        a(f's_branch {lp}')
        a.label(ld)
        a('s_waitcnt lgkmcnt(0)')
        a('s_barrier')

    def softmax(self, regs, V_M, V_M2, V_SUM, G_C=G_C):
        a = self.a
        a(f'v_max3_f32 v{V_M}, v{regs[0]}, v{regs[1]}, v{regs[2]}')
        r = regs[3:]
        while len(r) >= 2:
            a(f'v_max3_f32 v{V_M}, v{V_M}, v{r[0]}, v{r[1]}'); r = r[2:]
        if r: a(f'v_max_f32 v{V_M}, v{V_M}, v{r[0]}')
        a(f'v_mov_b32 v{V_M2}, v{V_M}')
        a(f'v_permlane32_swap_b32 v{V_M}, v{V_M2}')
        a(f'v_max_f32 v{V_M}, v{V_M}, v{V_M2}')
        a(f'v_mul_f32 v{V_M}, s{G_C}, v{V_M}')
        for x in regs: a(f'v_fma_f32 v{x}, v{x}, s{G_C}, -v{V_M}')
        for x in regs: a(f'v_exp_f32 v{x}, v{x}')
        a(f'v_add_f32 v{V_SUM}, v{regs[0]}, v{regs[1]}')
        a(f'v_add_f32 v{V_M2}, v{regs[2]}, v{regs[3]}')
        for i in range(4, len(regs), 2):
            a(f'v_add_f32 v{V_SUM}, v{V_SUM}, v{regs[i]}')
            a(f'v_add_f32 v{V_M2}, v{V_M2}, v{regs[i+1]}')
        a(f'v_add_f32 v{V_SUM}, v{V_SUM}, v{V_M2}')
        a(f'v_mov_b32 v{V_M2}, v{V_SUM}')
        a(f'v_permlane32_swap_b32 v{V_SUM}, v{V_M2}')
        a(f'v_add_f32 v{V_SUM}, v{V_SUM}, v{V_M2}')
        a(f'v_rcp_f32 v{V_SUM}, v{V_SUM}')

    def att(self, LNEXT):
        a = self.a; L = self.L; S = self.S
        V_BL, V_BS, V_AL, V_KML, V_VML, V_D0, V_FLA, V_FLB = 6, 7, 8, 9, 10, 11, 12, 13
        V_M, V_M2, V_SUM = 14, 15, 26
        V_PP = 16
        V_PP = 28
        V_PM = 40
        V_PK = 208
        V_BC, V_BP, V_BA = 64, 80, 96
        V_SC, V_SP = 112, 128
        V_O = 144
        A_Q, A_K, A_KM, A_V, A_VM = 0, 32, 64, 96, 128
        B_Q, B_K, B_V, B_KP, B_VP, B_VC = 160, 168, 176, 184, 192, 196
        NEG = f32(-1e30)
        T = G_PTR
        a(f's_mov_b32 s{G_C}, {f32(128 ** -0.5 * math.log2(math.e))}')
        a(f's_mov_b32 s{G_C2}, {f32(32 ** -0.5 * math.log2(math.e))}')
        G_STR, G_AEND, G_S2 = G_PS, G_WSO, G_WST
        G_NX = G_OUO
        S(G_J, [(G_ID, 0, 3, 2), (G_WV, 0, None, 0)])
        a(f's_lshl_b32 s{G_T0}, s{G_J}, 11')
        a(f'v_add_u32 v{V_BL}, s{G_T0}, v{V_L16}')
        L(V_KML, [(5, 1, 7), (0, 3, 4)], f's{G_T0}')
        a(f's_add_u32 s{G_T0}, s{G_T0}, {VM - KM}')
        L(V_VML, [(0, 5, 4), (5, 1, 3)], f's{G_T0}')
        a(f's_lshl_b32 s{G_T0}, s{G_J}, 13')
        a(f'v_add_u32 v{V_AL}, s{G_T0}, v{V_L16}')
        a(f'v_mov_b32 v{V_BS}, v{V_AL}')
        S(G_FA, [(G_J, 0, None, 7)], FLG + F_SLA)
        S(G_FB, [(G_J, 2, None, 7)], FLG + F_SLB)
        S(G_FR, [(G_J, 0, None, 7)], FLG + F_REC)
        S(G_T0, [(G_J, 0, None, 7)], FLG)
        a(f'v_mov_b32 v{V_FLA}, s{G_T0}')
        a(f'v_lshl_add_u32 v{V_FLB}, v{V_L}, 12, s{G_T0}')
        self.keep(V_FLA, 's_mov_b64 vcc, 1')
        lhelp = a.newlabel('at_help'); lcom = a.newlabel('at_com')
        a(f's_cmp_lt_u32 s{G_ID}, 120')
        a(f's_cbranch_scc1 {lhelp}')
        a(f's_mov_b32 s{G_SA}, 0')
        a(f's_mov_b32 s{G_SB}, 0')
        a(f's_mov_b32 s{G_STR}, 1')
        a(f's_mov_b32 s{G_AEND}, {N0}')
        a(f's_mov_b32 s{G_S2}, {N1 + 2}')
        if self.sync:
            li = a.newlabel('at_i')
            a(f'v_mov_b32 v{V_T0}, 0')
            a(f's_mov_b32 s{G_T0}, {F_ATB}')
            a(f'buffer_store_dword v{V_T0}, v{V_FLA}, {WS}, s{G_T0} offen sc1')
            a(f's_mov_b32 s{G_T0}, {F_ATA}')
            a(f'buffer_store_dword v{V_T0}, v{V_FLB}, {WS}, s{G_T0} offen sc1')
            a('s_waitcnt vmcnt(0)')
            a('s_barrier')
            self.mark(7)
            a(f's_cmp_lg_u32 s{G_WV}, 0')
            a(f's_cbranch_scc1 {li}')
            a('s_mov_b64 exec, 1')
            self.arrive()
            a.label(li)
        self.touch_wo()
        a(f's_load_dwordx2 s[{T}:{T+1}], s[0:1], {K_AX}')
        a(f's_load_dwordx2 s[{T+2}:{T+3}], s[0:1], {K_BX}')
        a(f's_load_dwordx2 s[{T+4}:{T+5}], s[0:1], {K_BWO}')
        a('s_waitcnt lgkmcnt(0)')
        srd(a, G_W, T, 4 * MB)
        srd(a, G_X, T + 2, 4 * MB)
        srd(a, G_W2, T + 4, 2 * MB)
        a(f's_lshl_b32 s{G_T0}, s{G_J}, 13')
        a(f'v_lshl_add_u32 v{V_D0}, v{V_L}, 7, s{G_T0}')
        a(f'buffer_load_dword v{V_O}, v{V_D0}, s[{G_W}:{G_W+3}], 0 offen')
        self.wait_start()
        for i in range(16):
            a(f's_mov_b32 s{G_T0}, {i * 262144}')
            a(f'buffer_load_dword v{V_O+2*i}, v{V_D0}, s[{G_W}:{G_W+3}], s{G_T0} offen')
            a(f'buffer_load_dword v{V_O+2*i+1}, v{V_D0}, s[{G_X}:{G_X+3}], s{G_T0} offen')
        for i in range(8):
            a(f's_mov_b32 s{G_T0}, {i * 262144}')
            a(f'buffer_load_dword v{V_O+32+i}, v{V_D0}, s[{G_W2}:{G_W2+3}], s{G_T0} offen')
        a(f's_branch {lcom}')
        a.label(lhelp)
        S(G_SA, [(G_ID, 3, None, 0)], N0)
        a(f's_mov_b32 s{G_SB}, {NSEG}')
        a(f's_mov_b32 s{G_STR}, 12')
        a(f's_mov_b32 s{G_AEND}, {N1}')
        S(G_S2, [(G_ID, 3, 1, 0)], N1)
        a(f's_cmp_lt_u32 s{G_ID}, {NOUT}')
        a(f's_cselect_b32 s{G_S2}, {NSEG}, s{G_S2}')
        a.label(lcom)
        L(V_D0, [(0, 5, 0)])
        L(V_T1, [(5, 1, 2)])
        a(f'v_sub_u32 v{V_D0}, v{V_D0}, v{V_T1}')
        def bias(dst, add):
            a(f'v_mov_b32 v{V_M}, {NEG}')
            for j in range(16):
                a(f'v_add_u32 v{V_T1}, {add - (8*(j>>2)+(j&3))}, v{V_D0}')
                a(f'v_and_b32 v{V_T1}, 0xfffffff1, v{V_T1}')
                a(f'v_cmp_ne_u32 vcc, 0, v{V_T1}')
                a(f'v_cndmask_b32 v{dst+j}, 0, v{V_M}, vcc')
        bias(V_BC, 0)
        for j in range(16):
            a(f'v_cmp_gt_i32 vcc, {8*(j>>2)+(j&3)}, v{V_D0}')
            a(f'v_cndmask_b32 v{V_BA+j}, 0, v{V_M}, vcc')
        for j in range(16): a(f'v_mov_b32 v{V_BP+j}, {NEG}')
        for j in range(12): a(f'v_accvgpr_write_b32 a{B_KP+j}, 0')
        for j in range(16): a(f'v_accvgpr_write_b32 a{A_VM+j}, 0')
        for j in range(4): a(f'v_mov_b32 v{V_PM+j}, 0')
        self.wait_dbg(D_INIT, NWG)
        top = a.newlabel('at_top'); la = a.newlabel('at_a'); lb = a.newlabel('at_b'); lend = a.newlabel('at_end'); lnb = a.newlabel('at_nb')
        lpoll = a.newlabel('at_poll'); lnf = a.newlabel('at_nf')
        G_DIRTY = G_SEEN
        def poll():
            if not self.sync: return
            a(f's_load_dwordx16 s[8:23], s[{G_WSP}:{G_WSP+1}], s{G_FR} glc')
            a(f's_load_dwordx4 s[{T+4}:{T+7}], s[{G_WSP}:{G_WSP+1}], s{G_FA} glc')
            a(f's_load_dwordx4 s[{T+8}:{T+11}], s[{G_WSP}:{G_WSP+1}], s{G_FB} glc')
        G_PV = G_R
        def post():
            a(f'v_mov_b32 v{V_T0}, s{G_PV}')
            a(f'buffer_store_dword v{V_T0}, v{V_FLA}, {WS}, s{G_DIRTY} offen sc1')
        def ld8(dst, base):
            for t in range(8):
                if t % 4 == 0: a(f's_add_u32 s{G_T0}, s{G_PO}, {base + t*1024}')
                a(f'buffer_load_dwordx4 {ar(dst+4*t,4)}, v{V_BS}, {WS}, s{G_T0} offen offset:{(t&3)*1024} sc1')
        def ldB(m, dst):
            a(f's_add_u32 s{G_T0}, s{G_XO}, {PB + m * PB_M}')
            for t in range(2): a(f'buffer_load_dwordx4 {ar(dst+4*t,4)}, v{V_BL}, {WS}, s{G_T0} offen offset:{t*1024} sc1')
        def nextseg():
            ln = a.newlabel('at_nx')
            a(f's_add_u32 s{G_NX}, s{G_SA}, s{G_STR}')
            a(f's_cmp_lt_u32 s{G_NX}, s{G_AEND}')
            a(f's_cbranch_scc1 {ln}')
            a(f's_max_u32 s{G_NX}, s{G_NX}, s{G_S2}')
            a(f's_cmp_eq_u32 s{G_AEND}, 255')
            a(f's_cselect_b32 s{G_NX}, s{G_NX}, s{G_S2}')
            a(f's_mov_b32 s{G_STR}, 3')
            a(f's_mov_b32 s{G_AEND}, 255')
            a.label(ln)
        nextseg()
        self.wait_flags_s(G_FB, 4, [0, 1, 2], 1)
        a(f's_mov_b32 s{G_XO}, 0')
        for m, dst in enumerate((B_Q, B_K, B_V)): ldB(m, dst)
        a(f's_add_u32 s{G_T1}, s{G_SA}, 1')
        self.wait_flags_s(G_FA, 4, [0, 1, 2], f's{G_T1}')
        a(f's_lshl_b32 s{G_PO}, s{G_SA}, 18')
        ld8(A_Q, PA); ld8(A_K, PA + PA_M); ld8(A_V, PA + 2 * PA_M)
        a(f's_mov_b32 s{G_DIRTY}, {F_DUM}')
        a(f's_mov_b32 s{G_PV}, 0')
        a(f's_mov_b32 s{G_END}, 0')
        a('s_waitcnt vmcnt(0)')
        self.acc(None)
        a.label(lpoll)
        poll()
        a.label(top)
        if self.sync:
            a('s_waitcnt lgkmcnt(0)')
            a(f's_min_u32 s{T}, s8, s12')
            for i in (16, 20): a(f's_min_u32 s{T}, s{T}, s{i}')
            for b in (4, 8):
                for i in (1, 2): a(f's_min_u32 s{T+b}, s{T+b}, s{T+b+i}')
            a(f's_min_u32 s{T+5}, s{G_NX}, {NSEG-1}')
            a(f's_cmp_gt_u32 s{T+4}, s{T+5}')
            a(f's_cselect_b32 s{T}, s{T}, 0')
            a(f's_min_u32 s{T}, s{T}, {NSEG}')
            a(f's_sub_u32 s{T+9}, s{T+8}, 1')
            a(f's_cmp_ge_u32 s{T+8}, {NSEG}')
            a(f's_cselect_b32 s{T+8}, {NSEG}, s{T+9}')
        else:
            a(f's_mov_b32 s{T}, {NSEG}'); a(f's_mov_b32 s{T+8}, {NSEG}')
        a(f's_cmp_lt_u32 s{G_SB}, s{T+8}')
        a(f's_cbranch_scc1 {lb}')
        a(f's_cmp_lt_u32 s{G_SA}, s{T}')
        a(f's_cbranch_scc1 {la}')
        a(f's_cmp_eq_u32 s{G_DIRTY}, {F_DUM}')
        a(f's_cbranch_scc1 {lnf}')
        a('s_waitcnt vmcnt(0)')
        post()
        a(f's_mov_b32 s{G_DIRTY}, {F_DUM}')
        a.label(lnf)
        a(f's_cmp_ge_u32 s{G_SA}, {NSEG}')
        a(f's_cselect_b32 s{G_T0}, s{G_SB}, 0')
        a(f's_cmp_ge_u32 s{G_T0}, {NSEG}')
        a(f's_cbranch_scc1 {lend}')
        self.spin_guard(lend)
        a('s_sleep 1')
        a(f's_branch {lpoll}')
        a.label(la)
        self.acc(0)
        G_KOK = G_END
        def ldkm():
            a('s_mov_b32 exec_lo, 0xff'); a('s_mov_b32 exec_hi, 0xff')
            for t in range(8): a(f'buffer_load_dwordx4 {ar(A_KM+4*t,4)}, v{V_KML}, {WS}, s{G_KMO} offen offset:{t*256} sc1')
            a('s_mov_b64 exec, -1')
        def ldvm():
            for e in range(4): a(f'buffer_load_dwordx2 {ar(A_VM+4*e,2)}, v{V_VML}, {WS}, s{G_KMO} offen offset:{e*512} sc1')
        lk1 = a.newlabel('at_k1'); lk2 = a.newlabel('at_k2'); lk3 = a.newlabel('at_k3'); lk4 = a.newlabel('at_k4')
        S(G_KMO, [(G_SA, 0, None, 16)], KM)
        a(f's_cmp_lg_u32 s{G_KOK}, 0')
        a(f's_cbranch_scc1 {lk1}')
        ldkm(); ldvm()
        a.label(lk1)
        S(G_OAO, [(G_SA, 0, None, 18)], OA)
        a(f's_cmp_lt_u32 s{G_NX}, s{T}')
        a(f's_cselect_b32 s{G_XMAX}, 1, 0')
        a(f's_cmp_lt_u32 s{G_NX}, {NSEG}')
        a(f's_cselect_b32 s{G_T1}, s{G_NX}, s{G_SA}')
        a(f's_cselect_b32 s{G_T0}, 0, {OOB}')
        a(f'v_or_b32 v{V_BS}, s{G_T0}, v{V_AL}')
        a(f's_lshl_b32 s{G_PO}, s{G_T1}, 18')
        S(G_KMO, [(G_T1, 0, None, 16)], KM)
        poll()
        for t in range(8):
            a(f'v_mfma_f32_32x32x16_bf16 {vr(V_SC,16)}, {ar(A_K+4*t,4)}, {ar(A_Q+4*t,4)}, {vr(V_SC if t else V_BA,16)}')
        a(f's_cmp_lg_u32 s{G_KOK}, 0')
        a(f's_cbranch_scc1 {lk2}')
        a('s_waitcnt vmcnt(4)')
        a.label(lk2)
        ld8(A_K, PA + PA_M)
        for t in range(8):
            a(f'v_mfma_f32_32x32x16_bf16 {vr(V_SP,16)}, {ar(A_KM+4*t,4)}, {ar(A_Q+4*t,4)}, {vr(V_SP,16) if t else 0}')
        self.acc(1)
        a(f's_mov_b32 s{G_KOK}, s{G_XMAX}')
        ld8(A_Q, PA)
        a(f's_cmp_eq_u32 s{G_KOK}, 0')
        a(f's_cbranch_scc1 {lk3}')
        ldkm()
        a.label(lk3)
        self.softmax([V_SC + j for j in range(16)] + [V_SP + j for j in range(4)], V_M, V_M2, V_SUM)
        for j in range(8): a(f'v_cvt_pk_bf16_f32 v{V_PP+j}, v{V_SC+2*j}, v{V_SC+2*j+1}')
        for j in range(2): a(f'v_cvt_pk_bf16_f32 v{V_PM+j}, v{V_SP+2*j}, v{V_SP+2*j+1}')
        def fin(e):
            O = V_O + 16 * e; PK = V_PK + 8 * e
            r = [f'v_mul_f32 v{O+j}, v{O+j}, v{V_SUM}' for j in range(16)]
            r += [f'v_cvt_pk_bf16_f32 v{PK+j}, v{O+2*j}, v{O+2*j+1}' for j in range(8)]
            return r
        def pv(e):
            O = vr(V_O + 16 * e, 16)
            return [f'v_mfma_f32_32x32x16_bf16 {O}, {ar(A_V+8*e,4)}, {vr(V_PP,4)}, 0',
                    f'v_mfma_f32_32x32x16_bf16 {O}, {ar(A_V+8*e+4,4)}, {vr(V_PP+4,4)}, {O}',
                    f'v_mfma_f32_32x32x16_bf16 {O}, {ar(A_VM+4*e,4)}, {vr(V_PM,4)}, {O}']
        a('s_waitcnt vmcnt(16)')
        post()
        for m in pv(0) + pv(1): a(m)
        q = fin(0) + fin(1)
        for m in pv(2) + pv(3):
            a(m)
            for _ in range(6): a(q.pop(0))
        ld8(A_V, PA + 2 * PA_M)
        a(f's_cmp_eq_u32 s{G_KOK}, 0')
        a(f's_cbranch_scc1 {lk4}')
        ldvm()
        a.label(lk4)
        for x in q + fin(2) + fin(3): a(x)
        for e in range(4):
            if e % 2 == 0: a(f's_add_u32 s{G_T0}, s{G_OAO}, {e*2048}')
            for t in range(2): a(f'buffer_store_dwordx4 {vr(V_PK+8*e+4*t,4)}, v{V_AL}, {WS}, s{G_T0} offen offset:{(e&1)*2048+t*1024} sc1')
        a(f's_mov_b32 s{G_PV}, 1')
        S(G_DIRTY, [(G_SA, 0, None, 12)], F_ATA)
        a(f's_mov_b32 s{G_SA}, s{G_NX}')
        nextseg()
        self.acc(2)
        a('s_waitcnt vmcnt(17)')
        self.acc(3)
        a(f's_branch {top}')
        a.label(lb)
        self.acc(0)
        poll()
        S(G_OBO, [(G_SB, 0, None, 16)], OB)
        a(f's_add_u32 s{G_T1}, s{G_SB}, 1')
        a(f's_min_u32 s{G_T1}, s{G_T1}, {NSEG-1}')
        a(f's_lshl_b32 s{G_XO}, s{G_T1}, 16')
        a(f'v_mfma_f32_32x32x16_bf16 {vr(V_SP,16)}, {ar(B_KP,4)}, {ar(B_Q,4)}, {vr(V_BP,16)}')
        a(f'v_mfma_f32_32x32x16_bf16 {vr(V_SP,16)}, {ar(B_KP+4,4)}, {ar(B_Q+4,4)}, {vr(V_SP,16)}')
        a(f'v_mfma_f32_32x32x16_bf16 {vr(V_SC,16)}, {ar(B_K,4)}, {ar(B_Q,4)}, {vr(V_BC,16)}')
        a(f'v_mfma_f32_32x32x16_bf16 {vr(V_SC,16)}, {ar(B_K+4,4)}, {ar(B_Q+4,4)}, {vr(V_SC,16)}')
        for j in range(8): a(f'v_accvgpr_mov_b32 a{B_KP+j}, a{B_K+j}')
        for j in range(8): a(f'v_accvgpr_mov_b32 a{B_VC+j}, a{B_V+j}')
        for m, dst in enumerate((B_Q, B_K, B_V)): ldB(m, dst)
        self.softmax([V_SP + 8 + j for j in range(8)] + [V_SC + j for j in range(16)], V_M, V_M2, V_SUM, G_C2)
        for j in range(8): a(f'v_cvt_pk_bf16_f32 v{V_PP+j}, v{V_SC+2*j}, v{V_SC+2*j+1}')
        for j in range(4): a(f'v_cvt_pk_bf16_f32 v{V_PP+8+j}, v{V_SP+8+2*j}, v{V_SP+8+2*j+1}')
        O = vr(V_O, 16)
        a(f'v_mfma_f32_32x32x16_bf16 {O}, {ar(B_VC,4)}, {vr(V_PP,4)}, 0')
        a(f'v_mfma_f32_32x32x16_bf16 {O}, {ar(B_VC+4,4)}, {vr(V_PP+4,4)}, {O}')
        a(f'v_mfma_f32_32x32x16_bf16 {O}, {ar(B_VP,4)}, {vr(V_PP+8,4)}, {O}')
        for j in range(4): a(f'v_accvgpr_mov_b32 a{B_VP+j}, a{B_VC+4+j}')
        self.acc(4)
        a('s_waitcnt vmcnt(6)')
        self.acc(5)
        post()
        a(f's_cmp_lg_u32 s{G_SB}, 0')
        a(f's_cbranch_scc1 {lnb}')
        bias(V_BP, 32)
        a.label(lnb)
        for j in range(16): a(f'v_mul_f32 v{V_O+j}, v{V_O+j}, v{V_SUM}')
        for j in range(8): a(f'v_cvt_pk_bf16_f32 v{V_PK+j}, v{V_O+2*j}, v{V_O+2*j+1}')
        for t in range(2):
            for j in range(2): a(f'v_permlane32_swap_b32 v{V_PK+4*t+j}, v{V_PK+4*t+2+j}')
        for t in range(2): a(f'buffer_store_dwordx4 {vr(V_PK+4*t,4)}, v{V_BL}, {WS}, s{G_OBO} offen offset:{t*1024} sc1')
        a(f's_add_u32 s{G_SB}, s{G_SB}, 1')
        a(f's_mov_b32 s{G_DIRTY}, {F_ATB}')
        a(f's_mov_b32 s{G_PV}, s{G_SB}')
        if self.prof:
            lm = a.newlabel('at_m')
            a(f's_cmp_lg_u32 s{G_SB}, {NSEG}')
            a(f's_cbranch_scc1 {lm}')
            self.mark(1)
            a.label(lm)
        self.acc(6)
        a('s_waitcnt vmcnt(3)')
        self.acc(7)
        a(f's_branch {top}')
        a.label(lend)
        a('s_waitcnt vmcnt(0) lgkmcnt(0)')
        self.mark(5)
        self.mark(6)
        a(f's_branch {LNEXT}')

    def out64(self, LNEXT, NF=16, SLP=10):
        a = self.a; L = self.L; S = self.S
        P = G_PTR
        NR = NOUT // 16
        V_G, V_TR, V_FA, V_RW, V_RR, V_OUT, V_FP, V_FR = 6, 7, 8, 9, 10, 11, 12, 13
        V_LW = 16
        V_AC = 32
        V_F = 64
        V_W = 128
        RB = 131072
        G_NXT, G_NOK, G_FSO = G_XO, G_END, G_XMAX
        a(f's_load_dwordx2 s[{P}:{P+1}], s[0:1], {K_WO}')
        a(f's_load_dwordx2 s[{P+2}:{P+3}], s[0:1], {K_OUT}')
        a(f's_mul_i32 s{G_J}, s{G_ID}, {-(-1024 // NR)}')
        a(f's_lshr_b32 s{G_J}, s{G_J}, 10')
        assert all((i * -(-1024 // NR)) >> 10 == i // NR for i in range(NOUT))
        a(f's_mul_i32 s{G_T0}, s{G_J}, {NR}')
        a(f's_sub_u32 s{G_SEG}, s{G_ID}, s{G_T0}')
        a('s_waitcnt lgkmcnt(0)')
        srd(a, G_W, P, 8 * MB)
        srd(a, G_OUT, P + 2, 8 * MB)
        S(G_T0, [(G_WV, 0, None, 21), (G_J, 0, None, 7)])
        L(V_G, [(3, 3, 11), (0, 3, 4)], f's{G_T0}')
        a(f's_lshl_b32 s{G_T0}, s{G_WV}, 15')
        L(V_TR, [(5, 1, 9), (2, 2, 7), (4, 1, 5), (0, 2, 3)], f's{G_T0}')
        def wreg(t, tile):
            return f'a[{8*t+4*tile}:{8*t+4*tile+3}]' if t < 32 else vr(V_W + 8 * (t - 32) + 4 * tile, 4)
        def rds(p):
            if p >= 48: return []
            f, b = ('a', 8 * p) if p < 32 else ('v', V_W + 8 * (p - 32))
            return [(f'{f}[{b+4*tl+2*q}:{b+4*tl+2*q+1}]', V_TR, tl * 64 + q * 1024) for tl in range(2) for q in range(2)]
        self.load_weights([(G_W, V_G, 64, rds, '0', '16384')])
        self.mark(4)
        a(f's_lshl_b32 s{G_T0}, s{G_WV}, 16')
        a(f'v_add_u32 v{V_FA}, s{G_T0}, v{V_L16}')
        S(G_T0, [(G_WV, 0, None, 13)], RB)
        a(f'v_add_u32 v{V_RW}, s{G_T0}, v{V_L16}')
        S(G_T0, [(G_WV, 0, None, 7)], RB)
        L(V_RR, [(1, 2, 10), (0, 1, 9), (3, 3, 4)], f's{G_T0}')
        S(G_T0, [(G_WV, 0, None, 15), (G_J, 0, None, 7)])
        L(V_OUT, [(3, 3, 12), (0, 3, 3)], f's{G_T0}')
        L(V_FP, [(0, 5, 7)], FLG)
        self.wait_dbg(D_INIT, NWG)
        def flagoff(seg):
            S(G_FSO, [(seg, 0, 6, 12)], F_ATA)
        order = []
        for i in range(16): order += [3 * i, 3 * i + 1, 3 * i + 2, 48 + i]
        def ldA(n, base):
            t = order[n]
            a(f's_add_u32 s{G_T0}, s{base}, {t*1024}')
            a(f'buffer_load_dwordx4 {vr(V_F+4*(n%NF),4)}, v{V_FA}, {WS}, s{G_T0} offen sc1')
        def ldW(i):
            for tl in range(2):
                for q in range(2):
                    r = V_LW + 8 * (i % 2) + 4 * tl + 2 * q
                    a(f'ds_read_b64_tr_b16 v[{r}:{r+1}], v{V_TR} offset:{i*2048+tl*64+q*1024}')
        lp = a.newlabel('o6_loop'); lgo = a.newlabel('o6_go'); lw = a.newlabel('o6_w'); lwd = a.newlabel('o6_wd')
        self.acc(None)
        a.label(lp)
        S(G_OAO, [(G_SEG, 0, None, 18)], OA)
        if self.sync:
            flagoff(G_SEG)
            a.label(lw)
            a(f'buffer_load_dword v{V_FR}, v{V_FP}, {WS}, s{G_FSO} offen sc1')
            self.spin_guard(lwd)
            a('s_waitcnt vmcnt(0)')
            a(f'v_cmp_eq_u32 vcc, 0, v{V_FR}')
            a(f's_cbranch_vccz {lwd}')
            a(f's_sleep {SLP}')
            a(f's_branch {lw}')
            a.label(lwd)
        for n in range(NF - 1): ldA(n, G_OAO)
        a.label(lgo)
        self.acc(0)
        a(f's_lshl_b32 s{G_OUO}, s{G_SEG}, 17')
        a(f's_add_u32 s{G_NXT}, s{G_SEG}, {NR}')
        flagoff(G_NXT)
        ldW(0)
        FL = 24
        for n in range(64):
            t = order[n]
            extra = 1 if (FL < n <= FL + NF - 1) else 0
            a(f's_waitcnt vmcnt({NF - 2 + extra})')
            x = vr(V_F + 4 * (n % NF), 4)
            if t >= 48: a('s_waitcnt lgkmcnt(0)')
            for tl in range(2):
                w = wreg(t, tl) if t < 48 else vr(V_LW + 8 * ((t - 48) % 2) + 4 * tl, 4)
                D = vr(V_AC + 16 * tl, 16)
                a(f'v_mfma_f32_32x32x16_bf16 {D}, {w}, {x}, {D if n else 0}')
                if tl == 0:
                    m = n + NF - 1
                    if m == 64:
                        a(f'v_cmp_eq_u32 vcc, 0, v{V_FR}')
                        S(G_KMO, [(G_NXT, 0, None, 18)], OA)
                        a(f's_cmp_eq_u64 vcc, 0')
                        a(f's_cselect_b32 s{G_NOK}, 1, 0')
                        a(f's_cmp_ge_u32 s{G_NXT}, {NSEG}')
                        a(f's_cselect_b32 s{G_NOK}, 0, s{G_NOK}')
                        a(f's_cmp_eq_u32 s{G_NOK}, 0')
                        a(f's_cselect_b32 s{G_KMO}, s{G_OAO}, s{G_KMO}')
                    ldA(m % 64, G_OAO if m < 64 else G_KMO)
                    if n == FL:
                        if self.sync: a(f'buffer_load_dword v{V_FR}, v{V_FP}, {WS}, s{G_FSO} offen sc1')
                        else: a(f'buffer_load_dword v{V_T1}, v{V_FP}, {WS}, s{G_FSO} offen sc1'); a(f'v_mov_b32 v{V_FR}, 127')
            if t >= 48 and t < 63: ldW(t - 48 + 1)
        self.acc(1)
        a('s_barrier')
        for b in range(8): a(f'ds_write_b128 v{V_RW}, {vr(V_AC+4*b,4)} offset:{b*1024}')
        a('s_waitcnt lgkmcnt(0)')
        a('s_barrier')
        for h in range(2):
            for w in range(4): a(f'ds_read_b128 {vr(V_AC+16*h+4*w,4)}, v{V_RR} offset:{h*4096+w*8192}')
        for h in range(2):
            R = V_AC + 16 * h
            a(f's_waitcnt lgkmcnt({4-4*h})')
            for j in (0, 2): a(f'v_pk_add_f32 {vr(R+j,2)}, {vr(R+j,2)}, {vr(R+4+j,2)}')
            for j in (0, 2): a(f'v_pk_add_f32 {vr(R+8+j,2)}, {vr(R+8+j,2)}, {vr(R+12+j,2)}')
            for j in (0, 2): a(f'v_pk_add_f32 {vr(R+j,2)}, {vr(R+j,2)}, {vr(R+8+j,2)}')
            for j in range(2): a(f'v_cvt_pk_bf16_f32 v{V_LW+8+2*h+j}, v{R+2*j}, v{R+2*j+1}')
            a(f'buffer_store_dwordx2 {vr(V_LW+8+2*h,2)}, v{V_OUT}, s[{G_OUT}:{G_OUT+3}], s{G_OUO} offen offset:{h*64}{self.ost}')
        self.acc(2)
        a(f's_mov_b32 s{G_SEG}, s{G_NXT}')
        a(f's_mov_b32 s{G_OAO}, s{G_KMO}')
        a(f's_cmp_lg_u32 s{G_NOK}, 0')
        a(f's_cbranch_scc1 {lgo}')
        a(f's_cmp_lt_u32 s{G_SEG}, {NSEG}')
        a(f's_cbranch_scc1 {lp}')
        self.mark(5)
        a(f's_branch {LNEXT}')
```

```python
from asmlib import *
from layout import *
import math, struct

def srd(a, s, ptr, nbytes):
    a(f's_mov_b32 s{s}, s{ptr}')
    a(f's_and_b32 s{s+1}, s{ptr+1}, 0xffff')
    a(f's_mov_b32 s{s+2}, {nbytes}')
    a(f's_mov_b32 s{s+3}, 0x00020000')

def lane(a, dst, tmp, VL, terms, add=None):
    first = True
    for sh, w, out in terms:
        t = dst if first else tmp
        if sh + w >= 6: a(f'v_lshrrev_b32 v{t}, {sh}, v{VL}')
        elif sh == 0: a(f'v_and_b32 v{t}, {(1 << w) - 1}, v{VL}')
        else: a(f'v_bfe_u32 v{t}, v{VL}, {sh}, {w}')
        if first:
            if out: a(f'v_lshlrev_b32 v{dst}, {out}, v{dst}')
        else: a(f'v_lshl_add_u32 v{dst}, v{tmp}, {out}, v{dst}')
        first = False
    if add is not None: a(f'v_add_u32 v{dst}, {add}, v{dst}')

def sexpr(a, dst, tmp, terms, const=0):
    first = True
    for sreg, sh, w, out in terms:
        t = dst if first else tmp
        src = sreg
        if sh: a(f's_lshr_b32 s{t}, s{src}, {sh}'); src = t
        if w is not None: a(f's_and_b32 s{t}, s{src}, {(1 << w) - 1}'); src = t
        if out: a(f's_lshl_b32 s{t}, s{src}, {out}'); src = t
        if first:
            if src != dst: a(f's_mov_b32 s{dst}, s{src}')
        else: a(f's_add_u32 s{dst}, s{dst}, s{src}')
        first = False
    if const: a(f's_add_u32 s{dst}, s{dst}, {const}')

S_PFL = 3
S_WS = 4
S_WQ = 8
S_WO = 20
S_M0 = 24
S_RID, S_H, S_I, S_W, S_STEP = 28, 29, 30, 31, 32
S_SL0, S_SL1, S_SL2 = 33, 34, 35
S_SC, S_KV = 36, 37
S_T0, S_T1, S_T2 = 38, 39, 40
S_SPIN = 41
S_MLO8 = 42
S_MHI = 44
S_MHI8 = 46
S_PAR = 48
S_HB = 49
S_C = 50
S_KXB = 51
S_TS = 52
S_TAG = 54
S_MBO = 55
S_MK = 56
S_PTR = 72
S_NSO = 88
S_WSP = 90
S_DBG = 92
S_SEEN, S_FKV, S_FAST, S_FRO = 94, 95, 96, 97
S_NSI, S_NBO, S_NBI = 89, 98, 99

L_QK = 0
L_V = 10240
L_OP = 14336
L_X = 15360
L_KX = 16384

def gen_rec(a, prof=0, nsteps=NSEG, sync=False, DA=1, DB=2, DC=0, PLAINB=1, TPOS=1, TA=0, NEAR=1, ILA=4, ILC=4, SEP=0, ROT=0, OMAP=0, RDYP=26, MIX=0, TW=1, KC=2, KA=1, CJ=3, LB=1, RING=0, ASY=1, NSP=0, ZD=0, XP=0):
    V_L, V_T0, V_T1, V_T2 = 1, 2, 3, 4
    V_IDX = 5
    V_MEMST, V_AOFF, V_COFF, V_COFF2 = 6, 7, 12, 13
    V_FF = 8
    V_QKW, V_QKW2, V_L16, V_VW, V_QKR, V_SCST, V_SCST2, V_SCLM = 14, 15, 16, 17, 18, 19, 20, 21
    V_SCL = [22, 23, 24]
    V_VR, V_VR2, V_OST, V_OPW, V_OPR, V_PFG, V_CK = 25, 26, 27, 28, 29, 30, 31
    V_ONE = 32
    V_MA = 36
    V_VX, V_KX = 52, 60
    V_D = 68
    V_S = 68
    V_PTG, V_NSA, V_SCCL, V_OCL = 92, 93, 94, 95
    V_X = 96
    V_R = 100
    V_TKST, V_TKSA, V_TG, V_M, V_M2 = 132, 133, 134, 135, 136
    V_VM = 138
    V_ZZ = 144
    V_TR = 148
    V_P = 156
    V_LD = 164
    V_NS = 180
    V_GQ, V_GO, V_TRQ, V_TRO = 184, 185, 186, 187
    V_FRA, V_NBA = 137, 26
    V_NB = 188
    V_FRV = V_NB
    V_CK2 = 4
    TRMAP = {0: 0, 2: 1, 5: 3, 8: 4, 10: 5, 'b': 2, 7: 6, 11: 7}
    TSR = [8, 10, 12, 14, 16, 18, 58, 20, 22, 24, 26, 56]
    def ts(k):
        if prof != 3: return
        r = 56 if k == 0 else (58 if k == 'o' else 8 + 2 * k)
        a(f's_memtime s[{r}:{r+1}]')
    def harvest():
        if prof != 3: return
        a('s_waitcnt lgkmcnt(0)')
        lh = a.newlabel('hv')
        a(f's_cmp_le_u32 s{S_STEP}, 3')
        a(f's_cbranch_scc1 {lh}')
        for k in range(1, 12):
            a(f's_sub_u32 s{S_TS}, s{TSR[k]}, s{TSR[k-1]}')
            a(f'v_readlane_b32 s{S_TS+1}, v{V_TR+1}, {k}')
            a(f's_add_u32 s{S_TS}, s{S_TS}, s{S_TS+1}')
            a(f'v_writelane_b32 v{V_TR+1}, s{S_TS}, {k}')
        a.label(lh)
        a('s_mov_b32 s8, s56')
    def stamp(k):
        if prof not in (1, 2): return
        e = TRMAP[k]
        if prof == 2 and k not in (5, 10, 7, 11): return
        lsk = a.newlabel('st')
        a(f's_cmp_eq_u32 s{S_W}, 3')
        a(f's_cbranch_scc1 {lsk}')
        a(f's_memrealtime s[{S_TS}:{S_TS+1}]')
        a('s_waitcnt lgkmcnt(0)')
        if k in (10, 11):
            a(f's_sub_u32 s{S_TS+1}, s{S_STEP}, 1')
            a(f's_mov_b32 m0, s{S_TS+1}')
        else:
            a(f's_mov_b32 m0, s{S_STEP}')
        a(f's_lshl_b32 s{S_TS}, s{S_TS}, 8')
        a(f's_and_b32 s{S_TS+1}, s{S_SPIN}, 0xff')
        a(f's_or_b32 s{S_TS}, s{S_TS}, s{S_TS+1}')
        a(f'v_writelane_b32 v{V_TR+e}, s{S_TS}, m0')
        a.label(lsk)
    def pmark(e):
        if not prof: return
        a(f's_memrealtime s[{S_TS}:{S_TS+1}]')
        a('s_waitcnt lgkmcnt(0)')
        a(f's_lshl_b32 s{S_TS}, s{S_TS}, 8')
        a(f'v_writelane_b32 v{V_TR+e}, s{S_TS}, 63')
    def L(dst, terms, add=None): lane(a, dst, V_T2, V_L, terms, add)
    def S(dst, terms, const=0): sexpr(a, dst, S_T2, terms, const)
    def spin_guard(lgive):
        a(f's_add_u32 s{S_SPIN}, s{S_SPIN}, 1')
        a(f's_cmp_ge_u32 s{S_SPIN}, 0x80000')
        a(f's_cbranch_scc1 {lgive}')
    def keep(reg, cond):
        a(cond)
        a(f'v_mov_b32 v{V_T2}, {OOB}')
        a(f'v_cndmask_b32 v{reg}, v{V_T2}, v{reg}, vcc')

    P = S_PTR
    a(f's_load_dwordx2 s[{P}:{P+1}], s[0:1], {K_MEM0}')
    a(f's_load_dwordx4 s[{P+4}:{P+7}], s[0:1], {K_WQ}')
    a(f's_load_dwordx4 s[{P+8}:{P+11}], s[0:1], {K_WV}')
    a(f's_load_dwordx2 s[{S_WSP}:{S_WSP+1}], s[0:1], {K_WS}')
    a(f's_load_dwordx2 s[{S_DBG}:{S_DBG+1}], s[0:1], {K_DBG}')
    a(f'v_and_b32 v{V_L}, 63, v0')
    a(f'v_lshrrev_b32 v{V_T0}, 6, v0')
    a(f'v_readfirstlane_b32 s{S_W}, v{V_T0}')
    a(f's_lshr_b32 s{S_H}, s{S_RID}, 2')
    a(f's_and_b32 s{S_I}, s{S_RID}, 3')
    a(f's_mov_b32 s{S_SPIN}, 0')
    if prof: a('s_mov_b32 s100, 0'); a('s_mov_b32 s101, 0')
    a('s_waitcnt lgkmcnt(0)')
    srd(a, S_M0, P, 16384)
    srd(a, S_WQ, P + 4, 8 * MB)
    srd(a, S_WQ + 4, P + 6, 8 * MB)
    srd(a, S_WQ + 8, P + 8, 8 * MB)
    srd(a, S_WO, P + 10, 8 * MB)
    srd(a, S_WS, S_WSP, WS_BYTES)
    WS = f's[{S_WS}:{S_WS+3}]'
    a(f's_sub_u32 s{S_HB}, 0, s{S_WSP}')
    a(f's_and_b32 s{S_HB}, s{S_HB}, {2*MB-1}')
    a(f's_add_u32 s{S_HB}, s{S_HB}, {HOFF}')

    if prof:
        for e in range(8): a(f'v_mov_b32 v{V_TR+e}, 0')
    lsk = a.newlabel('rec_cal')
    a(f's_mov_b32 s{S_PAR}, 1')
    a(f's_cmp_lg_u32 s{S_W}, 3')
    a(f's_cbranch_scc1 {lsk}')
    S(S_T0, [(S_RID, 0, 3, 21), (S_RID, 3, 1, 13), (S_RID, 4, 3, 8), (S_HB, 0, None, 0)], 15 * 16384)
    S(S_T1, [(S_RID, 3, 1, 14)])
    a(f's_sub_u32 s{S_T1}, s{S_T0}, s{S_T1}')
    a(f's_add_u32 s{S_T1}, s{S_T1}, 8192')
    a(f's_load_dword s{P+8}, s[{S_WSP}:{S_WSP+1}], s{S_T0} glc')
    a(f's_load_dword s{P+9}, s[{S_WSP}:{S_WSP+1}], s{S_T1} glc')
    for k in range(2):
        a('s_waitcnt lgkmcnt(0)')
        a(f's_memtime s[{P+4}:{P+5}]')
        a('s_waitcnt lgkmcnt(0)')
        a(f's_load_dword s{P+8}, s[{S_WSP}:{S_WSP+1}], s{S_T0+k} glc')
        a('s_waitcnt lgkmcnt(0)')
        a(f's_memtime s[{P+6}:{P+7}]')
        a('s_waitcnt lgkmcnt(0)')
        a(f's_sub_u32 s{P+k}, s{P+6}, s{P+4}')
    a(f's_cmp_lt_u32 s{P+1}, s{P}')
    a(f's_cselect_b32 s{S_T0}, 1, 0')
    a(f's_lshr_b32 s{S_T1}, s{S_RID}, 3')
    a(f's_xor_b32 s{S_T0}, s{S_T0}, s{S_T1}')
    a(f's_xor_b32 s{S_T0}, s{S_T0}, s{S_RID}')
    S(S_PAR, [(S_T0, 0, 1, 16)], 1)
    a.label(lsk)
    pmark(2)
    S(S_T0, [(S_W, 0, None, 21), (S_RID, 0, None, 6)])
    L(V_GQ, [(2, 4, 13), (0, 2, 4)], f's{S_T0}')
    S(S_T0, [(S_W, 0, None, 21), (S_RID, 1, None, 5)])
    L(V_GO, [(1, 5, 11), (0, 1, 4)], f's{S_T0}')
    S_LB = S_SL0
    a(f's_lshl_b32 s{S_LB}, s{S_W}, 15')
    L(V_TRQ, [(4, 2, 9), (2, 2, 6), (0, 2, 3)], f's{S_LB}')
    L(V_TRO, [(4, 2, 8), (2, 2, 5), (0, 2, 3)], f's{S_LB}')
    pairs = []
    def wq_reg(kb, tile): return ('a', (kb * 6 + tile) * 8)
    def wo_reg(kb):
        return ('a', 192 + kb * 8) if kb < 8 else ('v', 192 + (kb - 8) * 8)
    for kb in range(4):
        for hf32 in range(2):
            for m in range(3):
                k0 = kb * 64 + hf32 * 32
                ld = [(S_WQ + 4 * m, V_GQ, (k0 + 16 * j) * 8192) for j in range(2)]
                rd = []
                for t in range(2):
                    f, b = wq_reg(kb, m * 2 + t)
                    for q in range(2):
                        r0 = b + hf32 * 4 + q * 2
                        rd.append((f'{f}[{r0}:{r0+1}]', V_TRQ, t * 32 + q * 256))
                pairs.append((ld, rd))
    NW = 0
    wop = []
    for kb in range(16):
        ld = [(S_WO, V_GO, (kb * 64 + 32 * j) * 2048) for j in range(2)]
        rd = []
        f, b = wo_reg(kb)
        for j in range(2):
            for q in range(2):
                r0 = b + j * 4 + q * 2
                rd.append((f'{f}[{r0}:{r0+1}]', V_TRO, j * 1024 + q * 128))
        wop.append((ld, rd))
    mix = []
    for g in range(8): mix += [wop[2*g], pairs[3*g], pairs[3*g+1], wop[2*g+1], pairs[3*g+2]]
    pairs = mix if MIX else pairs + wop
    NSL = 16
    def issue(p):
        ld, _ = pairs[p]
        for j, (sd, vo, so) in enumerate(ld):
            a(f's_add_u32 m0, s{S_LB}, {(p % NSL) * 2048 + j * 1024}')
            a(f's_mov_b32 s{S_T0}, {so}')
            a(f'buffer_load_dwordx4 v{vo}, s[{sd}:{sd+3}], s{S_T0} offen lds')
    issued = 0
    FB = NSL if NW else 6
    for p in range(FB):
        issue(p); issued += 1
    L(V_T0, [(1, 1, 0)])
    a(f'v_mov_b32 v{V_T1}, 0xaaaa')
    a(f'v_mul_u32_u24 v{V_T0}, v{V_T0}, v{V_T1}')
    a(f'v_add_u32 v{V_IDX}, 0x4444, v{V_T0}')
    a(f'v_lshlrev_b32 v{V_L16}, 4, v{V_L}')
    BLK = 16384
    S(S_T0, [(S_RID, 6, None, 14), (S_RID, 0, 6, 7)], 8 * BLK)
    a(f'v_lshl_add_u32 v{V_MEMST}, v{V_L}, 2, s{S_T0}')
    S(S_T0, [(S_W, 1, None, 14), (S_W, 0, 1, 12)], 8 * BLK)
    a(f'v_add_u32 v{V_AOFF}, s{S_T0}, v{V_L16}')
    S(S_T0, [(S_RID, 0, 1, 16), (S_W, 0, None, 14)])
    a(f'v_add_u32 v{V_COFF}, s{S_T0}, v{V_L16}')
    a(f'v_add_u32 v{V_COFF2}, 4096, v{V_COFF}')
    a(f'v_lshrrev_b32 v{V_T0}, 4, v{V_L}')
    a(f'v_mul_u32_u24 v{V_T0}, 320, v{V_T0}')
    a(f'v_and_b32 v{V_T1}, 15, v{V_L}')
    a(f'v_lshl_add_u32 v{V_T0}, v{V_T1}, 2, v{V_T0}')
    a(f's_mul_i32 s{S_T0}, s{S_W}, 2560')
    a(f'v_add_u32 v{V_QKW}, s{S_T0}, v{V_T0}')
    a(f'v_add_u32 v{V_QKW2}, 1280, v{V_QKW}')
    S(S_T0, [(S_W, 0, None, 10)], L_V)
    a(f'v_add_u32 v{V_VW}, s{S_T0}, v{V_L16}')
    L(V_T0, [(0, 2, 1), (2, 1, 0)], 8)
    a(f'v_and_b32 v{V_T1}, 15, v{V_L}')
    a(f'v_cmp_gt_u32 vcc, 8, v{V_T1}')
    a(f'v_cndmask_b32 v{V_T1}, v{V_T0}, v{V_T1}, vcc')
    a(f'v_mul_u32_u24 v{V_T1}, 160, v{V_T1}')
    L(V_T0, [(5, 1, 6), (4, 1, 4)])
    a(f'v_add_u32 v{V_QKR}, v{V_T0}, v{V_T1}')
    a(f's_lshl_b32 s{S_T0}, s{S_RID}, 11')
    a(f'v_add_u32 v{V_SCST}, s{S_T0}, v{V_L16}')
    L(V_SCST2, [(4, 1, 7), (0, 3, 4)], f's{S_T0}')
    for k in range(3):
        a(f's_add_u32 s{S_T1}, s{S_I}, {k+1}')
        S(S_T0, [(S_T1, 0, 2, 11), (S_H, 0, None, 13)])
        a(f'v_add_u32 v{V_SCL[k]}, s{S_T0}, v{V_L16}')
    a(f's_lshl_b32 s{S_T0}, s{S_H}, 13')
    L(V_SCLM, [(4, 2, 11), (0, 4, 4)], f's{S_T0}')
    E0 = [(3, 1, 8), (1, 1, 6), (2, 1, 5), (0, 1, 4)]
    L(V_VR, [(4, 2, 8), (3, 1, 3)] + E0[1:], L_V)
    S(S_T0, [(S_RID, 0, None, 11), (S_W, 0, 1, 7)], PA + PA_M)
    L(V_T0, [(3, 1, 8), (0, 3, 4), (4, 1, 9), (5, 1, 10)], f's{S_T0}')
    a(f's_add_u32 s{S_T0}, s{S_T0}, {PA_M}')
    L(V_T1, E0 + [(4, 1, 9), (5, 1, 10)], f's{S_T0}')
    a(f's_cmp_lt_u32 s{S_W}, 2')
    a(f's_cselect_b64 vcc, -1, 0')
    a(f'v_cndmask_b32 v{V_PFG}, v{V_T1}, v{V_T0}, vcc')
    a(f's_lshl_b32 s{S_PFL}, s{S_W}, 10')
    S(S_T0, [(S_H, 3, None, 14), (S_H, 0, 3, 10), (S_I, 0, 1, 9), (S_I, 1, None, 7)])
    L(V_OST, [(2, 1, 16), (5, 1, 8), (1, 1, 6), (4, 1, 5), (0, 1, 4)], f's{S_T0}')
    S(S_T1, [(S_W, 1, None, 16), (S_W, 0, 1, 8), (S_T0, 0, None, 0)])
    a(f'v_add_u32 v{V_OCL}, s{S_T1}, v{V_L16}')
    keep(V_OCL, f'v_cmp_gt_u32 vcc, 8, v{V_L}')
    S(S_T0, [(S_W, 0, None, 8)], L_OP)
    a(f'v_lshl_add_u32 v{V_OPW}, v{V_L}, 2, s{S_T0}')
    L(V_OPR, [(2, 1, 7), (4, 1, 6), (0, 2, 4), (3, 1, 3)], L_OP)
    a(f's_mul_i32 s{S_T1}, s{S_W}, 320')
    S(S_T0, [(S_RID, 0, None, 11), (S_T1, 0, None, 0)])
    a(f'v_add_u32 v{V_SCCL}, s{S_T0}, v{V_L16}')
    keep(V_SCCL, f'v_cmp_gt_u32 vcc, 20, v{V_L}')
    a(f's_mul_i32 s{S_T0}, s{S_W}, 3')
    a(f'v_min_u32 v{V_T0}, 2, v{V_L}')
    a(f'v_add_u32 v{V_T0}, s{S_T0}, v{V_T0}')
    a(f'v_min_u32 v{V_T0}, 9, v{V_T0}')
    S(S_T0, [(S_RID, 0, None, 11)], 128 * 2048)
    a(f'v_lshl_add_u32 v{V_PTG}, v{V_T0}, 7, s{S_T0}')
    lw = a.newlabel('rec_ns')
    a(f's_lshl_b32 s{S_T0}, s{S_RID}, 9')
    L(V_NSA, [(4, 2, 7), (0, 2, 5), (2, 1, 4)], f's{S_T0}')
    a('s_mov_b32 vcc_lo, 0xff00ff00'); a('s_mov_b32 vcc_hi, 0xff00ff00')
    a(f's_cmp_eq_u32 s{S_W}, 1')
    a(f's_cbranch_scc1 {lw}')
    a(f's_add_u32 s{S_T0}, s{S_T0}, {VM - KM}')
    a(f'v_add_u32 v{V_NSA}, s{S_T0}, v{V_L16}')
    a('s_mov_b32 vcc_lo, -1'); a('s_mov_b32 vcc_hi, 0')
    a(f's_cmp_eq_u32 s{S_W}, 2')
    a(f's_cbranch_scc1 {lw}')
    S(S_T0, [(S_RID, 6, None, 14), (S_RID, 0, 6, 7)], 8 * BLK)
    a(f'v_add_u32 v{V_NSA}, s{S_T0}, v{V_L16}')
    a(f's_cmp_eq_u32 s{S_W}, 3')
    a('s_cselect_b32 vcc_lo, 0xff, 0')
    a.label(lw)
    keep(V_NSA, 's_nop 0')
    for j in range(4): a(f'v_mov_b32 v{V_ONE+j}, 0x3f803f80')
    for j in range(4): a(f'v_mov_b32 v{V_FF+j}, -1')
    for j in range(4): a(f'v_mov_b32 v{V_ZZ+j}, 0')
    for j in range(4): a(f'v_mov_b32 v{V_NS+j}, 0')
    for j in range(5, 8): a(f'v_mov_b32 v{V_P+j}, 0')
    for j in range(6): a(f'v_mov_b32 v{V_VM+j}, 0')
    a(f's_mov_b32 s{S_MLO8}, 0x00ff00ff'); a(f's_mov_b32 s{S_MLO8+1}, 0x00ff00ff')
    a(f's_mov_b32 s{S_MHI}, 0'); a(f's_mov_b32 s{S_MHI+1}, -1')
    a(f's_mov_b32 s{S_MHI8}, 0'); a(f's_mov_b32 s{S_MHI8+1}, 0x00ff00ff')
    c = (128 ** -0.5) * math.log2(math.e)
    a(f's_mov_b32 s{S_C}, 0x{struct.unpack("<I", struct.pack("<f", c))[0]:08x}')
    a(f's_mov_b32 s{S_SC}, {SCB}')
    a(f's_mov_b32 s{S_KV}, 0')
    a(f's_mov_b32 s{S_STEP}, 0')
    a(f's_mov_b32 s{S_KXB}, {L_KX}')
    a(f's_mov_b32 s{S_TAG}, 1')
    a(f's_min_u32 s{S_T0}, s{S_W}, 1')
    a(f's_add_u32 s{S_T0}, s{S_T0}, 1')
    a(f'v_mov_b32 v{V_TG}, s{S_T0}')

    S(S_FKV, [(S_H, 0, None, 7), (S_W, 1, None, 2)], FLG + F_SLA + 4)
    S(S_FRO, [(S_H, 0, None, 7)], FLG + F_REC)
    S(S_T0, [(S_I, 0, None, 4), (S_FRO, 0, None, 0)])
    a(f'v_mov_b32 v{V_FRA}, s{S_T0}')
    a(f's_cmp_eq_u32 s{S_W}, 2')
    keep(V_FRA, 's_cselect_b64 vcc, 1, 0')
    a(f's_mov_b32 s{S_SEEN}, 0')
    def wait_kv(target):
        if not sync: return
        lp = a.newlabel('rec_kv'); ld = a.newlabel('rec_kvd')
        a(f's_cmp_gt_u32 s{S_SEEN}, {target}')
        a(f's_cbranch_scc0 {lp}')
        a.label(ld)
        def tl():
            a.label(lp)
            a(f's_load_dword s{S_SEEN}, s[{S_WSP}:{S_WSP+1}], s{S_FKV} glc')
            spin_guard(ld)
            a('s_waitcnt lgkmcnt(0)')
            a(f's_cmp_gt_u32 s{S_SEEN}, {target}')
            a(f's_cbranch_scc1 {ld}')
            a('s_sleep 2')
            a(f's_branch {lp}')
        tails.append(tl)
    tails = []
    for par in range(2):
        for sl in range(2):
            a(f's_add_u32 s{S_T0}, s{S_HB}, {par*8192 + sl*SLOT}')
            a(f'buffer_store_dwordx4 {vr(V_ZZ,4)}, v{V_OCL}, {WS}, s{S_T0} offen sc1')
    a(f'buffer_store_dwordx4 {vr(V_FF,4)}, v{V_SCCL}, {WS}, s{S_SC} offen sc1')
    a(f'v_add_u32 v{V_SCCL}, {128*2048}, v{V_SCCL}')
    a(f'buffer_store_dwordx4 {vr(V_FF,4)}, v{V_SCCL}, {WS}, s{S_SC} offen sc1')
    a(f'v_add_u32 v{V_SCCL}, {128*2048}, v{V_SCCL}')
    a(f'buffer_store_dwordx4 {vr(V_FF,4)}, v{V_SCCL}, {WS}, s{S_SC} offen sc1')
    a(f'buffer_store_dword v{V_ZZ}, v{V_FRA}, {WS}, 0 offen sc1')
    a(f's_getreg_b32 s{S_T0}, hwreg(HW_REG_XCC_ID)')
    a(f'v_mov_b32 v{V_T0}, s{S_T0}')
    a(f'buffer_store_dword v{V_T0}, v{V_FRA}, {WS}, 0 offen offset:64 sc1')
    l3 = a.newlabel('rec_i3')
    a(f's_cmp_lg_u32 s{S_W}, 3')
    a(f's_cbranch_scc1 {l3}')
    for par in range(2):
        a(f's_add_u32 s{S_T0}, s{S_HB}, {par*8192 + SLOT}')
        a(f'buffer_store_dwordx4 {vr(V_ZZ,4)}, v{V_NSA}, {WS}, s{S_T0} offen sc1')
    S(S_T1, [(S_RID, 5, None, 14), (S_RID, 0, 5, 8), (S_HB, 0, None, 0)], 10 * BLK)
    a('s_mov_b64 exec, 0xffff')
    for par in range(2):
        a(f's_add_u32 s{S_T0}, s{S_T1}, {par*8192}')
        a(f'buffer_store_dwordx4 {vr(V_ZZ,4)}, v{V_L16}, {WS}, s{S_T0} offen sc1')
    a('s_mov_b64 exec, -1')
    a.label(l3)
    a(f's_lshl_b32 s{S_T0}, s{S_W}, 9')
    L(V_T0, [(2, 2, 12), (0, 1, 11), (4, 2, 5), (1, 1, 2)], f's{S_T0}')
    for c in range(4):
        for p in range(4):
            a(f'buffer_load_dword v{V_MA+4*c+p}, v{V_T0}, s[{S_M0}:{S_M0+3}], 0 offen offset:{c*128+p*8}')
    for p in range(FB, NSL):
        issue(p); issued += 1
    for p in range(NW, len(pairs)):
        a(f's_waitcnt vmcnt({min(63, 2 * (issued - p - 1) + ((40 if NW else 24) if p < FB else 0))})')
        if p == FB:
            lar = a.newlabel('rec_arr')
            a('s_barrier')
            pmark(1)
            a(f's_cmp_lg_u32 s{S_W}, 3')
            a(f's_cbranch_scc1 {lar}')
            a(f'v_mov_b32 v{V_T0}, 0')
            a(f'v_mov_b32 v{V_T1}, s{S_PAR}')
            a('s_mov_b64 exec, 1')
            a(f'global_atomic_add v{V_T0}, v{V_T1}, s[{S_DBG}:{S_DBG+1}] offset:{4*D_INIT} sc1')
            a('s_mov_b64 exec, -1')
            a.label(lar)
        if p == RDYP and sync:
            lar = a.newlabel('rec_rdy')
            a(f's_cmp_lg_u32 s{S_W}, 0')
            a(f's_cbranch_scc1 {lar}')
            a(f'v_mov_b32 v{V_T0}, 0')
            a(f'v_mov_b32 v{V_T1}, 1')
            a('s_mov_b64 exec, 1')
            a(f'global_atomic_add v{V_T0}, v{V_T1}, s[{S_DBG}:{S_DBG+1}] offset:{4*D_RDY} sc1')
            a('s_mov_b64 exec, -1')
            a.label(lar)
        for dst, va, off in pairs[p][1]:
            a(f'ds_read_b64_tr_b16 {dst}, v{va} offset:{(p % NSL) * 2048 + off}')
        if p >= NW + 1 and issued < len(pairs):
            a('s_waitcnt lgkmcnt(4)')
            issue(issued); issued += 1
    a('s_waitcnt lgkmcnt(0)')

    pmark(3)
    for j in range(16): a(f'v_max_u32 v{V_MA+j}, 1, v{V_MA+j}')
    for j in range(24): a(f'v_mov_b32 v{V_D+j}, 0')
    for j in range(16): a(f's_mov_b32 s{P+j}, 0')
    lb = a.newlabel('rec_ib'); lbp = a.newlabel('rec_ibp'); lbq = a.newlabel('rec_ibq')
    a(f'v_mov_b32 v{V_T0}, 0')
    a(f's_branch {lbq}')
    a.label(lbp)
    a('s_sleep 16')
    a.label(lbq)
    a(f'global_load_dword v{V_T1}, v{V_T0}, s[{S_DBG}:{S_DBG+1}] offset:{4*D_INIT} sc1')
    spin_guard(lb)
    a('s_waitcnt vmcnt(0)')
    a(f'v_readfirstlane_b32 s{S_T0}, v{V_T1}')
    a(f's_and_b32 s{S_T1}, s{S_T0}, 0xffff')
    a(f's_cmp_lt_u32 s{S_T1}, {NWG if sync else 128}')
    a(f's_cbranch_scc1 {lbp}')
    a.label(lb)
    a(f's_cmp_ge_u32 s{S_T0}, {(64 << 16) if NEAR else 0x7fffffff}')
    a(f's_cselect_b32 s{S_PAR}, -1, 0')
    a(f's_xor_b32 s{S_PAR}, s{S_PAR}, 0xaaa')
    pmark(4)
    S(S_SL0, [(S_PAR, 0, 1, 13), (S_HB, 0, None, 0)])
    a(f's_add_u32 s{S_SL1}, s{S_SL0}, {SLOT}')
    a(f's_add_u32 s{S_SL2}, s{S_SL0}, {2*SLOT}')
    S(S_T0, [(S_RID, 5, None, 4), (S_I, 0, None, 14), (S_SL0, 0, None, 0)], 10 * BLK)
    L(V_TKST, [(0, 5, 8)], f's{S_T0}')
    a(f's_and_b32 s{S_T1}, s{S_H}, { {4: 7, 2: 23, 1: 31}[KC] }')
    a(f's_cmp_eq_u32 s{S_T1}, {CJ}')
    a('s_mov_b32 vcc_hi, 0')
    keep(V_TKST, 's_cselect_b32 vcc_lo, -1, 0')
    a(f'v_add_u32 v{V_TKSA}, 128, v{V_TKST}')
    a(f's_and_b32 s{S_T1}, s{S_H}, { {4: 7, 2: 23, 1: 31}[KA] }')
    a(f's_cmp_eq_u32 s{S_T1}, {CJ}')
    a(f's_cselect_b32 s{S_T1}, s{S_W}, 99')
    a(f's_cmp_eq_u32 s{S_T1}, {TW}')
    keep(V_TKSA, 's_cselect_b64 vcc, -1, 0')
    S(S_MBO, [(S_RID, 5, None, 14), (S_RID, 0, 5, 8), (S_SL0, 0, None, 0)], 10 * BLK)
    a(f's_add_u32 s{S_MHI}, s{S_MBO}, 128')
    lq = a.newlabel('rec_gs'); lq1 = a.newlabel('rec_gs1'); lq2 = a.newlabel('rec_gs2'); lq3 = a.newlabel('rec_gs3')
    a(f'v_mov_b32 v{V_NBA}, {OOB}')
    a(f's_mov_b32 s{S_NBO}, 0'); a(f's_mov_b32 s{S_NBI}, 0')
    a(f's_mov_b32 s{S_NSO}, {KM}'); a(f's_mov_b32 s{S_NSI}, 65536')
    for j in range(4): a(f'v_mov_b32 v{V_NB+j}, 0')
    a(f's_cmp_eq_u32 s{S_W}, 1'); a(f's_cbranch_scc1 {lq1}')
    a(f's_cmp_eq_u32 s{S_W}, 2'); a(f's_cbranch_scc1 {lq2}')
    a(f's_cmp_eq_u32 s{S_W}, 3'); a(f's_cbranch_scc1 {lq3}')
    a(f'v_mov_b32 v{V_NSA}, v{V_SCST}')
    for j in range(4): a(f'v_mov_b32 v{V_NS+j}, -1')
    a(f's_mov_b32 s{S_NSO}, {SCB + 3*128*2048}'); a(f's_mov_b32 s{S_NSI}, {128*2048}')
    a(f's_branch {lq}')
    a.label(lq1)
    a(f'v_mov_b32 v{V_NBA}, v{V_SCST}')
    keep(V_NBA, 's_mov_b64 vcc, 0xffff')
    for j in range(4): a(f'v_mov_b32 v{V_NB+j}, -1')
    a(f's_mov_b32 s{S_NBO}, {SCB + 3*128*2048 + 1024}'); a(f's_mov_b32 s{S_NBI}, {128*2048}')
    a(f's_branch {lq}')
    a.label(lq2)
    a(f'v_mov_b32 v{V_NBA}, v{V_FRA}')
    a(f's_branch {lq}')
    a.label(lq3)
    S(S_T0, [(S_H, 3, None, 14), (S_H, 0, 3, 10), (S_I, 0, 1, 9), (S_I, 1, None, 7)])
    L(V_T0, [(4, 1, 16), (3, 1, 8), (0, 3, 4)], f's{S_T0}')
    a('s_mov_b32 vcc_lo, 0'); a('s_mov_b32 vcc_hi, -1')
    a(f'v_cndmask_b32 v{V_NSA}, v{V_NSA}, v{V_T0}, vcc')
    a(f's_mov_b32 s{S_NSO}, s{S_SL2}')
    a.label(lq)
    a(f's_cmp_eq_u32 s{S_W}, 2')
    a(f's_cselect_b32 s{S_MHI+1}, 1, 0')

    pmark(5)
    a('s_barrier')
    pmark(6)
    a(f's_load_dwordx16 s[{P}:{P+15}], s[{S_WSP}:{S_WSP+1}], s{S_FRO} offset:64 glc')
    a('s_waitcnt lgkmcnt(0)')
    for i in range(1, 4): a(f's_xor_b32 s{P+4*i}, s{P+4*i}, s{P}')
    a(f's_or_b32 s{P+4}, s{P+4}, s{P+8}')
    a(f's_or_b32 s{S_FAST}, s{P+4}, s{P+12}')
    if not PLAINB: a(f's_mov_b32 s{S_FAST}, 1')
    for j in range(16): a(f's_mov_b32 s{P+j}, 0')
    wait_kv(0)
    pmark(7)
    a(f's_add_u32 m0, s{S_KXB}, s{S_PFL}')
    a(f'buffer_load_dwordx4 v{V_PFG}, {WS}, s{S_KV} offen sc1 lds')
    a('s_waitcnt vmcnt(0)')
    a('s_barrier')
    ENTRY = a.newlabel('rec_entry')
    ts(0)
    a(f's_branch {ENTRY}')

    def gather(name, n, load, mf, nacc, noise, ilv, entry=None, pre=None, post=None):
        ok = a.newlabel(name + 'ok'); fix = a.newlabel(name + 'fix')
        def body(first):
            for c in range(n):
                load(c, V_MA + 4 * c)
                if first and ilv and c < n - 1: a(f's_nop {ilv-1}')
            if not first:
                for j in range(0, nacc, 2): a(f'v_mov_b64 {vr(V_D+j,2)}, 0')
            if first and entry: a.label(entry)
            if first and pre: pre()
            iss = 0
            for c in range(n):
                b = V_MA + 4 * c
                a(f's_waitcnt vmcnt({n-1-c+iss})')
                if first and c == 0: ts(1 if n == 4 else 7)
                ms = mf(c)
                if c == 0: seq = [f'v_min_u32 v{V_CK}, v{b}, v{b+1}', f'v_min_u32 v{V_CK2}, v{b+2}, v{b+3}']
                elif c < n - 1: seq = [f'v_min3_u32 v{V_CK}, v{V_CK}, v{b}, v{b+1}', f'v_min3_u32 v{V_CK2}, v{V_CK2}, v{b+2}, v{b+3}']
                else:
                    a(f'v_min3_u32 v{V_CK}, v{V_CK}, v{b}, v{b+1}')
                    seq = [f'v_min3_u32 v{V_CK}, v{V_CK}, v{b+2}, v{b+3}', f'v_cmp_eq_u32 vcc, 0, v{V_CK}']
                if c == n - 2: seq.append(f'v_min_u32 v{V_CK}, v{V_CK}, v{V_CK2}')
                k = 0
                for m in ms:
                    a(m)
                    if k < len(seq): a(seq[k]); k += 1
                while k < len(seq): a(seq[k]); k += 1
                if first and c < len(noise): noise[c](); iss += 1
            if first and post: post()
        body(True)
        a(f's_cbranch_vccnz {fix}')
        a.label(ok)
        def tl():
            a.label(fix)
            if prof: a(f's_add_u32 s{100 if nacc == 16 else 101}, s{100 if nacc == 16 else 101}, 1')
            spin_guard(ok)
            body(False)
            a(f's_cbranch_vccnz {fix}')
            a(f's_branch {ok}')
        tails.append(tl)

    def halves(m):
        b = V_D + 8 * m
        a(f'v_pk_add_f32 {vr(b,2)}, {vr(b,2)}, {vr(b+2,2)}')
        a(f'v_pk_add_f32 {vr(b+2,2)}, {vr(b+4,2)}, {vr(b+6,2)}')
    S_MB2 = S_MHI
    def tpoll(off):
        T = S_PTR
        K = KA if off else KC
        so = S_MB2 if off else S_MBO
        if K == 2: a(f's_load_dwordx8 s[{T}:{T+7}], s[{S_WSP}:{S_WSP+1}], s{so} glc')
        elif K == 4: a(f's_load_dwordx16 s[{T}:{T+15}], s[{S_WSP}:{S_WSP+1}], s{so} glc')
        else: a(f's_load_dword s{T}, s[{S_WSP}:{S_WSP+1}], s{so} glc')
    def tickwait(off, extra):
        lp = a.newlabel('rec_tk'); ld = a.newlabel('rec_tkd'); lc = a.newlabel('rec_tkc')
        T = S_PTR
        K = KA if off else KC
        a(f's_branch {lc}')
        a.label(lp)
        tpoll(off)
        spin_guard(ld)
        a(f's_sleep {TPOS}' if TPOS else 's_nop 7')
        a.label(lc)
        if K == 4:
            a(f's_min_u32 s{S_T0}, s{T}, s{T+4}')
            a(f's_min_u32 s{S_T1}, s{T+8}, s{T+12}')
            a(f's_min_u32 s{S_T0}, s{S_T0}, s{S_T1}')
        elif K == 2: a(f's_min_u32 s{S_T0}, s{T}, s{T+4}')
        else: a(f's_mov_b32 s{S_T0}, s{T}')
        a(f's_cmp_lt_u32 s{S_T0}, s{S_TAG}')
        a(f's_cbranch_scc1 {lp}')
        a.label(ld)
        a(f's_add_u32 s{S_TAG}, s{S_TAG}, 1')
        if extra: a(f's_sleep {extra}')
    def vmfl():
        r = []
        for c in range(4):
            for t in (4, 5):
                f, b = wq_reg(c, t)
                r.append(f'v_smfmac_f32_16x16x64_bf16 {vr(V_D+4*t,4)}, {vr(V_MA+4*c,4)}, {f}[{b}:{b+7}], v{V_IDX}')
        return r
    def vmf():
        for m in vmfl(): a(m)
    def red4(n):
        for j in range(0, n, 2): a(f'v_pk_add_f32 {vr(V_R+j,2)}, {vr(V_R+j,2)}, {vr(V_R+n+j,2)}')
        for j in range(0, n, 2): a(f'v_pk_add_f32 {vr(V_R+2*n+j,2)}, {vr(V_R+2*n+j,2)}, {vr(V_R+3*n+j,2)}')
        for j in range(0, n, 2): a(f'v_pk_add_f32 {vr(V_R+j,2)}, {vr(V_R+j,2)}, {vr(V_R+2*n+j,2)}')

    LOOP = a.newlabel('rec_loop'); DONE = a.newlabel('rec_done')
    a.label(LOOP)
    a('s_barrier')
    stamp(11)
    ts(0)
    def loadA(c, r): a(f'buffer_load_dwordx4 {vr(r,4)}, v{V_AOFF}, {WS}, s{S_SL0} offen offset:{c*1024} sc1')
    def mfA(c):
        r = []
        for t in range(4):
            f, b = wq_reg(c, t)
            r.append(f'v_smfmac_f32_16x16x64_bf16 {vr(V_D+4*t,4)}, {vr(V_MA+4*c,4)}, {f}[{b}:{b+7}], v{V_IDX}')
        return r
    def noiseA():
        a(f'buffer_store_dwordx4 {vr(V_FF,4)}, v{V_SCCL}, {WS}, s{S_SC} offen sc1')
    def preA():
        harvest()
        a(f'v_add_u32 v{V_T0}, s{S_KXB}, v{V_L16}')
        for t in range(2): a(f'ds_read_b128 {vr(V_KX+4*t,4)}, v{V_T0} offset:{t*1024}')
        for t in range(2): a(f'ds_read_b128 {vr(V_VX+4*t,4)}, v{V_T0} offset:{2048+t*1024}')
    gather('rec_ga', 4, loadA, mfA, 16, [], ILA, entry=ENTRY, pre=preA)
    stamp(0)
    ts(2)
    for m in range(2):
        halves(m)
        va = V_QKW if m == 0 else V_QKW2
        a(f'ds_write2_b32 v{va}, v{V_D+8*m}, v{V_D+8*m+1} offset0:0 offset1:40')
        a(f'ds_write2_b32 v{va}, v{V_D+8*m+2}, v{V_D+8*m+3} offset0:16 offset1:56')
    LB2 = a.newlabel('rec_b2'); LW1 = a.newlabel('rec_w1')
    a(f's_cmp_lg_u32 s{S_W}, 0')
    a(f's_cbranch_scc1 {LW1}')
    a('s_waitcnt lgkmcnt(0)')
    a('s_barrier')
    ts(3)
    vm = vmfl()
    for w in range(4):
        for q in range(2):
            a(f'ds_read_b128 {vr(V_R+8*w+4*q,4)}, v{V_QKR} offset:{L_QK+w*2560+q*32}')
            a(vm.pop(0))
    a('s_waitcnt lgkmcnt(4)')
    for j in range(0, 8, 2): a(f'v_pk_add_f32 {vr(V_R+j,2)}, {vr(V_R+j,2)}, {vr(V_R+8+j,2)}')
    a('s_waitcnt lgkmcnt(2)')
    for j in range(0, 8, 2): a(f'v_pk_add_f32 {vr(V_R+j,2)}, {vr(V_R+j,2)}, {vr(V_R+16+j,2)}')
    a('s_waitcnt lgkmcnt(0)')
    for j in range(0, 8, 2): a(f'v_pk_add_f32 {vr(V_R+j,2)}, {vr(V_R+j,2)}, {vr(V_R+24+j,2)}')
    for j in range(4): a(f'v_cvt_pk_bf16_f32 v{V_X+j}, v{V_R+2*j}, v{V_R+2*j+1}')
    a(f'v_mfma_f32_16x16x32_bf16 {vr(V_S,4)}, {vr(V_KX,4)}, {vr(V_X,4)}, 0')
    a(f'v_mfma_f32_16x16x32_bf16 {vr(V_S+4,4)}, {vr(V_KX+4,4)}, {vr(V_X,4)}, 0')
    a(f'v_mfma_f32_16x16x32_bf16 {vr(V_S+8,4)}, {vr(V_X,4)}, {vr(V_X,4)}, 0')
    a(f's_cmp_lg_u32 s{S_FAST}, 0')
    halves(2)
    def scst(f):
        a(f's_mov_b64 exec, s[{S_MLO8}:{S_MLO8+1}]')
        a(f'buffer_store_dwordx4 {vr(V_S,4)}, v{V_SCST}, {WS}, s{S_SC} offen{f}')
        a(f'buffer_store_dwordx4 {vr(V_S+4,4)}, v{V_SCST}, {WS}, s{S_SC} offen offset:128{f}')
        a(f's_mov_b64 exec, s[{S_MHI8}:{S_MHI8+1}]')
        a(f'buffer_store_dwordx4 {vr(V_S+8,4)}, v{V_SCST2}, {WS}, s{S_SC} offen offset:1024{f}')
        a('s_mov_b64 exec, -1')
    lsl = a.newlabel('rec_slow'); lsr = a.newlabel('rec_slowr')
    a(f's_cbranch_scc1 {lsl}')
    scst('')
    a.label(lsr)
    tails.append(lambda: (a.label(lsl), scst(' sc1'), a(f's_branch {lsr}')))
    a(f'ds_write_b128 v{V_VW}, {vr(V_D+16,4)}')
    a(f'ds_write_b128 v{V_L16}, {vr(V_X,4)} offset:{L_X}')
    stamp(2)
    ts(4)
    LBR = a.newlabel('rec_gbr'); LBO = a.newlabel('rec_gbo'); LBW = a.newlabel('rec_gbw')
    V_Q = V_R + 20
    SETS = [V_LD, V_MA]
    def loadB(LD):
        a(f'buffer_load_dwordx4 {vr(LD+12,4)}, v{V_SCLM}, {WS}, s{S_SC} offen offset:1024 sc1')
        for k in range(3):
            a(f'buffer_load_dwordx4 {vr(LD+4*k,4)}, v{V_SCL[k]}, {WS}, s{S_SC} offen sc1')
    def sumB(LD, base):
        LM = LD + 12
        a(f's_waitcnt vmcnt({base+3})')
        a(f'v_permlane32_swap_b32 v{LM}, v{LM+2}')
        a(f'v_permlane32_swap_b32 v{LM+1}, v{LM+3}')
        a(f'v_pk_add_f32 {vr(V_Q+4,2)}, {vr(LM,2)}, {vr(LM+2,2)}')
        a(f's_waitcnt vmcnt({base+2})')
        for j in range(0, 4, 2): a(f'v_pk_add_f32 {vr(V_Q+j,2)}, {vr(V_S+j,2)}, {vr(LD+j,2)}')
        a(f'v_permlane16_swap_b32 v{V_Q+4}, v{V_Q+5}')
        a(f's_waitcnt vmcnt({base+1})')
        for j in range(0, 4, 2): a(f'v_pk_add_f32 {vr(V_Q+j,2)}, {vr(V_Q+j,2)}, {vr(LD+4+j,2)}')
        a(f'v_add_f32 v{V_Q+4}, v{V_Q+4}, v{V_Q+5}')
        a(f's_waitcnt vmcnt({base})')
        for j in range(0, 4, 2): a(f'v_pk_add_f32 {vr(V_Q+j,2)}, {vr(V_Q+j,2)}, {vr(LD+8+j,2)}')
        a(f'v_maximum3_f32 v{V_M}, v{V_Q}, v{V_Q+1}, v{V_Q+4}')
        a(f'v_maximum3_f32 v{V_M}, v{V_M}, v{V_Q+2}, v{V_Q+3}')
        a(f'v_cmp_u_f32 vcc, v{V_M}, v{V_M}')
        a(f'v_max_f32_dpp v{V_M}, v{V_M}, v{V_M} row_ror:8 row_mask:0xf bank_mask:0xf')
        a(f'v_mov_b32 v{V_M2}, v{V_M}')
    if DB == 0: loadB(SETS[0])
    a('s_waitcnt lgkmcnt(0)')
    a('s_barrier')
    if DB == 1: loadB(SETS[0])
    for w in range(4):
        for t in range(2):
            a(f'ds_read_b64 {vr(V_R+4*w+2*t,2)}, v{V_VR} offset:{w*1024+t*128}')
    for j in range(4): a(f'v_mov_b32_dpp v{V_S+j}, v{V_S+4+j} row_ror:8 row_mask:0xf bank_mask:0xc')
    if DB == 0: loadB(SETS[1])
    if DB == 2: loadB(SETS[0])
    a('s_waitcnt lgkmcnt(0)')
    red4(4)
    if DB == 1: loadB(SETS[1])
    for t in range(2): a(f'v_cvt_pk_bf16_f32 v{V_VM+2*t}, v{V_R+2*t}, v{V_R+2*t+1}')
    if DB == 2: a('s_nop 15'); loadB(SETS[1])
    a(f's_cmp_eq_u32 s{S_STEP}, {nsteps-1}')
    a(f's_cbranch_scc1 {LB2}')
    sumB(SETS[0], 4)
    a(f's_cbranch_vccnz {LBR}')
    a.label(LBO)
    def tlB():
        a.label(LBR)
        for k in range(2):
            LD = SETS[k]
            a(f'v_max3_u32 v{V_CK}, v{LD}, v{LD+1}, v{LD+2}')
            for j in range(3, 15, 2): a(f'v_max3_u32 v{V_CK}, v{V_CK}, v{LD+j}, v{LD+j+1}')
            a(f'v_max_u32 v{V_CK}, v{V_CK}, v{LD+15}')
            loadB(LD)
            a(f'v_cmp_eq_u32 vcc, -1, v{V_CK}')
            spin_guard(LBO)
            a(f's_cbranch_vccz {LBO}')
            sumB(SETS[k ^ 1], 4)
            a(f's_cbranch_vccz {LBO}')
        a(f's_branch {LBR}')
    tails.append(tlB)
    a(f'buffer_store_dword v{V_TG}, v{V_TKST}, {WS}, 0 offen sc1')
    stamp('b')
    ts(5)
    a(f'v_permlane16_swap_b32 v{V_M}, v{V_M2}')
    a(f'v_max_f32 v{V_M}, v{V_M}, v{V_M2}')
    a(f'v_mov_b32 v{V_M2}, v{V_M}')
    a(f'v_permlane32_swap_b32 v{V_M}, v{V_M2}')
    a(f'v_max_f32 v{V_M}, v{V_M}, v{V_M2}')
    a(f'v_mul_f32 v{V_M}, s{S_C}, v{V_M}')
    for j in (4, 0, 1, 2, 3): a(f'v_fma_f32 v{V_Q+j}, v{V_Q+j}, s{S_C}, -v{V_M}')
    for j in (4, 0, 1, 2, 3): a(f'v_exp_f32 v{V_Q+j}, v{V_Q+j}')
    a(f'v_mov_b32_dpp v{V_Q+5}, v{V_Q+4} row_ror:8 row_mask:0xf bank_mask:0xf')
    for j in range(2): a(f'v_cvt_pk_bf16_f32 v{V_P+j}, v{V_Q+2*j}, v{V_Q+2*j+1}')
    a(f'v_cvt_pk_bf16_f32 v{V_P+4}, v{V_Q+4}, v{V_Q+5}')
    for j in range(2): a(f'v_mov_b32_dpp v{V_P+2+j}, v{V_P+j} row_ror:8 row_mask:0xf bank_mask:0xf')
    V_O = V_R + 8
    a(f'v_mfma_f32_16x16x32_bf16 {vr(V_O+8,4)}, {vr(V_ONE,4)}, {vr(V_P+4,4)}, 0')
    a(f'v_mfma_f32_16x16x32_bf16 {vr(V_O+8,4)}, {vr(V_ONE,4)}, {vr(V_P,4)}, {vr(V_O+8,4)}')
    for t in range(2):
        a(f'v_mfma_f32_16x16x32_bf16 {vr(V_O+4*t,4)}, {vr(V_VX+4*t,4)}, {vr(V_P,4)}, 0')
        a(f'v_mfma_f32_16x16x32_bf16 {vr(V_O+4*t,4)}, {vr(V_VM+2*t,4)}, {vr(V_P+4,4)}, {vr(V_O+4*t,4)}')
    V_RC = V_R
    a(f'v_rcp_f32 v{V_RC}, v{V_O+8}')
    a(f'v_mov_b32 v{V_RC+1}, v{V_RC}')
    for j in range(0, 8, 2): a(f'v_pk_mul_f32 {vr(V_O+j,2)}, {vr(V_O+j,2)}, {vr(V_RC,2)}')
    for j in range(4): a(f'v_cvt_pk_bf16_f32 v{V_O+j}, v{V_O+2*j}, v{V_O+2*j+1}')
    for j in range(4): a(f'v_max_u32 v{V_O+j}, 1, v{V_O+j}')
    a(f's_mov_b64 exec, s[{S_MLO8}:{S_MLO8+1}]')
    a(f'buffer_store_dwordx4 {vr(V_O,4)}, v{V_OST}, {WS}, s{S_SL0} offen sc1')
    a('s_mov_b64 exec, -1')
    stamp(5)
    ts('o')
    for j in range(0, 24, 2): a(f'v_mov_b64 {vr(V_D+j,2)}, 0')
    LCS = a.newlabel('rec_cs')
    a.label(LCS)
    a('s_barrier')
    def w123():
        a.label(LW1)
        a('s_waitcnt lgkmcnt(0)')
        a('s_barrier')
        vmf()
        halves(2)
        a(f'ds_write_b128 v{V_VW}, {vr(V_D+16,4)}')
        a('s_waitcnt lgkmcnt(0)')
        a('s_barrier')
        if ZD: a(f's_sleep {ZD}')
        for j in range(0, 24, 2): a(f'v_mov_b64 {vr(V_D+j,2)}, 0')
        LW2 = a.newlabel('rec_w2'); LW3 = a.newlabel('rec_w3')
        a(f's_cmp_eq_u32 s{S_W}, 3')
        a(f's_cbranch_scc1 {LW3}')
        a(f's_cmp_eq_u32 s{S_W}, 2')
        a(f's_cbranch_scc1 {LW2}')
        a(f'ds_read_b128 {vr(V_NS,4)}, v{V_L16} offset:{L_X}')
        a(f's_branch {LB2}')
        a.label(LW2)
        for w in range(4): a(f'ds_read_b128 {vr(V_R+4*w,4)}, v{V_L16} offset:{L_V+w*1024}')
        a('s_waitcnt lgkmcnt(0)')
        red4(4)
        for j in range(2): a(f'v_cvt_pk_bf16_f32 v{V_NS+j}, v{V_R+2*j}, v{V_R+2*j+1}')
        for j in range(2): a(f'v_permlane32_swap_b32 v{V_NS+j}, v{V_NS+2+j}')
        for j in (0, 2): a(f'v_permlane16_swap_b32 v{V_NS+j}, v{V_NS+j+1}')
        a.label(LB2)
        a('s_waitcnt lgkmcnt(0)')
        a(f's_cmp_eq_u32 s{S_STEP}, {nsteps-1}')
        a(f's_cbranch_scc1 {DONE}')
        a(f's_branch {LCS}')
        a.label(LW3)
        a(f's_cmp_eq_u32 s{S_STEP}, {nsteps-1}')
        a(f's_cbranch_scc1 {DONE}')
        tickwait(0, DC)
        a(f's_branch {LCS}')
    tails.append(w123)
    stamp(7)
    ts(6)
    def loadC(c, r):
        a(f'buffer_load_dwordx4 {vr(r,4)}, v{V_COFF if c < 4 else V_COFF2}, {WS}, s{S_SL0} offen offset:{(c&3)*1024} sc1')
    def mfC(c):
        r = []
        for sel in range(2):
            f, b = wo_reg(2 * c + sel)
            r.append(f'v_smfmac_f32_16x16x64_bf16 {vr(V_D+4*sel,4)}, {vr(V_MA+4*c,4)}, {f}[{b}:{b+7}], v{V_IDX}')
        return r
    def nC3():
        a(f's_add_u32 s{S_T0}, s{S_STEP}, 1')
        wait_kv(f's{S_T0}')
        a(f's_xor_b32 s{S_KXB}, s{S_KXB}, 4096')
        a(f's_add_u32 m0, s{S_KXB}, s{S_PFL}')
        if XP != 1: a(f's_add_u32 s{S_KV}, s{S_KV}, {256*1024}')
        a(f'buffer_load_dwordx4 v{V_PFG}, {WS}, s{S_KV} offen sc1 lds')
    noiseC = [nC3, lambda: a(f'buffer_load_dword v{V_T1}, v{V_PTG}, {WS}, s{S_SC} offen sc1')]
    st4 = [f'buffer_store_dwordx4 {vr(V_NS,4)}, v{V_NSA}, {WS}, s{S_NSO} offen sc1',
           f'buffer_store_dwordx4 {vr(V_NB,4)}, v{V_NBA}, {WS}, s{S_NBO} offen sc1']
    if NSP == 1: noiseC += [(lambda x=x: a(x)) for x in st4]
    def late_stores(pl=False, n=2):
        if not NSP:
            a('s_barrier')
            for k, x in enumerate(st4[:n]):
                if pl: tpoll(128)
                a(x)
        a(f's_add_u32 s{S_NBO}, s{S_NBO}, s{S_NBI}')
        if n == 2: a(f'v_add_u32 v{V_FRV}, s{S_MHI+1}, v{V_FRV}')
        if sync and ASY:
            lr = a.newlabel('rec_rf')
            a(f's_add_u32 s{S_T0}, s{S_STEP}, 3')
            a(f's_min_u32 s{S_T0}, s{S_T0}, {NSEG-1}')
            a(f's_cmp_gt_u32 s{S_SEEN}, s{S_T0}')
            a(f's_cbranch_scc1 {lr}')
            a(f's_load_dword s{S_SEEN}, s[{S_WSP}:{S_WSP+1}], s{S_FKV} glc')
            a.label(lr)
        a(f's_add_u32 s{S_NSO}, s{S_NSO}, s{S_NSI}')
        a(f's_cmp_eq_u32 s{S_W}, 3')
        a(f's_cselect_b32 s{S_NSO}, s{S_SL2}, s{S_NSO}')
    TKA = f'buffer_store_dword v{V_TG}, v{V_TKSA}, {WS}, 0 offen sc1'
    def postC():
        a(f's_add_u32 s{S_STEP}, s{S_STEP}, 1')
        a(f's_add_u32 s{S_T0}, s{S_STEP}, 2')
        a(f's_lshr_b32 s{S_T1}, s{S_T0}, 3')
        a(f's_lshr_b32 s{S_T1}, s{S_PAR}, s{S_T1}')
    gather('rec_gc', 8, loadC, mfC, 8, noiseC, ILC, post=postC)
    if NSP == 2:
        for x in st4: a(x)
    if TA == 9: a(TKA)
    ts(8)
    a(f's_mov_b32 s{S_SL0}, s{S_SL1}')
    a(f's_mov_b32 s{S_SL1}, s{S_SL2}')
    stamp_c = True
    if prof == 1:
        a(f's_sub_u32 s{S_STEP}, s{S_STEP}, 1'); stamp(8); a(f's_add_u32 s{S_STEP}, s{S_STEP}, 1')
    a(f'v_pk_add_f32 {vr(V_D,2)}, {vr(V_D,2)}, {vr(V_D+2,2)}')
    for r1 in range(2): a(f'v_add_f32_dpp v{V_D+r1}, v{V_D+4+r1}, v{V_D+6+r1} quad_perm:[0,1,2,3] row_mask:0xc bank_mask:0xf')
    a(f'v_permlane32_swap_b32 v{V_D}, v{V_D+1}')
    a(f'v_add_f32 v{V_D}, v{V_D}, v{V_D+1}')
    a(f'ds_write_b32 v{V_OPW}, v{V_D}')
    S(S_SL2, [(S_T1, 0, 1, 13), (S_T0, 0, None, 18), (S_HB, 0, None, 0)])
    a(f's_add_u32 s{S_SC}, s{S_SC}, {128*2048}')
    LB4 = a.newlabel('rec_b4')
    a(f's_cmp_lg_u32 s{S_W}, 0')
    a(f's_cbranch_scc1 {LB4}')
    a('s_waitcnt lgkmcnt(0)')
    a('s_barrier')
    for w in range(4): a(f'ds_read_b64 {vr(V_R+2*w,2)}, v{V_OPR} offset:{w*256}')
    a(f'v_add_u32 v{V_TG}, 2, v{V_TG}')
    a('s_waitcnt lgkmcnt(0)')
    red4(2)
    a(f'v_cvt_pk_bf16_f32 v{V_R}, v{V_R}, v{V_R+1}')
    a(f'v_max_u32 v{V_R}, 1, v{V_R}')
    for j in range(1, 4): a(f'v_mov_b32_dpp v{V_R+j}, v{V_R} quad_perm:[{j},{j},{j},{j}] row_mask:0xf bank_mask:0xf')
    a('s_mov_b64 exec, 0x11111111')
    a(f'buffer_store_dwordx4 {vr(V_R,4)}, v{V_MEMST}, {WS}, s{S_SL0} offen sc1')
    a('s_mov_b64 exec, -1')
    stamp(10)
    ts(9)
    late_stores(False, 1)
    for j in range(0, 8, 2): a(f'v_mov_b64 {vr(V_D+j,2)}, 0')
    a('s_waitcnt vmcnt(2)')
    a(f's_branch {LOOP}')
    a.label(LB4)
    a('s_waitcnt lgkmcnt(0)')
    a('s_barrier')
    if not TA: a(TKA)
    L3B = a.newlabel('rec_w3b')
    a(f's_cmp_eq_u32 s{S_W}, 3')
    a(f's_cbranch_scc1 {L3B}')
    a(f'v_add_u32 v{V_TG}, 2, v{V_TG}')
    for j in range(0, 8, 2): a(f'v_mov_b64 {vr(V_D+j,2)}, 0')
    late_stores()
    a('s_waitcnt vmcnt(2)')
    a(f's_branch {LOOP}')
    a.label(L3B)
    a(f'v_add_u32 v{V_TG}, 2, v{V_TG}')
    for j in range(0, 8, 2): a(f'v_mov_b64 {vr(V_D+j,2)}, 0')
    tpoll(128)
    late_stores(True, 1)
    tpoll(128)
    a('s_waitcnt vmcnt(2)')
    tickwait(128, DA)
    a(f's_branch {LOOP}')
    for t in tails: t()
    a.label(DONE)
    if prof >= 3:
        a(f'v_writelane_b32 v{V_TR}, s100, 10'); a(f'v_writelane_b32 v{V_TR}, s101, 11'); a(f'v_writelane_b32 v{V_TR}, s{S_SPIN}, 12')
    if prof == 4: pmark(0)
    a(f'buffer_store_dwordx4 {vr(V_NS,4)}, v{V_NSA}, {WS}, s{S_NSO} offen sc1')
    a('s_waitcnt vmcnt(0)')
    a('s_barrier')
    a(f'v_add_u32 v{V_FRV}, 1, v{V_FRV}')
    a(f'buffer_store_dword v{V_FRV}, v{V_FRA}, {WS}, 0 offen sc1')
    if prof:
        S(S_T0, [(S_RID, 0, None, 13), (S_W, 0, None, 11)], TRACE)
        a(f'v_lshlrev_b32 v{V_T0}, 2, v{V_L}')
        for e in range(8):
            a(f'buffer_store_dword v{V_TR+e}, v{V_T0}, {WS}, s{S_T0} offen offset:{e*256}')
```

```python
from asmlib import *
from layout import *
from rec import srd, lane, sexpr
import math, struct

G_WS = 4
G_W = 8
G_X = 12
G_W2 = 16
G_OUT = 20
G_ID, G_WV, G_SEG = 28, 29, 30
G_T0, G_T1, G_T2 = 31, 32, 33
G_LW = 34
G_XO = 35
G_PO = 36
G_PS = 37
G_WSO, G_WST = 38, 39
G_SPIN = 41
G_C = 42
G_SEEN = 43
G_J, G_R = 44, 45
G_KMO, G_OAO, G_OBO, G_OUO = 46, 47, 48, 49
G_FO = 50
G_END, G_XMAX = 51, 52
G_SA, G_SB, G_FA, G_FB, G_FR, G_C2 = 53, 54, 55, 56, 57, 58
G_PTR = 72
G_WSP = 90
G_DBG = 92
WS = f's[{G_WS}:{G_WS+3}]'
V_L, V_T0, V_T1, V_T2, V_L16 = 1, 2, 3, 4, 5

def f32(x): return '0x%08x' % struct.unpack('<I', struct.pack('<f', x))[0]

class Gem:
    def __init__(self, a, sync=True, prof=False):
        self.a = a; self.sync = sync; self.prof = prof; self.ost = ''
    def L(self, dst, terms, add=None): lane(self.a, dst, V_T2, V_L, terms, add)
    def S(self, dst, terms, const=0): sexpr(self.a, dst, G_T2, terms, const)
    def spin_guard(self, lgive):
        a = self.a
        a(f's_add_u32 s{G_SPIN}, s{G_SPIN}, 1')
        a(f's_cmp_ge_u32 s{G_SPIN}, 0x200000')
        a(f's_cbranch_scc1 {lgive}')
    def keep(self, reg, cond):
        a = self.a
        a(cond)
        a(f'v_mov_b32 v{V_T2}, {OOB}')
        a(f'v_cndmask_b32 v{reg}, v{V_T2}, v{reg}, vcc')

    def mark(self, k):
        if not self.prof: return
        a = self.a
        a(f's_memrealtime s[{G_PTR+14}:{G_PTR+15}]')
        a('s_waitcnt lgkmcnt(0)')
        a(f's_mov_b32 s{94+k}, s{G_PTR+14}')
        if False:
            a(f's_memtime s[{G_PTR+14}:{G_PTR+15}]')
            a('s_waitcnt lgkmcnt(0)')
            a(f's_mov_b32 s{98+k}, s{G_PTR+14}')
    def acc(self, k):
        if self.prof != 2: return
        a = self.a
        a(f's_memtime s[{G_PTR+14}:{G_PTR+15}]')
        a('s_waitcnt lgkmcnt(0)')
        if k is not None:
            a(f's_sub_u32 s{G_PTR+15}, s{G_PTR+14}, s60')
            a(f's_add_u32 s{61+k}, s{61+k}, s{G_PTR+15}')
        a(f's_mov_b32 s60, s{G_PTR+14}')
    def dump(self):
        if not self.prof: return
        a = self.a
        if self.prof == 5:
            a(f's_cmp_lt_u32 s{G_ID}, 96')
            a(f's_cselect_b32 s{G_T0}, 20, 44')
            a(f'v_mov_b32 v{V_T1}, s{G_T0}')
            a('s_mov_b64 exec, 1')
            for i, k in enumerate((1, 3, 6, 4, 5)):
                a(f'v_mov_b32 v{V_T0}, s{94+k}')
                a(f'global_atomic_umax v{V_T1}, v{V_T0}, s[{G_DBG}:{G_DBG+1}] offset:{4*i} sc1')
            return
        self.S(G_T0, [(G_ID, 0, None, 7), (G_WV, 0, None, 5)], TRACE + 4 * MB)
        a(f'v_mov_b32 v{V_T1}, 0')
        for k in range(8):
            a(f'v_mov_b32 v{V_T0}, s{94+k}')
            a(f'buffer_store_dword v{V_T0}, v{V_T1}, {WS}, s{G_T0} offen offset:{4*k}')
        a(f's_add_u32 s{G_T0}, s{G_T0}, {MB}')
        for k in range(8):
            a(f'v_mov_b32 v{V_T0}, s{61+k}')
            a(f'buffer_store_dword v{V_T0}, v{V_T1}, {WS}, s{G_T0} offen offset:{4*k}')

    def setup(self):
        a = self.a
        a(f's_load_dwordx2 s[{G_WSP}:{G_WSP+1}], s[0:1], {K_WS}')
        a(f's_load_dwordx2 s[{G_DBG}:{G_DBG+1}], s[0:1], {K_DBG}')
        a(f'v_and_b32 v{V_L}, 63, v0')
        a(f'v_lshrrev_b32 v{V_T0}, 6, v0')
        a(f'v_readfirstlane_b32 s{G_WV}, v{V_T0}')
        a(f'v_lshlrev_b32 v{V_L16}, 4, v{V_L}')
        a(f's_mov_b32 s{G_SPIN}, 0')
        a(f's_lshl_b32 s{G_LW}, s{G_WV}, 10')
        a('s_waitcnt lgkmcnt(0)')
        srd(a, G_WS, G_WSP, WS_BYTES)
        if self.prof:
            for k in range(8): a(f's_mov_b32 s{94+k}, 0'); a(f's_mov_b32 s{61+k}, 0')
        self.mark(0)

    def load_weights(self, jobs, hook=None):
        a = self.a
        LB = G_T1
        a(f's_lshl_b32 s{LB}, s{G_WV}, 15')
        pairs = []
        for (sd, vg, n, reads, so0, sst) in jobs:
            for p in range(n): pairs.append((sd, vg, reads(p), so0 if p == 0 else None, sst))
        NSL = 16
        def issue(p):
            sd, vg, _, so0, sst = pairs[p]
            for j in range(2):
                a(f's_add_u32 m0, s{LB}, {(p % NSL) * 2048 + j * 1024}')
                if so0 is not None and j == 0: a(f's_mov_b32 s{G_WSO}, {so0}')
                else: a(f's_add_u32 s{G_WSO}, s{G_WSO}, {sst}')
                a(f'buffer_load_dwordx4 v{vg}, s[{sd}:{sd+3}], s{G_WSO} offen lds')
        issued = 0
        for p in range(min(NSL, len(pairs))):
            issue(p); issued += 1
        for p in range(len(pairs)):
            a(f's_waitcnt vmcnt({2 * (issued - p - 1)})')
            if p == 0 and hook: hook()
            for dst, va, off in pairs[p][2]:
                a(f'ds_read_b64_tr_b16 {dst}, v{va} offset:{(p % NSL) * 2048 + off}')
            if p >= 1 and issued < len(pairs):
                a(f's_waitcnt lgkmcnt({len(pairs[p][2])})')
                issue(issued); issued += 1
        a('s_waitcnt lgkmcnt(0)')

    def touch_wo(self):
        a = self.a
        P = G_PTR
        lsk = a.newlabel('tw_skip')
        a(f's_cmp_lt_u32 s{G_ID}, 96')
        a(f's_cbranch_scc1 {lsk}')
        a(f's_load_dwordx2 s[{P}:{P+1}], s[0:1], {K_WO}')
        self.S(G_T0, [(G_ID, 0, 5, 13), (G_WV, 0, None, 21)])
        a(f'v_lshl_add_u32 v{V_T0}, v{V_L}, 7, s{G_T0}')
        a('s_waitcnt lgkmcnt(0)')
        srd(a, G_W, P, 8 * MB)
        for i in range(8):
            a(f's_mov_b32 s{G_T0}, {i * 262144}')
            a(f'buffer_load_dword v{128+i}, v{V_T0}, s[{G_W}:{G_W+3}], s{G_T0} offen')
        a.label(lsk)

    def slab(self, LNEXT, **opt):
        a = self.a; L = self.L; S = self.S
        P = G_PTR
        V_G, V_TR, V_XG, V_ST, V_FL, V_FV = 6, 7, 8, 9, 10, 11
        V_RA = 12
        V_F = 32
        V_ACC = 64
        V_PK = 96
        lB = a.newlabel('sl_b'); lC = a.newlabel('sl_c')
        G_M = G_J
        a(f's_cmp_ge_u32 s{G_ID}, 96')
        a(f's_cbranch_scc1 {lB}')
        a(f's_lshr_b32 s{G_T0}, s{G_ID}, 5')
        a(f's_add_u32 s{G_T0}, s{G_T0}, 1')
        a(f's_cmp_eq_u32 s{G_T0}, 3')
        a(f's_cselect_b32 s{G_M}, 0, s{G_T0}')
        S(G_T0, [(G_M, 0, None, 3)], K_WQ)
        a(f's_load_dwordx2 s[{P}:{P+1}], s[0:1], s{G_T0}')
        a(f's_load_dwordx2 s[{P+2}:{P+3}], s[0:1], {K_AX}')
        a(f's_mov_b32 s{P+4}, {8*MB}')
        a(f's_mov_b32 s{G_WST}, 8192')
        S(G_T0, [(G_ID, 0, 5, 8)])
        S(G_PO, [(G_M, 0, None, 24), (G_ID, 0, 5, 13)], PA)
        a(f's_mov_b32 s{G_PS}, {256*1024}')
        S(G_FO, [(G_ID, 0, 5, 7), (G_M, 0, None, 2)], FLG + F_SLA)
        a(f's_branch {lC}')
        a.label(lB)
        a(f's_sub_u32 s{G_T1}, s{G_ID}, 96')
        a(f's_lshr_b32 s{G_M}, s{G_T1}, 3')
        a(f's_load_dwordx2 s[{P}:{P+1}], s[0:1], {K_WQKV}')
        a(f's_load_dwordx2 s[{P+2}:{P+3}], s[0:1], {K_BX}')
        a(f's_mov_b32 s{P+4}, {6*MB}')
        a(f's_mov_b32 s{G_WST}, 6144')
        S(G_T0, [(G_T1, 0, None, 8)])
        S(G_PO, [(G_M, 0, None, 22), (G_T1, 0, 3, 13)], PB)
        a(f's_mov_b32 s{G_PS}, {64*1024}')
        S(G_FO, [(G_T1, 0, 3, 7), (G_M, 0, None, 2)], FLG + F_SLB)
        a.label(lC)
        a('s_waitcnt lgkmcnt(0)')
        if self.sync:
            li = a.newlabel('sl_i')
            a(f's_cmp_lg_u32 s{G_WV}, 0')
            a(f's_cbranch_scc1 {li}')
            a(f'v_mov_b32 v{V_T0}, 0')
            a('s_mov_b64 exec, 1')
            a(f'buffer_store_dword v{V_T0}, v{V_T0}, {WS}, s{G_FO} offen sc1')
            a('s_mov_b64 exec, -1')
            a.label(li)
        srd(a, G_W, P, f's{P+4}')
        srd(a, G_X, P + 2, 4 * MB)
        a(f's_mov_b64 s[{P+8}:{P+9}], s[{P}:{P+1}]')
        a(f's_mov_b32 s{G_R}, s{G_T0}')
        if self.sync:
            lg = a.newlabel('sl_go'); l2 = a.newlabel('sl_a2')
            a(f's_cmp_lt_u32 s{G_ID}, 96')
            a(f's_cbranch_scc1 {lg}')
            a(f's_cmp_lg_u32 s{G_WV}, 0')
            a(f's_cbranch_scc1 {l2}')
            a('s_mov_b64 exec, 1')
            self.arrive()
            a.label(l2)
            self.touch_wo()
            srd(a, G_W, P + 8, f's{P+4}')
            self.wait_start()
            a.label(lg)
        a(f'v_lshrrev_b32 v{V_T0}, 2, v{V_L}')
        a(f'v_mul_lo_u32 v{V_G}, v{V_T0}, s{G_WST}')
        S(G_T0, [(G_R, 0, None, 0), (G_WV, 0, None, 6)])
        L(V_T0, [(0, 2, 4)], f's{G_T0}')
        a(f'v_add_u32 v{V_G}, v{V_G}, v{V_T0}')
        a(f's_lshl_b32 s{G_WST}, s{G_WST}, 4')
        a(f's_mov_b32 s{G_SEG}, 0')
        a(f's_mov_b32 s{G_END}, {NSEG}')
        a(f's_mov_b32 s{G_XMAX}, {63*65536}')
        self.stream(LNEXT, [0, 1], **opt)

    def stream(self, LNEXT, variants, RD=6):
        a = self.a; L = self.L; S = self.S
        V_G, V_TR, V_XG, V_ST, V_FL, V_FV = 6, 7, 8, 9, 10, 11
        V_RA = 12
        V_F = 32
        V_ACC = 64
        V_PK = 96
        G_M = G_J
        ob = 2 in variants
        a(f's_lshl_b32 s{G_T0}, s{G_WV}, 15')
        if ob:
            L(V_TR, [(4, 2, 9), (2, 2, 6), (0, 2, 4)], f's{G_T0}')
        else:
            L(V_TR, [(4, 2, 9), (2, 2, 6), (1, 1, 5), (0, 1, 3)], f's{G_T0}')
        eo = 8 if ob else 16
        def wreads(p):
            return [(f'a[{8*p+4*et+2*q}:{8*p+4*et+2*q+1}]', V_TR, et * eo + q * 256) for et in range(2) for q in range(2)]
        def hook():
            li = a.newlabel('sl_ar')
            self.mark(7)
            a(f's_cmp_lg_u32 s{G_WV}, 0')
            a(f's_cbranch_scc1 {li}')
            a(f's_cmp_ge_u32 s{G_ID}, 96')
            a(f's_cbranch_scc1 {li}')
            a('s_mov_b64 exec, 1')
            self.arrive(False)
            a.label(li)
        self.load_weights([(G_W, V_G, 32, wreads, '0', f's{G_WST}')], hook if (self.sync and not ob) else None)
        self.mark(4 if ob else 1)
        S(G_T0, [(G_WV, 1, 1, 2)])
        L(V_T0, [(4, 2, 0)], f's{G_T0}')
        a(f'v_and_b32 v{V_T1}, 7, v{V_L}')
        a(f'v_xor_b32 v{V_T0}, v{V_T0}, v{V_T1}')
        a(f's_lshl_b32 s{G_T0}, s{G_WV}, 14')
        L(V_XG, [(3, 3, 11)], f's{G_T0}')
        a(f'v_lshl_add_u32 v{V_XG}, v{V_T0}, 4, v{V_XG}')
        L(V_T0, [(1, 3, 0)])
        a(f'v_lshrrev_b32 v{V_T1}, 4, v{V_L}')
        a(f'v_xor_b32 v{V_T0}, v{V_T0}, v{V_T1}')
        L(V_T1, [(3, 1, 11), (0, 3, 7)])
        for j in range(2):
            a(f'v_xor_b32 v{V_RA+j}, {4*j}, v{V_T0}')
            a(f'v_lshl_add_u32 v{V_RA+j}, v{V_RA+j}, 4, v{V_T1}')
            a(f'v_add_u32 v{V_RA+2+j}, 65536, v{V_RA+j}')
        if ob:
            a(f's_lshl_b32 s{G_T0}, s{G_WV}, 6')
            L(V_ST, [(0, 4, 12), (4, 2, 4)], f's{G_T0}')
            a(f'v_add_u32 v{V_XG}, s{G_LW}, v{V_L16}')
            L(V_RA, [(4, 2, 9), (0, 4, 4)])
            a(f'v_add_u32 v{V_RA+2}, 65536, v{V_RA}')
            self.wait_dbg(D_INIT, NWG)
            self.wait_lines(F_ATB, f's{G_END}')
        else:
            a(f's_lshl_b32 s{G_T0}, s{G_WV}, 11')
            L(V_ST, [(4, 2, 9), (3, 1, 8), (0, 3, 4)], f's{G_T0}')
            a(f'v_mov_b32 v{V_FL}, s{G_FO}')
            a(f's_cmp_eq_u32 s{G_WV}, 0')
            self.keep(V_FL, 's_cselect_b64 vcc, 1, 0')
            a(f'v_mov_b32 v{V_FV}, 0')
        a(f's_lshl_b32 s{G_XO}, s{G_SEG}, 16')
        a(f's_sub_u32 s{G_PO}, s{G_PO}, s{G_PS}')
        a('s_barrier')
        XS = f's[{G_X}:{G_X+3}]'
        SC = ' sc1' if ob else ''
        def dma(u, i, part=2):
            kb = (u & 1) * 8 + i
            if ob:
                if part != 1:
                    a(f's_add_u32 m0, s{G_LW}, {(u >> 1) * 65536 + kb * 4096}')
                    a(f's_add_u32 s{G_T1}, s{G_XO}, {kb * 4096}')
                if part != 0: a(f'buffer_load_dwordx4 v{V_XG}, {XS}, s{G_T1} offen sc1 lds')
                return
            if part != 1: a(f's_add_u32 m0, s{G_LW}, {(u >> 1) * 65536 + kb * 4096 - kb * 128}')
            if part != 0: a(f'buffer_load_dwordx4 v{V_XG}, {XS}, s{G_XO} offen offset:{kb*128} lds')
        for u in range(3):
            for i in range(8 if u < 2 else 4): dma(u, i)
            if u == 1: a(f's_add_u32 s{G_XO}, s{G_XO}, 65536')
        a('s_waitcnt vmcnt(12)')
        a('s_barrier')
        if not ob: self.mark(2)
        def rd(T):
            T %= 128
            p, t = T >> 6, T & 63
            ks, tt = t >> 1, t & 1
            if ob: a(f'ds_read_b128 {vr(V_F+4*(T%8),4)}, v{V_RA+2*p} offset:{ks*2048+tt*256}')
            else: a(f'ds_read_b128 {vr(V_F+4*(T%8),4)}, v{V_RA+2*p+(ks&1)} offset:{(ks>>1)*4096+tt*1024}')
        def epi(p, k, var):
            A = V_ACC + 16 * p
            if k < 8:
                o, inn, h = k >> 2, (k >> 1) & 1, k & 1
                tt, et = (inn, o) if var == 1 else (o, inn)
                r = A + 4 * (2 * tt + et) + 2 * h
                a(f'v_cvt_pk_bf16_f32 v{V_PK+k}, v{r}, v{r+1}')
            elif k == 8:
                if ob:
                    a(f'buffer_store_dwordx4 {vr(V_PK,4)}, v{V_ST}, s[{G_OUT}:{G_OUT+3}], s{G_PO} offen{self.ost}')
                    a(f's_add_u32 s{G_T0}, s{G_PO}, 65536')
                else: a(f'buffer_store_dwordx4 {vr(V_PK,4)}, v{V_ST}, {WS}, s{G_PO} offen sc1')
            elif k == 9:
                if ob: a(f'buffer_store_dwordx4 {vr(V_PK+4,4)}, v{V_ST}, s[{G_OUT}:{G_OUT+3}], s{G_T0} offen{self.ost}')
                else: a(f'buffer_store_dwordx4 {vr(V_PK+4,4)}, v{V_ST}, {WS}, s{G_PO} offen offset:128 sc1')
                a(f's_add_u32 s{G_PO}, s{G_PO}, s{G_PS}')
        for T in range(RD): rd(T)
        lV = a.newlabel('sl_v'); lE = a.newlabel('sl_e')
        a(f'v_add_u32 v{V_ST}, {OOB}, v{V_ST}')
        if len(variants) > 1:
            a(f's_cmp_eq_u32 s{G_M}, 2')
            a(f's_cbranch_scc1 {lV}')
        for var in variants:
            if var == 1: a.label(lV)
            lp = a.newlabel('sl_loop')
            a.label(lp)
            for T in range(128):
                p, t = T >> 6, T & 63
                u = T >> 5; tu = T & 31
                if tu == 16:
                    a('s_waitcnt vmcnt(8)')
                    a('s_barrier')
                if T % 2 == 0: a(f's_waitcnt lgkmcnt({RD-2})')
                A = V_ACC + 16 * p
                x = vr(V_F + 4 * (T % 8), 4)
                ks, tt = t >> 1, t & 1
                ph = (tu - 16) % 32
                isd = ph % 4 == 1
                if isd:
                    un = (u + 3) if tu >= 16 else (u + 2)
                    i = ph // 4
                for et in range(2):
                    w = f'a[{8*ks+4*et}:{8*ks+4*et+3}]'
                    D = vr(A + 4 * (2 * tt + et), 4)
                    c = D if ks else '0'
                    if var == 1: a(f'v_mfma_f32_16x16x32_bf16 {D}, {x}, {w}, {c}')
                    else: a(f'v_mfma_f32_16x16x32_bf16 {D}, {w}, {x}, {c}')
                    if et == 0:
                        rd(T + RD)
                        if isd: dma(un % 4, i, 0)
                    elif isd: dma(un % 4, i, 1)
                if isd and (un & 1) == 1 and i == 7:
                    a(f's_add_u32 s{G_XO}, s{G_XO}, 65536')
                    a(f's_min_u32 s{G_XO}, s{G_XO}, s{G_XMAX}')
                if tu == 18 and (u & 1) and not ob:
                    a(f'buffer_store_dword v{V_FV}, v{V_FL}, {WS}, 0 offen sc1')
                    a(f'v_add_u32 v{V_FV}, 1, v{V_FV}')
                if 4 <= t < 12: epi(p ^ 1, t - 4, var)
                if t == 11: epi(p ^ 1, 8, var)
                if t == 15: epi(p ^ 1, 9, var)
                if t == 20 and p == 0: a(f'v_and_b32 v{V_ST}, 0xffffff, v{V_ST}')
            a(f's_add_u32 s{G_SEG}, s{G_SEG}, 2')
            a(f's_cmp_lt_u32 s{G_SEG}, s{G_END}')
            a(f's_cbranch_scc1 {lp}')
            for k in range(8): epi(1, k, var)
            a(f's_branch {lE}')
        a.label(lE)
        for k in (8, 9): epi(1, k, 0)
        a('s_waitcnt vmcnt(0) lgkmcnt(0)')
        a('s_barrier')
        if not ob: a(f'buffer_store_dword v{V_FV}, v{V_FL}, {WS}, 0 offen sc1')
        self.mark(5 if ob else 3)
        a(f's_branch {LNEXT}')

    def outb(self, LNEXT):
        a = self.a; L = self.L; S = self.S
        P = G_PTR
        V_G = 6
        a(f's_load_dwordx4 s[{P}:{P+3}], s[0:1], {K_BWO}')
        a(f's_add_u32 s{P+4}, s{G_WSP}, {OB}')
        a(f's_addc_u32 s{P+5}, s{G_WSP+1}, 0')
        a(f's_sub_u32 s{G_T1}, s{G_ID}, 96')
        a(f's_lshr_b32 s{G_T1}, s{G_T1}, 3')
        a(f's_mul_i32 s{G_SEG}, s{G_T1}, 22')
        a(f's_add_u32 s{G_END}, s{G_SEG}, 22')
        a(f's_min_u32 s{G_END}, s{G_END}, {NSEG}')
        a(f's_sub_u32 s{G_XMAX}, s{G_END}, 1')
        a(f's_lshl_b32 s{G_XMAX}, s{G_XMAX}, 16')
        a('s_waitcnt lgkmcnt(0)')
        srd(a, G_W, P, 2 * MB)
        srd(a, G_OUT, P + 2, 8 * MB)
        srd(a, G_X, P + 4, 4 * MB)
        S(G_T0, [(G_ID, 0, 3, 8), (G_WV, 0, None, 6)])
        L(V_G, [(2, 4, 11), (0, 2, 4)], f's{G_T0}')
        a(f's_mov_b32 s{G_WST}, 32768')
        S(G_PO, [(G_SEG, 0, None, 17), (G_ID, 0, 3, 8)], 2048)
        a(f's_mov_b32 s{G_PS}, 131072')
        self.stream(LNEXT, [2])

    def wait_flags_s(self, off_sreg, nwords, idx, target, seen=None):
        a = self.a
        if not self.sync: return
        T = G_PTR
        lp = a.newlabel('g_wf'); ld = a.newlabel('g_wfd')
        if seen is not None:
            a(f's_cmp_ge_u32 s{seen}, {target}')
            a(f's_cbranch_scc1 {ld}')
        a.label(lp)
        a(f's_load_dwordx4 s[{T}:{T+3}], s[{G_WSP}:{G_WSP+1}], s{off_sreg} glc')
        self.spin_guard(ld)
        a('s_waitcnt lgkmcnt(0)')
        m = seen if seen is not None else T + 4
        a(f's_min_u32 s{m}, s{T+idx[0]}, s{T+idx[1]}')
        for i in idx[2:]: a(f's_min_u32 s{m}, s{m}, s{T+i}')
        a(f's_cmp_ge_u32 s{m}, {target}')
        a(f's_cbranch_scc1 {ld}')
        a('s_sleep 4')
        a(f's_branch {lp}')
        a.label(ld)
        a('s_waitcnt lgkmcnt(0)')

    def arrive(self, wait=True):
        a = self.a
        a(f'v_mov_b32 v{V_T0}, 0')
        a(f'v_mov_b32 v{V_T1}, 1')
        if wait: a('s_waitcnt vmcnt(0)')
        a(f'global_atomic_add v{V_T0}, v{V_T1}, s[{G_DBG}:{G_DBG+1}] offset:{4*D_INIT} sc1')
        a('s_mov_b64 exec, -1')

    def wait_lines(self, fo, target, seen=None):
        a = self.a
        if not self.sync: return
        lp = a.newlabel('g_wl'); ld = a.newlabel('g_wld')
        self.L(V_T0, [(0, 5, 7)], FLG + fo)
        a(f's_cmp_lg_u32 s{G_WV}, 0')
        a(f's_cbranch_scc1 {ld}')
        a.label(lp)
        a(f'buffer_load_dword v{V_T1}, v{V_T0}, {WS}, 0 offen sc1')
        self.spin_guard(ld)
        a('s_waitcnt vmcnt(0)')
        a(f'v_cmp_gt_u32 vcc, {target}, v{V_T1}')
        a(f's_cbranch_vccz {ld}')
        a('s_sleep 8')
        a(f's_branch {lp}')
        a.label(ld)
        a('s_barrier')

    def wait_start(self):
        self.wait_dbg(D_RDY, 96, G_PTR + 12)

    def wait_dbg(self, word, target, T=G_PTR):
        a = self.a
        if not self.sync: return
        lp = a.newlabel('g_wd'); ld = a.newlabel('g_wdd')
        a(f's_cmp_lg_u32 s{G_WV}, 0')
        a(f's_cbranch_scc1 {ld}')
        a.label(lp)
        a(f's_load_dword s{T}, s[{G_DBG}:{G_DBG+1}], {4*word} glc')
        self.spin_guard(ld)
        a('s_waitcnt lgkmcnt(0)')
        a(f's_and_b32 s{T}, s{T}, 0xffff')
        a(f's_cmp_ge_u32 s{T}, {target}')
        a(f's_cbranch_scc1 {ld}')
        a('s_sleep 32')
        a(f's_branch {lp}')
        a.label(ld)
        a('s_waitcnt lgkmcnt(0)')
        a('s_barrier')

    def softmax(self, regs, V_M, V_M2, V_SUM, G_C=G_C):
        a = self.a
        a(f'v_max3_f32 v{V_M}, v{regs[0]}, v{regs[1]}, v{regs[2]}')
        r = regs[3:]
        while len(r) >= 2:
            a(f'v_max3_f32 v{V_M}, v{V_M}, v{r[0]}, v{r[1]}'); r = r[2:]
        if r: a(f'v_max_f32 v{V_M}, v{V_M}, v{r[0]}')
        a(f'v_mov_b32 v{V_M2}, v{V_M}')
        a(f'v_permlane32_swap_b32 v{V_M}, v{V_M2}')
        a(f'v_max_f32 v{V_M}, v{V_M}, v{V_M2}')
        a(f'v_mul_f32 v{V_M}, s{G_C}, v{V_M}')
        for x in regs: a(f'v_fma_f32 v{x}, v{x}, s{G_C}, -v{V_M}')
        for x in regs: a(f'v_exp_f32 v{x}, v{x}')
        a(f'v_add_f32 v{V_SUM}, v{regs[0]}, v{regs[1]}')
        a(f'v_add_f32 v{V_M2}, v{regs[2]}, v{regs[3]}')
        for i in range(4, len(regs), 2):
            a(f'v_add_f32 v{V_SUM}, v{V_SUM}, v{regs[i]}')
            a(f'v_add_f32 v{V_M2}, v{V_M2}, v{regs[i+1]}')
        a(f'v_add_f32 v{V_SUM}, v{V_SUM}, v{V_M2}')
        a(f'v_mov_b32 v{V_M2}, v{V_SUM}')
        a(f'v_permlane32_swap_b32 v{V_SUM}, v{V_M2}')
        a(f'v_add_f32 v{V_SUM}, v{V_SUM}, v{V_M2}')
        a(f'v_rcp_f32 v{V_SUM}, v{V_SUM}')

    def att(self, LNEXT):
        a = self.a; L = self.L; S = self.S
        V_BL, V_BS, V_AL, V_KML, V_VML, V_D0, V_FLA, V_FLB = 6, 7, 8, 9, 10, 11, 12, 13
        V_M, V_M2, V_SUM = 14, 15, 26
        V_PP = 16
        V_PP = 28
        V_PM = 40
        V_PK = 208
        V_BC, V_BP, V_BA = 64, 80, 96
        V_SC, V_SP = 112, 128
        V_O = 144
        A_Q, A_K, A_KM, A_V, A_VM = 0, 32, 64, 96, 128
        B_Q, B_K, B_V, B_KP, B_VP, B_VC = 160, 168, 176, 184, 192, 196
        NEG = f32(-1e30)
        T = G_PTR
        a(f's_mov_b32 s{G_C}, {f32(128 ** -0.5 * math.log2(math.e))}')
        a(f's_mov_b32 s{G_C2}, {f32(32 ** -0.5 * math.log2(math.e))}')
        G_STR, G_AEND, G_S2 = G_PS, G_WSO, G_WST
        G_NX = G_OUO
        S(G_J, [(G_ID, 0, 3, 2), (G_WV, 0, None, 0)])
        a(f's_lshl_b32 s{G_T0}, s{G_J}, 11')
        a(f'v_add_u32 v{V_BL}, s{G_T0}, v{V_L16}')
        L(V_KML, [(5, 1, 7), (0, 3, 4)], f's{G_T0}')
        a(f's_add_u32 s{G_T0}, s{G_T0}, {VM - KM}')
        L(V_VML, [(0, 5, 4), (5, 1, 3)], f's{G_T0}')
        a(f's_lshl_b32 s{G_T0}, s{G_J}, 13')
        a(f'v_add_u32 v{V_AL}, s{G_T0}, v{V_L16}')
        a(f'v_mov_b32 v{V_BS}, v{V_AL}')
        S(G_FA, [(G_J, 0, None, 7)], FLG + F_SLA)
        S(G_FB, [(G_J, 2, None, 7)], FLG + F_SLB)
        S(G_FR, [(G_J, 0, None, 7)], FLG + F_REC)
        S(G_T0, [(G_J, 0, None, 7)], FLG)
        a(f'v_mov_b32 v{V_FLA}, s{G_T0}')
        a(f'v_lshl_add_u32 v{V_FLB}, v{V_L}, 12, s{G_T0}')
        self.keep(V_FLA, 's_mov_b64 vcc, 1')
        lhelp = a.newlabel('at_help'); lcom = a.newlabel('at_com')
        a(f's_cmp_lt_u32 s{G_ID}, 120')
        a(f's_cbranch_scc1 {lhelp}')
        a(f's_mov_b32 s{G_SA}, 0')
        a(f's_mov_b32 s{G_SB}, 0')
        a(f's_mov_b32 s{G_STR}, 1')
        a(f's_mov_b32 s{G_AEND}, {N0}')
        a(f's_mov_b32 s{G_S2}, {N1 + 2}')
        if self.sync:
            li = a.newlabel('at_i')
            a(f'v_mov_b32 v{V_T0}, 0')
            a(f's_mov_b32 s{G_T0}, {F_ATB}')
            a(f'buffer_store_dword v{V_T0}, v{V_FLA}, {WS}, s{G_T0} offen sc1')
            a(f's_mov_b32 s{G_T0}, {F_ATA}')
            a(f'buffer_store_dword v{V_T0}, v{V_FLB}, {WS}, s{G_T0} offen sc1')
            a('s_waitcnt vmcnt(0)')
            a('s_barrier')
            self.mark(7)
            a(f's_cmp_lg_u32 s{G_WV}, 0')
            a(f's_cbranch_scc1 {li}')
            a('s_mov_b64 exec, 1')
            self.arrive()
            a.label(li)
        self.touch_wo()
        a(f's_load_dwordx2 s[{T}:{T+1}], s[0:1], {K_AX}')
        a(f's_load_dwordx2 s[{T+2}:{T+3}], s[0:1], {K_BX}')
        a(f's_load_dwordx2 s[{T+4}:{T+5}], s[0:1], {K_BWO}')
        a('s_waitcnt lgkmcnt(0)')
        srd(a, G_W, T, 4 * MB)
        srd(a, G_X, T + 2, 4 * MB)
        srd(a, G_W2, T + 4, 2 * MB)
        a(f's_lshl_b32 s{G_T0}, s{G_J}, 13')
        a(f'v_lshl_add_u32 v{V_D0}, v{V_L}, 7, s{G_T0}')
        a(f'buffer_load_dword v{V_O}, v{V_D0}, s[{G_W}:{G_W+3}], 0 offen')
        self.wait_start()
        for i in range(16):
            a(f's_mov_b32 s{G_T0}, {i * 262144}')
            a(f'buffer_load_dword v{V_O+2*i}, v{V_D0}, s[{G_W}:{G_W+3}], s{G_T0} offen')
            a(f'buffer_load_dword v{V_O+2*i+1}, v{V_D0}, s[{G_X}:{G_X+3}], s{G_T0} offen')
        for i in range(8):
            a(f's_mov_b32 s{G_T0}, {i * 262144}')
            a(f'buffer_load_dword v{V_O+32+i}, v{V_D0}, s[{G_W2}:{G_W2+3}], s{G_T0} offen')
        a(f's_branch {lcom}')
        a.label(lhelp)
        S(G_SA, [(G_ID, 3, None, 0)], N0)
        a(f's_mov_b32 s{G_SB}, {NSEG}')
        a(f's_mov_b32 s{G_STR}, 12')
        a(f's_mov_b32 s{G_AEND}, {N1}')
        S(G_S2, [(G_ID, 3, 1, 0)], N1)
        a(f's_cmp_lt_u32 s{G_ID}, {NOUT}')
        a(f's_cselect_b32 s{G_S2}, {NSEG}, s{G_S2}')
        a.label(lcom)
        L(V_D0, [(0, 5, 0)])
        L(V_T1, [(5, 1, 2)])
        a(f'v_sub_u32 v{V_D0}, v{V_D0}, v{V_T1}')
        def bias(dst, add):
            a(f'v_mov_b32 v{V_M}, {NEG}')
            for j in range(16):
                a(f'v_add_u32 v{V_T1}, {add - (8*(j>>2)+(j&3))}, v{V_D0}')
                a(f'v_and_b32 v{V_T1}, 0xfffffff1, v{V_T1}')
                a(f'v_cmp_ne_u32 vcc, 0, v{V_T1}')
                a(f'v_cndmask_b32 v{dst+j}, 0, v{V_M}, vcc')
        bias(V_BC, 0)
        for j in range(16):
            a(f'v_cmp_gt_i32 vcc, {8*(j>>2)+(j&3)}, v{V_D0}')
            a(f'v_cndmask_b32 v{V_BA+j}, 0, v{V_M}, vcc')
        for j in range(16): a(f'v_mov_b32 v{V_BP+j}, {NEG}')
        for j in range(12): a(f'v_accvgpr_write_b32 a{B_KP+j}, 0')
        for j in range(16): a(f'v_accvgpr_write_b32 a{A_VM+j}, 0')
        for j in range(4): a(f'v_mov_b32 v{V_PM+j}, 0')
        self.wait_dbg(D_INIT, NWG)
        top = a.newlabel('at_top'); la = a.newlabel('at_a'); lb = a.newlabel('at_b'); lend = a.newlabel('at_end'); lnb = a.newlabel('at_nb')
        lpoll = a.newlabel('at_poll'); lnf = a.newlabel('at_nf')
        G_DIRTY = G_SEEN
        def poll():
            if not self.sync: return
            a(f's_load_dwordx16 s[8:23], s[{G_WSP}:{G_WSP+1}], s{G_FR} glc')
            a(f's_load_dwordx4 s[{T+4}:{T+7}], s[{G_WSP}:{G_WSP+1}], s{G_FA} glc')
            a(f's_load_dwordx4 s[{T+8}:{T+11}], s[{G_WSP}:{G_WSP+1}], s{G_FB} glc')
        G_PV = G_R
        def post():
            a(f'v_mov_b32 v{V_T0}, s{G_PV}')
            a(f'buffer_store_dword v{V_T0}, v{V_FLA}, {WS}, s{G_DIRTY} offen sc1')
        def ld8(dst, base):
            for t in range(8):
                if t % 4 == 0: a(f's_add_u32 s{G_T0}, s{G_PO}, {base + t*1024}')
                a(f'buffer_load_dwordx4 {ar(dst+4*t,4)}, v{V_BS}, {WS}, s{G_T0} offen offset:{(t&3)*1024} sc1')
        def ldB(m, dst):
            a(f's_add_u32 s{G_T0}, s{G_XO}, {PB + m * PB_M}')
            for t in range(2): a(f'buffer_load_dwordx4 {ar(dst+4*t,4)}, v{V_BL}, {WS}, s{G_T0} offen offset:{t*1024} sc1')
        def nextseg():
            ln = a.newlabel('at_nx')
            a(f's_add_u32 s{G_NX}, s{G_SA}, s{G_STR}')
            a(f's_cmp_lt_u32 s{G_NX}, s{G_AEND}')
            a(f's_cbranch_scc1 {ln}')
            a(f's_max_u32 s{G_NX}, s{G_NX}, s{G_S2}')
            a(f's_cmp_eq_u32 s{G_AEND}, 255')
            a(f's_cselect_b32 s{G_NX}, s{G_NX}, s{G_S2}')
            a(f's_mov_b32 s{G_STR}, 3')
            a(f's_mov_b32 s{G_AEND}, 255')
            a.label(ln)
        nextseg()
        self.wait_flags_s(G_FB, 4, [0, 1, 2], 1)
        a(f's_mov_b32 s{G_XO}, 0')
        for m, dst in enumerate((B_Q, B_K, B_V)): ldB(m, dst)
        a(f's_add_u32 s{G_T1}, s{G_SA}, 1')
        self.wait_flags_s(G_FA, 4, [0, 1, 2], f's{G_T1}')
        a(f's_lshl_b32 s{G_PO}, s{G_SA}, 18')
        ld8(A_Q, PA); ld8(A_K, PA + PA_M); ld8(A_V, PA + 2 * PA_M)
        a(f's_mov_b32 s{G_DIRTY}, {F_DUM}')
        a(f's_mov_b32 s{G_PV}, 0')
        a(f's_mov_b32 s{G_END}, 0')
        a('s_waitcnt vmcnt(0)')
        self.acc(None)
        a.label(lpoll)
        poll()
        a.label(top)
        if self.sync:
            a('s_waitcnt lgkmcnt(0)')
            a(f's_min_u32 s{T}, s8, s12')
            for i in (16, 20): a(f's_min_u32 s{T}, s{T}, s{i}')
            for b in (4, 8):
                for i in (1, 2): a(f's_min_u32 s{T+b}, s{T+b}, s{T+b+i}')
            a(f's_min_u32 s{T+5}, s{G_NX}, {NSEG-1}')
            a(f's_cmp_gt_u32 s{T+4}, s{T+5}')
            a(f's_cselect_b32 s{T}, s{T}, 0')
            a(f's_min_u32 s{T}, s{T}, {NSEG}')
            a(f's_sub_u32 s{T+9}, s{T+8}, 1')
            a(f's_cmp_ge_u32 s{T+8}, {NSEG}')
            a(f's_cselect_b32 s{T+8}, {NSEG}, s{T+9}')
        else:
            a(f's_mov_b32 s{T}, {NSEG}'); a(f's_mov_b32 s{T+8}, {NSEG}')
        a(f's_cmp_lt_u32 s{G_SB}, s{T+8}')
        a(f's_cbranch_scc1 {lb}')
        a(f's_cmp_lt_u32 s{G_SA}, s{T}')
        a(f's_cbranch_scc1 {la}')
        a(f's_cmp_eq_u32 s{G_DIRTY}, {F_DUM}')
        a(f's_cbranch_scc1 {lnf}')
        a('s_waitcnt vmcnt(0)')
        post()
        a(f's_mov_b32 s{G_DIRTY}, {F_DUM}')
        a.label(lnf)
        a(f's_cmp_ge_u32 s{G_SA}, {NSEG}')
        a(f's_cselect_b32 s{G_T0}, s{G_SB}, 0')
        a(f's_cmp_ge_u32 s{G_T0}, {NSEG}')
        a(f's_cbranch_scc1 {lend}')
        self.spin_guard(lend)
        a('s_sleep 1')
        a(f's_branch {lpoll}')
        a.label(la)
        self.acc(0)
        G_KOK = G_END
        def ldkm():
            a('s_mov_b32 exec_lo, 0xff'); a('s_mov_b32 exec_hi, 0xff')
            for t in range(8): a(f'buffer_load_dwordx4 {ar(A_KM+4*t,4)}, v{V_KML}, {WS}, s{G_KMO} offen offset:{t*256} sc1')
            a('s_mov_b64 exec, -1')
        def ldvm():
            for e in range(4): a(f'buffer_load_dwordx2 {ar(A_VM+4*e,2)}, v{V_VML}, {WS}, s{G_KMO} offen offset:{e*512} sc1')
        lk1 = a.newlabel('at_k1'); lk2 = a.newlabel('at_k2'); lk3 = a.newlabel('at_k3'); lk4 = a.newlabel('at_k4')
        S(G_KMO, [(G_SA, 0, None, 16)], KM)
        a(f's_cmp_lg_u32 s{G_KOK}, 0')
        a(f's_cbranch_scc1 {lk1}')
        ldkm(); ldvm()
        a.label(lk1)
        S(G_OAO, [(G_SA, 0, None, 18)], OA)
        a(f's_cmp_lt_u32 s{G_NX}, s{T}')
        a(f's_cselect_b32 s{G_XMAX}, 1, 0')
        a(f's_cmp_lt_u32 s{G_NX}, {NSEG}')
        a(f's_cselect_b32 s{G_T1}, s{G_NX}, s{G_SA}')
        a(f's_cselect_b32 s{G_T0}, 0, {OOB}')
        a(f'v_or_b32 v{V_BS}, s{G_T0}, v{V_AL}')
        a(f's_lshl_b32 s{G_PO}, s{G_T1}, 18')
        S(G_KMO, [(G_T1, 0, None, 16)], KM)
        poll()
        for t in range(8):
            a(f'v_mfma_f32_32x32x16_bf16 {vr(V_SC,16)}, {ar(A_K+4*t,4)}, {ar(A_Q+4*t,4)}, {vr(V_SC if t else V_BA,16)}')
        a(f's_cmp_lg_u32 s{G_KOK}, 0')
        a(f's_cbranch_scc1 {lk2}')
        a('s_waitcnt vmcnt(4)')
        a.label(lk2)
        ld8(A_K, PA + PA_M)
        for t in range(8):
            a(f'v_mfma_f32_32x32x16_bf16 {vr(V_SP,16)}, {ar(A_KM+4*t,4)}, {ar(A_Q+4*t,4)}, {vr(V_SP,16) if t else 0}')
        self.acc(1)
        a(f's_mov_b32 s{G_KOK}, s{G_XMAX}')
        ld8(A_Q, PA)
        a(f's_cmp_eq_u32 s{G_KOK}, 0')
        a(f's_cbranch_scc1 {lk3}')
        ldkm()
        a.label(lk3)
        self.softmax([V_SC + j for j in range(16)] + [V_SP + j for j in range(4)], V_M, V_M2, V_SUM)
        for j in range(8): a(f'v_cvt_pk_bf16_f32 v{V_PP+j}, v{V_SC+2*j}, v{V_SC+2*j+1}')
        for j in range(2): a(f'v_cvt_pk_bf16_f32 v{V_PM+j}, v{V_SP+2*j}, v{V_SP+2*j+1}')
        def fin(e):
            O = V_O + 16 * e; PK = V_PK + 8 * e
            r = [f'v_mul_f32 v{O+j}, v{O+j}, v{V_SUM}' for j in range(16)]
            r += [f'v_cvt_pk_bf16_f32 v{PK+j}, v{O+2*j}, v{O+2*j+1}' for j in range(8)]
            return r
        def pv(e):
            O = vr(V_O + 16 * e, 16)
            return [f'v_mfma_f32_32x32x16_bf16 {O}, {ar(A_V+8*e,4)}, {vr(V_PP,4)}, 0',
                    f'v_mfma_f32_32x32x16_bf16 {O}, {ar(A_V+8*e+4,4)}, {vr(V_PP+4,4)}, {O}',
                    f'v_mfma_f32_32x32x16_bf16 {O}, {ar(A_VM+4*e,4)}, {vr(V_PM,4)}, {O}']
        a('s_waitcnt vmcnt(16)')
        post()
        for m in pv(0) + pv(1): a(m)
        q = fin(0) + fin(1)
        for m in pv(2) + pv(3):
            a(m)
            for _ in range(6): a(q.pop(0))
        ld8(A_V, PA + 2 * PA_M)
        a(f's_cmp_eq_u32 s{G_KOK}, 0')
        a(f's_cbranch_scc1 {lk4}')
        ldvm()
        a.label(lk4)
        for x in q + fin(2) + fin(3): a(x)
        for e in range(4):
            if e % 2 == 0: a(f's_add_u32 s{G_T0}, s{G_OAO}, {e*2048}')
            for t in range(2): a(f'buffer_store_dwordx4 {vr(V_PK+8*e+4*t,4)}, v{V_AL}, {WS}, s{G_T0} offen offset:{(e&1)*2048+t*1024} sc1')
        a(f's_mov_b32 s{G_PV}, 1')
        S(G_DIRTY, [(G_SA, 0, None, 12)], F_ATA)
        a(f's_mov_b32 s{G_SA}, s{G_NX}')
        nextseg()
        self.acc(2)
        a('s_waitcnt vmcnt(17)')
        self.acc(3)
        a(f's_branch {top}')
        a.label(lb)
        self.acc(0)
        poll()
        S(G_OBO, [(G_SB, 0, None, 16)], OB)
        a(f's_add_u32 s{G_T1}, s{G_SB}, 1')
        a(f's_min_u32 s{G_T1}, s{G_T1}, {NSEG-1}')
        a(f's_lshl_b32 s{G_XO}, s{G_T1}, 16')
        a(f'v_mfma_f32_32x32x16_bf16 {vr(V_SP,16)}, {ar(B_KP,4)}, {ar(B_Q,4)}, {vr(V_BP,16)}')
        a(f'v_mfma_f32_32x32x16_bf16 {vr(V_SP,16)}, {ar(B_KP+4,4)}, {ar(B_Q+4,4)}, {vr(V_SP,16)}')
        a(f'v_mfma_f32_32x32x16_bf16 {vr(V_SC,16)}, {ar(B_K,4)}, {ar(B_Q,4)}, {vr(V_BC,16)}')
        a(f'v_mfma_f32_32x32x16_bf16 {vr(V_SC,16)}, {ar(B_K+4,4)}, {ar(B_Q+4,4)}, {vr(V_SC,16)}')
        for j in range(8): a(f'v_accvgpr_mov_b32 a{B_KP+j}, a{B_K+j}')
        for j in range(8): a(f'v_accvgpr_mov_b32 a{B_VC+j}, a{B_V+j}')
        for m, dst in enumerate((B_Q, B_K, B_V)): ldB(m, dst)
        self.softmax([V_SP + 8 + j for j in range(8)] + [V_SC + j for j in range(16)], V_M, V_M2, V_SUM, G_C2)
        for j in range(8): a(f'v_cvt_pk_bf16_f32 v{V_PP+j}, v{V_SC+2*j}, v{V_SC+2*j+1}')
        for j in range(4): a(f'v_cvt_pk_bf16_f32 v{V_PP+8+j}, v{V_SP+8+2*j}, v{V_SP+8+2*j+1}')
        O = vr(V_O, 16)
        a(f'v_mfma_f32_32x32x16_bf16 {O}, {ar(B_VC,4)}, {vr(V_PP,4)}, 0')
        a(f'v_mfma_f32_32x32x16_bf16 {O}, {ar(B_VC+4,4)}, {vr(V_PP+4,4)}, {O}')
        a(f'v_mfma_f32_32x32x16_bf16 {O}, {ar(B_VP,4)}, {vr(V_PP+8,4)}, {O}')
        for j in range(4): a(f'v_accvgpr_mov_b32 a{B_VP+j}, a{B_VC+4+j}')
        self.acc(4)
        a('s_waitcnt vmcnt(6)')
        self.acc(5)
        post()
        a(f's_cmp_lg_u32 s{G_SB}, 0')
        a(f's_cbranch_scc1 {lnb}')
        bias(V_BP, 32)
        a.label(lnb)
        for j in range(16): a(f'v_mul_f32 v{V_O+j}, v{V_O+j}, v{V_SUM}')
        for j in range(8): a(f'v_cvt_pk_bf16_f32 v{V_PK+j}, v{V_O+2*j}, v{V_O+2*j+1}')
        for t in range(2):
            for j in range(2): a(f'v_permlane32_swap_b32 v{V_PK+4*t+j}, v{V_PK+4*t+2+j}')
        for t in range(2): a(f'buffer_store_dwordx4 {vr(V_PK+4*t,4)}, v{V_BL}, {WS}, s{G_OBO} offen offset:{t*1024} sc1')
        a(f's_add_u32 s{G_SB}, s{G_SB}, 1')
        a(f's_mov_b32 s{G_DIRTY}, {F_ATB}')
        a(f's_mov_b32 s{G_PV}, s{G_SB}')
        if self.prof:
            lm = a.newlabel('at_m')
            a(f's_cmp_lg_u32 s{G_SB}, {NSEG}')
            a(f's_cbranch_scc1 {lm}')
            self.mark(1)
            a.label(lm)
        self.acc(6)
        a('s_waitcnt vmcnt(3)')
        self.acc(7)
        a(f's_branch {top}')
        a.label(lend)
        a('s_waitcnt vmcnt(0) lgkmcnt(0)')
        self.mark(5)
        self.mark(6)
        a(f's_branch {LNEXT}')

    def out64(self, LNEXT, NF=16, SLP=10):
        a = self.a; L = self.L; S = self.S
        P = G_PTR
        NR = NOUT // 16
        V_G, V_TR, V_FA, V_RW, V_RR, V_OUT, V_FP, V_FR = 6, 7, 8, 9, 10, 11, 12, 13
        V_LW = 16
        V_AC = 32
        V_F = 64
        V_W = 128
        RB = 131072
        G_NXT, G_NOK, G_FSO = G_XO, G_END, G_XMAX
        a(f's_load_dwordx2 s[{P}:{P+1}], s[0:1], {K_WO}')
        a(f's_load_dwordx2 s[{P+2}:{P+3}], s[0:1], {K_OUT}')
        a(f's_mul_i32 s{G_J}, s{G_ID}, {-(-1024 // NR)}')
        a(f's_lshr_b32 s{G_J}, s{G_J}, 10')
        assert all((i * -(-1024 // NR)) >> 10 == i // NR for i in range(NOUT))
        a(f's_mul_i32 s{G_T0}, s{G_J}, {NR}')
        a(f's_sub_u32 s{G_SEG}, s{G_ID}, s{G_T0}')
        a('s_waitcnt lgkmcnt(0)')
        srd(a, G_W, P, 8 * MB)
        srd(a, G_OUT, P + 2, 8 * MB)
        S(G_T0, [(G_WV, 0, None, 21), (G_J, 0, None, 7)])
        L(V_G, [(3, 3, 11), (0, 3, 4)], f's{G_T0}')
        a(f's_lshl_b32 s{G_T0}, s{G_WV}, 15')
        L(V_TR, [(5, 1, 9), (2, 2, 7), (4, 1, 5), (0, 2, 3)], f's{G_T0}')
        def wreg(t, tile):
            return f'a[{8*t+4*tile}:{8*t+4*tile+3}]' if t < 32 else vr(V_W + 8 * (t - 32) + 4 * tile, 4)
        def rds(p):
            if p >= 48: return []
            f, b = ('a', 8 * p) if p < 32 else ('v', V_W + 8 * (p - 32))
            return [(f'{f}[{b+4*tl+2*q}:{b+4*tl+2*q+1}]', V_TR, tl * 64 + q * 1024) for tl in range(2) for q in range(2)]
        self.load_weights([(G_W, V_G, 64, rds, '0', '16384')])
        self.mark(4)
        a(f's_lshl_b32 s{G_T0}, s{G_WV}, 16')
        a(f'v_add_u32 v{V_FA}, s{G_T0}, v{V_L16}')
        S(G_T0, [(G_WV, 0, None, 13)], RB)
        a(f'v_add_u32 v{V_RW}, s{G_T0}, v{V_L16}')
        S(G_T0, [(G_WV, 0, None, 7)], RB)
        L(V_RR, [(1, 2, 10), (0, 1, 9), (3, 3, 4)], f's{G_T0}')
        S(G_T0, [(G_WV, 0, None, 15), (G_J, 0, None, 7)])
        L(V_OUT, [(3, 3, 12), (0, 3, 3)], f's{G_T0}')
        L(V_FP, [(0, 5, 7)], FLG)
        self.wait_dbg(D_INIT, NWG)
        def flagoff(seg):
            S(G_FSO, [(seg, 0, 6, 12)], F_ATA)
        order = []
        for i in range(16): order += [3 * i, 3 * i + 1, 3 * i + 2, 48 + i]
        def ldA(n, base):
            t = order[n]
            a(f's_add_u32 s{G_T0}, s{base}, {t*1024}')
            a(f'buffer_load_dwordx4 {vr(V_F+4*(n%NF),4)}, v{V_FA}, {WS}, s{G_T0} offen sc1')
        def ldW(i):
            for tl in range(2):
                for q in range(2):
                    r = V_LW + 8 * (i % 2) + 4 * tl + 2 * q
                    a(f'ds_read_b64_tr_b16 v[{r}:{r+1}], v{V_TR} offset:{i*2048+tl*64+q*1024}')
        lp = a.newlabel('o6_loop'); lgo = a.newlabel('o6_go'); lw = a.newlabel('o6_w'); lwd = a.newlabel('o6_wd')
        self.acc(None)
        a.label(lp)
        S(G_OAO, [(G_SEG, 0, None, 18)], OA)
        if self.sync:
            flagoff(G_SEG)
            a.label(lw)
            a(f'buffer_load_dword v{V_FR}, v{V_FP}, {WS}, s{G_FSO} offen sc1')
            self.spin_guard(lwd)
            a('s_waitcnt vmcnt(0)')
            a(f'v_cmp_eq_u32 vcc, 0, v{V_FR}')
            a(f's_cbranch_vccz {lwd}')
            a(f's_sleep {SLP}')
            a(f's_branch {lw}')
            a.label(lwd)
        for n in range(NF - 1): ldA(n, G_OAO)
        a.label(lgo)
        self.acc(0)
        a(f's_lshl_b32 s{G_OUO}, s{G_SEG}, 17')
        a(f's_add_u32 s{G_NXT}, s{G_SEG}, {NR}')
        flagoff(G_NXT)
        ldW(0)
        FL = 24
        for n in range(64):
            t = order[n]
            extra = 1 if (FL < n <= FL + NF - 1) else 0
            a(f's_waitcnt vmcnt({NF - 2 + extra})')
            x = vr(V_F + 4 * (n % NF), 4)
            if t >= 48: a('s_waitcnt lgkmcnt(0)')
            for tl in range(2):
                w = wreg(t, tl) if t < 48 else vr(V_LW + 8 * ((t - 48) % 2) + 4 * tl, 4)
                D = vr(V_AC + 16 * tl, 16)
                a(f'v_mfma_f32_32x32x16_bf16 {D}, {w}, {x}, {D if n else 0}')
                if tl == 0:
                    m = n + NF - 1
                    if m == 64:
                        a(f'v_cmp_eq_u32 vcc, 0, v{V_FR}')
                        S(G_KMO, [(G_NXT, 0, None, 18)], OA)
                        a(f's_cmp_eq_u64 vcc, 0')
                        a(f's_cselect_b32 s{G_NOK}, 1, 0')
                        a(f's_cmp_ge_u32 s{G_NXT}, {NSEG}')
                        a(f's_cselect_b32 s{G_NOK}, 0, s{G_NOK}')
                        a(f's_cmp_eq_u32 s{G_NOK}, 0')
                        a(f's_cselect_b32 s{G_KMO}, s{G_OAO}, s{G_KMO}')
                    ldA(m % 64, G_OAO if m < 64 else G_KMO)
                    if n == FL:
                        if self.sync: a(f'buffer_load_dword v{V_FR}, v{V_FP}, {WS}, s{G_FSO} offen sc1')
                        else: a(f'buffer_load_dword v{V_T1}, v{V_FP}, {WS}, s{G_FSO} offen sc1'); a(f'v_mov_b32 v{V_FR}, 127')
            if t >= 48 and t < 63: ldW(t - 48 + 1)
        self.acc(1)
        a('s_barrier')
        for b in range(8): a(f'ds_write_b128 v{V_RW}, {vr(V_AC+4*b,4)} offset:{b*1024}')
        a('s_waitcnt lgkmcnt(0)')
        a('s_barrier')
        for h in range(2):
            for w in range(4): a(f'ds_read_b128 {vr(V_AC+16*h+4*w,4)}, v{V_RR} offset:{h*4096+w*8192}')
        for h in range(2):
            R = V_AC + 16 * h
            a(f's_waitcnt lgkmcnt({4-4*h})')
            for j in (0, 2): a(f'v_pk_add_f32 {vr(R+j,2)}, {vr(R+j,2)}, {vr(R+4+j,2)}')
            for j in (0, 2): a(f'v_pk_add_f32 {vr(R+8+j,2)}, {vr(R+8+j,2)}, {vr(R+12+j,2)}')
            for j in (0, 2): a(f'v_pk_add_f32 {vr(R+j,2)}, {vr(R+j,2)}, {vr(R+8+j,2)}')
            for j in range(2): a(f'v_cvt_pk_bf16_f32 v{V_LW+8+2*h+j}, v{R+2*j}, v{R+2*j+1}')
            a(f'buffer_store_dwordx2 {vr(V_LW+8+2*h,2)}, v{V_OUT}, s[{G_OUT}:{G_OUT+3}], s{G_OUO} offen offset:{h*64}{self.ost}')
        self.acc(2)
        a(f's_mov_b32 s{G_SEG}, s{G_NXT}')
        a(f's_mov_b32 s{G_OAO}, s{G_KMO}')
        a(f's_cmp_lg_u32 s{G_NOK}, 0')
        a(f's_cbranch_scc1 {lgo}')
        a(f's_cmp_lt_u32 s{G_SEG}, {NSEG}')
        a(f's_cbranch_scc1 {lp}')
        self.mark(5)
        a(f's_branch {LNEXT}')
```

```python
from asmlib import *
from layout import *
import math, struct

def srd(a, s, ptr, nbytes):
    a(f's_mov_b32 s{s}, s{ptr}')
    a(f's_and_b32 s{s+1}, s{ptr+1}, 0xffff')
    a(f's_mov_b32 s{s+2}, {nbytes}')
    a(f's_mov_b32 s{s+3}, 0x00020000')

def lane(a, dst, tmp, VL, terms, add=None):
    first = True
    for sh, w, out in terms:
        t = dst if first else tmp
        if sh + w >= 6: a(f'v_lshrrev_b32 v{t}, {sh}, v{VL}')
        elif sh == 0: a(f'v_and_b32 v{t}, {(1 << w) - 1}, v{VL}')
        else: a(f'v_bfe_u32 v{t}, v{VL}, {sh}, {w}')
        if first:
            if out: a(f'v_lshlrev_b32 v{dst}, {out}, v{dst}')
        else: a(f'v_lshl_add_u32 v{dst}, v{tmp}, {out}, v{dst}')
        first = False
    if add is not None: a(f'v_add_u32 v{dst}, {add}, v{dst}')

def sexpr(a, dst, tmp, terms, const=0):
    first = True
    for sreg, sh, w, out in terms:
        t = dst if first else tmp
        src = sreg
        if sh: a(f's_lshr_b32 s{t}, s{src}, {sh}'); src = t
        if w is not None: a(f's_and_b32 s{t}, s{src}, {(1 << w) - 1}'); src = t
        if out: a(f's_lshl_b32 s{t}, s{src}, {out}'); src = t
        if first:
            if src != dst: a(f's_mov_b32 s{dst}, s{src}')
        else: a(f's_add_u32 s{dst}, s{dst}, s{src}')
        first = False
    if const: a(f's_add_u32 s{dst}, s{dst}, {const}')

S_PFL = 3
S_WS = 4
S_WQ = 8
S_WO = 20
S_M0 = 24
S_RID, S_H, S_I, S_W, S_STEP = 28, 29, 30, 31, 32
S_SL0, S_SL1, S_SL2 = 33, 34, 35
S_SC, S_KV = 36, 37
S_T0, S_T1, S_T2 = 38, 39, 40
S_SPIN = 41
S_MLO8 = 42
S_MHI = 44
S_MHI8 = 46
S_PAR = 48
S_HB = 49
S_C = 50
S_KXB = 51
S_TS = 52
S_TAG = 54
S_MBO = 55
S_MK = 56
S_PTR = 72
S_NSO = 88
S_WSP = 90
S_DBG = 92
S_SEEN, S_FKV, S_FAST, S_FRO = 94, 95, 96, 97
S_NSI, S_NBO, S_NBI = 89, 98, 99

L_QK = 0
L_V = 10240
L_OP = 14336
L_X = 15360
L_KX = 16384

def gen_rec(a, prof=0, nsteps=NSEG, sync=False, DA=1, DB=2, DC=0, PLAINB=1, TPOS=1, TA=0, NEAR=1, ILA=4, ILC=4, SEP=0, ROT=0, OMAP=0, RDYP=26, MIX=0, TW=1, KC=2, KA=1, CJ=3, LB=1, RING=0, ASY=1, NSP=0, ZD=0, XP=0):
    V_L, V_T0, V_T1, V_T2 = 1, 2, 3, 4
    V_IDX = 5
    V_MEMST, V_AOFF, V_COFF, V_COFF2 = 6, 7, 12, 13
    V_FF = 8
    V_QKW, V_QKW2, V_L16, V_VW, V_QKR, V_SCST, V_SCST2, V_SCLM = 14, 15, 16, 17, 18, 19, 20, 21
    V_SCL = [22, 23, 24]
    V_VR, V_VR2, V_OST, V_OPW, V_OPR, V_PFG, V_CK = 25, 26, 27, 28, 29, 30, 31
    V_ONE = 32
    V_MA = 36
    V_VX, V_KX = 52, 60
    V_D = 68
    V_S = 68
    V_PTG, V_NSA, V_SCCL, V_OCL = 92, 93, 94, 95
    V_X = 96
    V_R = 100
    V_TKST, V_TKSA, V_TG, V_M, V_M2 = 132, 133, 134, 135, 136
    V_VM = 138
    V_ZZ = 144
    V_TR = 148
    V_P = 156
    V_LD = 164
    V_NS = 180
    V_GQ, V_GO, V_TRQ, V_TRO = 184, 185, 186, 187
    V_FRA, V_NBA = 137, 26
    V_NB = 188
    V_FRV = V_NB
    V_CK2 = 4
    TRMAP = {0: 0, 2: 1, 5: 3, 8: 4, 10: 5, 'b': 2, 7: 6, 11: 7}
    TSR = [8, 10, 12, 14, 16, 18, 58, 20, 22, 24, 26, 56]
    def ts(k):
        if prof != 3: return
        r = 56 if k == 0 else (58 if k == 'o' else 8 + 2 * k)
        a(f's_memtime s[{r}:{r+1}]')
    def harvest():
        if prof != 3: return
        a('s_waitcnt lgkmcnt(0)')
        lh = a.newlabel('hv')
        a(f's_cmp_le_u32 s{S_STEP}, 3')
        a(f's_cbranch_scc1 {lh}')
        for k in range(1, 12):
            a(f's_sub_u32 s{S_TS}, s{TSR[k]}, s{TSR[k-1]}')
            a(f'v_readlane_b32 s{S_TS+1}, v{V_TR+1}, {k}')
            a(f's_add_u32 s{S_TS}, s{S_TS}, s{S_TS+1}')
            a(f'v_writelane_b32 v{V_TR+1}, s{S_TS}, {k}')
        a.label(lh)
        a('s_mov_b32 s8, s56')
    def stamp(k):
        if prof not in (1, 2): return
        e = TRMAP[k]
        if prof == 2 and k not in (5, 10, 7, 11): return
        lsk = a.newlabel('st')
        a(f's_cmp_eq_u32 s{S_W}, 3')
        a(f's_cbranch_scc1 {lsk}')
        a(f's_memrealtime s[{S_TS}:{S_TS+1}]')
        a('s_waitcnt lgkmcnt(0)')
        if k in (10, 11):
            a(f's_sub_u32 s{S_TS+1}, s{S_STEP}, 1')
            a(f's_mov_b32 m0, s{S_TS+1}')
        else:
            a(f's_mov_b32 m0, s{S_STEP}')
        a(f's_lshl_b32 s{S_TS}, s{S_TS}, 8')
        a(f's_and_b32 s{S_TS+1}, s{S_SPIN}, 0xff')
        a(f's_or_b32 s{S_TS}, s{S_TS}, s{S_TS+1}')
        a(f'v_writelane_b32 v{V_TR+e}, s{S_TS}, m0')
        a.label(lsk)
    def pmark(e):
        if prof == 5:
            if e in (2, 3, 7, 0):
                a(f's_memrealtime s[{S_TS}:{S_TS+1}]')
                a('s_waitcnt lgkmcnt(0)')
                a(f'v_mov_b32 v{V_TR}, s{S_TS}'); a(f'v_mov_b32 v{V_TR+1}, 0')
                a('s_mov_b64 exec, 1')
                a(f'global_atomic_umax v{V_TR+1}, v{V_TR}, s[{S_DBG}:{S_DBG+1}] offset:{4*{2: 1, 3: 2, 7: 3, 0: 4}[e]} sc1')
                a('s_mov_b64 exec, -1')
            return
        if not prof: return
        a(f's_memrealtime s[{S_TS}:{S_TS+1}]')
        a('s_waitcnt lgkmcnt(0)')
        a(f's_lshl_b32 s{S_TS}, s{S_TS}, 8')
        a(f'v_writelane_b32 v{V_TR+e}, s{S_TS}, 63')
    def L(dst, terms, add=None): lane(a, dst, V_T2, V_L, terms, add)
    def S(dst, terms, const=0): sexpr(a, dst, S_T2, terms, const)
    def spin_guard(lgive):
        a(f's_add_u32 s{S_SPIN}, s{S_SPIN}, 1')
        a(f's_cmp_ge_u32 s{S_SPIN}, 0x80000')
        a(f's_cbranch_scc1 {lgive}')
    def keep(reg, cond):
        a(cond)
        a(f'v_mov_b32 v{V_T2}, {OOB}')
        a(f'v_cndmask_b32 v{reg}, v{V_T2}, v{reg}, vcc')

    P = S_PTR
    a(f's_load_dwordx2 s[{P}:{P+1}], s[0:1], {K_MEM0}')
    a(f's_load_dwordx4 s[{P+4}:{P+7}], s[0:1], {K_WQ}')
    a(f's_load_dwordx4 s[{P+8}:{P+11}], s[0:1], {K_WV}')
    a(f's_load_dwordx2 s[{S_WSP}:{S_WSP+1}], s[0:1], {K_WS}')
    a(f's_load_dwordx2 s[{S_DBG}:{S_DBG+1}], s[0:1], {K_DBG}')
    a(f'v_and_b32 v{V_L}, 63, v0')
    a(f'v_lshrrev_b32 v{V_T0}, 6, v0')
    a(f'v_readfirstlane_b32 s{S_W}, v{V_T0}')
    a(f's_lshr_b32 s{S_H}, s{S_RID}, 2')
    a(f's_and_b32 s{S_I}, s{S_RID}, 3')
    a(f's_mov_b32 s{S_SPIN}, 0')
    if prof: a('s_mov_b32 s100, 0'); a('s_mov_b32 s101, 0')
    a('s_waitcnt lgkmcnt(0)')
    srd(a, S_M0, P, 16384)
    srd(a, S_WQ, P + 4, 8 * MB)
    srd(a, S_WQ + 4, P + 6, 8 * MB)
    srd(a, S_WQ + 8, P + 8, 8 * MB)
    srd(a, S_WO, P + 10, 8 * MB)
    srd(a, S_WS, S_WSP, WS_BYTES)
    WS = f's[{S_WS}:{S_WS+3}]'
    a(f's_sub_u32 s{S_HB}, 0, s{S_WSP}')
    a(f's_and_b32 s{S_HB}, s{S_HB}, {2*MB-1}')
    a(f's_add_u32 s{S_HB}, s{S_HB}, {HOFF}')

    if prof:
        for e in range(8): a(f'v_mov_b32 v{V_TR+e}, 0')
    lsk = a.newlabel('rec_cal')
    a(f's_mov_b32 s{S_PAR}, 1')
    a(f's_cmp_lg_u32 s{S_W}, 3')
    a(f's_cbranch_scc1 {lsk}')
    S(S_T0, [(S_RID, 0, 3, 21), (S_RID, 3, 1, 13), (S_RID, 4, 3, 8), (S_HB, 0, None, 0)], 15 * 16384)
    S(S_T1, [(S_RID, 3, 1, 14)])
    a(f's_sub_u32 s{S_T1}, s{S_T0}, s{S_T1}')
    a(f's_add_u32 s{S_T1}, s{S_T1}, 8192')
    a(f's_load_dword s{P+8}, s[{S_WSP}:{S_WSP+1}], s{S_T0} glc')
    a(f's_load_dword s{P+9}, s[{S_WSP}:{S_WSP+1}], s{S_T1} glc')
    for k in range(2):
        a('s_waitcnt lgkmcnt(0)')
        a(f's_memtime s[{P+4}:{P+5}]')
        a('s_waitcnt lgkmcnt(0)')
        a(f's_load_dword s{P+8}, s[{S_WSP}:{S_WSP+1}], s{S_T0+k} glc')
        a('s_waitcnt lgkmcnt(0)')
        a(f's_memtime s[{P+6}:{P+7}]')
        a('s_waitcnt lgkmcnt(0)')
        a(f's_sub_u32 s{P+k}, s{P+6}, s{P+4}')
    a(f's_cmp_lt_u32 s{P+1}, s{P}')
    a(f's_cselect_b32 s{S_T0}, 1, 0')
    a(f's_lshr_b32 s{S_T1}, s{S_RID}, 3')
    a(f's_xor_b32 s{S_T0}, s{S_T0}, s{S_T1}')
    a(f's_xor_b32 s{S_T0}, s{S_T0}, s{S_RID}')
    S(S_PAR, [(S_T0, 0, 1, 16)], 1)
    a.label(lsk)
    pmark(2)
    S(S_T0, [(S_W, 0, None, 21), (S_RID, 0, None, 6)])
    L(V_GQ, [(2, 4, 13), (0, 2, 4)], f's{S_T0}')
    S(S_T0, [(S_W, 0, None, 21), (S_RID, 1, None, 5)])
    L(V_GO, [(1, 5, 11), (0, 1, 4)], f's{S_T0}')
    S_LB = S_SL0
    a(f's_lshl_b32 s{S_LB}, s{S_W}, 15')
    L(V_TRQ, [(4, 2, 9), (2, 2, 6), (0, 2, 3)], f's{S_LB}')
    L(V_TRO, [(4, 2, 8), (2, 2, 5), (0, 2, 3)], f's{S_LB}')
    pairs = []
    def wq_reg(kb, tile): return ('a', (kb * 6 + tile) * 8)
    def wo_reg(kb):
        return ('a', 192 + kb * 8) if kb < 8 else ('v', 192 + (kb - 8) * 8)
    for kb in range(4):
        for hf32 in range(2):
            for m in range(3):
                k0 = kb * 64 + hf32 * 32
                ld = [(S_WQ + 4 * m, V_GQ, (k0 + 16 * j) * 8192) for j in range(2)]
                rd = []
                for t in range(2):
                    f, b = wq_reg(kb, m * 2 + t)
                    for q in range(2):
                        r0 = b + hf32 * 4 + q * 2
                        rd.append((f'{f}[{r0}:{r0+1}]', V_TRQ, t * 32 + q * 256))
                pairs.append((ld, rd))
    NW = 0
    wop = []
    for kb in range(16):
        ld = [(S_WO, V_GO, (kb * 64 + 32 * j) * 2048) for j in range(2)]
        rd = []
        f, b = wo_reg(kb)
        for j in range(2):
            for q in range(2):
                r0 = b + j * 4 + q * 2
                rd.append((f'{f}[{r0}:{r0+1}]', V_TRO, j * 1024 + q * 128))
        wop.append((ld, rd))
    mix = []
    for g in range(8): mix += [wop[2*g], pairs[3*g], pairs[3*g+1], wop[2*g+1], pairs[3*g+2]]
    pairs = mix if MIX else pairs + wop
    NSL = 16
    def issue(p):
        ld, _ = pairs[p]
        for j, (sd, vo, so) in enumerate(ld):
            a(f's_add_u32 m0, s{S_LB}, {(p % NSL) * 2048 + j * 1024}')
            a(f's_mov_b32 s{S_T0}, {so}')
            a(f'buffer_load_dwordx4 v{vo}, s[{sd}:{sd+3}], s{S_T0} offen lds')
    issued = 0
    FB = NSL if NW else 6
    for p in range(FB):
        issue(p); issued += 1
    L(V_T0, [(1, 1, 0)])
    a(f'v_mov_b32 v{V_T1}, 0xaaaa')
    a(f'v_mul_u32_u24 v{V_T0}, v{V_T0}, v{V_T1}')
    a(f'v_add_u32 v{V_IDX}, 0x4444, v{V_T0}')
    a(f'v_lshlrev_b32 v{V_L16}, 4, v{V_L}')
    BLK = 16384
    S(S_T0, [(S_RID, 6, None, 14), (S_RID, 0, 6, 7)], 8 * BLK)
    a(f'v_lshl_add_u32 v{V_MEMST}, v{V_L}, 2, s{S_T0}')
    S(S_T0, [(S_W, 1, None, 14), (S_W, 0, 1, 12)], 8 * BLK)
    a(f'v_add_u32 v{V_AOFF}, s{S_T0}, v{V_L16}')
    S(S_T0, [(S_RID, 0, 1, 16), (S_W, 0, None, 14)])
    a(f'v_add_u32 v{V_COFF}, s{S_T0}, v{V_L16}')
    a(f'v_add_u32 v{V_COFF2}, 4096, v{V_COFF}')
    a(f'v_lshrrev_b32 v{V_T0}, 4, v{V_L}')
    a(f'v_mul_u32_u24 v{V_T0}, 320, v{V_T0}')
    a(f'v_and_b32 v{V_T1}, 15, v{V_L}')
    a(f'v_lshl_add_u32 v{V_T0}, v{V_T1}, 2, v{V_T0}')
    a(f's_mul_i32 s{S_T0}, s{S_W}, 2560')
    a(f'v_add_u32 v{V_QKW}, s{S_T0}, v{V_T0}')
    a(f'v_add_u32 v{V_QKW2}, 1280, v{V_QKW}')
    S(S_T0, [(S_W, 0, None, 10)], L_V)
    a(f'v_add_u32 v{V_VW}, s{S_T0}, v{V_L16}')
    L(V_T0, [(0, 2, 1), (2, 1, 0)], 8)
    a(f'v_and_b32 v{V_T1}, 15, v{V_L}')
    a(f'v_cmp_gt_u32 vcc, 8, v{V_T1}')
    a(f'v_cndmask_b32 v{V_T1}, v{V_T0}, v{V_T1}, vcc')
    a(f'v_mul_u32_u24 v{V_T1}, 160, v{V_T1}')
    L(V_T0, [(5, 1, 6), (4, 1, 4)])
    a(f'v_add_u32 v{V_QKR}, v{V_T0}, v{V_T1}')
    a(f's_lshl_b32 s{S_T0}, s{S_RID}, 11')
    a(f'v_add_u32 v{V_SCST}, s{S_T0}, v{V_L16}')
    L(V_SCST2, [(4, 1, 7), (0, 3, 4)], f's{S_T0}')
    for k in range(3):
        a(f's_add_u32 s{S_T1}, s{S_I}, {k+1}')
        S(S_T0, [(S_T1, 0, 2, 11), (S_H, 0, None, 13)])
        a(f'v_add_u32 v{V_SCL[k]}, s{S_T0}, v{V_L16}')
    a(f's_lshl_b32 s{S_T0}, s{S_H}, 13')
    L(V_SCLM, [(4, 2, 11), (0, 4, 4)], f's{S_T0}')
    E0 = [(3, 1, 8), (1, 1, 6), (2, 1, 5), (0, 1, 4)]
    L(V_VR, [(4, 2, 8), (3, 1, 3)] + E0[1:], L_V)
    S(S_T0, [(S_RID, 0, None, 11), (S_W, 0, 1, 7)], PA + PA_M)
    L(V_T0, [(3, 1, 8), (0, 3, 4), (4, 1, 9), (5, 1, 10)], f's{S_T0}')
    a(f's_add_u32 s{S_T0}, s{S_T0}, {PA_M}')
    L(V_T1, E0 + [(4, 1, 9), (5, 1, 10)], f's{S_T0}')
    a(f's_cmp_lt_u32 s{S_W}, 2')
    a(f's_cselect_b64 vcc, -1, 0')
    a(f'v_cndmask_b32 v{V_PFG}, v{V_T1}, v{V_T0}, vcc')
    a(f's_lshl_b32 s{S_PFL}, s{S_W}, 10')
    S(S_T0, [(S_H, 3, None, 14), (S_H, 0, 3, 10), (S_I, 0, 1, 9), (S_I, 1, None, 7)])
    L(V_OST, [(2, 1, 16), (5, 1, 8), (1, 1, 6), (4, 1, 5), (0, 1, 4)], f's{S_T0}')
    S(S_T1, [(S_W, 1, None, 16), (S_W, 0, 1, 8), (S_T0, 0, None, 0)])
    a(f'v_add_u32 v{V_OCL}, s{S_T1}, v{V_L16}')
    keep(V_OCL, f'v_cmp_gt_u32 vcc, 8, v{V_L}')
    S(S_T0, [(S_W, 0, None, 8)], L_OP)
    a(f'v_lshl_add_u32 v{V_OPW}, v{V_L}, 2, s{S_T0}')
    L(V_OPR, [(2, 1, 7), (4, 1, 6), (0, 2, 4), (3, 1, 3)], L_OP)
    a(f's_mul_i32 s{S_T1}, s{S_W}, 320')
    S(S_T0, [(S_RID, 0, None, 11), (S_T1, 0, None, 0)])
    a(f'v_add_u32 v{V_SCCL}, s{S_T0}, v{V_L16}')
    keep(V_SCCL, f'v_cmp_gt_u32 vcc, 20, v{V_L}')
    a(f's_mul_i32 s{S_T0}, s{S_W}, 3')
    a(f'v_min_u32 v{V_T0}, 2, v{V_L}')
    a(f'v_add_u32 v{V_T0}, s{S_T0}, v{V_T0}')
    a(f'v_min_u32 v{V_T0}, 9, v{V_T0}')
    S(S_T0, [(S_RID, 0, None, 11)], 128 * 2048)
    a(f'v_lshl_add_u32 v{V_PTG}, v{V_T0}, 7, s{S_T0}')
    lw = a.newlabel('rec_ns')
    a(f's_lshl_b32 s{S_T0}, s{S_RID}, 9')
    L(V_NSA, [(4, 2, 7), (0, 2, 5), (2, 1, 4)], f's{S_T0}')
    a('s_mov_b32 vcc_lo, 0xff00ff00'); a('s_mov_b32 vcc_hi, 0xff00ff00')
    a(f's_cmp_eq_u32 s{S_W}, 1')
    a(f's_cbranch_scc1 {lw}')
    a(f's_add_u32 s{S_T0}, s{S_T0}, {VM - KM}')
    a(f'v_add_u32 v{V_NSA}, s{S_T0}, v{V_L16}')
    a('s_mov_b32 vcc_lo, -1'); a('s_mov_b32 vcc_hi, 0')
    a(f's_cmp_eq_u32 s{S_W}, 2')
    a(f's_cbranch_scc1 {lw}')
    S(S_T0, [(S_RID, 6, None, 14), (S_RID, 0, 6, 7)], 8 * BLK)
    a(f'v_add_u32 v{V_NSA}, s{S_T0}, v{V_L16}')
    a(f's_cmp_eq_u32 s{S_W}, 3')
    a('s_cselect_b32 vcc_lo, 0xff, 0')
    a.label(lw)
    keep(V_NSA, 's_nop 0')
    for j in range(4): a(f'v_mov_b32 v{V_ONE+j}, 0x3f803f80')
    for j in range(4): a(f'v_mov_b32 v{V_FF+j}, -1')
    for j in range(4): a(f'v_mov_b32 v{V_ZZ+j}, 0')
    for j in range(4): a(f'v_mov_b32 v{V_NS+j}, 0')
    for j in range(5, 8): a(f'v_mov_b32 v{V_P+j}, 0')
    for j in range(6): a(f'v_mov_b32 v{V_VM+j}, 0')
    a(f's_mov_b32 s{S_MLO8}, 0x00ff00ff'); a(f's_mov_b32 s{S_MLO8+1}, 0x00ff00ff')
    a(f's_mov_b32 s{S_MHI}, 0'); a(f's_mov_b32 s{S_MHI+1}, -1')
    a(f's_mov_b32 s{S_MHI8}, 0'); a(f's_mov_b32 s{S_MHI8+1}, 0x00ff00ff')
    c = (128 ** -0.5) * math.log2(math.e)
    a(f's_mov_b32 s{S_C}, 0x{struct.unpack("<I", struct.pack("<f", c))[0]:08x}')
    a(f's_mov_b32 s{S_SC}, {SCB}')
    a(f's_mov_b32 s{S_KV}, 0')
    a(f's_mov_b32 s{S_STEP}, 0')
    a(f's_mov_b32 s{S_KXB}, {L_KX}')
    a(f's_mov_b32 s{S_TAG}, 1')
    a(f's_min_u32 s{S_T0}, s{S_W}, 1')
    a(f's_add_u32 s{S_T0}, s{S_T0}, 1')
    a(f'v_mov_b32 v{V_TG}, s{S_T0}')

    S(S_FKV, [(S_H, 0, None, 7), (S_W, 1, None, 2)], FLG + F_SLA + 4)
    S(S_FRO, [(S_H, 0, None, 7)], FLG + F_REC)
    S(S_T0, [(S_I, 0, None, 4), (S_FRO, 0, None, 0)])
    a(f'v_mov_b32 v{V_FRA}, s{S_T0}')
    a(f's_cmp_eq_u32 s{S_W}, 2')
    keep(V_FRA, 's_cselect_b64 vcc, 1, 0')
    a(f's_mov_b32 s{S_SEEN}, 0')
    def wait_kv(target):
        if not sync: return
        lp = a.newlabel('rec_kv'); ld = a.newlabel('rec_kvd')
        a(f's_cmp_gt_u32 s{S_SEEN}, {target}')
        a(f's_cbranch_scc0 {lp}')
        a.label(ld)
        def tl():
            a.label(lp)
            a(f's_load_dword s{S_SEEN}, s[{S_WSP}:{S_WSP+1}], s{S_FKV} glc')
            spin_guard(ld)
            a('s_waitcnt lgkmcnt(0)')
            a(f's_cmp_gt_u32 s{S_SEEN}, {target}')
            a(f's_cbranch_scc1 {ld}')
            a('s_sleep 2')
            a(f's_branch {lp}')
        tails.append(tl)
    tails = []
    for par in range(2):
        for sl in range(2):
            a(f's_add_u32 s{S_T0}, s{S_HB}, {par*8192 + sl*SLOT}')
            a(f'buffer_store_dwordx4 {vr(V_ZZ,4)}, v{V_OCL}, {WS}, s{S_T0} offen sc1')
    a(f'buffer_store_dwordx4 {vr(V_FF,4)}, v{V_SCCL}, {WS}, s{S_SC} offen sc1')
    a(f'v_add_u32 v{V_SCCL}, {128*2048}, v{V_SCCL}')
    a(f'buffer_store_dwordx4 {vr(V_FF,4)}, v{V_SCCL}, {WS}, s{S_SC} offen sc1')
    a(f'v_add_u32 v{V_SCCL}, {128*2048}, v{V_SCCL}')
    a(f'buffer_store_dwordx4 {vr(V_FF,4)}, v{V_SCCL}, {WS}, s{S_SC} offen sc1')
    a(f'buffer_store_dword v{V_ZZ}, v{V_FRA}, {WS}, 0 offen sc1')
    a(f's_getreg_b32 s{S_T0}, hwreg(HW_REG_XCC_ID)')
    a(f'v_mov_b32 v{V_T0}, s{S_T0}')
    a(f'buffer_store_dword v{V_T0}, v{V_FRA}, {WS}, 0 offen offset:64 sc1')
    l3 = a.newlabel('rec_i3')
    a(f's_cmp_lg_u32 s{S_W}, 3')
    a(f's_cbranch_scc1 {l3}')
    for par in range(2):
        a(f's_add_u32 s{S_T0}, s{S_HB}, {par*8192 + SLOT}')
        a(f'buffer_store_dwordx4 {vr(V_ZZ,4)}, v{V_NSA}, {WS}, s{S_T0} offen sc1')
    S(S_T1, [(S_RID, 5, None, 14), (S_RID, 0, 5, 8), (S_HB, 0, None, 0)], 10 * BLK)
    a('s_mov_b64 exec, 0xffff')
    for par in range(2):
        a(f's_add_u32 s{S_T0}, s{S_T1}, {par*8192}')
        a(f'buffer_store_dwordx4 {vr(V_ZZ,4)}, v{V_L16}, {WS}, s{S_T0} offen sc1')
    a('s_mov_b64 exec, -1')
    a.label(l3)
    a(f's_lshl_b32 s{S_T0}, s{S_W}, 9')
    L(V_T0, [(2, 2, 12), (0, 1, 11), (4, 2, 5), (1, 1, 2)], f's{S_T0}')
    for c in range(4):
        for p in range(4):
            a(f'buffer_load_dword v{V_MA+4*c+p}, v{V_T0}, s[{S_M0}:{S_M0+3}], 0 offen offset:{c*128+p*8}')
    for p in range(FB, NSL):
        issue(p); issued += 1
    for p in range(NW, len(pairs)):
        a(f's_waitcnt vmcnt({min(63, 2 * (issued - p - 1) + ((40 if NW else 24) if p < FB else 0))})')
        if p == FB:
            lar = a.newlabel('rec_arr')
            a('s_barrier')
            pmark(1)
            a(f's_cmp_lg_u32 s{S_W}, 3')
            a(f's_cbranch_scc1 {lar}')
            a(f'v_mov_b32 v{V_T0}, 0')
            a(f'v_mov_b32 v{V_T1}, s{S_PAR}')
            a('s_mov_b64 exec, 1')
            a(f'global_atomic_add v{V_T0}, v{V_T1}, s[{S_DBG}:{S_DBG+1}] offset:{4*D_INIT} sc1')
            a('s_mov_b64 exec, -1')
            a.label(lar)
        if p == RDYP and sync:
            lar = a.newlabel('rec_rdy')
            a(f's_cmp_lg_u32 s{S_W}, 0')
            a(f's_cbranch_scc1 {lar}')
            a(f'v_mov_b32 v{V_T0}, 0')
            a(f'v_mov_b32 v{V_T1}, 1')
            a('s_mov_b64 exec, 1')
            a(f'global_atomic_add v{V_T0}, v{V_T1}, s[{S_DBG}:{S_DBG+1}] offset:{4*D_RDY} sc1')
            a('s_mov_b64 exec, -1')
            a.label(lar)
        for dst, va, off in pairs[p][1]:
            a(f'ds_read_b64_tr_b16 {dst}, v{va} offset:{(p % NSL) * 2048 + off}')
        if p >= NW + 1 and issued < len(pairs):
            a('s_waitcnt lgkmcnt(4)')
            issue(issued); issued += 1
    a('s_waitcnt lgkmcnt(0)')

    pmark(3)
    for j in range(16): a(f'v_max_u32 v{V_MA+j}, 1, v{V_MA+j}')
    for j in range(24): a(f'v_mov_b32 v{V_D+j}, 0')
    for j in range(16): a(f's_mov_b32 s{P+j}, 0')
    lb = a.newlabel('rec_ib'); lbp = a.newlabel('rec_ibp'); lbq = a.newlabel('rec_ibq')
    a(f'v_mov_b32 v{V_T0}, 0')
    a(f's_branch {lbq}')
    a.label(lbp)
    a('s_sleep 16')
    a.label(lbq)
    a(f'global_load_dword v{V_T1}, v{V_T0}, s[{S_DBG}:{S_DBG+1}] offset:{4*D_INIT} sc1')
    spin_guard(lb)
    a('s_waitcnt vmcnt(0)')
    a(f'v_readfirstlane_b32 s{S_T0}, v{V_T1}')
    a(f's_and_b32 s{S_T1}, s{S_T0}, 0xffff')
    a(f's_cmp_lt_u32 s{S_T1}, {NWG if sync else 128}')
    a(f's_cbranch_scc1 {lbp}')
    a.label(lb)
    a(f's_cmp_ge_u32 s{S_T0}, {(64 << 16) if NEAR else 0x7fffffff}')
    a(f's_cselect_b32 s{S_PAR}, -1, 0')
    a(f's_xor_b32 s{S_PAR}, s{S_PAR}, 0xaaa')
    pmark(4)
    S(S_SL0, [(S_PAR, 0, 1, 13), (S_HB, 0, None, 0)])
    a(f's_add_u32 s{S_SL1}, s{S_SL0}, {SLOT}')
    a(f's_add_u32 s{S_SL2}, s{S_SL0}, {2*SLOT}')
    S(S_T0, [(S_RID, 5, None, 4), (S_I, 0, None, 14), (S_SL0, 0, None, 0)], 10 * BLK)
    L(V_TKST, [(0, 5, 8)], f's{S_T0}')
    a(f's_and_b32 s{S_T1}, s{S_H}, { {4: 7, 2: 23, 1: 31}[KC] }')
    a(f's_cmp_eq_u32 s{S_T1}, {CJ}')
    a('s_mov_b32 vcc_hi, 0')
    keep(V_TKST, 's_cselect_b32 vcc_lo, -1, 0')
    a(f'v_add_u32 v{V_TKSA}, 128, v{V_TKST}')
    a(f's_and_b32 s{S_T1}, s{S_H}, { {4: 7, 2: 23, 1: 31}[KA] }')
    a(f's_cmp_eq_u32 s{S_T1}, {CJ}')
    a(f's_cselect_b32 s{S_T1}, s{S_W}, 99')
    a(f's_cmp_eq_u32 s{S_T1}, {TW}')
    keep(V_TKSA, 's_cselect_b64 vcc, -1, 0')
    S(S_MBO, [(S_RID, 5, None, 14), (S_RID, 0, 5, 8), (S_SL0, 0, None, 0)], 10 * BLK)
    a(f's_add_u32 s{S_MHI}, s{S_MBO}, 128')
    lq = a.newlabel('rec_gs'); lq1 = a.newlabel('rec_gs1'); lq2 = a.newlabel('rec_gs2'); lq3 = a.newlabel('rec_gs3')
    a(f'v_mov_b32 v{V_NBA}, {OOB}')
    a(f's_mov_b32 s{S_NBO}, 0'); a(f's_mov_b32 s{S_NBI}, 0')
    a(f's_mov_b32 s{S_NSO}, {KM}'); a(f's_mov_b32 s{S_NSI}, 65536')
    for j in range(4): a(f'v_mov_b32 v{V_NB+j}, 0')
    a(f's_cmp_eq_u32 s{S_W}, 1'); a(f's_cbranch_scc1 {lq1}')
    a(f's_cmp_eq_u32 s{S_W}, 2'); a(f's_cbranch_scc1 {lq2}')
    a(f's_cmp_eq_u32 s{S_W}, 3'); a(f's_cbranch_scc1 {lq3}')
    a(f'v_mov_b32 v{V_NSA}, v{V_SCST}')
    for j in range(4): a(f'v_mov_b32 v{V_NS+j}, -1')
    a(f's_mov_b32 s{S_NSO}, {SCB + 3*128*2048}'); a(f's_mov_b32 s{S_NSI}, {128*2048}')
    a(f's_branch {lq}')
    a.label(lq1)
    a(f'v_mov_b32 v{V_NBA}, v{V_SCST}')
    keep(V_NBA, 's_mov_b64 vcc, 0xffff')
    for j in range(4): a(f'v_mov_b32 v{V_NB+j}, -1')
    a(f's_mov_b32 s{S_NBO}, {SCB + 3*128*2048 + 1024}'); a(f's_mov_b32 s{S_NBI}, {128*2048}')
    a(f's_branch {lq}')
    a.label(lq2)
    a(f'v_mov_b32 v{V_NBA}, v{V_FRA}')
    a(f's_branch {lq}')
    a.label(lq3)
    S(S_T0, [(S_H, 3, None, 14), (S_H, 0, 3, 10), (S_I, 0, 1, 9), (S_I, 1, None, 7)])
    L(V_T0, [(4, 1, 16), (3, 1, 8), (0, 3, 4)], f's{S_T0}')
    a('s_mov_b32 vcc_lo, 0'); a('s_mov_b32 vcc_hi, -1')
    a(f'v_cndmask_b32 v{V_NSA}, v{V_NSA}, v{V_T0}, vcc')
    a(f's_mov_b32 s{S_NSO}, s{S_SL2}')
    a.label(lq)
    a(f's_cmp_eq_u32 s{S_W}, 2')
    a(f's_cselect_b32 s{S_MHI+1}, 1, 0')

    pmark(5)
    a('s_barrier')
    pmark(6)
    a(f's_load_dwordx16 s[{P}:{P+15}], s[{S_WSP}:{S_WSP+1}], s{S_FRO} offset:64 glc')
    a('s_waitcnt lgkmcnt(0)')
    for i in range(1, 4): a(f's_xor_b32 s{P+4*i}, s{P+4*i}, s{P}')
    a(f's_or_b32 s{P+4}, s{P+4}, s{P+8}')
    a(f's_or_b32 s{S_FAST}, s{P+4}, s{P+12}')
    if not PLAINB: a(f's_mov_b32 s{S_FAST}, 1')
    for j in range(16): a(f's_mov_b32 s{P+j}, 0')
    wait_kv(0)
    pmark(7)
    a(f's_add_u32 m0, s{S_KXB}, s{S_PFL}')
    a(f'buffer_load_dwordx4 v{V_PFG}, {WS}, s{S_KV} offen sc1 lds')
    a('s_waitcnt vmcnt(0)')
    a('s_barrier')
    ENTRY = a.newlabel('rec_entry')
    ts(0)
    a(f's_branch {ENTRY}')

    def gather(name, n, load, mf, nacc, noise, ilv, entry=None, pre=None, post=None):
        ok = a.newlabel(name + 'ok'); fix = a.newlabel(name + 'fix')
        def body(first):
            for c in range(n):
                load(c, V_MA + 4 * c)
                if first and ilv and c < n - 1: a(f's_nop {ilv-1}')
            if not first:
                for j in range(0, nacc, 2): a(f'v_mov_b64 {vr(V_D+j,2)}, 0')
            if first and entry: a.label(entry)
            if first and pre: pre()
            iss = 0
            for c in range(n):
                b = V_MA + 4 * c
                a(f's_waitcnt vmcnt({n-1-c+iss})')
                if first and c == 0: ts(1 if n == 4 else 7)
                ms = mf(c)
                if c == 0: seq = [f'v_min_u32 v{V_CK}, v{b}, v{b+1}', f'v_min_u32 v{V_CK2}, v{b+2}, v{b+3}']
                elif c < n - 1: seq = [f'v_min3_u32 v{V_CK}, v{V_CK}, v{b}, v{b+1}', f'v_min3_u32 v{V_CK2}, v{V_CK2}, v{b+2}, v{b+3}']
                else:
                    a(f'v_min3_u32 v{V_CK}, v{V_CK}, v{b}, v{b+1}')
                    seq = [f'v_min3_u32 v{V_CK}, v{V_CK}, v{b+2}, v{b+3}', f'v_cmp_eq_u32 vcc, 0, v{V_CK}']
                if c == n - 2: seq.append(f'v_min_u32 v{V_CK}, v{V_CK}, v{V_CK2}')
                k = 0
                for m in ms:
                    a(m)
                    if k < len(seq): a(seq[k]); k += 1
                while k < len(seq): a(seq[k]); k += 1
                if first and c < len(noise): noise[c](); iss += 1
            if first and post: post()
        body(True)
        a(f's_cbranch_vccnz {fix}')
        a.label(ok)
        def tl():
            a.label(fix)
            if prof: a(f's_add_u32 s{100 if nacc == 16 else 101}, s{100 if nacc == 16 else 101}, 1')
            spin_guard(ok)
            body(False)
            a(f's_cbranch_vccnz {fix}')
            a(f's_branch {ok}')
        tails.append(tl)

    def halves(m):
        b = V_D + 8 * m
        a(f'v_pk_add_f32 {vr(b,2)}, {vr(b,2)}, {vr(b+2,2)}')
        a(f'v_pk_add_f32 {vr(b+2,2)}, {vr(b+4,2)}, {vr(b+6,2)}')
    S_MB2 = S_MHI
    def tpoll(off):
        T = S_PTR
        K = KA if off else KC
        so = S_MB2 if off else S_MBO
        if K == 2: a(f's_load_dwordx8 s[{T}:{T+7}], s[{S_WSP}:{S_WSP+1}], s{so} glc')
        elif K == 4: a(f's_load_dwordx16 s[{T}:{T+15}], s[{S_WSP}:{S_WSP+1}], s{so} glc')
        else: a(f's_load_dword s{T}, s[{S_WSP}:{S_WSP+1}], s{so} glc')
    def tickwait(off, extra):
        lp = a.newlabel('rec_tk'); ld = a.newlabel('rec_tkd'); lc = a.newlabel('rec_tkc')
        T = S_PTR
        K = KA if off else KC
        a(f's_branch {lc}')
        a.label(lp)
        tpoll(off)
        spin_guard(ld)
        a(f's_sleep {TPOS}' if TPOS else 's_nop 7')
        a.label(lc)
        if K == 4:
            a(f's_min_u32 s{S_T0}, s{T}, s{T+4}')
            a(f's_min_u32 s{S_T1}, s{T+8}, s{T+12}')
            a(f's_min_u32 s{S_T0}, s{S_T0}, s{S_T1}')
        elif K == 2: a(f's_min_u32 s{S_T0}, s{T}, s{T+4}')
        else: a(f's_mov_b32 s{S_T0}, s{T}')
        a(f's_cmp_lt_u32 s{S_T0}, s{S_TAG}')
        a(f's_cbranch_scc1 {lp}')
        a.label(ld)
        a(f's_add_u32 s{S_TAG}, s{S_TAG}, 1')
        if extra: a(f's_sleep {extra}')
    def vmfl():
        r = []
        for c in range(4):
            for t in (4, 5):
                f, b = wq_reg(c, t)
                r.append(f'v_smfmac_f32_16x16x64_bf16 {vr(V_D+4*t,4)}, {vr(V_MA+4*c,4)}, {f}[{b}:{b+7}], v{V_IDX}')
        return r
    def vmf():
        for m in vmfl(): a(m)
    def red4(n):
        for j in range(0, n, 2): a(f'v_pk_add_f32 {vr(V_R+j,2)}, {vr(V_R+j,2)}, {vr(V_R+n+j,2)}')
        for j in range(0, n, 2): a(f'v_pk_add_f32 {vr(V_R+2*n+j,2)}, {vr(V_R+2*n+j,2)}, {vr(V_R+3*n+j,2)}')
        for j in range(0, n, 2): a(f'v_pk_add_f32 {vr(V_R+j,2)}, {vr(V_R+j,2)}, {vr(V_R+2*n+j,2)}')

    LOOP = a.newlabel('rec_loop'); DONE = a.newlabel('rec_done')
    a.label(LOOP)
    a('s_barrier')
    stamp(11)
    ts(0)
    def loadA(c, r): a(f'buffer_load_dwordx4 {vr(r,4)}, v{V_AOFF}, {WS}, s{S_SL0} offen offset:{c*1024} sc1')
    def mfA(c):
        r = []
        for t in range(4):
            f, b = wq_reg(c, t)
            r.append(f'v_smfmac_f32_16x16x64_bf16 {vr(V_D+4*t,4)}, {vr(V_MA+4*c,4)}, {f}[{b}:{b+7}], v{V_IDX}')
        return r
    def noiseA():
        a(f'buffer_store_dwordx4 {vr(V_FF,4)}, v{V_SCCL}, {WS}, s{S_SC} offen sc1')
    def preA():
        harvest()
        a(f'v_add_u32 v{V_T0}, s{S_KXB}, v{V_L16}')
        for t in range(2): a(f'ds_read_b128 {vr(V_KX+4*t,4)}, v{V_T0} offset:{t*1024}')
        for t in range(2): a(f'ds_read_b128 {vr(V_VX+4*t,4)}, v{V_T0} offset:{2048+t*1024}')
    gather('rec_ga', 4, loadA, mfA, 16, [], ILA, entry=ENTRY, pre=preA)
    stamp(0)
    ts(2)
    for m in range(2):
        halves(m)
        va = V_QKW if m == 0 else V_QKW2
        a(f'ds_write2_b32 v{va}, v{V_D+8*m}, v{V_D+8*m+1} offset0:0 offset1:40')
        a(f'ds_write2_b32 v{va}, v{V_D+8*m+2}, v{V_D+8*m+3} offset0:16 offset1:56')
    LB2 = a.newlabel('rec_b2'); LW1 = a.newlabel('rec_w1')
    a(f's_cmp_lg_u32 s{S_W}, 0')
    a(f's_cbranch_scc1 {LW1}')
    a('s_waitcnt lgkmcnt(0)')
    a('s_barrier')
    ts(3)
    vm = vmfl()
    for w in range(4):
        for q in range(2):
            a(f'ds_read_b128 {vr(V_R+8*w+4*q,4)}, v{V_QKR} offset:{L_QK+w*2560+q*32}')
            a(vm.pop(0))
    a('s_waitcnt lgkmcnt(4)')
    for j in range(0, 8, 2): a(f'v_pk_add_f32 {vr(V_R+j,2)}, {vr(V_R+j,2)}, {vr(V_R+8+j,2)}')
    a('s_waitcnt lgkmcnt(2)')
    for j in range(0, 8, 2): a(f'v_pk_add_f32 {vr(V_R+j,2)}, {vr(V_R+j,2)}, {vr(V_R+16+j,2)}')
    a('s_waitcnt lgkmcnt(0)')
    for j in range(0, 8, 2): a(f'v_pk_add_f32 {vr(V_R+j,2)}, {vr(V_R+j,2)}, {vr(V_R+24+j,2)}')
    for j in range(4): a(f'v_cvt_pk_bf16_f32 v{V_X+j}, v{V_R+2*j}, v{V_R+2*j+1}')
    a(f'v_mfma_f32_16x16x32_bf16 {vr(V_S,4)}, {vr(V_KX,4)}, {vr(V_X,4)}, 0')
    a(f'v_mfma_f32_16x16x32_bf16 {vr(V_S+4,4)}, {vr(V_KX+4,4)}, {vr(V_X,4)}, 0')
    a(f'v_mfma_f32_16x16x32_bf16 {vr(V_S+8,4)}, {vr(V_X,4)}, {vr(V_X,4)}, 0')
    a(f's_cmp_lg_u32 s{S_FAST}, 0')
    halves(2)
    def scst(f):
        a(f's_mov_b64 exec, s[{S_MLO8}:{S_MLO8+1}]')
        a(f'buffer_store_dwordx4 {vr(V_S,4)}, v{V_SCST}, {WS}, s{S_SC} offen{f}')
        a(f'buffer_store_dwordx4 {vr(V_S+4,4)}, v{V_SCST}, {WS}, s{S_SC} offen offset:128{f}')
        a(f's_mov_b64 exec, s[{S_MHI8}:{S_MHI8+1}]')
        a(f'buffer_store_dwordx4 {vr(V_S+8,4)}, v{V_SCST2}, {WS}, s{S_SC} offen offset:1024{f}')
        a('s_mov_b64 exec, -1')
    lsl = a.newlabel('rec_slow'); lsr = a.newlabel('rec_slowr')
    a(f's_cbranch_scc1 {lsl}')
    scst('')
    a.label(lsr)
    tails.append(lambda: (a.label(lsl), scst(' sc1'), a(f's_branch {lsr}')))
    a(f'ds_write_b128 v{V_VW}, {vr(V_D+16,4)}')
    a(f'ds_write_b128 v{V_L16}, {vr(V_X,4)} offset:{L_X}')
    stamp(2)
    ts(4)
    LBR = a.newlabel('rec_gbr'); LBO = a.newlabel('rec_gbo'); LBW = a.newlabel('rec_gbw')
    V_Q = V_R + 20
    SETS = [V_LD, V_MA]
    def loadB(LD):
        a(f'buffer_load_dwordx4 {vr(LD+12,4)}, v{V_SCLM}, {WS}, s{S_SC} offen offset:1024 sc1')
        for k in range(3):
            a(f'buffer_load_dwordx4 {vr(LD+4*k,4)}, v{V_SCL[k]}, {WS}, s{S_SC} offen sc1')
    def sumB(LD, base):
        LM = LD + 12
        a(f's_waitcnt vmcnt({base+3})')
        a(f'v_permlane32_swap_b32 v{LM}, v{LM+2}')
        a(f'v_permlane32_swap_b32 v{LM+1}, v{LM+3}')
        a(f'v_pk_add_f32 {vr(V_Q+4,2)}, {vr(LM,2)}, {vr(LM+2,2)}')
        a(f's_waitcnt vmcnt({base+2})')
        for j in range(0, 4, 2): a(f'v_pk_add_f32 {vr(V_Q+j,2)}, {vr(V_S+j,2)}, {vr(LD+j,2)}')
        a(f'v_permlane16_swap_b32 v{V_Q+4}, v{V_Q+5}')
        a(f's_waitcnt vmcnt({base+1})')
        for j in range(0, 4, 2): a(f'v_pk_add_f32 {vr(V_Q+j,2)}, {vr(V_Q+j,2)}, {vr(LD+4+j,2)}')
        a(f'v_add_f32 v{V_Q+4}, v{V_Q+4}, v{V_Q+5}')
        a(f's_waitcnt vmcnt({base})')
        for j in range(0, 4, 2): a(f'v_pk_add_f32 {vr(V_Q+j,2)}, {vr(V_Q+j,2)}, {vr(LD+8+j,2)}')
        a(f'v_maximum3_f32 v{V_M}, v{V_Q}, v{V_Q+1}, v{V_Q+4}')
        a(f'v_maximum3_f32 v{V_M}, v{V_M}, v{V_Q+2}, v{V_Q+3}')
        a(f'v_cmp_u_f32 vcc, v{V_M}, v{V_M}')
        a(f'v_max_f32_dpp v{V_M}, v{V_M}, v{V_M} row_ror:8 row_mask:0xf bank_mask:0xf')
        a(f'v_mov_b32 v{V_M2}, v{V_M}')
    if DB == 0: loadB(SETS[0])
    a('s_waitcnt lgkmcnt(0)')
    a('s_barrier')
    if DB == 1: loadB(SETS[0])
    for w in range(4):
        for t in range(2):
            a(f'ds_read_b64 {vr(V_R+4*w+2*t,2)}, v{V_VR} offset:{w*1024+t*128}')
    for j in range(4): a(f'v_mov_b32_dpp v{V_S+j}, v{V_S+4+j} row_ror:8 row_mask:0xf bank_mask:0xc')
    if DB == 0: loadB(SETS[1])
    if DB == 2: loadB(SETS[0])
    a('s_waitcnt lgkmcnt(0)')
    red4(4)
    if DB == 1: loadB(SETS[1])
    for t in range(2): a(f'v_cvt_pk_bf16_f32 v{V_VM+2*t}, v{V_R+2*t}, v{V_R+2*t+1}')
    if DB == 2: a('s_nop 15'); loadB(SETS[1])
    a(f's_cmp_eq_u32 s{S_STEP}, {nsteps-1}')
    a(f's_cbranch_scc1 {LB2}')
    sumB(SETS[0], 4)
    a(f's_cbranch_vccnz {LBR}')
    a.label(LBO)
    def tlB():
        a.label(LBR)
        for k in range(2):
            LD = SETS[k]
            a(f'v_max3_u32 v{V_CK}, v{LD}, v{LD+1}, v{LD+2}')
            for j in range(3, 15, 2): a(f'v_max3_u32 v{V_CK}, v{V_CK}, v{LD+j}, v{LD+j+1}')
            a(f'v_max_u32 v{V_CK}, v{V_CK}, v{LD+15}')
            loadB(LD)
            a(f'v_cmp_eq_u32 vcc, -1, v{V_CK}')
            spin_guard(LBO)
            a(f's_cbranch_vccz {LBO}')
            sumB(SETS[k ^ 1], 4)
            a(f's_cbranch_vccz {LBO}')
        a(f's_branch {LBR}')
    tails.append(tlB)
    a(f'buffer_store_dword v{V_TG}, v{V_TKST}, {WS}, 0 offen sc1')
    stamp('b')
    ts(5)
    a(f'v_permlane16_swap_b32 v{V_M}, v{V_M2}')
    a(f'v_max_f32 v{V_M}, v{V_M}, v{V_M2}')
    a(f'v_mov_b32 v{V_M2}, v{V_M}')
    a(f'v_permlane32_swap_b32 v{V_M}, v{V_M2}')
    a(f'v_max_f32 v{V_M}, v{V_M}, v{V_M2}')
    a(f'v_mul_f32 v{V_M}, s{S_C}, v{V_M}')
    for j in (4, 0, 1, 2, 3): a(f'v_fma_f32 v{V_Q+j}, v{V_Q+j}, s{S_C}, -v{V_M}')
    for j in (4, 0, 1, 2, 3): a(f'v_exp_f32 v{V_Q+j}, v{V_Q+j}')
    a(f'v_mov_b32_dpp v{V_Q+5}, v{V_Q+4} row_ror:8 row_mask:0xf bank_mask:0xf')
    for j in range(2): a(f'v_cvt_pk_bf16_f32 v{V_P+j}, v{V_Q+2*j}, v{V_Q+2*j+1}')
    a(f'v_cvt_pk_bf16_f32 v{V_P+4}, v{V_Q+4}, v{V_Q+5}')
    for j in range(2): a(f'v_mov_b32_dpp v{V_P+2+j}, v{V_P+j} row_ror:8 row_mask:0xf bank_mask:0xf')
    V_O = V_R + 8
    a(f'v_mfma_f32_16x16x32_bf16 {vr(V_O+8,4)}, {vr(V_ONE,4)}, {vr(V_P+4,4)}, 0')
    a(f'v_mfma_f32_16x16x32_bf16 {vr(V_O+8,4)}, {vr(V_ONE,4)}, {vr(V_P,4)}, {vr(V_O+8,4)}')
    for t in range(2):
        a(f'v_mfma_f32_16x16x32_bf16 {vr(V_O+4*t,4)}, {vr(V_VX+4*t,4)}, {vr(V_P,4)}, 0')
        a(f'v_mfma_f32_16x16x32_bf16 {vr(V_O+4*t,4)}, {vr(V_VM+2*t,4)}, {vr(V_P+4,4)}, {vr(V_O+4*t,4)}')
    V_RC = V_R
    a(f'v_rcp_f32 v{V_RC}, v{V_O+8}')
    a(f'v_mov_b32 v{V_RC+1}, v{V_RC}')
    for j in range(0, 8, 2): a(f'v_pk_mul_f32 {vr(V_O+j,2)}, {vr(V_O+j,2)}, {vr(V_RC,2)}')
    for j in range(4): a(f'v_cvt_pk_bf16_f32 v{V_O+j}, v{V_O+2*j}, v{V_O+2*j+1}')
    for j in range(4): a(f'v_max_u32 v{V_O+j}, 1, v{V_O+j}')
    a(f's_mov_b64 exec, s[{S_MLO8}:{S_MLO8+1}]')
    a(f'buffer_store_dwordx4 {vr(V_O,4)}, v{V_OST}, {WS}, s{S_SL0} offen sc1')
    a('s_mov_b64 exec, -1')
    stamp(5)
    ts('o')
    for j in range(0, 24, 2): a(f'v_mov_b64 {vr(V_D+j,2)}, 0')
    LCS = a.newlabel('rec_cs')
    a.label(LCS)
    a('s_barrier')
    def w123():
        a.label(LW1)
        a('s_waitcnt lgkmcnt(0)')
        a('s_barrier')
        vmf()
        halves(2)
        a(f'ds_write_b128 v{V_VW}, {vr(V_D+16,4)}')
        a('s_waitcnt lgkmcnt(0)')
        a('s_barrier')
        if ZD: a(f's_sleep {ZD}')
        for j in range(0, 24, 2): a(f'v_mov_b64 {vr(V_D+j,2)}, 0')
        LW2 = a.newlabel('rec_w2'); LW3 = a.newlabel('rec_w3')
        a(f's_cmp_eq_u32 s{S_W}, 3')
        a(f's_cbranch_scc1 {LW3}')
        a(f's_cmp_eq_u32 s{S_W}, 2')
        a(f's_cbranch_scc1 {LW2}')
        a(f'ds_read_b128 {vr(V_NS,4)}, v{V_L16} offset:{L_X}')
        a(f's_branch {LB2}')
        a.label(LW2)
        for w in range(4): a(f'ds_read_b128 {vr(V_R+4*w,4)}, v{V_L16} offset:{L_V+w*1024}')
        a('s_waitcnt lgkmcnt(0)')
        red4(4)
        for j in range(2): a(f'v_cvt_pk_bf16_f32 v{V_NS+j}, v{V_R+2*j}, v{V_R+2*j+1}')
        for j in range(2): a(f'v_permlane32_swap_b32 v{V_NS+j}, v{V_NS+2+j}')
        for j in (0, 2): a(f'v_permlane16_swap_b32 v{V_NS+j}, v{V_NS+j+1}')
        a.label(LB2)
        a('s_waitcnt lgkmcnt(0)')
        a(f's_cmp_eq_u32 s{S_STEP}, {nsteps-1}')
        a(f's_cbranch_scc1 {DONE}')
        a(f's_branch {LCS}')
        a.label(LW3)
        a(f's_cmp_eq_u32 s{S_STEP}, {nsteps-1}')
        a(f's_cbranch_scc1 {DONE}')
        tickwait(0, DC)
        a(f's_branch {LCS}')
    tails.append(w123)
    stamp(7)
    ts(6)
    def loadC(c, r):
        a(f'buffer_load_dwordx4 {vr(r,4)}, v{V_COFF if c < 4 else V_COFF2}, {WS}, s{S_SL0} offen offset:{(c&3)*1024} sc1')
    def mfC(c):
        r = []
        for sel in range(2):
            f, b = wo_reg(2 * c + sel)
            r.append(f'v_smfmac_f32_16x16x64_bf16 {vr(V_D+4*sel,4)}, {vr(V_MA+4*c,4)}, {f}[{b}:{b+7}], v{V_IDX}')
        return r
    def nC3():
        a(f's_add_u32 s{S_T0}, s{S_STEP}, 1')
        wait_kv(f's{S_T0}')
        a(f's_xor_b32 s{S_KXB}, s{S_KXB}, 4096')
        a(f's_add_u32 m0, s{S_KXB}, s{S_PFL}')
        if XP != 1: a(f's_add_u32 s{S_KV}, s{S_KV}, {256*1024}')
        a(f'buffer_load_dwordx4 v{V_PFG}, {WS}, s{S_KV} offen sc1 lds')
    noiseC = [nC3, lambda: a(f'buffer_load_dword v{V_T1}, v{V_PTG}, {WS}, s{S_SC} offen sc1')]
    st4 = [f'buffer_store_dwordx4 {vr(V_NS,4)}, v{V_NSA}, {WS}, s{S_NSO} offen sc1',
           f'buffer_store_dwordx4 {vr(V_NB,4)}, v{V_NBA}, {WS}, s{S_NBO} offen sc1']
    if NSP == 1: noiseC += [(lambda x=x: a(x)) for x in st4]
    def late_stores(pl=False, n=2):
        if not NSP:
            a('s_barrier')
            for k, x in enumerate(st4[:n]):
                if pl: tpoll(128)
                a(x)
        a(f's_add_u32 s{S_NBO}, s{S_NBO}, s{S_NBI}')
        if n == 2: a(f'v_add_u32 v{V_FRV}, s{S_MHI+1}, v{V_FRV}')
        if sync and ASY:
            lr = a.newlabel('rec_rf')
            a(f's_add_u32 s{S_T0}, s{S_STEP}, 3')
            a(f's_min_u32 s{S_T0}, s{S_T0}, {NSEG-1}')
            a(f's_cmp_gt_u32 s{S_SEEN}, s{S_T0}')
            a(f's_cbranch_scc1 {lr}')
            a(f's_load_dword s{S_SEEN}, s[{S_WSP}:{S_WSP+1}], s{S_FKV} glc')
            a.label(lr)
        a(f's_add_u32 s{S_NSO}, s{S_NSO}, s{S_NSI}')
        a(f's_cmp_eq_u32 s{S_W}, 3')
        a(f's_cselect_b32 s{S_NSO}, s{S_SL2}, s{S_NSO}')
    TKA = f'buffer_store_dword v{V_TG}, v{V_TKSA}, {WS}, 0 offen sc1'
    def postC():
        a(f's_add_u32 s{S_STEP}, s{S_STEP}, 1')
        a(f's_add_u32 s{S_T0}, s{S_STEP}, 2')
        a(f's_lshr_b32 s{S_T1}, s{S_T0}, 3')
        a(f's_lshr_b32 s{S_T1}, s{S_PAR}, s{S_T1}')
    gather('rec_gc', 8, loadC, mfC, 8, noiseC, ILC, post=postC)
    if NSP == 2:
        for x in st4: a(x)
    if TA == 9: a(TKA)
    ts(8)
    a(f's_mov_b32 s{S_SL0}, s{S_SL1}')
    a(f's_mov_b32 s{S_SL1}, s{S_SL2}')
    stamp_c = True
    if prof == 1:
        a(f's_sub_u32 s{S_STEP}, s{S_STEP}, 1'); stamp(8); a(f's_add_u32 s{S_STEP}, s{S_STEP}, 1')
    a(f'v_pk_add_f32 {vr(V_D,2)}, {vr(V_D,2)}, {vr(V_D+2,2)}')
    for r1 in range(2): a(f'v_add_f32_dpp v{V_D+r1}, v{V_D+4+r1}, v{V_D+6+r1} quad_perm:[0,1,2,3] row_mask:0xc bank_mask:0xf')
    a(f'v_permlane32_swap_b32 v{V_D}, v{V_D+1}')
    a(f'v_add_f32 v{V_D}, v{V_D}, v{V_D+1}')
    a(f'ds_write_b32 v{V_OPW}, v{V_D}')
    S(S_SL2, [(S_T1, 0, 1, 13), (S_T0, 0, None, 18), (S_HB, 0, None, 0)])
    a(f's_add_u32 s{S_SC}, s{S_SC}, {128*2048}')
    LB4 = a.newlabel('rec_b4')
    a(f's_cmp_lg_u32 s{S_W}, 0')
    a(f's_cbranch_scc1 {LB4}')
    a('s_waitcnt lgkmcnt(0)')
    a('s_barrier')
    for w in range(4): a(f'ds_read_b64 {vr(V_R+2*w,2)}, v{V_OPR} offset:{w*256}')
    a(f'v_add_u32 v{V_TG}, 2, v{V_TG}')
    a('s_waitcnt lgkmcnt(0)')
    red4(2)
    a(f'v_cvt_pk_bf16_f32 v{V_R}, v{V_R}, v{V_R+1}')
    a(f'v_max_u32 v{V_R}, 1, v{V_R}')
    for j in range(1, 4): a(f'v_mov_b32_dpp v{V_R+j}, v{V_R} quad_perm:[{j},{j},{j},{j}] row_mask:0xf bank_mask:0xf')
    a('s_mov_b64 exec, 0x11111111')
    a(f'buffer_store_dwordx4 {vr(V_R,4)}, v{V_MEMST}, {WS}, s{S_SL0} offen sc1')
    a('s_mov_b64 exec, -1')
    stamp(10)
    ts(9)
    late_stores(False, 1)
    for j in range(0, 8, 2): a(f'v_mov_b64 {vr(V_D+j,2)}, 0')
    a('s_waitcnt vmcnt(2)')
    a(f's_branch {LOOP}')
    a.label(LB4)
    a('s_waitcnt lgkmcnt(0)')
    a('s_barrier')
    if not TA: a(TKA)
    L3B = a.newlabel('rec_w3b')
    a(f's_cmp_eq_u32 s{S_W}, 3')
    a(f's_cbranch_scc1 {L3B}')
    a(f'v_add_u32 v{V_TG}, 2, v{V_TG}')
    for j in range(0, 8, 2): a(f'v_mov_b64 {vr(V_D+j,2)}, 0')
    late_stores()
    a('s_waitcnt vmcnt(2)')
    a(f's_branch {LOOP}')
    a.label(L3B)
    a(f'v_add_u32 v{V_TG}, 2, v{V_TG}')
    for j in range(0, 8, 2): a(f'v_mov_b64 {vr(V_D+j,2)}, 0')
    tpoll(128)
    late_stores(True, 1)
    tpoll(128)
    a('s_waitcnt vmcnt(2)')
    tickwait(128, DA)
    a(f's_branch {LOOP}')
    for t in tails: t()
    a.label(DONE)
    if prof >= 3:
        a(f'v_writelane_b32 v{V_TR}, s100, 10'); a(f'v_writelane_b32 v{V_TR}, s101, 11'); a(f'v_writelane_b32 v{V_TR}, s{S_SPIN}, 12')
    if prof >= 4: pmark(0)
    a(f'buffer_store_dwordx4 {vr(V_NS,4)}, v{V_NSA}, {WS}, s{S_NSO} offen sc1')
    a('s_waitcnt vmcnt(0)')
    a('s_barrier')
    a(f'v_add_u32 v{V_FRV}, 1, v{V_FRV}')
    a(f'buffer_store_dword v{V_FRV}, v{V_FRA}, {WS}, 0 offen sc1')
    if prof and prof != 5:
        S(S_T0, [(S_RID, 0, None, 13), (S_W, 0, None, 11)], TRACE)
        a(f'v_lshlrev_b32 v{V_T0}, 2, v{V_L}')
        for e in range(8):
            a(f'buffer_store_dword v{V_TR+e}, v{V_T0}, {WS}, s{S_T0} offen offset:{e*256}')
```

```python
from asmlib import *
from layout import *
from rec import srd, lane, sexpr
import math, struct

G_WS = 4
G_W = 8
G_X = 12
G_W2 = 16
G_OUT = 20
G_ID, G_WV, G_SEG = 28, 29, 30
G_T0, G_T1, G_T2 = 31, 32, 33
G_LW = 34
G_XO = 35
G_PO = 36
G_PS = 37
G_WSO, G_WST = 38, 39
G_SPIN = 41
G_C = 42
G_SEEN = 43
G_J, G_R = 44, 45
G_KMO, G_OAO, G_OBO, G_OUO = 46, 47, 48, 49
G_FO = 50
G_END, G_XMAX = 51, 52
G_SA, G_SB, G_FA, G_FB, G_FR, G_C2 = 53, 54, 55, 56, 57, 58
G_PTR = 72
G_WSP = 90
G_DBG = 92
WS = f's[{G_WS}:{G_WS+3}]'
V_L, V_T0, V_T1, V_T2, V_L16 = 1, 2, 3, 4, 5
V_VAL = 31

def f32(x): return '0x%08x' % struct.unpack('<I', struct.pack('<f', x))[0]

class Gem:
    def __init__(self, a, sync=True, prof=False):
        self.a = a; self.sync = sync; self.prof = prof; self.ost = ''
    def L(self, dst, terms, add=None): lane(self.a, dst, V_T2, V_L, terms, add)
    def S(self, dst, terms, const=0): sexpr(self.a, dst, G_T2, terms, const)
    def spin_guard(self, lgive):
        a = self.a
        a(f's_add_u32 s{G_SPIN}, s{G_SPIN}, 1')
        a(f's_cmp_ge_u32 s{G_SPIN}, 0x200000')
        a(f's_cbranch_scc1 {lgive}')
    def keep(self, reg, cond):
        a = self.a
        a(cond)
        a(f'v_mov_b32 v{V_T2}, {OOB}')
        a(f'v_cndmask_b32 v{reg}, v{V_T2}, v{reg}, vcc')

    def mark(self, k):
        if not self.prof: return
        a = self.a
        a(f's_memrealtime s[{G_PTR+14}:{G_PTR+15}]')
        a('s_waitcnt lgkmcnt(0)')
        a(f's_mov_b32 s{94+k}, s{G_PTR+14}')
        if False:
            a(f's_memtime s[{G_PTR+14}:{G_PTR+15}]')
            a('s_waitcnt lgkmcnt(0)')
            a(f's_mov_b32 s{98+k}, s{G_PTR+14}')
    def acc(self, k):
        if self.prof != 2: return
        a = self.a
        a(f's_memtime s[{G_PTR+14}:{G_PTR+15}]')
        a('s_waitcnt lgkmcnt(0)')
        if k is not None:
            a(f's_sub_u32 s{G_PTR+15}, s{G_PTR+14}, s60')
            a(f's_add_u32 s{61+k}, s{61+k}, s{G_PTR+15}')
        a(f's_mov_b32 s60, s{G_PTR+14}')
    def dump(self):
        if not self.prof: return
        a = self.a
        if self.prof == 5:
            a(f's_cmp_lt_u32 s{G_ID}, 96')
            a(f's_cselect_b32 s{G_T0}, 20, 44')
            a(f'v_mov_b32 v{V_T1}, s{G_T0}')
            a('s_mov_b64 exec, 1')
            for i, k in enumerate((1, 3, 6, 4, 5)):
                a(f'v_mov_b32 v{V_T0}, s{94+k}')
                a(f'global_atomic_umax v{V_T1}, v{V_T0}, s[{G_DBG}:{G_DBG+1}] offset:{4*i} sc1')
            return
        self.S(G_T0, [(G_ID, 0, None, 7), (G_WV, 0, None, 5)], TRACE + 4 * MB)
        a(f'v_mov_b32 v{V_T1}, 0')
        for k in range(8):
            a(f'v_mov_b32 v{V_T0}, s{94+k}')
            a(f'buffer_store_dword v{V_T0}, v{V_T1}, {WS}, s{G_T0} offen offset:{4*k}')
        a(f's_add_u32 s{G_T0}, s{G_T0}, {MB}')
        for k in range(8):
            a(f'v_mov_b32 v{V_T0}, s{61+k}')
            a(f'buffer_store_dword v{V_T0}, v{V_T1}, {WS}, s{G_T0} offen offset:{4*k}')

    def setup(self):
        a = self.a
        a(f's_load_dwordx2 s[{G_WSP}:{G_WSP+1}], s[0:1], {K_WS}')
        a(f's_load_dwordx2 s[{G_DBG}:{G_DBG+1}], s[0:1], {K_DBG}')
        a(f'v_and_b32 v{V_L}, 63, v0')
        a(f'v_lshrrev_b32 v{V_T0}, 6, v0')
        a(f'v_readfirstlane_b32 s{G_WV}, v{V_T0}')
        a(f'v_lshlrev_b32 v{V_L16}, 4, v{V_L}')
        a(f's_mov_b32 s{G_SPIN}, 0')
        a(f's_lshl_b32 s{G_LW}, s{G_WV}, 10')
        a('s_waitcnt lgkmcnt(0)')
        srd(a, G_WS, G_WSP, WS_BYTES)
        if self.sync:
            lv = a.newlabel('g_nv')
            a(f'v_mov_b32 v{V_VAL}, 0')
            a(f's_cmp_lt_u32 s{G_ID}, 96')
            a(f's_cbranch_scc1 {lv}')
            validate(a, V_VAL, V_T0, G_DBG, G_SPIN, G_T0)
            a.label(lv)
        if self.prof:
            for k in range(8): a(f's_mov_b32 s{94+k}, 0'); a(f's_mov_b32 s{61+k}, 0')
        self.mark(0)

    def load_weights(self, jobs, hook=None):
        a = self.a
        LB = G_T1
        a(f's_lshl_b32 s{LB}, s{G_WV}, 15')
        pairs = []
        for (sd, vg, n, reads, so0, sst) in jobs:
            for p in range(n): pairs.append((sd, vg, reads(p), so0 if p == 0 else None, sst))
        NSL = 16
        def issue(p):
            sd, vg, _, so0, sst = pairs[p]
            for j in range(2):
                a(f's_add_u32 m0, s{LB}, {(p % NSL) * 2048 + j * 1024}')
                if so0 is not None and j == 0: a(f's_mov_b32 s{G_WSO}, {so0}')
                else: a(f's_add_u32 s{G_WSO}, s{G_WSO}, {sst}')
                a(f'buffer_load_dwordx4 v{vg}, s[{sd}:{sd+3}], s{G_WSO} offen lds')
        issued = 0
        for p in range(min(NSL, len(pairs))):
            issue(p); issued += 1
        for p in range(len(pairs)):
            a(f's_waitcnt vmcnt({2 * (issued - p - 1)})')
            if hook and p == 2:
                a(f'v_mov_b32 v{V_T0}, 0')
                a(f'global_load_dword v{V_VAL}, v{V_T0}, s[{G_DBG}:{G_DBG+1}] offset:{4*D_ROT} sc1')
            if hook and p == NSL + 1: hook(0)
            if hook and p == len(pairs) - 1: hook(1)
            for dst, va, off in pairs[p][2]:
                a(f'ds_read_b64_tr_b16 {dst}, v{va} offset:{(p % NSL) * 2048 + off}')
            if p >= 1 and issued < len(pairs):
                a(f's_waitcnt lgkmcnt({len(pairs[p][2])})')
                issue(issued); issued += 1
        a('s_waitcnt lgkmcnt(0)')

    def touch_wo(self):
        a = self.a
        P = G_PTR
        lsk = a.newlabel('tw_skip')
        a(f's_cmp_lt_u32 s{G_ID}, 96')
        a(f's_cbranch_scc1 {lsk}')
        a(f's_load_dwordx2 s[{P}:{P+1}], s[0:1], {K_WO}')
        self.S(G_T0, [(G_ID, 0, 5, 13), (G_WV, 0, None, 21)])
        a(f'v_lshl_add_u32 v{V_T0}, v{V_L}, 7, s{G_T0}')
        a('s_waitcnt lgkmcnt(0)')
        srd(a, G_W, P, 8 * MB)
        for i in range(8):
            a(f's_mov_b32 s{G_T0}, {i * 262144}')
            a(f'buffer_load_dword v{128+i}, v{V_T0}, s[{G_W}:{G_W+3}], s{G_T0} offen')
        a.label(lsk)

    def slab(self, LNEXT, **opt):
        a = self.a; L = self.L; S = self.S
        P = G_PTR
        V_G, V_TR, V_XG, V_ST, V_FL, V_FV = 6, 7, 8, 9, 10, 11
        V_RA = 12
        V_F = 32
        V_ACC = 64
        V_PK = 96
        lB = a.newlabel('sl_b'); lC = a.newlabel('sl_c')
        G_M = G_J
        a(f's_cmp_ge_u32 s{G_ID}, 96')
        a(f's_cbranch_scc1 {lB}')
        a(f's_lshr_b32 s{G_T0}, s{G_ID}, 5')
        a(f's_add_u32 s{G_T0}, s{G_T0}, 1')
        a(f's_cmp_eq_u32 s{G_T0}, 3')
        a(f's_cselect_b32 s{G_M}, 0, s{G_T0}')
        S(G_T0, [(G_M, 0, None, 3)], K_WQ)
        a(f's_load_dwordx2 s[{P}:{P+1}], s[0:1], s{G_T0}')
        a(f's_load_dwordx2 s[{P+2}:{P+3}], s[0:1], {K_AX}')
        a(f's_mov_b32 s{P+4}, {8*MB}')
        a(f's_mov_b32 s{G_WST}, 8192')
        S(G_T0, [(G_ID, 0, 5, 8)])
        S(G_PO, [(G_M, 0, None, 24), (G_ID, 0, 5, 13)], PA)
        a(f's_mov_b32 s{G_PS}, {256*1024}')
        S(G_FO, [(G_ID, 0, 5, 7), (G_M, 0, None, 2)], FLG + F_SLA)
        a(f's_branch {lC}')
        a.label(lB)
        a(f's_sub_u32 s{G_T1}, s{G_ID}, 96')
        a(f's_lshr_b32 s{G_M}, s{G_T1}, 3')
        a(f's_load_dwordx2 s[{P}:{P+1}], s[0:1], {K_WQKV}')
        a(f's_load_dwordx2 s[{P+2}:{P+3}], s[0:1], {K_BX}')
        a(f's_mov_b32 s{P+4}, {6*MB}')
        a(f's_mov_b32 s{G_WST}, 6144')
        S(G_T0, [(G_T1, 0, None, 8)])
        S(G_PO, [(G_M, 0, None, 22), (G_T1, 0, 3, 13)], PB)
        a(f's_mov_b32 s{G_PS}, {64*1024}')
        S(G_FO, [(G_T1, 0, 3, 7), (G_M, 0, None, 2)], FLG + F_SLB)
        a.label(lC)
        a('s_waitcnt lgkmcnt(0)')
        srd(a, G_W, P, f's{P+4}')
        srd(a, G_X, P + 2, 4 * MB)
        a(f's_mov_b64 s[{P+8}:{P+9}], s[{P}:{P+1}]')
        a(f's_mov_b32 s{G_R}, s{G_T0}')
        if self.sync:
            lg = a.newlabel('sl_go'); l2 = a.newlabel('sl_a2')
            a(f's_cmp_lt_u32 s{G_ID}, 96')
            a(f's_cbranch_scc1 {lg}')
            a(f's_cmp_lg_u32 s{G_WV}, 0')
            a(f's_cbranch_scc1 {l2}')
            a('s_mov_b64 exec, 1')
            a(f'v_mov_b32 v{V_T0}, 0')
            a(f'buffer_store_dword v{V_T0}, v{V_T0}, {WS}, s{G_FO} offen sc1')
            self.arrive()
            a.label(l2)
            self.touch_wo()
            srd(a, G_W, P + 8, f's{P+4}')
            self.wait_start()
            a.label(lg)
        a(f'v_lshrrev_b32 v{V_T0}, 2, v{V_L}')
        a(f'v_mul_lo_u32 v{V_G}, v{V_T0}, s{G_WST}')
        S(G_T0, [(G_R, 0, None, 0), (G_WV, 0, None, 6)])
        L(V_T0, [(0, 2, 4)], f's{G_T0}')
        a(f'v_add_u32 v{V_G}, v{V_G}, v{V_T0}')
        a(f's_lshl_b32 s{G_WST}, s{G_WST}, 4')
        a(f's_mov_b32 s{G_SEG}, 0')
        a(f's_mov_b32 s{G_END}, {NSEG}')
        a(f's_mov_b32 s{G_XMAX}, {63*65536}')
        self.stream(LNEXT, [0, 1], **opt)

    def stream(self, LNEXT, variants, RD=6):
        a = self.a; L = self.L; S = self.S
        V_G, V_TR, V_XG, V_ST, V_FL, V_FV = 6, 7, 8, 9, 10, 11
        V_RA = 12
        V_F = 32
        V_ACC = 64
        V_PK = 96
        G_M = G_J
        ob = 2 in variants
        a(f's_lshl_b32 s{G_T0}, s{G_WV}, 15')
        if ob:
            L(V_TR, [(4, 2, 9), (2, 2, 6), (0, 2, 4)], f's{G_T0}')
        else:
            L(V_TR, [(4, 2, 9), (2, 2, 6), (1, 1, 5), (0, 1, 3)], f's{G_T0}')
        eo = 8 if ob else 16
        def wreads(p):
            return [(f'a[{8*p+4*et+2*q}:{8*p+4*et+2*q+1}]', V_TR, et * eo + q * 256) for et in range(2) for q in range(2)]
        def hook(k):
            li = a.newlabel('sl_ar')
            if k == 0: validate(a, V_VAL, V_T0, G_DBG, G_SPIN, G_T0)
            else: self.mark(7)
            a(f's_cmp_lg_u32 s{G_WV}, 0')
            a(f's_cbranch_scc1 {li}')
            a(f's_cmp_ge_u32 s{G_ID}, 96')
            a(f's_cbranch_scc1 {li}')
            a('s_mov_b64 exec, 1')
            if k == 0:
                a(f'v_mov_b32 v{V_T0}, 0')
                a(f'buffer_store_dword v{V_T0}, v{V_T0}, {WS}, s{G_FO} offen sc1')
                a('s_mov_b64 exec, -1')
            else: self.arrive(False)
            a.label(li)
        self.load_weights([(G_W, V_G, 32, wreads, '0', f's{G_WST}')], hook if (self.sync and not ob) else None)
        self.mark(4 if ob else 1)
        S(G_T0, [(G_WV, 1, 1, 2)])
        L(V_T0, [(4, 2, 0)], f's{G_T0}')
        a(f'v_and_b32 v{V_T1}, 7, v{V_L}')
        a(f'v_xor_b32 v{V_T0}, v{V_T0}, v{V_T1}')
        a(f's_lshl_b32 s{G_T0}, s{G_WV}, 14')
        L(V_XG, [(3, 3, 11)], f's{G_T0}')
        a(f'v_lshl_add_u32 v{V_XG}, v{V_T0}, 4, v{V_XG}')
        L(V_T0, [(1, 3, 0)])
        a(f'v_lshrrev_b32 v{V_T1}, 4, v{V_L}')
        a(f'v_xor_b32 v{V_T0}, v{V_T0}, v{V_T1}')
        L(V_T1, [(3, 1, 11), (0, 3, 7)])
        for j in range(2):
            a(f'v_xor_b32 v{V_RA+j}, {4*j}, v{V_T0}')
            a(f'v_lshl_add_u32 v{V_RA+j}, v{V_RA+j}, 4, v{V_T1}')
            a(f'v_add_u32 v{V_RA+2+j}, 65536, v{V_RA+j}')
        if ob:
            a(f's_lshl_b32 s{G_T0}, s{G_WV}, 6')
            L(V_ST, [(0, 4, 12), (4, 2, 4)], f's{G_T0}')
            a(f'v_add_u32 v{V_XG}, s{G_LW}, v{V_L16}')
            L(V_RA, [(4, 2, 9), (0, 4, 4)])
            a(f'v_add_u32 v{V_RA+2}, 65536, v{V_RA}')
            self.wait_dbg(D_INIT, NWG)
            self.wait_lines(F_ATB, f's{G_END}')
        else:
            a(f's_lshl_b32 s{G_T0}, s{G_WV}, 11')
            L(V_ST, [(4, 2, 9), (3, 1, 8), (0, 3, 4)], f's{G_T0}')
            a(f'v_mov_b32 v{V_FL}, s{G_FO}')
            a(f's_cmp_eq_u32 s{G_WV}, 0')
            self.keep(V_FL, 's_cselect_b64 vcc, 1, 0')
            a(f'v_mov_b32 v{V_FV}, 0')
        a(f's_lshl_b32 s{G_XO}, s{G_SEG}, 16')
        a(f's_sub_u32 s{G_PO}, s{G_PO}, s{G_PS}')
        a('s_barrier')
        XS = f's[{G_X}:{G_X+3}]'
        SC = ' sc1' if ob else ''
        def dma(u, i, part=2):
            kb = (u & 1) * 8 + i
            if ob:
                if part != 1:
                    a(f's_add_u32 m0, s{G_LW}, {(u >> 1) * 65536 + kb * 4096}')
                    a(f's_add_u32 s{G_T1}, s{G_XO}, {kb * 4096}')
                if part != 0: a(f'buffer_load_dwordx4 v{V_XG}, {XS}, s{G_T1} offen sc1 lds')
                return
            if part != 1: a(f's_add_u32 m0, s{G_LW}, {(u >> 1) * 65536 + kb * 4096 - kb * 128}')
            if part != 0: a(f'buffer_load_dwordx4 v{V_XG}, {XS}, s{G_XO} offen offset:{kb*128} lds')
        for u in range(3):
            for i in range(8 if u < 2 else 4): dma(u, i)
            if u == 1: a(f's_add_u32 s{G_XO}, s{G_XO}, 65536')
        a('s_waitcnt vmcnt(12)')
        a('s_barrier')
        if not ob: self.mark(2)
        def rd(T):
            T %= 128
            p, t = T >> 6, T & 63
            ks, tt = t >> 1, t & 1
            if ob: a(f'ds_read_b128 {vr(V_F+4*(T%8),4)}, v{V_RA+2*p} offset:{ks*2048+tt*256}')
            else: a(f'ds_read_b128 {vr(V_F+4*(T%8),4)}, v{V_RA+2*p+(ks&1)} offset:{(ks>>1)*4096+tt*1024}')
        def epi(p, k, var):
            A = V_ACC + 16 * p
            if k < 8:
                o, inn, h = k >> 2, (k >> 1) & 1, k & 1
                tt, et = (inn, o) if var == 1 else (o, inn)
                r = A + 4 * (2 * tt + et) + 2 * h
                a(f'v_cvt_pk_bf16_f32 v{V_PK+k}, v{r}, v{r+1}')
            elif k == 8:
                if ob:
                    a(f'buffer_store_dwordx4 {vr(V_PK,4)}, v{V_ST}, s[{G_OUT}:{G_OUT+3}], s{G_PO} offen{self.ost}')
                    a(f's_add_u32 s{G_T0}, s{G_PO}, 65536')
                else: a(f'buffer_store_dwordx4 {vr(V_PK,4)}, v{V_ST}, {WS}, s{G_PO} offen sc1')
            elif k == 9:
                if ob: a(f'buffer_store_dwordx4 {vr(V_PK+4,4)}, v{V_ST}, s[{G_OUT}:{G_OUT+3}], s{G_T0} offen{self.ost}')
                else: a(f'buffer_store_dwordx4 {vr(V_PK+4,4)}, v{V_ST}, {WS}, s{G_PO} offen offset:128 sc1')
                a(f's_add_u32 s{G_PO}, s{G_PO}, s{G_PS}')
        for T in range(RD): rd(T)
        lV = a.newlabel('sl_v'); lE = a.newlabel('sl_e')
        a(f'v_add_u32 v{V_ST}, {OOB}, v{V_ST}')
        if len(variants) > 1:
            a(f's_cmp_eq_u32 s{G_M}, 2')
            a(f's_cbranch_scc1 {lV}')
        for var in variants:
            if var == 1: a.label(lV)
            lp = a.newlabel('sl_loop')
            a.label(lp)
            for T in range(128):
                p, t = T >> 6, T & 63
                u = T >> 5; tu = T & 31
                if tu == 16:
                    a('s_waitcnt vmcnt(8)')
                    a('s_barrier')
                if T % 2 == 0: a(f's_waitcnt lgkmcnt({RD-2})')
                A = V_ACC + 16 * p
                x = vr(V_F + 4 * (T % 8), 4)
                ks, tt = t >> 1, t & 1
                ph = (tu - 16) % 32
                isd = ph % 4 == 1
                if isd:
                    un = (u + 3) if tu >= 16 else (u + 2)
                    i = ph // 4
                for et in range(2):
                    w = f'a[{8*ks+4*et}:{8*ks+4*et+3}]'
                    D = vr(A + 4 * (2 * tt + et), 4)
                    c = D if ks else '0'
                    if var == 1: a(f'v_mfma_f32_16x16x32_bf16 {D}, {x}, {w}, {c}')
                    else: a(f'v_mfma_f32_16x16x32_bf16 {D}, {w}, {x}, {c}')
                    if et == 0:
                        rd(T + RD)
                        if isd: dma(un % 4, i, 0)
                    elif isd: dma(un % 4, i, 1)
                if isd and (un & 1) == 1 and i == 7:
                    a(f's_add_u32 s{G_XO}, s{G_XO}, 65536')
                    a(f's_min_u32 s{G_XO}, s{G_XO}, s{G_XMAX}')
                if tu == 18 and (u & 1) and not ob:
                    a(f'buffer_store_dword v{V_FV}, v{V_FL}, {WS}, 0 offen sc1')
                    a(f'v_add_u32 v{V_FV}, 1, v{V_FV}')
                if 4 <= t < 12: epi(p ^ 1, t - 4, var)
                if t == 11: epi(p ^ 1, 8, var)
                if t == 15: epi(p ^ 1, 9, var)
                if t == 20 and p == 0: a(f'v_and_b32 v{V_ST}, 0xffffff, v{V_ST}')
            a(f's_add_u32 s{G_SEG}, s{G_SEG}, 2')
            a(f's_cmp_lt_u32 s{G_SEG}, s{G_END}')
            a(f's_cbranch_scc1 {lp}')
            for k in range(8): epi(1, k, var)
            a(f's_branch {lE}')
        a.label(lE)
        for k in (8, 9): epi(1, k, 0)
        a('s_waitcnt vmcnt(0) lgkmcnt(0)')
        a('s_barrier')
        if not ob: a(f'buffer_store_dword v{V_FV}, v{V_FL}, {WS}, 0 offen sc1')
        self.mark(5 if ob else 3)
        a(f's_branch {LNEXT}')

    def outb(self, LNEXT):
        a = self.a; L = self.L; S = self.S
        P = G_PTR
        V_G = 6
        a(f's_load_dwordx4 s[{P}:{P+3}], s[0:1], {K_BWO}')
        a(f's_add_u32 s{P+4}, s{G_WSP}, {OB}')
        a(f's_addc_u32 s{P+5}, s{G_WSP+1}, 0')
        a(f's_sub_u32 s{G_T1}, s{G_ID}, 96')
        a(f's_lshr_b32 s{G_T1}, s{G_T1}, 3')
        a(f's_mul_i32 s{G_SEG}, s{G_T1}, 22')
        a(f's_add_u32 s{G_END}, s{G_SEG}, 22')
        a(f's_min_u32 s{G_END}, s{G_END}, {NSEG}')
        a(f's_sub_u32 s{G_XMAX}, s{G_END}, 1')
        a(f's_lshl_b32 s{G_XMAX}, s{G_XMAX}, 16')
        a('s_waitcnt lgkmcnt(0)')
        srd(a, G_W, P, 2 * MB)
        srd(a, G_OUT, P + 2, 8 * MB)
        srd(a, G_X, P + 4, 4 * MB)
        S(G_T0, [(G_ID, 0, 3, 8), (G_WV, 0, None, 6)])
        L(V_G, [(2, 4, 11), (0, 2, 4)], f's{G_T0}')
        a(f's_mov_b32 s{G_WST}, 32768')
        S(G_PO, [(G_SEG, 0, None, 17), (G_ID, 0, 3, 8)], 2048)
        a(f's_mov_b32 s{G_PS}, 131072')
        self.stream(LNEXT, [2])

    def wait_flags_s(self, off_sreg, nwords, idx, target, seen=None):
        a = self.a
        if not self.sync: return
        T = G_PTR
        lp = a.newlabel('g_wf'); ld = a.newlabel('g_wfd')
        if seen is not None:
            a(f's_cmp_ge_u32 s{seen}, {target}')
            a(f's_cbranch_scc1 {ld}')
        a.label(lp)
        a(f's_load_dwordx4 s[{T}:{T+3}], s[{G_WSP}:{G_WSP+1}], s{off_sreg} glc')
        self.spin_guard(ld)
        a('s_waitcnt lgkmcnt(0)')
        m = seen if seen is not None else T + 4
        a(f's_min_u32 s{m}, s{T+idx[0]}, s{T+idx[1]}')
        for i in idx[2:]: a(f's_min_u32 s{m}, s{m}, s{T+i}')
        a(f's_cmp_ge_u32 s{m}, {target}')
        a(f's_cbranch_scc1 {ld}')
        a('s_sleep 4')
        a(f's_branch {lp}')
        a.label(ld)
        a('s_waitcnt lgkmcnt(0)')

    def arrive(self, wait=True):
        a = self.a
        a(f'v_mov_b32 v{V_T0}, 0')
        a(f's_add_u32 s{S_BAD}, s{S_BAD}, 1')
        a(f'v_mov_b32 v{V_T1}, s{S_BAD}')
        if wait: a('s_waitcnt vmcnt(0)')
        a(f'global_atomic_add v{V_T0}, v{V_T1}, s[{G_DBG}:{G_DBG+1}] offset:{4*D_INIT} sc1')
        a('s_mov_b64 exec, -1')

    def wait_lines(self, fo, target, seen=None):
        a = self.a
        if not self.sync: return
        lp = a.newlabel('g_wl'); ld = a.newlabel('g_wld')
        self.L(V_T0, [(0, 5, 7)], FLG + fo)
        a(f's_cmp_lg_u32 s{G_WV}, 0')
        a(f's_cbranch_scc1 {ld}')
        a.label(lp)
        a(f'buffer_load_dword v{V_T1}, v{V_T0}, {WS}, 0 offen sc1')
        self.spin_guard(ld)
        a('s_waitcnt vmcnt(0)')
        a(f'v_cmp_gt_u32 vcc, {target}, v{V_T1}')
        a(f's_cbranch_vccz {ld}')
        a('s_sleep 8')
        a(f's_branch {lp}')
        a.label(ld)
        a('s_barrier')

    def wait_start(self):
        self.wait_dbg(D_RDY, 96, G_PTR + 12)

    def wait_dbg(self, word, target, T=G_PTR):
        a = self.a
        if not self.sync: return
        lp = a.newlabel('g_wd'); ld = a.newlabel('g_wdd')
        a(f's_cmp_lg_u32 s{G_WV}, 0')
        a(f's_cbranch_scc1 {ld}')
        a.label(lp)
        a(f's_load_dword s{T}, s[{G_DBG}:{G_DBG+1}], {4*word} glc')
        self.spin_guard(ld)
        a('s_waitcnt lgkmcnt(0)')
        a(f's_and_b32 s{T}, s{T}, {CNT_MASK}')
        a(f's_cmp_ge_u32 s{T}, {target}')
        a(f's_cbranch_scc1 {ld}')
        a('s_sleep 32')
        a(f's_branch {lp}')
        a.label(ld)
        a('s_waitcnt lgkmcnt(0)')
        a('s_barrier')

    def softmax(self, regs, V_M, V_M2, V_SUM, G_C=G_C):
        a = self.a
        a(f'v_max3_f32 v{V_M}, v{regs[0]}, v{regs[1]}, v{regs[2]}')
        r = regs[3:]
        while len(r) >= 2:
            a(f'v_max3_f32 v{V_M}, v{V_M}, v{r[0]}, v{r[1]}'); r = r[2:]
        if r: a(f'v_max_f32 v{V_M}, v{V_M}, v{r[0]}')
        a(f'v_mov_b32 v{V_M2}, v{V_M}')
        a(f'v_permlane32_swap_b32 v{V_M}, v{V_M2}')
        a(f'v_max_f32 v{V_M}, v{V_M}, v{V_M2}')
        a(f'v_mul_f32 v{V_M}, s{G_C}, v{V_M}')
        for x in regs: a(f'v_fma_f32 v{x}, v{x}, s{G_C}, -v{V_M}')
        for x in regs: a(f'v_exp_f32 v{x}, v{x}')
        a(f'v_add_f32 v{V_SUM}, v{regs[0]}, v{regs[1]}')
        a(f'v_add_f32 v{V_M2}, v{regs[2]}, v{regs[3]}')
        for i in range(4, len(regs), 2):
            a(f'v_add_f32 v{V_SUM}, v{V_SUM}, v{regs[i]}')
            a(f'v_add_f32 v{V_M2}, v{V_M2}, v{regs[i+1]}')
        a(f'v_add_f32 v{V_SUM}, v{V_SUM}, v{V_M2}')
        a(f'v_mov_b32 v{V_M2}, v{V_SUM}')
        a(f'v_permlane32_swap_b32 v{V_SUM}, v{V_M2}')
        a(f'v_add_f32 v{V_SUM}, v{V_SUM}, v{V_M2}')
        a(f'v_rcp_f32 v{V_SUM}, v{V_SUM}')

    def att(self, LNEXT):
        a = self.a; L = self.L; S = self.S
        V_BL, V_BS, V_AL, V_KML, V_VML, V_D0, V_FLA, V_FLB = 6, 7, 8, 9, 10, 11, 12, 13
        V_M, V_M2, V_SUM = 14, 15, 26
        V_PP = 16
        V_PP = 28
        V_PM = 40
        V_PK = 208
        V_BC, V_BP, V_BA = 64, 80, 96
        V_SC, V_SP = 112, 128
        V_O = 144
        A_Q, A_K, A_KM, A_V, A_VM = 0, 32, 64, 96, 128
        B_Q, B_K, B_V, B_KP, B_VP, B_VC = 160, 168, 176, 184, 192, 196
        NEG = f32(-1e30)
        T = G_PTR
        a(f's_mov_b32 s{G_C}, {f32(128 ** -0.5 * math.log2(math.e))}')
        a(f's_mov_b32 s{G_C2}, {f32(32 ** -0.5 * math.log2(math.e))}')
        G_STR, G_AEND, G_S2 = G_PS, G_WSO, G_WST
        G_NX = G_OUO
        S(G_J, [(G_ID, 0, 3, 2), (G_WV, 0, None, 0)])
        a(f's_lshl_b32 s{G_T0}, s{G_J}, 11')
        a(f'v_add_u32 v{V_BL}, s{G_T0}, v{V_L16}')
        L(V_KML, [(5, 1, 7), (0, 3, 4)], f's{G_T0}')
        a(f's_add_u32 s{G_T0}, s{G_T0}, {VM - KM}')
        L(V_VML, [(0, 5, 4), (5, 1, 3)], f's{G_T0}')
        a(f's_lshl_b32 s{G_T0}, s{G_J}, 13')
        a(f'v_add_u32 v{V_AL}, s{G_T0}, v{V_L16}')
        a(f'v_mov_b32 v{V_BS}, v{V_AL}')
        S(G_FA, [(G_J, 0, None, 7)], FLG + F_SLA)
        S(G_FB, [(G_J, 2, None, 7)], FLG + F_SLB)
        S(G_FR, [(G_J, 0, None, 7)], FLG + F_REC)
        S(G_T0, [(G_J, 0, None, 7)], FLG)
        a(f'v_mov_b32 v{V_FLA}, s{G_T0}')
        a(f'v_lshl_add_u32 v{V_FLB}, v{V_L}, 12, s{G_T0}')
        self.keep(V_FLA, 's_mov_b64 vcc, 1')
        lhelp = a.newlabel('at_help'); lcom = a.newlabel('at_com')
        a(f's_cmp_lt_u32 s{G_ID}, 120')
        a(f's_cbranch_scc1 {lhelp}')
        a(f's_mov_b32 s{G_SA}, 0')
        a(f's_mov_b32 s{G_SB}, 0')
        a(f's_mov_b32 s{G_STR}, 1')
        a(f's_mov_b32 s{G_AEND}, {N0}')
        a(f's_mov_b32 s{G_S2}, {N1 + 2}')
        if self.sync:
            li = a.newlabel('at_i')
            a(f'v_mov_b32 v{V_T0}, 0')
            a(f's_mov_b32 s{G_T0}, {F_ATB}')
            a(f'buffer_store_dword v{V_T0}, v{V_FLA}, {WS}, s{G_T0} offen sc1')
            a(f's_mov_b32 s{G_T0}, {F_ATA}')
            a(f'buffer_store_dword v{V_T0}, v{V_FLB}, {WS}, s{G_T0} offen sc1')
            a('s_waitcnt vmcnt(0)')
            a('s_barrier')
            self.mark(7)
            a(f's_cmp_lg_u32 s{G_WV}, 0')
            a(f's_cbranch_scc1 {li}')
            a('s_mov_b64 exec, 1')
            self.arrive()
            a.label(li)
        self.touch_wo()
        a(f's_load_dwordx2 s[{T}:{T+1}], s[0:1], {K_AX}')
        a(f's_load_dwordx2 s[{T+2}:{T+3}], s[0:1], {K_BX}')
        a(f's_load_dwordx2 s[{T+4}:{T+5}], s[0:1], {K_BWO}')
        a('s_waitcnt lgkmcnt(0)')
        srd(a, G_W, T, 4 * MB)
        srd(a, G_X, T + 2, 4 * MB)
        srd(a, G_W2, T + 4, 2 * MB)
        a(f's_lshl_b32 s{G_T0}, s{G_J}, 13')
        a(f'v_lshl_add_u32 v{V_D0}, v{V_L}, 7, s{G_T0}')
        a(f'buffer_load_dword v{V_O}, v{V_D0}, s[{G_W}:{G_W+3}], 0 offen')
        self.wait_start()
        for i in range(16):
            a(f's_mov_b32 s{G_T0}, {i * 262144}')
            a(f'buffer_load_dword v{V_O+2*i}, v{V_D0}, s[{G_W}:{G_W+3}], s{G_T0} offen')
            a(f'buffer_load_dword v{V_O+2*i+1}, v{V_D0}, s[{G_X}:{G_X+3}], s{G_T0} offen')
        for i in range(8):
            a(f's_mov_b32 s{G_T0}, {i * 262144}')
            a(f'buffer_load_dword v{V_O+32+i}, v{V_D0}, s[{G_W2}:{G_W2+3}], s{G_T0} offen')
        a(f's_branch {lcom}')
        a.label(lhelp)
        S(G_SA, [(G_ID, 3, None, 0)], N0)
        a(f's_mov_b32 s{G_SB}, {NSEG}')
        a(f's_mov_b32 s{G_STR}, 12')
        a(f's_mov_b32 s{G_AEND}, {N1}')
        S(G_S2, [(G_ID, 3, 1, 0)], N1)
        a(f's_cmp_lt_u32 s{G_ID}, {NOUT}')
        a(f's_cselect_b32 s{G_S2}, {NSEG}, s{G_S2}')
        a.label(lcom)
        L(V_D0, [(0, 5, 0)])
        L(V_T1, [(5, 1, 2)])
        a(f'v_sub_u32 v{V_D0}, v{V_D0}, v{V_T1}')
        def bias(dst, add):
            a(f'v_mov_b32 v{V_M}, {NEG}')
            for j in range(16):
                a(f'v_add_u32 v{V_T1}, {add - (8*(j>>2)+(j&3))}, v{V_D0}')
                a(f'v_and_b32 v{V_T1}, 0xfffffff1, v{V_T1}')
                a(f'v_cmp_ne_u32 vcc, 0, v{V_T1}')
                a(f'v_cndmask_b32 v{dst+j}, 0, v{V_M}, vcc')
        bias(V_BC, 0)
        for j in range(16):
            a(f'v_cmp_gt_i32 vcc, {8*(j>>2)+(j&3)}, v{V_D0}')
            a(f'v_cndmask_b32 v{V_BA+j}, 0, v{V_M}, vcc')
        for j in range(16): a(f'v_mov_b32 v{V_BP+j}, {NEG}')
        for j in range(12): a(f'v_accvgpr_write_b32 a{B_KP+j}, 0')
        for j in range(16): a(f'v_accvgpr_write_b32 a{A_VM+j}, 0')
        for j in range(4): a(f'v_mov_b32 v{V_PM+j}, 0')
        self.wait_dbg(D_INIT, NWG)
        top = a.newlabel('at_top'); la = a.newlabel('at_a'); lb = a.newlabel('at_b'); lend = a.newlabel('at_end'); lnb = a.newlabel('at_nb')
        lpoll = a.newlabel('at_poll'); lnf = a.newlabel('at_nf')
        G_DIRTY = G_SEEN
        def poll():
            if not self.sync: return
            a(f's_load_dwordx16 s[8:23], s[{G_WSP}:{G_WSP+1}], s{G_FR} glc')
            a(f's_load_dwordx4 s[{T+4}:{T+7}], s[{G_WSP}:{G_WSP+1}], s{G_FA} glc')
            a(f's_load_dwordx4 s[{T+8}:{T+11}], s[{G_WSP}:{G_WSP+1}], s{G_FB} glc')
        G_PV = G_R
        def post():
            a(f'v_mov_b32 v{V_T0}, s{G_PV}')
            a(f'buffer_store_dword v{V_T0}, v{V_FLA}, {WS}, s{G_DIRTY} offen sc1')
        def ld8(dst, base):
            for t in range(8):
                if t % 4 == 0: a(f's_add_u32 s{G_T0}, s{G_PO}, {base + t*1024}')
                a(f'buffer_load_dwordx4 {ar(dst+4*t,4)}, v{V_BS}, {WS}, s{G_T0} offen offset:{(t&3)*1024} sc1')
        def ldB(m, dst):
            a(f's_add_u32 s{G_T0}, s{G_XO}, {PB + m * PB_M}')
            for t in range(2): a(f'buffer_load_dwordx4 {ar(dst+4*t,4)}, v{V_BL}, {WS}, s{G_T0} offen offset:{t*1024} sc1')
        def nextseg():
            ln = a.newlabel('at_nx')
            a(f's_add_u32 s{G_NX}, s{G_SA}, s{G_STR}')
            a(f's_cmp_lt_u32 s{G_NX}, s{G_AEND}')
            a(f's_cbranch_scc1 {ln}')
            a(f's_max_u32 s{G_NX}, s{G_NX}, s{G_S2}')
            a(f's_cmp_eq_u32 s{G_AEND}, 255')
            a(f's_cselect_b32 s{G_NX}, s{G_NX}, s{G_S2}')
            a(f's_mov_b32 s{G_STR}, 3')
            a(f's_mov_b32 s{G_AEND}, 255')
            a.label(ln)
        nextseg()
        self.wait_flags_s(G_FB, 4, [0, 1, 2], 1)
        a(f's_mov_b32 s{G_XO}, 0')
        for m, dst in enumerate((B_Q, B_K, B_V)): ldB(m, dst)
        a(f's_add_u32 s{G_T1}, s{G_SA}, 1')
        self.wait_flags_s(G_FA, 4, [0, 1, 2], f's{G_T1}')
        a(f's_lshl_b32 s{G_PO}, s{G_SA}, 18')
        ld8(A_Q, PA); ld8(A_K, PA + PA_M); ld8(A_V, PA + 2 * PA_M)
        a(f's_mov_b32 s{G_DIRTY}, {F_DUM}')
        a(f's_mov_b32 s{G_PV}, 0')
        a(f's_mov_b32 s{G_END}, 0')
        a('s_waitcnt vmcnt(0)')
        self.acc(None)
        a.label(lpoll)
        poll()
        a.label(top)
        if self.sync:
            a('s_waitcnt lgkmcnt(0)')
            a(f's_min_u32 s{T}, s8, s12')
            for i in (16, 20): a(f's_min_u32 s{T}, s{T}, s{i}')
            for b in (4, 8):
                for i in (1, 2): a(f's_min_u32 s{T+b}, s{T+b}, s{T+b+i}')
            a(f's_min_u32 s{T+5}, s{G_NX}, {NSEG-1}')
            a(f's_cmp_gt_u32 s{T+4}, s{T+5}')
            a(f's_cselect_b32 s{T}, s{T}, 0')
            a(f's_min_u32 s{T}, s{T}, {NSEG}')
            a(f's_sub_u32 s{T+9}, s{T+8}, 1')
            a(f's_cmp_ge_u32 s{T+8}, {NSEG}')
            a(f's_cselect_b32 s{T+8}, {NSEG}, s{T+9}')
        else:
            a(f's_mov_b32 s{T}, {NSEG}'); a(f's_mov_b32 s{T+8}, {NSEG}')
        a(f's_cmp_lt_u32 s{G_SB}, s{T+8}')
        a(f's_cbranch_scc1 {lb}')
        a(f's_cmp_lt_u32 s{G_SA}, s{T}')
        a(f's_cbranch_scc1 {la}')
        a(f's_cmp_eq_u32 s{G_DIRTY}, {F_DUM}')
        a(f's_cbranch_scc1 {lnf}')
        a('s_waitcnt vmcnt(0)')
        post()
        a(f's_mov_b32 s{G_DIRTY}, {F_DUM}')
        a.label(lnf)
        a(f's_cmp_ge_u32 s{G_SA}, {NSEG}')
        a(f's_cselect_b32 s{G_T0}, s{G_SB}, 0')
        a(f's_cmp_ge_u32 s{G_T0}, {NSEG}')
        a(f's_cbranch_scc1 {lend}')
        self.spin_guard(lend)
        a('s_sleep 1')
        a(f's_branch {lpoll}')
        a.label(la)
        self.acc(0)
        G_KOK = G_END
        def ldkm():
            a('s_mov_b32 exec_lo, 0xff'); a('s_mov_b32 exec_hi, 0xff')
            for t in range(8): a(f'buffer_load_dwordx4 {ar(A_KM+4*t,4)}, v{V_KML}, {WS}, s{G_KMO} offen offset:{t*256} sc1')
            a('s_mov_b64 exec, -1')
        def ldvm():
            for e in range(4): a(f'buffer_load_dwordx2 {ar(A_VM+4*e,2)}, v{V_VML}, {WS}, s{G_KMO} offen offset:{e*512} sc1')
        lk1 = a.newlabel('at_k1'); lk2 = a.newlabel('at_k2'); lk3 = a.newlabel('at_k3'); lk4 = a.newlabel('at_k4')
        S(G_KMO, [(G_SA, 0, None, 16)], KM)
        a(f's_cmp_lg_u32 s{G_KOK}, 0')
        a(f's_cbranch_scc1 {lk1}')
        ldkm(); ldvm()
        a.label(lk1)
        S(G_OAO, [(G_SA, 0, None, 18)], OA)
        a(f's_cmp_lt_u32 s{G_NX}, s{T}')
        a(f's_cselect_b32 s{G_XMAX}, 1, 0')
        a(f's_cmp_lt_u32 s{G_NX}, {NSEG}')
        a(f's_cselect_b32 s{G_T1}, s{G_NX}, s{G_SA}')
        a(f's_cselect_b32 s{G_T0}, 0, {OOB}')
        a(f'v_or_b32 v{V_BS}, s{G_T0}, v{V_AL}')
        a(f's_lshl_b32 s{G_PO}, s{G_T1}, 18')
        S(G_KMO, [(G_T1, 0, None, 16)], KM)
        poll()
        for t in range(8):
            a(f'v_mfma_f32_32x32x16_bf16 {vr(V_SC,16)}, {ar(A_K+4*t,4)}, {ar(A_Q+4*t,4)}, {vr(V_SC if t else V_BA,16)}')
        a(f's_cmp_lg_u32 s{G_KOK}, 0')
        a(f's_cbranch_scc1 {lk2}')
        a('s_waitcnt vmcnt(4)')
        a.label(lk2)
        ld8(A_K, PA + PA_M)
        for t in range(8):
            a(f'v_mfma_f32_32x32x16_bf16 {vr(V_SP,16)}, {ar(A_KM+4*t,4)}, {ar(A_Q+4*t,4)}, {vr(V_SP,16) if t else 0}')
        self.acc(1)
        a(f's_mov_b32 s{G_KOK}, s{G_XMAX}')
        ld8(A_Q, PA)
        a(f's_cmp_eq_u32 s{G_KOK}, 0')
        a(f's_cbranch_scc1 {lk3}')
        ldkm()
        a.label(lk3)
        self.softmax([V_SC + j for j in range(16)] + [V_SP + j for j in range(4)], V_M, V_M2, V_SUM)
        for j in range(8): a(f'v_cvt_pk_bf16_f32 v{V_PP+j}, v{V_SC+2*j}, v{V_SC+2*j+1}')
        for j in range(2): a(f'v_cvt_pk_bf16_f32 v{V_PM+j}, v{V_SP+2*j}, v{V_SP+2*j+1}')
        def fin(e):
            O = V_O + 16 * e; PK = V_PK + 8 * e
            r = [f'v_mul_f32 v{O+j}, v{O+j}, v{V_SUM}' for j in range(16)]
            r += [f'v_cvt_pk_bf16_f32 v{PK+j}, v{O+2*j}, v{O+2*j+1}' for j in range(8)]
            return r
        def pv(e):
            O = vr(V_O + 16 * e, 16)
            return [f'v_mfma_f32_32x32x16_bf16 {O}, {ar(A_V+8*e,4)}, {vr(V_PP,4)}, 0',
                    f'v_mfma_f32_32x32x16_bf16 {O}, {ar(A_V+8*e+4,4)}, {vr(V_PP+4,4)}, {O}',
                    f'v_mfma_f32_32x32x16_bf16 {O}, {ar(A_VM+4*e,4)}, {vr(V_PM,4)}, {O}']
        a('s_waitcnt vmcnt(16)')
        post()
        for m in pv(0) + pv(1): a(m)
        q = fin(0) + fin(1)
        for m in pv(2) + pv(3):
            a(m)
            for _ in range(6): a(q.pop(0))
        ld8(A_V, PA + 2 * PA_M)
        a(f's_cmp_eq_u32 s{G_KOK}, 0')
        a(f's_cbranch_scc1 {lk4}')
        ldvm()
        a.label(lk4)
        for x in q + fin(2) + fin(3): a(x)
        for e in range(4):
            if e % 2 == 0: a(f's_add_u32 s{G_T0}, s{G_OAO}, {e*2048}')
            for t in range(2): a(f'buffer_store_dwordx4 {vr(V_PK+8*e+4*t,4)}, v{V_AL}, {WS}, s{G_T0} offen offset:{(e&1)*2048+t*1024} sc1')
        a(f's_mov_b32 s{G_PV}, 1')
        S(G_DIRTY, [(G_SA, 0, None, 12)], F_ATA)
        a(f's_mov_b32 s{G_SA}, s{G_NX}')
        nextseg()
        self.acc(2)
        a('s_waitcnt vmcnt(17)')
        self.acc(3)
        a(f's_branch {top}')
        a.label(lb)
        self.acc(0)
        poll()
        S(G_OBO, [(G_SB, 0, None, 16)], OB)
        a(f's_add_u32 s{G_T1}, s{G_SB}, 1')
        a(f's_min_u32 s{G_T1}, s{G_T1}, {NSEG-1}')
        a(f's_lshl_b32 s{G_XO}, s{G_T1}, 16')
        a(f'v_mfma_f32_32x32x16_bf16 {vr(V_SP,16)}, {ar(B_KP,4)}, {ar(B_Q,4)}, {vr(V_BP,16)}')
        a(f'v_mfma_f32_32x32x16_bf16 {vr(V_SP,16)}, {ar(B_KP+4,4)}, {ar(B_Q+4,4)}, {vr(V_SP,16)}')
        a(f'v_mfma_f32_32x32x16_bf16 {vr(V_SC,16)}, {ar(B_K,4)}, {ar(B_Q,4)}, {vr(V_BC,16)}')
        a(f'v_mfma_f32_32x32x16_bf16 {vr(V_SC,16)}, {ar(B_K+4,4)}, {ar(B_Q+4,4)}, {vr(V_SC,16)}')
        for j in range(8): a(f'v_accvgpr_mov_b32 a{B_KP+j}, a{B_K+j}')
        for j in range(8): a(f'v_accvgpr_mov_b32 a{B_VC+j}, a{B_V+j}')
        for m, dst in enumerate((B_Q, B_K, B_V)): ldB(m, dst)
        self.softmax([V_SP + 8 + j for j in range(8)] + [V_SC + j for j in range(16)], V_M, V_M2, V_SUM, G_C2)
        for j in range(8): a(f'v_cvt_pk_bf16_f32 v{V_PP+j}, v{V_SC+2*j}, v{V_SC+2*j+1}')
        for j in range(4): a(f'v_cvt_pk_bf16_f32 v{V_PP+8+j}, v{V_SP+8+2*j}, v{V_SP+8+2*j+1}')
        O = vr(V_O, 16)
        a(f'v_mfma_f32_32x32x16_bf16 {O}, {ar(B_VC,4)}, {vr(V_PP,4)}, 0')
        a(f'v_mfma_f32_32x32x16_bf16 {O}, {ar(B_VC+4,4)}, {vr(V_PP+4,4)}, {O}')
        a(f'v_mfma_f32_32x32x16_bf16 {O}, {ar(B_VP,4)}, {vr(V_PP+8,4)}, {O}')
        for j in range(4): a(f'v_accvgpr_mov_b32 a{B_VP+j}, a{B_VC+4+j}')
        self.acc(4)
        a('s_waitcnt vmcnt(6)')
        self.acc(5)
        post()
        a(f's_cmp_lg_u32 s{G_SB}, 0')
        a(f's_cbranch_scc1 {lnb}')
        bias(V_BP, 32)
        a.label(lnb)
        for j in range(16): a(f'v_mul_f32 v{V_O+j}, v{V_O+j}, v{V_SUM}')
        for j in range(8): a(f'v_cvt_pk_bf16_f32 v{V_PK+j}, v{V_O+2*j}, v{V_O+2*j+1}')
        for t in range(2):
            for j in range(2): a(f'v_permlane32_swap_b32 v{V_PK+4*t+j}, v{V_PK+4*t+2+j}')
        for t in range(2): a(f'buffer_store_dwordx4 {vr(V_PK+4*t,4)}, v{V_BL}, {WS}, s{G_OBO} offen offset:{t*1024} sc1')
        a(f's_add_u32 s{G_SB}, s{G_SB}, 1')
        a(f's_mov_b32 s{G_DIRTY}, {F_ATB}')
        a(f's_mov_b32 s{G_PV}, s{G_SB}')
        if self.prof:
            lm = a.newlabel('at_m')
            a(f's_cmp_lg_u32 s{G_SB}, {NSEG}')
            a(f's_cbranch_scc1 {lm}')
            self.mark(1)
            a.label(lm)
        self.acc(6)
        a('s_waitcnt vmcnt(3)')
        self.acc(7)
        a(f's_branch {top}')
        a.label(lend)
        a('s_waitcnt vmcnt(0) lgkmcnt(0)')
        self.mark(5)
        self.mark(6)
        a(f's_branch {LNEXT}')

    def out64(self, LNEXT, NF=16, SLP=10):
        a = self.a; L = self.L; S = self.S
        P = G_PTR
        NR = NOUT // 16
        V_G, V_TR, V_FA, V_RW, V_RR, V_OUT, V_FP, V_FR = 6, 7, 8, 9, 10, 11, 12, 13
        V_LW = 16
        V_AC = 32
        V_F = 64
        V_W = 128
        RB = 131072
        G_NXT, G_NOK, G_FSO = G_XO, G_END, G_XMAX
        a(f's_load_dwordx2 s[{P}:{P+1}], s[0:1], {K_WO}')
        a(f's_load_dwordx2 s[{P+2}:{P+3}], s[0:1], {K_OUT}')
        a(f's_mul_i32 s{G_J}, s{G_ID}, {-(-1024 // NR)}')
        a(f's_lshr_b32 s{G_J}, s{G_J}, 10')
        assert all((i * -(-1024 // NR)) >> 10 == i // NR for i in range(NOUT))
        a(f's_mul_i32 s{G_T0}, s{G_J}, {NR}')
        a(f's_sub_u32 s{G_SEG}, s{G_ID}, s{G_T0}')
        a('s_waitcnt lgkmcnt(0)')
        srd(a, G_W, P, 8 * MB)
        srd(a, G_OUT, P + 2, 8 * MB)
        S(G_T0, [(G_WV, 0, None, 21), (G_J, 0, None, 7)])
        L(V_G, [(3, 3, 11), (0, 3, 4)], f's{G_T0}')
        a(f's_lshl_b32 s{G_T0}, s{G_WV}, 15')
        L(V_TR, [(5, 1, 9), (2, 2, 7), (4, 1, 5), (0, 2, 3)], f's{G_T0}')
        def wreg(t, tile):
            return f'a[{8*t+4*tile}:{8*t+4*tile+3}]' if t < 32 else vr(V_W + 8 * (t - 32) + 4 * tile, 4)
        def rds(p):
            if p >= 48: return []
            f, b = ('a', 8 * p) if p < 32 else ('v', V_W + 8 * (p - 32))
            return [(f'{f}[{b+4*tl+2*q}:{b+4*tl+2*q+1}]', V_TR, tl * 64 + q * 1024) for tl in range(2) for q in range(2)]
        self.load_weights([(G_W, V_G, 64, rds, '0', '16384')])
        self.mark(4)
        a(f's_lshl_b32 s{G_T0}, s{G_WV}, 16')
        a(f'v_add_u32 v{V_FA}, s{G_T0}, v{V_L16}')
        S(G_T0, [(G_WV, 0, None, 13)], RB)
        a(f'v_add_u32 v{V_RW}, s{G_T0}, v{V_L16}')
        S(G_T0, [(G_WV, 0, None, 7)], RB)
        L(V_RR, [(1, 2, 10), (0, 1, 9), (3, 3, 4)], f's{G_T0}')
        S(G_T0, [(G_WV, 0, None, 15), (G_J, 0, None, 7)])
        L(V_OUT, [(3, 3, 12), (0, 3, 3)], f's{G_T0}')
        L(V_FP, [(0, 5, 7)], FLG)
        self.wait_dbg(D_INIT, NWG)
        def flagoff(seg):
            S(G_FSO, [(seg, 0, 6, 12)], F_ATA)
        order = []
        for i in range(16): order += [3 * i, 3 * i + 1, 3 * i + 2, 48 + i]
        def ldA(n, base):
            t = order[n]
            a(f's_add_u32 s{G_T0}, s{base}, {t*1024}')
            a(f'buffer_load_dwordx4 {vr(V_F+4*(n%NF),4)}, v{V_FA}, {WS}, s{G_T0} offen sc1')
        def ldW(i):
            for tl in range(2):
                for q in range(2):
                    r = V_LW + 8 * (i % 2) + 4 * tl + 2 * q
                    a(f'ds_read_b64_tr_b16 v[{r}:{r+1}], v{V_TR} offset:{i*2048+tl*64+q*1024}')
        lp = a.newlabel('o6_loop'); lgo = a.newlabel('o6_go'); lw = a.newlabel('o6_w'); lwd = a.newlabel('o6_wd')
        self.acc(None)
        a.label(lp)
        S(G_OAO, [(G_SEG, 0, None, 18)], OA)
        if self.sync:
            flagoff(G_SEG)
            a.label(lw)
            a(f'buffer_load_dword v{V_FR}, v{V_FP}, {WS}, s{G_FSO} offen sc1')
            self.spin_guard(lwd)
            a('s_waitcnt vmcnt(0)')
            a(f'v_cmp_eq_u32 vcc, 0, v{V_FR}')
            a(f's_cbranch_vccz {lwd}')
            a(f's_sleep {SLP}')
            a(f's_branch {lw}')
            a.label(lwd)
        for n in range(NF - 1): ldA(n, G_OAO)
        a.label(lgo)
        self.acc(0)
        a(f's_lshl_b32 s{G_OUO}, s{G_SEG}, 17')
        a(f's_add_u32 s{G_NXT}, s{G_SEG}, {NR}')
        flagoff(G_NXT)
        ldW(0)
        FL = 24
        for n in range(64):
            t = order[n]
            extra = 1 if (FL < n <= FL + NF - 1) else 0
            a(f's_waitcnt vmcnt({NF - 2 + extra})')
            x = vr(V_F + 4 * (n % NF), 4)
            if t >= 48: a('s_waitcnt lgkmcnt(0)')
            for tl in range(2):
                w = wreg(t, tl) if t < 48 else vr(V_LW + 8 * ((t - 48) % 2) + 4 * tl, 4)
                D = vr(V_AC + 16 * tl, 16)
                a(f'v_mfma_f32_32x32x16_bf16 {D}, {w}, {x}, {D if n else 0}')
                if tl == 0:
                    m = n + NF - 1
                    if m == 64:
                        a(f'v_cmp_eq_u32 vcc, 0, v{V_FR}')
                        S(G_KMO, [(G_NXT, 0, None, 18)], OA)
                        a(f's_cmp_eq_u64 vcc, 0')
                        a(f's_cselect_b32 s{G_NOK}, 1, 0')
                        a(f's_cmp_ge_u32 s{G_NXT}, {NSEG}')
                        a(f's_cselect_b32 s{G_NOK}, 0, s{G_NOK}')
                        a(f's_cmp_eq_u32 s{G_NOK}, 0')
                        a(f's_cselect_b32 s{G_KMO}, s{G_OAO}, s{G_KMO}')
                    ldA(m % 64, G_OAO if m < 64 else G_KMO)
                    if n == FL:
                        if self.sync: a(f'buffer_load_dword v{V_FR}, v{V_FP}, {WS}, s{G_FSO} offen sc1')
                        else: a(f'buffer_load_dword v{V_T1}, v{V_FP}, {WS}, s{G_FSO} offen sc1'); a(f'v_mov_b32 v{V_FR}, 127')
            if t >= 48 and t < 63: ldW(t - 48 + 1)
        self.acc(1)
        a('s_barrier')
        for b in range(8): a(f'ds_write_b128 v{V_RW}, {vr(V_AC+4*b,4)} offset:{b*1024}')
        a('s_waitcnt lgkmcnt(0)')
        a('s_barrier')
        for h in range(2):
            for w in range(4): a(f'ds_read_b128 {vr(V_AC+16*h+4*w,4)}, v{V_RR} offset:{h*4096+w*8192}')
        for h in range(2):
            R = V_AC + 16 * h
            a(f's_waitcnt lgkmcnt({4-4*h})')
            for j in (0, 2): a(f'v_pk_add_f32 {vr(R+j,2)}, {vr(R+j,2)}, {vr(R+4+j,2)}')
            for j in (0, 2): a(f'v_pk_add_f32 {vr(R+8+j,2)}, {vr(R+8+j,2)}, {vr(R+12+j,2)}')
            for j in (0, 2): a(f'v_pk_add_f32 {vr(R+j,2)}, {vr(R+j,2)}, {vr(R+8+j,2)}')
            for j in range(2): a(f'v_cvt_pk_bf16_f32 v{V_LW+8+2*h+j}, v{R+2*j}, v{R+2*j+1}')
            a(f'buffer_store_dwordx2 {vr(V_LW+8+2*h,2)}, v{V_OUT}, s[{G_OUT}:{G_OUT+3}], s{G_OUO} offen offset:{h*64}{self.ost}')
        self.acc(2)
        a(f's_mov_b32 s{G_SEG}, s{G_NXT}')
        a(f's_mov_b32 s{G_OAO}, s{G_KMO}')
        a(f's_cmp_lg_u32 s{G_NOK}, 0')
        a(f's_cbranch_scc1 {lgo}')
        a(f's_cmp_lt_u32 s{G_SEG}, {NSEG}')
        a(f's_cbranch_scc1 {lp}')
        self.mark(5)
        a(f's_branch {LNEXT}')
```

```python
MB = 1 << 20
NSEG = 64
PA = 0
PA_M = 16 * MB
PB = 48 * MB
PB_M = 4 * MB
OA = 64 * MB
OB = 80 * MB
KM = 84 * MB
VM = 88 * MB
SCB = 92 * MB
FLG = 110 * MB
HOFF = 112 * MB
NPAGE = 9
SLOT = 256 * 1024
WOF = 132 * MB
TRACE = 140 * MB
WS_BYTES = 268435456
K_AX, K_MEM0, K_WQ, K_WK, K_WV, K_WO, K_SEG, K_BX, K_WQKV, K_BWO, K_OUT, K_DBG, K_WS = [8 * i for i in range(13)]
OOB = 0x7f000000
D_INIT = 0
D_RDY = 32
F_SLA = 0
F_SLB = 4096
F_REC = 8192
F_ATB = 16384
F_DUM = 20480
F_ATA = 32768
N0 = 6
N1 = 30
NOUT = 80
NWG = 256
NARR = 224 + 32 * 4
D_ROT = 48
S_ROT, S_BAD = 70, 71
VOTE_SH = 0
BAD_SH = 16
def validate(a, vreg, vz, dbg, spin, t0):
    lp = a.newlabel('val'); lc = a.newlabel('valc'); ok = a.newlabel('valok')
    a(f's_branch {lc}')
    a.label(lp)
    a(f'v_mov_b32 v{vz}, 0')
    a(f'global_load_dword v{vreg}, v{vz}, s[{dbg}:{dbg+1}] offset:{4*D_ROT} sc1')
    a(f's_add_u32 s{spin}, s{spin}, 1')
    a(f's_cmp_ge_u32 s{spin}, 0x80000')
    a('s_cbranch_scc1 L_end')
    a('s_waitcnt vmcnt(0)')
    a.label(lc)
    a(f'v_readfirstlane_b32 s{t0}, v{vreg}')
    a(f's_cmp_eq_u32 s{t0}, s{S_ROT}')
    a(f's_cbranch_scc1 {ok}')
    a(f's_cmp_eq_u32 s{t0}, 0')
    a(f's_cbranch_scc1 {lp}')
    a(f's_mov_b32 s{S_ROT}, s{t0}')
    a(f's_mov_b32 s{S_BAD}, {1 << BAD_SH}')
    a('s_waitcnt vmcnt(0) lgkmcnt(0)')
    a('s_barrier')
    a('s_branch L_role')
    a.label(ok)
```

```python
from asmlib import *
from layout import *
import math, struct

def srd(a, s, ptr, nbytes):
    a(f's_mov_b32 s{s}, s{ptr}')
    a(f's_and_b32 s{s+1}, s{ptr+1}, 0xffff')
    a(f's_mov_b32 s{s+2}, {nbytes}')
    a(f's_mov_b32 s{s+3}, 0x00020000')

def lane(a, dst, tmp, VL, terms, add=None):
    first = True
    for sh, w, out in terms:
        t = dst if first else tmp
        if sh + w >= 6: a(f'v_lshrrev_b32 v{t}, {sh}, v{VL}')
        elif sh == 0: a(f'v_and_b32 v{t}, {(1 << w) - 1}, v{VL}')
        else: a(f'v_bfe_u32 v{t}, v{VL}, {sh}, {w}')
        if first:
            if out: a(f'v_lshlrev_b32 v{dst}, {out}, v{dst}')
        else: a(f'v_lshl_add_u32 v{dst}, v{tmp}, {out}, v{dst}')
        first = False
    if add is not None: a(f'v_add_u32 v{dst}, {add}, v{dst}')

def sexpr(a, dst, tmp, terms, const=0):
    first = True
    for sreg, sh, w, out in terms:
        t = dst if first else tmp
        src = sreg
        if sh: a(f's_lshr_b32 s{t}, s{src}, {sh}'); src = t
        if w is not None: a(f's_and_b32 s{t}, s{src}, {(1 << w) - 1}'); src = t
        if out: a(f's_lshl_b32 s{t}, s{src}, {out}'); src = t
        if first:
            if src != dst: a(f's_mov_b32 s{dst}, s{src}')
        else: a(f's_add_u32 s{dst}, s{dst}, s{src}')
        first = False
    if const: a(f's_add_u32 s{dst}, s{dst}, {const}')

S_PFL = 3
S_WS = 4
S_WQ = 8
S_WO = 20
S_M0 = 24
S_RID, S_H, S_I, S_W, S_STEP = 28, 29, 30, 31, 32
S_SL0, S_SL1, S_SL2 = 33, 34, 35
S_SC, S_KV = 36, 37
S_T0, S_T1, S_T2 = 38, 39, 40
S_SPIN = 41
S_MLO8 = 42
S_MHI = 44
S_MHI8 = 46
S_PAR = 48
S_HB = 49
S_C = 50
S_KXB = 51
S_TS = 52
S_TAG = 54
S_MBO = 55
S_MK = 56
S_PTR = 72
S_NSO = 88
S_WSP = 90
S_DBG = 92
S_SEEN, S_FKV, S_FAST, S_FRO = 94, 95, 96, 97
S_NSI, S_NBO, S_NBI = 89, 98, 99

L_QK = 0
L_V = 10240
L_OP = 14336
L_X = 15360
L_KX = 16384

def gen_rec(a, prof=0, nsteps=NSEG, sync=False, DA=1, DB=2, DC=0, PLAINB=1, TPOS=1, TA=0, NEAR=1, ILA=4, ILC=4, SEP=0, ROT=0, OMAP=0, RDYP=26, MIX=0, TW=1, KC=2, KA=1, CJ=3, LB=1, RING=0, ASY=1, NSP=0, ZD=0, XP=0):
    V_L, V_T0, V_T1, V_T2 = 1, 2, 3, 4
    V_IDX = 5
    V_MEMST, V_AOFF, V_COFF, V_COFF2 = 6, 7, 12, 13
    V_FF = 8
    V_QKW, V_QKW2, V_L16, V_VW, V_QKR, V_SCST, V_SCST2, V_SCLM = 14, 15, 16, 17, 18, 19, 20, 21
    V_SCL = [22, 23, 24]
    V_VR, V_VR2, V_OST, V_OPW, V_OPR, V_PFG, V_CK = 25, 26, 27, 28, 29, 30, 31
    V_ONE = 32
    V_MA = 36
    V_VX, V_KX = 52, 60
    V_D = 68
    V_S = 68
    V_PTG, V_NSA, V_SCCL, V_OCL = 92, 93, 94, 95
    V_X = 96
    V_R = 100
    V_TKST, V_TKSA, V_TG, V_M, V_M2 = 132, 133, 134, 135, 136
    V_VM = 138
    V_ZZ = 144
    V_TR = 148
    V_P = 156
    V_LD = 164
    V_NS = 180
    V_GQ, V_GO, V_TRQ, V_TRO = 184, 185, 186, 187
    V_FRA, V_NBA = 137, 26
    V_NB = 188
    V_FRV = V_NB
    V_CK2 = 4
    TRMAP = {0: 0, 2: 1, 5: 3, 8: 4, 10: 5, 'b': 2, 7: 6, 11: 7}
    TSR = [8, 10, 12, 14, 16, 18, 58, 20, 22, 24, 26, 56]
    def ts(k):
        if prof != 3: return
        r = 56 if k == 0 else (58 if k == 'o' else 8 + 2 * k)
        a(f's_memtime s[{r}:{r+1}]')
    def harvest():
        if prof != 3: return
        a('s_waitcnt lgkmcnt(0)')
        lh = a.newlabel('hv')
        a(f's_cmp_le_u32 s{S_STEP}, 3')
        a(f's_cbranch_scc1 {lh}')
        for k in range(1, 12):
            a(f's_sub_u32 s{S_TS}, s{TSR[k]}, s{TSR[k-1]}')
            a(f'v_readlane_b32 s{S_TS+1}, v{V_TR+1}, {k}')
            a(f's_add_u32 s{S_TS}, s{S_TS}, s{S_TS+1}')
            a(f'v_writelane_b32 v{V_TR+1}, s{S_TS}, {k}')
        a.label(lh)
        a('s_mov_b32 s8, s56')
    def stamp(k):
        if prof not in (1, 2): return
        e = TRMAP[k]
        if prof == 2 and k not in (5, 10, 7, 11): return
        lsk = a.newlabel('st')
        a(f's_cmp_eq_u32 s{S_W}, 3')
        a(f's_cbranch_scc1 {lsk}')
        a(f's_memrealtime s[{S_TS}:{S_TS+1}]')
        a('s_waitcnt lgkmcnt(0)')
        if k in (10, 11):
            a(f's_sub_u32 s{S_TS+1}, s{S_STEP}, 1')
            a(f's_mov_b32 m0, s{S_TS+1}')
        else:
            a(f's_mov_b32 m0, s{S_STEP}')
        a(f's_lshl_b32 s{S_TS}, s{S_TS}, 8')
        a(f's_and_b32 s{S_TS+1}, s{S_SPIN}, 0xff')
        a(f's_or_b32 s{S_TS}, s{S_TS}, s{S_TS+1}')
        a(f'v_writelane_b32 v{V_TR+e}, s{S_TS}, m0')
        a.label(lsk)
    def pmark(e):
        if prof == 5:
            if e in (2, 3, 7, 0):
                a(f's_memrealtime s[{S_TS}:{S_TS+1}]')
                a('s_waitcnt lgkmcnt(0)')
                a(f'v_mov_b32 v{V_TR}, s{S_TS}'); a(f'v_mov_b32 v{V_TR+1}, 0')
                a('s_mov_b64 exec, 1')
                a(f'global_atomic_umax v{V_TR+1}, v{V_TR}, s[{S_DBG}:{S_DBG+1}] offset:{4*{2: 1, 3: 2, 7: 3, 0: 4}[e]} sc1')
                a('s_mov_b64 exec, -1')
            return
        if not prof: return
        a(f's_memrealtime s[{S_TS}:{S_TS+1}]')
        a('s_waitcnt lgkmcnt(0)')
        a(f's_lshl_b32 s{S_TS}, s{S_TS}, 8')
        a(f'v_writelane_b32 v{V_TR+e}, s{S_TS}, 63')
    def L(dst, terms, add=None): lane(a, dst, V_T2, V_L, terms, add)
    def S(dst, terms, const=0): sexpr(a, dst, S_T2, terms, const)
    def spin_guard(lgive):
        a(f's_add_u32 s{S_SPIN}, s{S_SPIN}, 1')
        a(f's_cmp_ge_u32 s{S_SPIN}, 0x80000')
        a(f's_cbranch_scc1 {lgive}')
    def keep(reg, cond):
        a(cond)
        a(f'v_mov_b32 v{V_T2}, {OOB}')
        a(f'v_cndmask_b32 v{reg}, v{V_T2}, v{reg}, vcc')

    P = S_PTR
    a(f's_load_dwordx2 s[{P}:{P+1}], s[0:1], {K_MEM0}')
    a(f's_load_dwordx4 s[{P+4}:{P+7}], s[0:1], {K_WQ}')
    a(f's_load_dwordx4 s[{P+8}:{P+11}], s[0:1], {K_WV}')
    a(f's_load_dwordx2 s[{S_WSP}:{S_WSP+1}], s[0:1], {K_WS}')
    a(f's_load_dwordx2 s[{S_DBG}:{S_DBG+1}], s[0:1], {K_DBG}')
    a(f'v_and_b32 v{V_L}, 63, v0')
    a(f'v_lshrrev_b32 v{V_T0}, 6, v0')
    a(f'v_readfirstlane_b32 s{S_W}, v{V_T0}')
    a(f's_lshr_b32 s{S_H}, s{S_RID}, 2')
    a(f's_and_b32 s{S_I}, s{S_RID}, 3')
    a(f's_mov_b32 s{S_SPIN}, 0')
    if prof: a('s_mov_b32 s100, 0'); a('s_mov_b32 s101, 0')
    a('s_waitcnt lgkmcnt(0)')
    srd(a, S_M0, P, 16384)
    srd(a, S_WQ, P + 4, 8 * MB)
    srd(a, S_WQ + 4, P + 6, 8 * MB)
    srd(a, S_WQ + 8, P + 8, 8 * MB)
    srd(a, S_WO, P + 10, 8 * MB)
    srd(a, S_WS, S_WSP, WS_BYTES)
    WS = f's[{S_WS}:{S_WS+3}]'
    a(f's_sub_u32 s{S_HB}, 0, s{S_WSP}')
    a(f's_and_b32 s{S_HB}, s{S_HB}, {2*MB-1}')
    a(f's_add_u32 s{S_HB}, s{S_HB}, {HOFF}')

    if prof:
        for e in range(8): a(f'v_mov_b32 v{V_TR+e}, 0')
    lsk = a.newlabel('rec_cal')
    a(f's_mov_b32 s{S_PAR}, 1')
    a(f's_cmp_lg_u32 s{S_W}, 3')
    a(f's_cbranch_scc1 {lsk}')
    S(S_T0, [(S_RID, 0, 3, 21), (S_RID, 3, 1, 13), (S_RID, 4, 3, 8), (S_HB, 0, None, 0)], 15 * 16384)
    S(S_T1, [(S_RID, 3, 1, 14)])
    a(f's_sub_u32 s{S_T1}, s{S_T0}, s{S_T1}')
    a(f's_add_u32 s{S_T1}, s{S_T1}, 8192')
    a(f's_load_dword s{P+8}, s[{S_WSP}:{S_WSP+1}], s{S_T0} glc')
    a(f's_load_dword s{P+9}, s[{S_WSP}:{S_WSP+1}], s{S_T1} glc')
    for k in range(2):
        a('s_waitcnt lgkmcnt(0)')
        a(f's_memtime s[{P+4}:{P+5}]')
        a('s_waitcnt lgkmcnt(0)')
        a(f's_load_dword s{P+8}, s[{S_WSP}:{S_WSP+1}], s{S_T0+k} glc')
        a('s_waitcnt lgkmcnt(0)')
        a(f's_memtime s[{P+6}:{P+7}]')
        a('s_waitcnt lgkmcnt(0)')
        a(f's_sub_u32 s{P+k}, s{P+6}, s{P+4}')
    a(f's_cmp_lt_u32 s{P+1}, s{P}')
    a(f's_cselect_b32 s{S_T0}, 1, 0')
    a(f's_lshr_b32 s{S_T1}, s{S_RID}, 3')
    a(f's_xor_b32 s{S_T0}, s{S_T0}, s{S_T1}')
    a(f's_xor_b32 s{S_T0}, s{S_T0}, s{S_RID}')
    S(S_PAR, [(S_T0, 0, 1, VOTE_SH)], 1)
    a.label(lsk)
    pmark(2)
    S(S_T0, [(S_W, 0, None, 21), (S_RID, 0, None, 6)])
    L(V_GQ, [(2, 4, 13), (0, 2, 4)], f's{S_T0}')
    S(S_T0, [(S_W, 0, None, 21), (S_RID, 1, None, 5)])
    L(V_GO, [(1, 5, 11), (0, 1, 4)], f's{S_T0}')
    S_LB = S_SL0
    a(f's_lshl_b32 s{S_LB}, s{S_W}, 15')
    L(V_TRQ, [(4, 2, 9), (2, 2, 6), (0, 2, 3)], f's{S_LB}')
    L(V_TRO, [(4, 2, 8), (2, 2, 5), (0, 2, 3)], f's{S_LB}')
    pairs = []
    def wq_reg(kb, tile): return ('a', (kb * 6 + tile) * 8)
    def wo_reg(kb):
        return ('a', 192 + kb * 8) if kb < 8 else ('v', 192 + (kb - 8) * 8)
    for kb in range(4):
        for hf32 in range(2):
            for m in range(3):
                k0 = kb * 64 + hf32 * 32
                ld = [(S_WQ + 4 * m, V_GQ, (k0 + 16 * j) * 8192) for j in range(2)]
                rd = []
                for t in range(2):
                    f, b = wq_reg(kb, m * 2 + t)
                    for q in range(2):
                        r0 = b + hf32 * 4 + q * 2
                        rd.append((f'{f}[{r0}:{r0+1}]', V_TRQ, t * 32 + q * 256))
                pairs.append((ld, rd))
    NW = 0
    wop = []
    for kb in range(16):
        ld = [(S_WO, V_GO, (kb * 64 + 32 * j) * 2048) for j in range(2)]
        rd = []
        f, b = wo_reg(kb)
        for j in range(2):
            for q in range(2):
                r0 = b + j * 4 + q * 2
                rd.append((f'{f}[{r0}:{r0+1}]', V_TRO, j * 1024 + q * 128))
        wop.append((ld, rd))
    mix = []
    for g in range(8): mix += [wop[2*g], pairs[3*g], pairs[3*g+1], wop[2*g+1], pairs[3*g+2]]
    pairs = mix if MIX else pairs + wop
    NSL = 16
    def issue(p):
        ld, _ = pairs[p]
        for j, (sd, vo, so) in enumerate(ld):
            a(f's_add_u32 m0, s{S_LB}, {(p % NSL) * 2048 + j * 1024}')
            a(f's_mov_b32 s{S_T0}, {so}')
            a(f'buffer_load_dwordx4 v{vo}, s[{sd}:{sd+3}], s{S_T0} offen lds')
    issued = 0
    FB = NSL if NW else 6
    for p in range(FB):
        issue(p); issued += 1
    L(V_T0, [(1, 1, 0)])
    a(f'v_mov_b32 v{V_T1}, 0xaaaa')
    a(f'v_mul_u32_u24 v{V_T0}, v{V_T0}, v{V_T1}')
    a(f'v_add_u32 v{V_IDX}, 0x4444, v{V_T0}')
    a(f'v_lshlrev_b32 v{V_L16}, 4, v{V_L}')
    BLK = 16384
    S(S_T0, [(S_RID, 6, None, 14), (S_RID, 0, 6, 7)], 8 * BLK)
    a(f'v_lshl_add_u32 v{V_MEMST}, v{V_L}, 2, s{S_T0}')
    S(S_T0, [(S_W, 1, None, 14), (S_W, 0, 1, 12)], 8 * BLK)
    a(f'v_add_u32 v{V_AOFF}, s{S_T0}, v{V_L16}')
    S(S_T0, [(S_RID, 0, 1, 16), (S_W, 0, None, 14)])
    a(f'v_add_u32 v{V_COFF}, s{S_T0}, v{V_L16}')
    a(f'v_add_u32 v{V_COFF2}, 4096, v{V_COFF}')
    a(f'v_lshrrev_b32 v{V_T0}, 4, v{V_L}')
    a(f'v_mul_u32_u24 v{V_T0}, 320, v{V_T0}')
    a(f'v_and_b32 v{V_T1}, 15, v{V_L}')
    a(f'v_lshl_add_u32 v{V_T0}, v{V_T1}, 2, v{V_T0}')
    a(f's_mul_i32 s{S_T0}, s{S_W}, 2560')
    a(f'v_add_u32 v{V_QKW}, s{S_T0}, v{V_T0}')
    a(f'v_add_u32 v{V_QKW2}, 1280, v{V_QKW}')
    S(S_T0, [(S_W, 0, None, 10)], L_V)
    a(f'v_add_u32 v{V_VW}, s{S_T0}, v{V_L16}')
    L(V_T0, [(0, 2, 1), (2, 1, 0)], 8)
    a(f'v_and_b32 v{V_T1}, 15, v{V_L}')
    a(f'v_cmp_gt_u32 vcc, 8, v{V_T1}')
    a(f'v_cndmask_b32 v{V_T1}, v{V_T0}, v{V_T1}, vcc')
    a(f'v_mul_u32_u24 v{V_T1}, 160, v{V_T1}')
    L(V_T0, [(5, 1, 6), (4, 1, 4)])
    a(f'v_add_u32 v{V_QKR}, v{V_T0}, v{V_T1}')
    a(f's_lshl_b32 s{S_T0}, s{S_RID}, 11')
    a(f'v_add_u32 v{V_SCST}, s{S_T0}, v{V_L16}')
    L(V_SCST2, [(4, 1, 7), (0, 3, 4)], f's{S_T0}')
    for k in range(3):
        a(f's_add_u32 s{S_T1}, s{S_I}, {k+1}')
        S(S_T0, [(S_T1, 0, 2, 11), (S_H, 0, None, 13)])
        a(f'v_add_u32 v{V_SCL[k]}, s{S_T0}, v{V_L16}')
    a(f's_lshl_b32 s{S_T0}, s{S_H}, 13')
    L(V_SCLM, [(4, 2, 11), (0, 4, 4)], f's{S_T0}')
    E0 = [(3, 1, 8), (1, 1, 6), (2, 1, 5), (0, 1, 4)]
    L(V_VR, [(4, 2, 8), (3, 1, 3)] + E0[1:], L_V)
    S(S_T0, [(S_RID, 0, None, 11), (S_W, 0, 1, 7)], PA + PA_M)
    L(V_T0, [(3, 1, 8), (0, 3, 4), (4, 1, 9), (5, 1, 10)], f's{S_T0}')
    a(f's_add_u32 s{S_T0}, s{S_T0}, {PA_M}')
    L(V_T1, E0 + [(4, 1, 9), (5, 1, 10)], f's{S_T0}')
    a(f's_cmp_lt_u32 s{S_W}, 2')
    a(f's_cselect_b64 vcc, -1, 0')
    a(f'v_cndmask_b32 v{V_PFG}, v{V_T1}, v{V_T0}, vcc')
    a(f's_lshl_b32 s{S_PFL}, s{S_W}, 10')
    S(S_T0, [(S_H, 3, None, 14), (S_H, 0, 3, 10), (S_I, 0, 1, 9), (S_I, 1, None, 7)])
    L(V_OST, [(2, 1, 16), (5, 1, 8), (1, 1, 6), (4, 1, 5), (0, 1, 4)], f's{S_T0}')
    S(S_T1, [(S_W, 1, None, 16), (S_W, 0, 1, 8), (S_T0, 0, None, 0)])
    a(f'v_add_u32 v{V_OCL}, s{S_T1}, v{V_L16}')
    keep(V_OCL, f'v_cmp_gt_u32 vcc, 8, v{V_L}')
    S(S_T0, [(S_W, 0, None, 8)], L_OP)
    a(f'v_lshl_add_u32 v{V_OPW}, v{V_L}, 2, s{S_T0}')
    L(V_OPR, [(2, 1, 7), (4, 1, 6), (0, 2, 4), (3, 1, 3)], L_OP)
    a(f's_mul_i32 s{S_T1}, s{S_W}, 320')
    S(S_T0, [(S_RID, 0, None, 11), (S_T1, 0, None, 0)])
    a(f'v_add_u32 v{V_SCCL}, s{S_T0}, v{V_L16}')
    keep(V_SCCL, f'v_cmp_gt_u32 vcc, 20, v{V_L}')
    a(f's_mul_i32 s{S_T0}, s{S_W}, 3')
    a(f'v_min_u32 v{V_T0}, 2, v{V_L}')
    a(f'v_add_u32 v{V_T0}, s{S_T0}, v{V_T0}')
    a(f'v_min_u32 v{V_T0}, 9, v{V_T0}')
    S(S_T0, [(S_RID, 0, None, 11)], 128 * 2048)
    a(f'v_lshl_add_u32 v{V_PTG}, v{V_T0}, 7, s{S_T0}')
    lw = a.newlabel('rec_ns')
    a(f's_lshl_b32 s{S_T0}, s{S_RID}, 9')
    L(V_NSA, [(4, 2, 7), (0, 2, 5), (2, 1, 4)], f's{S_T0}')
    a('s_mov_b32 vcc_lo, 0xff00ff00'); a('s_mov_b32 vcc_hi, 0xff00ff00')
    a(f's_cmp_eq_u32 s{S_W}, 1')
    a(f's_cbranch_scc1 {lw}')
    a(f's_add_u32 s{S_T0}, s{S_T0}, {VM - KM}')
    a(f'v_add_u32 v{V_NSA}, s{S_T0}, v{V_L16}')
    a('s_mov_b32 vcc_lo, -1'); a('s_mov_b32 vcc_hi, 0')
    a(f's_cmp_eq_u32 s{S_W}, 2')
    a(f's_cbranch_scc1 {lw}')
    S(S_T0, [(S_RID, 6, None, 14), (S_RID, 0, 6, 7)], 8 * BLK)
    a(f'v_add_u32 v{V_NSA}, s{S_T0}, v{V_L16}')
    a(f's_cmp_eq_u32 s{S_W}, 3')
    a('s_cselect_b32 vcc_lo, 0xff, 0')
    a.label(lw)
    keep(V_NSA, 's_nop 0')
    for j in range(4): a(f'v_mov_b32 v{V_ONE+j}, 0x3f803f80')
    for j in range(4): a(f'v_mov_b32 v{V_FF+j}, -1')
    for j in range(4): a(f'v_mov_b32 v{V_ZZ+j}, 0')
    for j in range(4): a(f'v_mov_b32 v{V_NS+j}, 0')
    for j in range(5, 8): a(f'v_mov_b32 v{V_P+j}, 0')
    for j in range(6): a(f'v_mov_b32 v{V_VM+j}, 0')
    a(f's_mov_b32 s{S_MLO8}, 0x00ff00ff'); a(f's_mov_b32 s{S_MLO8+1}, 0x00ff00ff')
    a(f's_mov_b32 s{S_MHI}, 0'); a(f's_mov_b32 s{S_MHI+1}, -1')
    a(f's_mov_b32 s{S_MHI8}, 0'); a(f's_mov_b32 s{S_MHI8+1}, 0x00ff00ff')
    c = (128 ** -0.5) * math.log2(math.e)
    a(f's_mov_b32 s{S_C}, 0x{struct.unpack("<I", struct.pack("<f", c))[0]:08x}')
    a(f's_mov_b32 s{S_SC}, {SCB}')
    a(f's_mov_b32 s{S_KV}, 0')
    a(f's_mov_b32 s{S_STEP}, 0')
    a(f's_mov_b32 s{S_KXB}, {L_KX}')
    a(f's_mov_b32 s{S_TAG}, 1')
    a(f's_min_u32 s{S_T0}, s{S_W}, 1')
    a(f's_add_u32 s{S_T0}, s{S_T0}, 1')
    a(f'v_mov_b32 v{V_TG}, s{S_T0}')

    S(S_FKV, [(S_H, 0, None, 7), (S_W, 1, None, 2)], FLG + F_SLA + 4)
    S(S_FRO, [(S_H, 0, None, 7)], FLG + F_REC)
    S(S_T0, [(S_I, 0, None, 4), (S_FRO, 0, None, 0)])
    a(f'v_mov_b32 v{V_FRA}, s{S_T0}')
    a(f's_cmp_eq_u32 s{S_W}, 2')
    keep(V_FRA, 's_cselect_b64 vcc, 1, 0')
    a(f's_mov_b32 s{S_SEEN}, 0')
    def wait_kv(target):
        if not sync: return
        lp = a.newlabel('rec_kv'); ld = a.newlabel('rec_kvd')
        a(f's_cmp_gt_u32 s{S_SEEN}, {target}')
        a(f's_cbranch_scc0 {lp}')
        a.label(ld)
        def tl():
            a.label(lp)
            a(f's_load_dword s{S_SEEN}, s[{S_WSP}:{S_WSP+1}], s{S_FKV} glc')
            spin_guard(ld)
            a('s_waitcnt lgkmcnt(0)')
            a(f's_cmp_gt_u32 s{S_SEEN}, {target}')
            a(f's_cbranch_scc1 {ld}')
            a('s_sleep 2')
            a(f's_branch {lp}')
        tails.append(tl)
    tails = []
    for par in range(2):
        for sl in range(2):
            a(f's_add_u32 s{S_T0}, s{S_HB}, {par*8192 + sl*SLOT}')
            a(f'buffer_store_dwordx4 {vr(V_ZZ,4)}, v{V_OCL}, {WS}, s{S_T0} offen sc1')
    a(f'buffer_store_dwordx4 {vr(V_FF,4)}, v{V_SCCL}, {WS}, s{S_SC} offen sc1')
    a(f'v_add_u32 v{V_SCCL}, {128*2048}, v{V_SCCL}')
    a(f'buffer_store_dwordx4 {vr(V_FF,4)}, v{V_SCCL}, {WS}, s{S_SC} offen sc1')
    a(f'v_add_u32 v{V_SCCL}, {128*2048}, v{V_SCCL}')
    a(f'buffer_store_dwordx4 {vr(V_FF,4)}, v{V_SCCL}, {WS}, s{S_SC} offen sc1')
    a(f'buffer_store_dword v{V_ZZ}, v{V_FRA}, {WS}, 0 offen sc1')
    l3 = a.newlabel('rec_i3')
    a(f's_cmp_lg_u32 s{S_W}, 3')
    a(f's_cbranch_scc1 {l3}')
    for par in range(2):
        a(f's_add_u32 s{S_T0}, s{S_HB}, {par*8192 + SLOT}')
        a(f'buffer_store_dwordx4 {vr(V_ZZ,4)}, v{V_NSA}, {WS}, s{S_T0} offen sc1')
    S(S_T1, [(S_RID, 5, None, 14), (S_RID, 0, 5, 8), (S_HB, 0, None, 0)], 10 * BLK)
    a('s_mov_b64 exec, 0xffff')
    for par in range(2):
        a(f's_add_u32 s{S_T0}, s{S_T1}, {par*8192}')
        a(f'buffer_store_dwordx4 {vr(V_ZZ,4)}, v{V_L16}, {WS}, s{S_T0} offen sc1')
    a('s_mov_b64 exec, -1')
    a.label(l3)
    a(f's_lshl_b32 s{S_T0}, s{S_W}, 9')
    L(V_T0, [(2, 2, 12), (0, 1, 11), (4, 2, 5), (1, 1, 2)], f's{S_T0}')
    for c in range(4):
        for p in range(4):
            a(f'buffer_load_dword v{V_MA+4*c+p}, v{V_T0}, s[{S_M0}:{S_M0+3}], 0 offen offset:{c*128+p*8}')
    for p in range(FB, NSL):
        issue(p); issued += 1
    for p in range(NW, len(pairs)):
        a(f's_waitcnt vmcnt({min(63, 2 * (issued - p - 1) + ((40 if NW else 24) if p < FB else 0))})')
        if p == 2 and sync:
            a(f'global_load_dword v{V_CK}, v{V_ZZ}, s[{S_DBG}:{S_DBG+1}] offset:{4*D_ROT} sc1')
        if p == (NSL + 1 if sync else FB):
            lar = a.newlabel('rec_arr')
            if sync: validate(a, V_CK, V_T0, S_DBG, S_SPIN, S_T0)
            a('s_barrier')
            pmark(1)
            a(f's_cmp_lg_u32 s{S_W}, 3')
            a(f's_cbranch_scc1 {lar}')
            a(f'v_mov_b32 v{V_T0}, 0')
            if sync: a(f's_add_u32 s{S_PAR}, s{S_PAR}, s{S_BAD}')
            a(f'v_mov_b32 v{V_T1}, s{S_PAR}')
            a('s_mov_b64 exec, 1')
            a(f'global_atomic_add v{V_T0}, v{V_T1}, s[{S_DBG}:{S_DBG+1}] offset:{4*D_INIT} sc1')
            a('s_mov_b64 exec, -1')
            a.label(lar)
        if p == RDYP and sync:
            lar = a.newlabel('rec_rdy')
            a(f's_cmp_lg_u32 s{S_W}, 0')
            a(f's_cbranch_scc1 {lar}')
            a(f'v_mov_b32 v{V_T0}, 0')
            a(f'v_mov_b32 v{V_T1}, 1')
            a('s_mov_b64 exec, 1')
            a(f'global_atomic_add v{V_T0}, v{V_T1}, s[{S_DBG}:{S_DBG+1}] offset:{4*D_RDY} sc1')
            a('s_mov_b64 exec, -1')
            a.label(lar)
        for dst, va, off in pairs[p][1]:
            a(f'ds_read_b64_tr_b16 {dst}, v{va} offset:{(p % NSL) * 2048 + off}')
        if p >= NW + 1 and issued < len(pairs):
            a('s_waitcnt lgkmcnt(4)')
            issue(issued); issued += 1
    a('s_waitcnt lgkmcnt(0)')

    pmark(3)
    for j in range(16): a(f'v_max_u32 v{V_MA+j}, 1, v{V_MA+j}')
    for j in range(24): a(f'v_mov_b32 v{V_D+j}, 0')
    for j in range(16): a(f's_mov_b32 s{P+j}, 0')
    lb = a.newlabel('rec_ib'); lbp = a.newlabel('rec_ibp'); lbq = a.newlabel('rec_ibq')
    a(f'v_mov_b32 v{V_T0}, 0')
    a(f's_branch {lbq}')
    a.label(lbp)
    a('s_sleep 16')
    a.label(lbq)
    a(f'global_load_dword v{V_T1}, v{V_T0}, s[{S_DBG}:{S_DBG+1}] offset:{4*D_INIT} sc1')
    spin_guard(lb)
    a('s_waitcnt vmcnt(0)')
    a(f'v_readfirstlane_b32 s{S_T0}, v{V_T1}')
    a(f's_and_b32 s{S_T1}, s{S_T0}, {CNT_MASK}')
    a(f's_cmp_lt_u32 s{S_T1}, {NWG if sync else 128}')
    a(f's_cbranch_scc1 {lbp}')
    a.label(lb)
    a(f's_lshr_b32 s{S_FAST}, s{S_T0}, {BAD_SH}')
    a(f's_bfe_u32 s{S_T0}, s{S_T0}, {(9 << 16) | VOTE_SH}')
    a(f's_cmp_ge_u32 s{S_T0}, {64 if NEAR else 999}')
    a(f's_cselect_b32 s{S_PAR}, -1, 0')
    a(f's_xor_b32 s{S_PAR}, s{S_PAR}, 0xaaa')
    pmark(4)
    S(S_SL0, [(S_PAR, 0, 1, 13), (S_HB, 0, None, 0)])
    a(f's_add_u32 s{S_SL1}, s{S_SL0}, {SLOT}')
    a(f's_add_u32 s{S_SL2}, s{S_SL0}, {2*SLOT}')
    S(S_T0, [(S_RID, 5, None, 4), (S_I, 0, None, 14), (S_SL0, 0, None, 0)], 10 * BLK)
    L(V_TKST, [(0, 5, 8)], f's{S_T0}')
    a(f's_and_b32 s{S_T1}, s{S_H}, { {4: 7, 2: 23, 1: 31}[KC] }')
    a(f's_cmp_eq_u32 s{S_T1}, {CJ}')
    a('s_mov_b32 vcc_hi, 0')
    keep(V_TKST, 's_cselect_b32 vcc_lo, -1, 0')
    a(f'v_add_u32 v{V_TKSA}, 128, v{V_TKST}')
    a(f's_and_b32 s{S_T1}, s{S_H}, { {4: 7, 2: 23, 1: 31}[KA] }')
    a(f's_cmp_eq_u32 s{S_T1}, {CJ}')
    a(f's_cselect_b32 s{S_T1}, s{S_W}, 99')
    a(f's_cmp_eq_u32 s{S_T1}, {TW}')
    keep(V_TKSA, 's_cselect_b64 vcc, -1, 0')
    S(S_MBO, [(S_RID, 5, None, 14), (S_RID, 0, 5, 8), (S_SL0, 0, None, 0)], 10 * BLK)
    a(f's_add_u32 s{S_MHI}, s{S_MBO}, 128')
    lq = a.newlabel('rec_gs'); lq1 = a.newlabel('rec_gs1'); lq2 = a.newlabel('rec_gs2'); lq3 = a.newlabel('rec_gs3')
    a(f'v_mov_b32 v{V_NBA}, {OOB}')
    a(f's_mov_b32 s{S_NBO}, 0'); a(f's_mov_b32 s{S_NBI}, 0')
    a(f's_mov_b32 s{S_NSO}, {KM}'); a(f's_mov_b32 s{S_NSI}, 65536')
    for j in range(4): a(f'v_mov_b32 v{V_NB+j}, 0')
    a(f's_cmp_eq_u32 s{S_W}, 1'); a(f's_cbranch_scc1 {lq1}')
    a(f's_cmp_eq_u32 s{S_W}, 2'); a(f's_cbranch_scc1 {lq2}')
    a(f's_cmp_eq_u32 s{S_W}, 3'); a(f's_cbranch_scc1 {lq3}')
    a(f'v_mov_b32 v{V_NSA}, v{V_SCST}')
    for j in range(4): a(f'v_mov_b32 v{V_NS+j}, -1')
    a(f's_mov_b32 s{S_NSO}, {SCB + 3*128*2048}'); a(f's_mov_b32 s{S_NSI}, {128*2048}')
    a(f's_branch {lq}')
    a.label(lq1)
    a(f'v_mov_b32 v{V_NBA}, v{V_SCST}')
    keep(V_NBA, 's_mov_b64 vcc, 0xffff')
    for j in range(4): a(f'v_mov_b32 v{V_NB+j}, -1')
    a(f's_mov_b32 s{S_NBO}, {SCB + 3*128*2048 + 1024}'); a(f's_mov_b32 s{S_NBI}, {128*2048}')
    a(f's_branch {lq}')
    a.label(lq2)
    a(f'v_mov_b32 v{V_NBA}, v{V_FRA}')
    a(f's_branch {lq}')
    a.label(lq3)
    S(S_T0, [(S_H, 3, None, 14), (S_H, 0, 3, 10), (S_I, 0, 1, 9), (S_I, 1, None, 7)])
    L(V_T0, [(4, 1, 16), (3, 1, 8), (0, 3, 4)], f's{S_T0}')
    a('s_mov_b32 vcc_lo, 0'); a('s_mov_b32 vcc_hi, -1')
    a(f'v_cndmask_b32 v{V_NSA}, v{V_NSA}, v{V_T0}, vcc')
    a(f's_mov_b32 s{S_NSO}, s{S_SL2}')
    a.label(lq)
    a(f's_cmp_eq_u32 s{S_W}, 2')
    a(f's_cselect_b32 s{S_MHI+1}, 1, 0')

    pmark(5)
    a('s_barrier')
    pmark(6)
    if not PLAINB: a(f's_mov_b32 s{S_FAST}, 1')
    for j in range(16): a(f's_mov_b32 s{P+j}, 0')
    wait_kv(0)
    pmark(7)
    a(f's_add_u32 m0, s{S_KXB}, s{S_PFL}')
    a(f'buffer_load_dwordx4 v{V_PFG}, {WS}, s{S_KV} offen sc1 lds')
    a('s_waitcnt vmcnt(0)')
    a('s_barrier')
    ENTRY = a.newlabel('rec_entry')
    ts(0)
    a(f's_branch {ENTRY}')

    def gather(name, n, load, mf, nacc, noise, ilv, entry=None, pre=None, post=None):
        ok = a.newlabel(name + 'ok'); fix = a.newlabel(name + 'fix')
        def body(first):
            for c in range(n):
                load(c, V_MA + 4 * c)
                if first and ilv and c < n - 1: a(f's_nop {ilv-1}')
            if not first:
                for j in range(0, nacc, 2): a(f'v_mov_b64 {vr(V_D+j,2)}, 0')
            if first and entry: a.label(entry)
            if first and pre: pre()
            iss = 0
            for c in range(n):
                b = V_MA + 4 * c
                a(f's_waitcnt vmcnt({n-1-c+iss})')
                if first and c == 0: ts(1 if n == 4 else 7)
                ms = mf(c)
                if c == 0: seq = [f'v_min_u32 v{V_CK}, v{b}, v{b+1}', f'v_min_u32 v{V_CK2}, v{b+2}, v{b+3}']
                elif c < n - 1: seq = [f'v_min3_u32 v{V_CK}, v{V_CK}, v{b}, v{b+1}', f'v_min3_u32 v{V_CK2}, v{V_CK2}, v{b+2}, v{b+3}']
                else:
                    a(f'v_min3_u32 v{V_CK}, v{V_CK}, v{b}, v{b+1}')
                    seq = [f'v_min3_u32 v{V_CK}, v{V_CK}, v{b+2}, v{b+3}', f'v_cmp_eq_u32 vcc, 0, v{V_CK}']
                if c == n - 2: seq.append(f'v_min_u32 v{V_CK}, v{V_CK}, v{V_CK2}')
                k = 0
                for m in ms:
                    a(m)
                    if k < len(seq): a(seq[k]); k += 1
                while k < len(seq): a(seq[k]); k += 1
                if first and c < len(noise): noise[c](); iss += 1
            if first and post: post()
        body(True)
        a(f's_cbranch_vccnz {fix}')
        a.label(ok)
        def tl():
            a.label(fix)
            if prof: a(f's_add_u32 s{100 if nacc == 16 else 101}, s{100 if nacc == 16 else 101}, 1')
            spin_guard(ok)
            body(False)
            a(f's_cbranch_vccnz {fix}')
            a(f's_branch {ok}')
        tails.append(tl)

    def halves(m):
        b = V_D + 8 * m
        a(f'v_pk_add_f32 {vr(b,2)}, {vr(b,2)}, {vr(b+2,2)}')
        a(f'v_pk_add_f32 {vr(b+2,2)}, {vr(b+4,2)}, {vr(b+6,2)}')
    S_MB2 = S_MHI
    def tpoll(off):
        T = S_PTR
        K = KA if off else KC
        so = S_MB2 if off else S_MBO
        if K == 2: a(f's_load_dwordx8 s[{T}:{T+7}], s[{S_WSP}:{S_WSP+1}], s{so} glc')
        elif K == 4: a(f's_load_dwordx16 s[{T}:{T+15}], s[{S_WSP}:{S_WSP+1}], s{so} glc')
        else: a(f's_load_dword s{T}, s[{S_WSP}:{S_WSP+1}], s{so} glc')
    def tickwait(off, extra):
        lp = a.newlabel('rec_tk'); ld = a.newlabel('rec_tkd'); lc = a.newlabel('rec_tkc')
        T = S_PTR
        K = KA if off else KC
        a(f's_branch {lc}')
        a.label(lp)
        tpoll(off)
        spin_guard(ld)
        a(f's_sleep {TPOS}' if TPOS else 's_nop 7')
        a.label(lc)
        if K == 4:
            a(f's_min_u32 s{S_T0}, s{T}, s{T+4}')
            a(f's_min_u32 s{S_T1}, s{T+8}, s{T+12}')
            a(f's_min_u32 s{S_T0}, s{S_T0}, s{S_T1}')
        elif K == 2: a(f's_min_u32 s{S_T0}, s{T}, s{T+4}')
        else: a(f's_mov_b32 s{S_T0}, s{T}')
        a(f's_cmp_lt_u32 s{S_T0}, s{S_TAG}')
        a(f's_cbranch_scc1 {lp}')
        a.label(ld)
        a(f's_add_u32 s{S_TAG}, s{S_TAG}, 1')
        if extra: a(f's_sleep {extra}')
    def vmfl():
        r = []
        for c in range(4):
            for t in (4, 5):
                f, b = wq_reg(c, t)
                r.append(f'v_smfmac_f32_16x16x64_bf16 {vr(V_D+4*t,4)}, {vr(V_MA+4*c,4)}, {f}[{b}:{b+7}], v{V_IDX}')
        return r
    def vmf():
        for m in vmfl(): a(m)
    def red4(n):
        for j in range(0, n, 2): a(f'v_pk_add_f32 {vr(V_R+j,2)}, {vr(V_R+j,2)}, {vr(V_R+n+j,2)}')
        for j in range(0, n, 2): a(f'v_pk_add_f32 {vr(V_R+2*n+j,2)}, {vr(V_R+2*n+j,2)}, {vr(V_R+3*n+j,2)}')
        for j in range(0, n, 2): a(f'v_pk_add_f32 {vr(V_R+j,2)}, {vr(V_R+j,2)}, {vr(V_R+2*n+j,2)}')

    LOOP = a.newlabel('rec_loop'); DONE = a.newlabel('rec_done')
    a.label(LOOP)
    a('s_barrier')
    stamp(11)
    ts(0)
    def loadA(c, r): a(f'buffer_load_dwordx4 {vr(r,4)}, v{V_AOFF}, {WS}, s{S_SL0} offen offset:{c*1024} sc1')
    def mfA(c):
        r = []
        for t in range(4):
            f, b = wq_reg(c, t)
            r.append(f'v_smfmac_f32_16x16x64_bf16 {vr(V_D+4*t,4)}, {vr(V_MA+4*c,4)}, {f}[{b}:{b+7}], v{V_IDX}')
        return r
    def noiseA():
        a(f'buffer_store_dwordx4 {vr(V_FF,4)}, v{V_SCCL}, {WS}, s{S_SC} offen sc1')
    def preA():
        harvest()
        a(f'v_add_u32 v{V_T0}, s{S_KXB}, v{V_L16}')
        for t in range(2): a(f'ds_read_b128 {vr(V_KX+4*t,4)}, v{V_T0} offset:{t*1024}')
        for t in range(2): a(f'ds_read_b128 {vr(V_VX+4*t,4)}, v{V_T0} offset:{2048+t*1024}')
    gather('rec_ga', 4, loadA, mfA, 16, [], ILA, entry=ENTRY, pre=preA)
    stamp(0)
    ts(2)
    for m in range(2):
        halves(m)
        va = V_QKW if m == 0 else V_QKW2
        a(f'ds_write2_b32 v{va}, v{V_D+8*m}, v{V_D+8*m+1} offset0:0 offset1:40')
        a(f'ds_write2_b32 v{va}, v{V_D+8*m+2}, v{V_D+8*m+3} offset0:16 offset1:56')
    LB2 = a.newlabel('rec_b2'); LW1 = a.newlabel('rec_w1')
    a(f's_cmp_lg_u32 s{S_W}, 0')
    a(f's_cbranch_scc1 {LW1}')
    a('s_waitcnt lgkmcnt(0)')
    a('s_barrier')
    ts(3)
    vm = vmfl()
    for w in range(4):
        for q in range(2):
            a(f'ds_read_b128 {vr(V_R+8*w+4*q,4)}, v{V_QKR} offset:{L_QK+w*2560+q*32}')
            a(vm.pop(0))
    a('s_waitcnt lgkmcnt(4)')
    for j in range(0, 8, 2): a(f'v_pk_add_f32 {vr(V_R+j,2)}, {vr(V_R+j,2)}, {vr(V_R+8+j,2)}')
    a('s_waitcnt lgkmcnt(2)')
    for j in range(0, 8, 2): a(f'v_pk_add_f32 {vr(V_R+j,2)}, {vr(V_R+j,2)}, {vr(V_R+16+j,2)}')
    a('s_waitcnt lgkmcnt(0)')
    for j in range(0, 8, 2): a(f'v_pk_add_f32 {vr(V_R+j,2)}, {vr(V_R+j,2)}, {vr(V_R+24+j,2)}')
    for j in range(4): a(f'v_cvt_pk_bf16_f32 v{V_X+j}, v{V_R+2*j}, v{V_R+2*j+1}')
    a(f'v_mfma_f32_16x16x32_bf16 {vr(V_S,4)}, {vr(V_KX,4)}, {vr(V_X,4)}, 0')
    a(f'v_mfma_f32_16x16x32_bf16 {vr(V_S+4,4)}, {vr(V_KX+4,4)}, {vr(V_X,4)}, 0')
    a(f'v_mfma_f32_16x16x32_bf16 {vr(V_S+8,4)}, {vr(V_X,4)}, {vr(V_X,4)}, 0')
    a(f's_cmp_lg_u32 s{S_FAST}, 0')
    halves(2)
    def scst(f):
        a(f's_mov_b64 exec, s[{S_MLO8}:{S_MLO8+1}]')
        a(f'buffer_store_dwordx4 {vr(V_S,4)}, v{V_SCST}, {WS}, s{S_SC} offen{f}')
        a(f'buffer_store_dwordx4 {vr(V_S+4,4)}, v{V_SCST}, {WS}, s{S_SC} offen offset:128{f}')
        a(f's_mov_b64 exec, s[{S_MHI8}:{S_MHI8+1}]')
        a(f'buffer_store_dwordx4 {vr(V_S+8,4)}, v{V_SCST2}, {WS}, s{S_SC} offen offset:1024{f}')
        a('s_mov_b64 exec, -1')
    lsl = a.newlabel('rec_slow'); lsr = a.newlabel('rec_slowr')
    a(f's_cbranch_scc1 {lsl}')
    scst('')
    a.label(lsr)
    tails.append(lambda: (a.label(lsl), scst(' sc1'), a(f's_branch {lsr}')))
    a(f'ds_write_b128 v{V_VW}, {vr(V_D+16,4)}')
    a(f'ds_write_b128 v{V_L16}, {vr(V_X,4)} offset:{L_X}')
    stamp(2)
    ts(4)
    LBR = a.newlabel('rec_gbr'); LBO = a.newlabel('rec_gbo'); LBW = a.newlabel('rec_gbw')
    V_Q = V_R + 20
    SETS = [V_LD, V_MA]
    def loadB(LD):
        a(f'buffer_load_dwordx4 {vr(LD+12,4)}, v{V_SCLM}, {WS}, s{S_SC} offen offset:1024 sc1')
        for k in range(3):
            a(f'buffer_load_dwordx4 {vr(LD+4*k,4)}, v{V_SCL[k]}, {WS}, s{S_SC} offen sc1')
    def sumB(LD, base):
        LM = LD + 12
        a(f's_waitcnt vmcnt({base+3})')
        a(f'v_permlane32_swap_b32 v{LM}, v{LM+2}')
        a(f'v_permlane32_swap_b32 v{LM+1}, v{LM+3}')
        a(f'v_pk_add_f32 {vr(V_Q+4,2)}, {vr(LM,2)}, {vr(LM+2,2)}')
        a(f's_waitcnt vmcnt({base+2})')
        for j in range(0, 4, 2): a(f'v_pk_add_f32 {vr(V_Q+j,2)}, {vr(V_S+j,2)}, {vr(LD+j,2)}')
        a(f'v_permlane16_swap_b32 v{V_Q+4}, v{V_Q+5}')
        a(f's_waitcnt vmcnt({base+1})')
        for j in range(0, 4, 2): a(f'v_pk_add_f32 {vr(V_Q+j,2)}, {vr(V_Q+j,2)}, {vr(LD+4+j,2)}')
        a(f'v_add_f32 v{V_Q+4}, v{V_Q+4}, v{V_Q+5}')
        a(f's_waitcnt vmcnt({base})')
        for j in range(0, 4, 2): a(f'v_pk_add_f32 {vr(V_Q+j,2)}, {vr(V_Q+j,2)}, {vr(LD+8+j,2)}')
        a(f'v_maximum3_f32 v{V_M}, v{V_Q}, v{V_Q+1}, v{V_Q+4}')
        a(f'v_maximum3_f32 v{V_M}, v{V_M}, v{V_Q+2}, v{V_Q+3}')
        a(f'v_cmp_u_f32 vcc, v{V_M}, v{V_M}')
        a(f'v_max_f32_dpp v{V_M}, v{V_M}, v{V_M} row_ror:8 row_mask:0xf bank_mask:0xf')
        a(f'v_mov_b32 v{V_M2}, v{V_M}')
    if DB == 0: loadB(SETS[0])
    a('s_waitcnt lgkmcnt(0)')
    a('s_barrier')
    if DB == 1: loadB(SETS[0])
    for w in range(4):
        for t in range(2):
            a(f'ds_read_b64 {vr(V_R+4*w+2*t,2)}, v{V_VR} offset:{w*1024+t*128}')
    for j in range(4): a(f'v_mov_b32_dpp v{V_S+j}, v{V_S+4+j} row_ror:8 row_mask:0xf bank_mask:0xc')
    if DB == 0: loadB(SETS[1])
    if DB == 2: loadB(SETS[0])
    a('s_waitcnt lgkmcnt(0)')
    red4(4)
    if DB == 1: loadB(SETS[1])
    for t in range(2): a(f'v_cvt_pk_bf16_f32 v{V_VM+2*t}, v{V_R+2*t}, v{V_R+2*t+1}')
    if DB == 2: a('s_nop 15'); loadB(SETS[1])
    a(f's_cmp_eq_u32 s{S_STEP}, {nsteps-1}')
    a(f's_cbranch_scc1 {LB2}')
    sumB(SETS[0], 4)
    a(f's_cbranch_vccnz {LBR}')
    a.label(LBO)
    def tlB():
        a.label(LBR)
        for k in range(2):
            LD = SETS[k]
            a(f'v_max3_u32 v{V_CK}, v{LD}, v{LD+1}, v{LD+2}')
            for j in range(3, 15, 2): a(f'v_max3_u32 v{V_CK}, v{V_CK}, v{LD+j}, v{LD+j+1}')
            a(f'v_max_u32 v{V_CK}, v{V_CK}, v{LD+15}')
            loadB(LD)
            a(f'v_cmp_eq_u32 vcc, -1, v{V_CK}')
            spin_guard(LBO)
            a(f's_cbranch_vccz {LBO}')
            sumB(SETS[k ^ 1], 4)
            a(f's_cbranch_vccz {LBO}')
        a(f's_branch {LBR}')
    tails.append(tlB)
    a(f'buffer_store_dword v{V_TG}, v{V_TKST}, {WS}, 0 offen sc1')
    stamp('b')
    ts(5)
    a(f'v_permlane16_swap_b32 v{V_M}, v{V_M2}')
    a(f'v_max_f32 v{V_M}, v{V_M}, v{V_M2}')
    a(f'v_mov_b32 v{V_M2}, v{V_M}')
    a(f'v_permlane32_swap_b32 v{V_M}, v{V_M2}')
    a(f'v_max_f32 v{V_M}, v{V_M}, v{V_M2}')
    a(f'v_mul_f32 v{V_M}, s{S_C}, v{V_M}')
    for j in (4, 0, 1, 2, 3): a(f'v_fma_f32 v{V_Q+j}, v{V_Q+j}, s{S_C}, -v{V_M}')
    for j in (4, 0, 1, 2, 3): a(f'v_exp_f32 v{V_Q+j}, v{V_Q+j}')
    a(f'v_mov_b32_dpp v{V_Q+5}, v{V_Q+4} row_ror:8 row_mask:0xf bank_mask:0xf')
    for j in range(2): a(f'v_cvt_pk_bf16_f32 v{V_P+j}, v{V_Q+2*j}, v{V_Q+2*j+1}')
    a(f'v_cvt_pk_bf16_f32 v{V_P+4}, v{V_Q+4}, v{V_Q+5}')
    for j in range(2): a(f'v_mov_b32_dpp v{V_P+2+j}, v{V_P+j} row_ror:8 row_mask:0xf bank_mask:0xf')
    V_O = V_R + 8
    a(f'v_mfma_f32_16x16x32_bf16 {vr(V_O+8,4)}, {vr(V_ONE,4)}, {vr(V_P+4,4)}, 0')
    a(f'v_mfma_f32_16x16x32_bf16 {vr(V_O+8,4)}, {vr(V_ONE,4)}, {vr(V_P,4)}, {vr(V_O+8,4)}')
    for t in range(2):
        a(f'v_mfma_f32_16x16x32_bf16 {vr(V_O+4*t,4)}, {vr(V_VX+4*t,4)}, {vr(V_P,4)}, 0')
        a(f'v_mfma_f32_16x16x32_bf16 {vr(V_O+4*t,4)}, {vr(V_VM+2*t,4)}, {vr(V_P+4,4)}, {vr(V_O+4*t,4)}')
    V_RC = V_R
    a(f'v_rcp_f32 v{V_RC}, v{V_O+8}')
    a(f'v_mov_b32 v{V_RC+1}, v{V_RC}')
    for j in range(0, 8, 2): a(f'v_pk_mul_f32 {vr(V_O+j,2)}, {vr(V_O+j,2)}, {vr(V_RC,2)}')
    for j in range(4): a(f'v_cvt_pk_bf16_f32 v{V_O+j}, v{V_O+2*j}, v{V_O+2*j+1}')
    for j in range(4): a(f'v_max_u32 v{V_O+j}, 1, v{V_O+j}')
    a(f's_mov_b64 exec, s[{S_MLO8}:{S_MLO8+1}]')
    a(f'buffer_store_dwordx4 {vr(V_O,4)}, v{V_OST}, {WS}, s{S_SL0} offen sc1')
    a('s_mov_b64 exec, -1')
    stamp(5)
    ts('o')
    for j in range(0, 24, 2): a(f'v_mov_b64 {vr(V_D+j,2)}, 0')
    LCS = a.newlabel('rec_cs')
    a.label(LCS)
    a('s_barrier')
    def w123():
        a.label(LW1)
        a('s_waitcnt lgkmcnt(0)')
        a('s_barrier')
        vmf()
        halves(2)
        a(f'ds_write_b128 v{V_VW}, {vr(V_D+16,4)}')
        a('s_waitcnt lgkmcnt(0)')
        a('s_barrier')
        if ZD: a(f's_sleep {ZD}')
        for j in range(0, 24, 2): a(f'v_mov_b64 {vr(V_D+j,2)}, 0')
        LW2 = a.newlabel('rec_w2'); LW3 = a.newlabel('rec_w3')
        a(f's_cmp_eq_u32 s{S_W}, 3')
        a(f's_cbranch_scc1 {LW3}')
        a(f's_cmp_eq_u32 s{S_W}, 2')
        a(f's_cbranch_scc1 {LW2}')
        a(f'ds_read_b128 {vr(V_NS,4)}, v{V_L16} offset:{L_X}')
        a(f's_branch {LB2}')
        a.label(LW2)
        for w in range(4): a(f'ds_read_b128 {vr(V_R+4*w,4)}, v{V_L16} offset:{L_V+w*1024}')
        a('s_waitcnt lgkmcnt(0)')
        red4(4)
        for j in range(2): a(f'v_cvt_pk_bf16_f32 v{V_NS+j}, v{V_R+2*j}, v{V_R+2*j+1}')
        for j in range(2): a(f'v_permlane32_swap_b32 v{V_NS+j}, v{V_NS+2+j}')
        for j in (0, 2): a(f'v_permlane16_swap_b32 v{V_NS+j}, v{V_NS+j+1}')
        a.label(LB2)
        a('s_waitcnt lgkmcnt(0)')
        a(f's_cmp_eq_u32 s{S_STEP}, {nsteps-1}')
        a(f's_cbranch_scc1 {DONE}')
        a(f's_branch {LCS}')
        a.label(LW3)
        a(f's_cmp_eq_u32 s{S_STEP}, {nsteps-1}')
        a(f's_cbranch_scc1 {DONE}')
        tickwait(0, DC)
        a(f's_branch {LCS}')
    tails.append(w123)
    stamp(7)
    ts(6)
    def loadC(c, r):
        a(f'buffer_load_dwordx4 {vr(r,4)}, v{V_COFF if c < 4 else V_COFF2}, {WS}, s{S_SL0} offen offset:{(c&3)*1024} sc1')
    def mfC(c):
        r = []
        for sel in range(2):
            f, b = wo_reg(2 * c + sel)
            r.append(f'v_smfmac_f32_16x16x64_bf16 {vr(V_D+4*sel,4)}, {vr(V_MA+4*c,4)}, {f}[{b}:{b+7}], v{V_IDX}')
        return r
    def nC3():
        a(f's_add_u32 s{S_T0}, s{S_STEP}, 1')
        wait_kv(f's{S_T0}')
        a(f's_xor_b32 s{S_KXB}, s{S_KXB}, 4096')
        a(f's_add_u32 m0, s{S_KXB}, s{S_PFL}')
        if XP != 1: a(f's_add_u32 s{S_KV}, s{S_KV}, {256*1024}')
        a(f'buffer_load_dwordx4 v{V_PFG}, {WS}, s{S_KV} offen sc1 lds')
    noiseC = [nC3, lambda: a(f'buffer_load_dword v{V_T1}, v{V_PTG}, {WS}, s{S_SC} offen sc1')]
    st4 = [f'buffer_store_dwordx4 {vr(V_NS,4)}, v{V_NSA}, {WS}, s{S_NSO} offen sc1',
           f'buffer_store_dwordx4 {vr(V_NB,4)}, v{V_NBA}, {WS}, s{S_NBO} offen sc1']
    if NSP == 1: noiseC += [(lambda x=x: a(x)) for x in st4]
    def late_stores(pl=False, n=2):
        if not NSP:
            a('s_barrier')
            for k, x in enumerate(st4[:n]):
                if pl: tpoll(128)
                a(x)
        a(f's_add_u32 s{S_NBO}, s{S_NBO}, s{S_NBI}')
        if n == 2: a(f'v_add_u32 v{V_FRV}, s{S_MHI+1}, v{V_FRV}')
        if sync and ASY:
            lr = a.newlabel('rec_rf')
            a(f's_add_u32 s{S_T0}, s{S_STEP}, 3')
            a(f's_min_u32 s{S_T0}, s{S_T0}, {NSEG-1}')
            a(f's_cmp_gt_u32 s{S_SEEN}, s{S_T0}')
            a(f's_cbranch_scc1 {lr}')
            a(f's_load_dword s{S_SEEN}, s[{S_WSP}:{S_WSP+1}], s{S_FKV} glc')
            a.label(lr)
        a(f's_add_u32 s{S_NSO}, s{S_NSO}, s{S_NSI}')
        a(f's_cmp_eq_u32 s{S_W}, 3')
        a(f's_cselect_b32 s{S_NSO}, s{S_SL2}, s{S_NSO}')
    TKA = f'buffer_store_dword v{V_TG}, v{V_TKSA}, {WS}, 0 offen sc1'
    def postC():
        a(f's_add_u32 s{S_STEP}, s{S_STEP}, 1')
        a(f's_add_u32 s{S_T0}, s{S_STEP}, 2')
        a(f's_lshr_b32 s{S_T1}, s{S_T0}, 3')
        a(f's_lshr_b32 s{S_T1}, s{S_PAR}, s{S_T1}')
    gather('rec_gc', 8, loadC, mfC, 8, noiseC, ILC, post=postC)
    if NSP == 2:
        for x in st4: a(x)
    if TA == 9: a(TKA)
    ts(8)
    a(f's_mov_b32 s{S_SL0}, s{S_SL1}')
    a(f's_mov_b32 s{S_SL1}, s{S_SL2}')
    stamp_c = True
    if prof == 1:
        a(f's_sub_u32 s{S_STEP}, s{S_STEP}, 1'); stamp(8); a(f's_add_u32 s{S_STEP}, s{S_STEP}, 1')
    a(f'v_pk_add_f32 {vr(V_D,2)}, {vr(V_D,2)}, {vr(V_D+2,2)}')
    for r1 in range(2): a(f'v_add_f32_dpp v{V_D+r1}, v{V_D+4+r1}, v{V_D+6+r1} quad_perm:[0,1,2,3] row_mask:0xc bank_mask:0xf')
    a(f'v_permlane32_swap_b32 v{V_D}, v{V_D+1}')
    a(f'v_add_f32 v{V_D}, v{V_D}, v{V_D+1}')
    a(f'ds_write_b32 v{V_OPW}, v{V_D}')
    S(S_SL2, [(S_T1, 0, 1, 13), (S_T0, 0, None, 18), (S_HB, 0, None, 0)])
    a(f's_add_u32 s{S_SC}, s{S_SC}, {128*2048}')
    LB4 = a.newlabel('rec_b4')
    a(f's_cmp_lg_u32 s{S_W}, 0')
    a(f's_cbranch_scc1 {LB4}')
    a('s_waitcnt lgkmcnt(0)')
    a('s_barrier')
    for w in range(4): a(f'ds_read_b64 {vr(V_R+2*w,2)}, v{V_OPR} offset:{w*256}')
    a(f'v_add_u32 v{V_TG}, 2, v{V_TG}')
    a('s_waitcnt lgkmcnt(0)')
    red4(2)
    a(f'v_cvt_pk_bf16_f32 v{V_R}, v{V_R}, v{V_R+1}')
    a(f'v_max_u32 v{V_R}, 1, v{V_R}')
    for j in range(1, 4): a(f'v_mov_b32_dpp v{V_R+j}, v{V_R} quad_perm:[{j},{j},{j},{j}] row_mask:0xf bank_mask:0xf')
    a('s_mov_b64 exec, 0x11111111')
    a(f'buffer_store_dwordx4 {vr(V_R,4)}, v{V_MEMST}, {WS}, s{S_SL0} offen sc1')
    a('s_mov_b64 exec, -1')
    stamp(10)
    ts(9)
    late_stores(False, 1)
    for j in range(0, 8, 2): a(f'v_mov_b64 {vr(V_D+j,2)}, 0')
    a('s_waitcnt vmcnt(2)')
    a(f's_branch {LOOP}')
    a.label(LB4)
    a('s_waitcnt lgkmcnt(0)')
    a('s_barrier')
    if not TA: a(TKA)
    L3B = a.newlabel('rec_w3b')
    a(f's_cmp_eq_u32 s{S_W}, 3')
    a(f's_cbranch_scc1 {L3B}')
    a(f'v_add_u32 v{V_TG}, 2, v{V_TG}')
    for j in range(0, 8, 2): a(f'v_mov_b64 {vr(V_D+j,2)}, 0')
    late_stores()
    a('s_waitcnt vmcnt(2)')
    a(f's_branch {LOOP}')
    a.label(L3B)
    a(f'v_add_u32 v{V_TG}, 2, v{V_TG}')
    for j in range(0, 8, 2): a(f'v_mov_b64 {vr(V_D+j,2)}, 0')
    tpoll(128)
    late_stores(True, 1)
    tpoll(128)
    a('s_waitcnt vmcnt(2)')
    tickwait(128, DA)
    a(f's_branch {LOOP}')
    for t in tails: t()
    a.label(DONE)
    if prof >= 3:
        a(f'v_writelane_b32 v{V_TR}, s100, 10'); a(f'v_writelane_b32 v{V_TR}, s101, 11'); a(f'v_writelane_b32 v{V_TR}, s{S_SPIN}, 12')
    if prof >= 4: pmark(0)
    a(f'buffer_store_dwordx4 {vr(V_NS,4)}, v{V_NSA}, {WS}, s{S_NSO} offen sc1')
    a('s_waitcnt vmcnt(0)')
    a('s_barrier')
    a(f'v_add_u32 v{V_FRV}, 1, v{V_FRV}')
    a(f'buffer_store_dword v{V_FRV}, v{V_FRA}, {WS}, 0 offen sc1')
    if prof and prof != 5:
        S(S_T0, [(S_RID, 0, None, 13), (S_W, 0, None, 11)], TRACE)
        a(f'v_lshlrev_b32 v{V_T0}, 2, v{V_L}')
        for e in range(8):
            a(f'buffer_store_dword v{V_TR+e}, v{V_T0}, {WS}, s{S_T0} offen offset:{e*256}')
```

```python
from asmlib import *
from layout import *
from rec import srd, lane, sexpr
import math, struct

G_WS = 4
G_W = 8
G_X = 12
G_W2 = 16
G_OUT = 20
G_ID, G_WV, G_SEG = 28, 29, 30
G_T0, G_T1, G_T2 = 31, 32, 33
G_LW = 34
G_XO = 35
G_PO = 36
G_PS = 37
G_WSO, G_WST = 38, 39
G_SPIN = 41
G_C = 42
G_SEEN = 43
G_J, G_R = 44, 45
G_KMO, G_OAO, G_OBO, G_OUO = 46, 47, 48, 49
G_FO = 50
G_END, G_XMAX = 51, 52
G_SA, G_SB, G_FA, G_FB, G_FR, G_C2 = 53, 54, 55, 56, 57, 58
G_PTR = 72
G_WSP = 90
G_DBG = 92
WS = f's[{G_WS}:{G_WS+3}]'
V_L, V_T0, V_T1, V_T2, V_L16 = 1, 2, 3, 4, 5
V_VAL = 31

def f32(x): return '0x%08x' % struct.unpack('<I', struct.pack('<f', x))[0]

class Gem:
    LATE = 96; TWO = 1; QTH = 96; TSL = 0; GV = 0; FS = 0; TSW = 0; OM = 0; XT = 1; BTH = 96; TC = 0
    def __init__(self, a, sync=True, prof=False):
        self.a = a; self.sync = sync; self.prof = prof; self.ost = ''
    def L(self, dst, terms, add=None): lane(self.a, dst, V_T2, V_L, terms, add)
    def S(self, dst, terms, const=0): sexpr(self.a, dst, G_T2, terms, const)
    def spin_guard(self, lgive):
        a = self.a
        a(f's_add_u32 s{G_SPIN}, s{G_SPIN}, 1')
        a(f's_cmp_ge_u32 s{G_SPIN}, 0x200000')
        a(f's_cbranch_scc1 {lgive}')
    def keep(self, reg, cond):
        a = self.a
        a(cond)
        a(f'v_mov_b32 v{V_T2}, {OOB}')
        a(f'v_cndmask_b32 v{reg}, v{V_T2}, v{reg}, vcc')

    def mark(self, k):
        if not self.prof: return
        a = self.a
        a(f's_memrealtime s[{G_PTR+14}:{G_PTR+15}]')
        a('s_waitcnt lgkmcnt(0)')
        a(f's_mov_b32 s{94+k}, s{G_PTR+14}')
        if False:
            a(f's_memtime s[{G_PTR+14}:{G_PTR+15}]')
            a('s_waitcnt lgkmcnt(0)')
            a(f's_mov_b32 s{98+k}, s{G_PTR+14}')
    def acc(self, k):
        if self.prof != 2: return
        a = self.a
        a(f's_memtime s[{G_PTR+14}:{G_PTR+15}]')
        a('s_waitcnt lgkmcnt(0)')
        if k is not None:
            a(f's_sub_u32 s{G_PTR+15}, s{G_PTR+14}, s60')
            a(f's_add_u32 s{61+k}, s{61+k}, s{G_PTR+15}')
        a(f's_mov_b32 s60, s{G_PTR+14}')
    def dump(self):
        if not self.prof: return
        a = self.a
        if self.prof == 5:
            a(f's_cmp_lt_u32 s{G_ID}, 96')
            a(f's_cselect_b32 s{G_T0}, 20, 44')
            a(f'v_mov_b32 v{V_T1}, s{G_T0}')
            a('s_mov_b64 exec, 1')
            for i, k in enumerate((1, 3, 6, 4, 5)):
                a(f'v_mov_b32 v{V_T0}, s{94+k}')
                a(f'global_atomic_umax v{V_T1}, v{V_T0}, s[{G_DBG}:{G_DBG+1}] offset:{4*i} sc1')
            return
        self.S(G_T0, [(G_ID, 0, None, 7), (G_WV, 0, None, 5)], TRACE + 4 * MB)
        a(f'v_mov_b32 v{V_T1}, 0')
        for k in range(8):
            a(f'v_mov_b32 v{V_T0}, s{94+k}')
            a(f'buffer_store_dword v{V_T0}, v{V_T1}, {WS}, s{G_T0} offen offset:{4*k}')
        a(f's_add_u32 s{G_T0}, s{G_T0}, {MB}')
        for k in range(8):
            a(f'v_mov_b32 v{V_T0}, s{61+k}')
            a(f'buffer_store_dword v{V_T0}, v{V_T1}, {WS}, s{G_T0} offen offset:{4*k}')

    def setup(self):
        a = self.a
        a(f's_load_dwordx2 s[{G_WSP}:{G_WSP+1}], s[0:1], {K_WS}')
        a(f's_load_dwordx2 s[{G_DBG}:{G_DBG+1}], s[0:1], {K_DBG}')
        a(f'v_and_b32 v{V_L}, 63, v0')
        a(f'v_lshrrev_b32 v{V_T0}, 6, v0')
        a(f'v_readfirstlane_b32 s{G_WV}, v{V_T0}')
        a(f'v_lshlrev_b32 v{V_L16}, 4, v{V_L}')
        a(f's_mov_b32 s{G_SPIN}, 0')
        a(f's_lshl_b32 s{G_LW}, s{G_WV}, 10')
        a('s_waitcnt lgkmcnt(0)')
        srd(a, G_WS, G_WSP, WS_BYTES)
        if self.sync and self.TSW:
            lw = a.newlabel('g_tw')
            P = G_PTR
            a(f's_cmp_lg_u32 s{G_WV}, 1')
            a(f's_cbranch_scc1 {lw}')
            a(f's_load_dwordx2 s[{P}:{P+1}], s[0:1], {K_WO}')
            self.S(G_T0, [(G_ID, 0, None, 16)])
            self.L(V_T0, [(3, 3, 13), (0, 3, 10)], f's{G_T0}')
            a('s_waitcnt lgkmcnt(0)')
            srd(a, G_OUT, P, 8 * MB)
            a(f's_sub_u32 s{G_T0}, 384, s{P}')
            a(f's_and_b32 s{G_T0}, s{G_T0}, 0x380')
            a(f'buffer_load_dword v119, v{V_T0}, s[{G_OUT}:{G_OUT+3}], s{G_T0} offen')
            a.label(lw)
        if self.sync:
            lv = a.newlabel('g_nv')
            a(f'v_mov_b32 v{V_VAL}, 0')
            a(f's_cmp_lt_u32 s{G_ID}, {self.LATE}')
            a(f's_cbranch_scc1 {lv}')
            P = G_PTR
            if self.TSL:
                a(f's_load_dwordx8 s[{P}:{P+7}], s[0:1], {K_WQ}')
                self.S(G_T0, [(G_ID, 0, 5, 18), (G_WV, 0, None, 16)])
                self.L(V_T0, [(3, 3, 13), (0, 3, 10)], f's{G_T0}')
                self.L(V_T1, [(0, 3, 13)], f's{G_T0}')
                a('s_waitcnt lgkmcnt(0)')
                SD = (G_W, G_X, G_W2, G_OUT)[:2+self.TSL]
                for m, sd in enumerate(SD):
                    srd(a, sd, P + 2 * m, 8 * MB)
                    a(f's_sub_u32 s{G_T0}, 384, s{P+2*m}')
                    a(f's_and_b32 s{G_T0}, s{G_T0}, 0x380')
                    a(f'buffer_load_dword v{120+m}, v{V_T0}, s[{sd}:{sd+3}], s{G_T0} offen')
                a('s_mov_b64 exec, 0xff')
                for m, sd in enumerate(SD):
                    a(f's_sub_u32 s{G_T0}, 8064, s{P+2*m}')
                    a(f's_and_b32 s{G_T0}, s{G_T0}, 0x1f80')
                    a(f'buffer_load_dword v{124+m}, v{V_T1}, s[{sd}:{sd+3}], s{G_T0} offen')
                a('s_mov_b64 exec, -1')
            validate(a, V_VAL, V_T0, G_DBG, G_SPIN, G_T0)
            a.label(lv)
        if self.prof:
            for k in range(8): a(f's_mov_b32 s{94+k}, 0'); a(f's_mov_b32 s{61+k}, 0')
        self.mark(0)

    def vote(self):
        a = self.a
        A0, R, M0, TA, TB, D = 60, 59, 62, 64, 66, 68
        self.S(R, [(G_ID, 0, 5, 2), (G_WV, 0, None, 0)])
        a(f's_sub_u32 s{G_T0}, 0, s{G_WSP}')
        a(f's_and_b32 s{G_T0}, s{G_T0}, {2*MB-1}')
        self.S(A0, [(R, 0, 3, 21), (R, 3, 1, 13), (R, 4, 3, 8), (G_T0, 0, None, 0)], HOFF + 15 * 16384)
        self.S(G_T1, [(R, 3, 1, 14)])
        a(f's_sub_u32 s{A0+1}, s{A0}, s{G_T1}')
        a(f's_add_u32 s{A0+1}, s{A0+1}, 8192')
        for k in range(2):
            a(f's_load_dword s{D+k}, s[{G_WSP}:{G_WSP+1}], s{A0+k} glc')
            a(f's_mov_b32 s{M0+k}, -1')
        for r in range(self.GV):
            for k in range(2):
                a('s_waitcnt lgkmcnt(0)')
                a(f's_memtime s[{TA}:{TA+1}]')
                a('s_waitcnt lgkmcnt(0)')
                a(f's_load_dword s{D}, s[{G_WSP}:{G_WSP+1}], s{A0+k} glc')
                a('s_waitcnt lgkmcnt(0)')
                a(f's_memtime s[{TB}:{TB+1}]')
                a('s_waitcnt lgkmcnt(0)')
                a(f's_sub_u32 s{G_T0}, s{TB}, s{TA}')
                a(f's_min_u32 s{M0+k}, s{M0+k}, s{G_T0}')
        a(f's_cmp_gt_u32 s{M0+1}, s{M0}')
        a(f's_cselect_b32 s{G_T0}, 1, 0')
        a(f's_lshr_b32 s{G_T1}, s{R}, 3')
        a(f's_xor_b32 s{G_T0}, s{G_T0}, s{G_T1}')
        a(f's_xor_b32 s{G_T0}, s{G_T0}, s{R}')
        self.S(G_T0, [(G_T0, 0, 1, VOTE_SH)])
        a(f's_add_u32 s{S_BAD}, s{S_BAD}, s{G_T0}')
        if self.prof:
            for k in range(8): a(f's_mov_b32 s{61+k}, 0')

    def late_arrive(self):
        a = self.a
        a('s_mov_b64 exec, -1')
        self.touch_wo()
        self.vote()
        self.mark(7)
        a(f's_waitcnt vmcnt({8 if self.TWO else 0})')
        a('s_mov_b64 exec, 1')
        self.arrive(False)

    def load_weights(self, jobs, hook=None):
        a = self.a
        LB = G_T1
        a(f's_lshl_b32 s{LB}, s{G_WV}, 15')
        pairs = []
        for (sd, vg, n, reads, so0, sst) in jobs:
            for p in range(n): pairs.append((sd, vg, reads(p), so0 if p == 0 else None, sst))
        NSL = 16
        def issue(p):
            sd, vg, _, so0, sst = pairs[p]
            for j in range(2):
                a(f's_add_u32 m0, s{LB}, {(p % NSL) * 2048 + j * 1024}')
                if so0 is not None and j == 0: a(f's_mov_b32 s{G_WSO}, {so0}')
                else: a(f's_add_u32 s{G_WSO}, s{G_WSO}, {sst}')
                a(f'buffer_load_dwordx4 v{vg}, s[{sd}:{sd+3}], s{G_WSO} offen lds')
        issued = 0
        for p in range(min(NSL, len(pairs))):
            issue(p); issued += 1
        for p in range(len(pairs)):
            a(f's_waitcnt vmcnt({2 * (issued - p - 1)})')
            if hook and p == 2:
                a(f'v_mov_b32 v{V_T0}, 0')
                a(f'global_load_dword v{V_VAL}, v{V_T0}, s[{G_DBG}:{G_DBG+1}] offset:{4*D_ROT} sc1')
            if hook and p == NSL + 1: hook(0)
            if hook and p == len(pairs) - 1: hook(1)
            for dst, va, off in pairs[p][2]:
                a(f'ds_read_b64_tr_b16 {dst}, v{va} offset:{(p % NSL) * 2048 + off}')
            if p >= 1 and issued < len(pairs):
                a(f's_waitcnt lgkmcnt({len(pairs[p][2])})')
                issue(issued); issued += 1
        a('s_waitcnt lgkmcnt(0)')

    def touch_wo(self):
        if not self.TWO: return
        a = self.a
        P = G_PTR
        lsk = a.newlabel('tw_skip')
        a(f's_cmp_lt_u32 s{G_ID}, 96')
        a(f's_cbranch_scc1 {lsk}')
        a(f's_load_dwordx2 s[{P}:{P+1}], s[0:1], {K_WO}')
        self.S(G_T0, [(G_ID, 0, 5, 13), (G_WV, 0, None, 21)])
        a(f'v_lshl_add_u32 v{V_T0}, v{V_L}, 7, s{G_T0}')
        a('s_waitcnt lgkmcnt(0)')
        srd(a, G_W, P, 8 * MB)
        for i in range(8):
            a(f's_mov_b32 s{G_T0}, {i * 262144}')
            a(f'buffer_load_dword v{128+i}, v{V_T0}, s[{G_W}:{G_W+3}], s{G_T0} offen')
        a.label(lsk)

    def slab(self, LNEXT, **opt):
        a = self.a; L = self.L; S = self.S
        P = G_PTR
        V_G, V_TR, V_XG, V_ST, V_FL, V_FV = 6, 7, 8, 9, 10, 11
        V_RA = 12
        V_F = 32
        V_ACC = 64
        V_PK = 96
        lB = a.newlabel('sl_b'); lC = a.newlabel('sl_c')
        G_M = G_J
        a(f's_cmp_ge_u32 s{G_ID}, 96')
        a(f's_cbranch_scc1 {lB}')
        a(f's_lshr_b32 s{G_T0}, s{G_ID}, 5')
        a(f's_add_u32 s{G_T0}, s{G_T0}, 1')
        a(f's_cmp_eq_u32 s{G_T0}, 3')
        a(f's_cselect_b32 s{G_M}, 0, s{G_T0}')
        S(G_T0, [(G_M, 0, None, 3)], K_WQ)
        a(f's_load_dwordx2 s[{P}:{P+1}], s[0:1], s{G_T0}')
        a(f's_load_dwordx2 s[{P+2}:{P+3}], s[0:1], {K_AX}')
        a(f's_mov_b32 s{P+4}, {8*MB}')
        a(f's_mov_b32 s{G_WST}, 8192')
        S(G_T0, [(G_ID, 0, 5, 8)])
        S(G_PO, [(G_M, 0, None, 24), (G_ID, 0, 5, 13)], PA)
        a(f's_mov_b32 s{G_PS}, {256*1024}')
        S(G_FO, [(G_ID, 0, 5, 7), (G_M, 0, None, 2)], FLG + F_SLA)
        a(f's_branch {lC}')
        a.label(lB)
        a(f's_sub_u32 s{G_T1}, s{G_ID}, 96')
        a(f's_lshr_b32 s{G_M}, s{G_T1}, 3')
        a(f's_load_dwordx2 s[{P}:{P+1}], s[0:1], {K_WQKV}')
        a(f's_load_dwordx2 s[{P+2}:{P+3}], s[0:1], {K_BX}')
        a(f's_mov_b32 s{P+4}, {6*MB}')
        a(f's_mov_b32 s{G_WST}, 6144')
        S(G_T0, [(G_T1, 0, None, 8)])
        S(G_PO, [(G_M, 0, None, 22), (G_T1, 0, 3, 13)], PB)
        a(f's_mov_b32 s{G_PS}, {64*1024}')
        S(G_FO, [(G_T1, 0, 3, 7), (G_M, 0, None, 2)], FLG + F_SLB)
        a.label(lC)
        a('s_waitcnt lgkmcnt(0)')
        srd(a, G_W, P, f's{P+4}')
        srd(a, G_X, P + 2, 4 * MB)
        a(f's_mov_b64 s[{P+8}:{P+9}], s[{P}:{P+1}]')
        a(f's_mov_b32 s{G_R}, s{G_T0}')
        if self.sync:
            lg = a.newlabel('sl_go'); l2 = a.newlabel('sl_a2')
            a(f's_cmp_lt_u32 s{G_ID}, {self.LATE}')
            a(f's_cbranch_scc1 {lg}')
            if not self.GV:
                a(f's_cmp_lg_u32 s{G_WV}, 0')
                a(f's_cbranch_scc1 {l2}')
            a('s_mov_b64 exec, 1')
            a(f'v_mov_b32 v{V_T0}, 0')
            a(f'buffer_store_dword v{V_T0}, v{V_T0}, {WS}, s{G_FO} offen sc1')
            if self.GV: self.late_arrive()
            else: self.arrive()
            a.label(l2)
            if not self.GV: self.touch_wo()
            srd(a, G_W, P + 8, f's{P+4}')
            self.wait_start()
            a.label(lg)
        a(f'v_lshrrev_b32 v{V_T0}, 2, v{V_L}')
        a(f'v_mul_lo_u32 v{V_G}, v{V_T0}, s{G_WST}')
        S(G_T0, [(G_R, 0, None, 0), (G_WV, 0, None, 6)])
        L(V_T0, [(0, 2, 4)], f's{G_T0}')
        a(f'v_add_u32 v{V_G}, v{V_G}, v{V_T0}')
        a(f's_lshl_b32 s{G_WST}, s{G_WST}, 4')
        a(f's_mov_b32 s{G_SEG}, 0')
        a(f's_mov_b32 s{G_END}, {NSEG}')
        a(f's_mov_b32 s{G_XMAX}, {63*65536}')
        self.stream(LNEXT, [0, 1], **opt)

    def stream(self, LNEXT, variants, RD=6):
        a = self.a; L = self.L; S = self.S
        V_G, V_TR, V_XG, V_ST, V_FL, V_FV = 6, 7, 8, 9, 10, 11
        V_RA = 12
        V_F = 32
        V_ACC = 64
        V_PK = 96
        G_M = G_J
        ob = 2 in variants
        a(f's_lshl_b32 s{G_T0}, s{G_WV}, 15')
        if ob:
            L(V_TR, [(4, 2, 9), (2, 2, 6), (0, 2, 4)], f's{G_T0}')
        else:
            L(V_TR, [(4, 2, 9), (2, 2, 6), (1, 1, 5), (0, 1, 3)], f's{G_T0}')
        eo = 8 if ob else 16
        def wreads(p):
            return [(f'a[{8*p+4*et+2*q}:{8*p+4*et+2*q+1}]', V_TR, et * eo + q * 256) for et in range(2) for q in range(2)]
        def hook(k):
            li = a.newlabel('sl_ar')
            if k == 0: validate(a, V_VAL, V_T0, G_DBG, G_SPIN, G_T0)
            else: self.mark(7)
            if self.FS: return
            a(f's_cmp_lg_u32 s{G_WV}, 0')
            a(f's_cbranch_scc1 {li}')
            a(f's_cmp_ge_u32 s{G_ID}, {self.LATE}')
            a(f's_cbranch_scc1 {li}')
            a('s_mov_b64 exec, 1')
            if k == 0:
                a(f'v_mov_b32 v{V_T0}, 0')
                a(f'buffer_store_dword v{V_T0}, v{V_T0}, {WS}, s{G_FO} offen sc1')
                a('s_mov_b64 exec, -1')
            else: self.arrive(False)
            a.label(li)
        self.load_weights([(G_W, V_G, 32, wreads, '0', f's{G_WST}')], hook if (self.sync and not ob) else None)
        self.mark(4 if ob else 1)
        S(G_T0, [(G_WV, 1, 1, 2)])
        L(V_T0, [(4, 2, 0)], f's{G_T0}')
        a(f'v_and_b32 v{V_T1}, 7, v{V_L}')
        a(f'v_xor_b32 v{V_T0}, v{V_T0}, v{V_T1}')
        a(f's_lshl_b32 s{G_T0}, s{G_WV}, 14')
        L(V_XG, [(3, 3, 11)], f's{G_T0}')
        a(f'v_lshl_add_u32 v{V_XG}, v{V_T0}, 4, v{V_XG}')
        L(V_T0, [(1, 3, 0)])
        a(f'v_lshrrev_b32 v{V_T1}, 4, v{V_L}')
        a(f'v_xor_b32 v{V_T0}, v{V_T0}, v{V_T1}')
        L(V_T1, [(3, 1, 11), (0, 3, 7)])
        for j in range(2):
            a(f'v_xor_b32 v{V_RA+j}, {4*j}, v{V_T0}')
            a(f'v_lshl_add_u32 v{V_RA+j}, v{V_RA+j}, 4, v{V_T1}')
            a(f'v_add_u32 v{V_RA+2+j}, 65536, v{V_RA+j}')
        if ob:
            a(f's_lshl_b32 s{G_T0}, s{G_WV}, 6')
            L(V_ST, [(0, 4, 12), (4, 2, 4)], f's{G_T0}')
            a(f'v_add_u32 v{V_XG}, s{G_LW}, v{V_L16}')
            L(V_RA, [(4, 2, 9), (0, 4, 4)])
            a(f'v_add_u32 v{V_RA+2}, 65536, v{V_RA}')
            self.wait_dbg(D_INIT, NARR if self.GV else NWG)
            self.wait_lines(F_ATB, f's{G_END}')
        else:
            a(f's_lshl_b32 s{G_T0}, s{G_WV}, 11')
            L(V_ST, [(4, 2, 9), (3, 1, 8), (0, 3, 4)], f's{G_T0}')
            a(f'v_mov_b32 v{V_FL}, s{G_FO}')
            a(f's_cmp_eq_u32 s{G_WV}, 0')
            self.keep(V_FL, 's_cselect_b64 vcc, 1, 0')
            a(f'v_mov_b32 v{V_FV}, 0')
            a(f's_cmp_lt_u32 s{G_ID}, {self.LATE}')
            a(f's_cselect_b32 s{G_KMO}, s{G_WV}, 1')
            a(f's_min_u32 s{G_KMO}, s{G_KMO}, 1')
        a(f's_lshl_b32 s{G_XO}, s{G_SEG}, 16')
        a(f's_sub_u32 s{G_PO}, s{G_PO}, s{G_PS}')
        a('s_barrier')
        XS = f's[{G_X}:{G_X+3}]'
        SC = ' sc1' if ob else ''
        def dma(u, i, part=2):
            kb = (u & 1) * 8 + i
            if ob:
                if part != 1:
                    a(f's_add_u32 m0, s{G_LW}, {(u >> 1) * 65536 + kb * 4096}')
                    a(f's_add_u32 s{G_T1}, s{G_XO}, {kb * 4096}')
                if part != 0: a(f'buffer_load_dwordx4 v{V_XG}, {XS}, s{G_T1} offen sc1 lds')
                return
            if part != 1: a(f's_add_u32 m0, s{G_LW}, {(u >> 1) * 65536 + kb * 4096 - kb * 128}')
            if part != 0: a(f'buffer_load_dwordx4 v{V_XG}, {XS}, s{G_XO} offen offset:{kb*128} lds')
        for u in range(3):
            for i in range(8 if u < 2 else 4): dma(u, i)
            if u == 1: a(f's_add_u32 s{G_XO}, s{G_XO}, 65536')
        a('s_waitcnt vmcnt(12)')
        a('s_barrier')
        if not ob: self.mark(2)
        def rd(T):
            T %= 128
            p, t = T >> 6, T & 63
            ks, tt = t >> 1, t & 1
            if ob: a(f'ds_read_b128 {vr(V_F+4*(T%8),4)}, v{V_RA+2*p} offset:{ks*2048+tt*256}')
            else: a(f'ds_read_b128 {vr(V_F+4*(T%8),4)}, v{V_RA+2*p+(ks&1)} offset:{(ks>>1)*4096+tt*1024}')
        def epi(p, k, var):
            A = V_ACC + 16 * p
            if k < 8:
                o, inn, h = k >> 2, (k >> 1) & 1, k & 1
                tt, et = (inn, o) if var == 1 else (o, inn)
                r = A + 4 * (2 * tt + et) + 2 * h
                a(f'v_cvt_pk_bf16_f32 v{V_PK+k}, v{r}, v{r+1}')
            elif k == 8:
                if ob:
                    a(f'buffer_store_dwordx4 {vr(V_PK,4)}, v{V_ST}, s[{G_OUT}:{G_OUT+3}], s{G_PO} offen{self.ost}')
                    a(f's_add_u32 s{G_T0}, s{G_PO}, 65536')
                else: a(f'buffer_store_dwordx4 {vr(V_PK,4)}, v{V_ST}, {WS}, s{G_PO} offen sc1')
            elif k == 9:
                if ob: a(f'buffer_store_dwordx4 {vr(V_PK+4,4)}, v{V_ST}, s[{G_OUT}:{G_OUT+3}], s{G_T0} offen{self.ost}')
                else: a(f'buffer_store_dwordx4 {vr(V_PK+4,4)}, v{V_ST}, {WS}, s{G_PO} offen offset:128 sc1')
                a(f's_add_u32 s{G_PO}, s{G_PO}, s{G_PS}')
        for T in range(RD): rd(T)
        lV = a.newlabel('sl_v'); lE = a.newlabel('sl_e')
        a(f'v_add_u32 v{V_ST}, {OOB}, v{V_ST}')
        if len(variants) > 1:
            a(f's_cmp_eq_u32 s{G_M}, 2')
            a(f's_cbranch_scc1 {lV}')
        for var in variants:
            if var == 1: a.label(lV)
            lp = a.newlabel('sl_loop')
            a.label(lp)
            for T in range(128):
                p, t = T >> 6, T & 63
                u = T >> 5; tu = T & 31
                if tu == 16:
                    a('s_waitcnt vmcnt(8)')
                    a('s_barrier')
                if T % 2 == 0: a(f's_waitcnt lgkmcnt({RD-2})')
                A = V_ACC + 16 * p
                x = vr(V_F + 4 * (T % 8), 4)
                ks, tt = t >> 1, t & 1
                ph = (tu - 16) % 32
                isd = ph % 4 == 1
                if isd:
                    un = (u + 3) if tu >= 16 else (u + 2)
                    i = ph // 4
                for et in range(2):
                    w = f'a[{8*ks+4*et}:{8*ks+4*et+3}]'
                    D = vr(A + 4 * (2 * tt + et), 4)
                    c = D if ks else '0'
                    if var == 1: a(f'v_mfma_f32_16x16x32_bf16 {D}, {x}, {w}, {c}')
                    else: a(f'v_mfma_f32_16x16x32_bf16 {D}, {w}, {x}, {c}')
                    if et == 0:
                        rd(T + RD)
                        if isd: dma(un % 4, i, 0)
                    elif isd: dma(un % 4, i, 1)
                if isd and (un & 1) == 1 and i == 7:
                    a(f's_add_u32 s{G_XO}, s{G_XO}, 65536')
                    a(f's_min_u32 s{G_XO}, s{G_XO}, s{G_XMAX}')
                if tu == 18 and (u & 1) and not ob:
                    a(f'buffer_store_dword v{V_FV}, v{V_FL}, {WS}, 0 offen sc1')
                    a(f'v_add_u32 v{V_FV}, 1, v{V_FV}')
                    if u == 3 and self.FS and self.sync:
                        la = a.newlabel('sl_ar')
                        a(f's_cmp_lg_u32 s{G_SEG}, s{G_KMO}')
                        a(f's_cbranch_scc1 {la}')
                        a('s_mov_b64 exec, 1')
                        self.arrive(False)
                        a.label(la)
                if 4 <= t < 12: epi(p ^ 1, t - 4, var)
                if t == 11: epi(p ^ 1, 8, var)
                if t == 15: epi(p ^ 1, 9, var)
                if t == 20 and p == 0: a(f'v_and_b32 v{V_ST}, 0xffffff, v{V_ST}')
            a(f's_add_u32 s{G_SEG}, s{G_SEG}, 2')
            a(f's_cmp_lt_u32 s{G_SEG}, s{G_END}')
            a(f's_cbranch_scc1 {lp}')
            for k in range(8): epi(1, k, var)
            a(f's_branch {lE}')
        a.label(lE)
        for k in (8, 9): epi(1, k, 0)
        a('s_waitcnt vmcnt(0) lgkmcnt(0)')
        a('s_barrier')
        if not ob: a(f'buffer_store_dword v{V_FV}, v{V_FL}, {WS}, 0 offen sc1')
        self.mark(5 if ob else 3)
        a(f's_branch {LNEXT}')

    def outb(self, LNEXT):
        a = self.a; L = self.L; S = self.S
        P = G_PTR
        V_G = 6
        a(f's_load_dwordx4 s[{P}:{P+3}], s[0:1], {K_BWO}')
        a(f's_add_u32 s{P+4}, s{G_WSP}, {OB}')
        a(f's_addc_u32 s{P+5}, s{G_WSP+1}, 0')
        a(f's_sub_u32 s{G_T1}, s{G_ID}, 96')
        a(f's_lshr_b32 s{G_T1}, s{G_T1}, 3')
        a(f's_mul_i32 s{G_SEG}, s{G_T1}, 22')
        a(f's_add_u32 s{G_END}, s{G_SEG}, 22')
        a(f's_min_u32 s{G_END}, s{G_END}, {NSEG}')
        a(f's_sub_u32 s{G_XMAX}, s{G_END}, 1')
        a(f's_lshl_b32 s{G_XMAX}, s{G_XMAX}, 16')
        a('s_waitcnt lgkmcnt(0)')
        srd(a, G_W, P, 2 * MB)
        srd(a, G_OUT, P + 2, 8 * MB)
        srd(a, G_X, P + 4, 4 * MB)
        S(G_T0, [(G_ID, 0, 3, 8), (G_WV, 0, None, 6)])
        L(V_G, [(2, 4, 11), (0, 2, 4)], f's{G_T0}')
        a(f's_mov_b32 s{G_WST}, 32768')
        S(G_PO, [(G_SEG, 0, None, 17), (G_ID, 0, 3, 8)], 2048)
        a(f's_mov_b32 s{G_PS}, 131072')
        self.stream(LNEXT, [2])

    def wait_flags_s(self, off_sreg, nwords, idx, target, seen=None):
        a = self.a
        if not self.sync: return
        T = G_PTR
        lp = a.newlabel('g_wf'); ld = a.newlabel('g_wfd')
        if seen is not None:
            a(f's_cmp_ge_u32 s{seen}, {target}')
            a(f's_cbranch_scc1 {ld}')
        a.label(lp)
        a(f's_load_dwordx4 s[{T}:{T+3}], s[{G_WSP}:{G_WSP+1}], s{off_sreg} glc')
        self.spin_guard(ld)
        a('s_waitcnt lgkmcnt(0)')
        m = seen if seen is not None else T + 4
        a(f's_min_u32 s{m}, s{T+idx[0]}, s{T+idx[1]}')
        for i in idx[2:]: a(f's_min_u32 s{m}, s{m}, s{T+i}')
        a(f's_cmp_ge_u32 s{m}, {target}')
        a(f's_cbranch_scc1 {ld}')
        a('s_sleep 4')
        a(f's_branch {lp}')
        a.label(ld)
        a('s_waitcnt lgkmcnt(0)')

    def arrive(self, wait=True):
        a = self.a
        a(f'v_mov_b32 v{V_T0}, 0')
        a(f's_add_u32 s{S_BAD}, s{S_BAD}, 1')
        a(f'v_mov_b32 v{V_T1}, s{S_BAD}')
        if wait: a('s_waitcnt vmcnt(0)')
        a(f'global_atomic_add v{V_T0}, v{V_T1}, s[{G_DBG}:{G_DBG+1}] offset:{4*D_INIT} sc1')
        a('s_mov_b64 exec, -1')

    def wait_lines(self, fo, target, seen=None):
        a = self.a
        if not self.sync: return
        lp = a.newlabel('g_wl'); ld = a.newlabel('g_wld')
        self.L(V_T0, [(0, 5, 7)], FLG + fo)
        a(f's_cmp_lg_u32 s{G_WV}, 0')
        a(f's_cbranch_scc1 {ld}')
        a.label(lp)
        a(f'buffer_load_dword v{V_T1}, v{V_T0}, {WS}, 0 offen sc1')
        self.spin_guard(ld)
        a('s_waitcnt vmcnt(0)')
        a(f'v_cmp_gt_u32 vcc, {target}, v{V_T1}')
        a(f's_cbranch_vccz {ld}')
        a('s_sleep 8')
        a(f's_branch {lp}')
        a.label(ld)
        a('s_barrier')

    def wait_start(self):
        a = self.a
        a(f's_cmp_lt_u32 s{G_ID}, 96')
        a(f's_cselect_b32 s{G_T2}, {self.QTH}, {self.BTH}')
        self.wait_dbg(D_RDY, f's{G_T2}', G_PTR + 12)

    def wait_dbg(self, word, target, T=G_PTR):
        a = self.a
        if not self.sync: return
        lp = a.newlabel('g_wd'); ld = a.newlabel('g_wdd')
        a(f's_cmp_lg_u32 s{G_WV}, 0')
        a(f's_cbranch_scc1 {ld}')
        a.label(lp)
        a(f's_load_dword s{T}, s[{G_DBG}:{G_DBG+1}], {4*word} glc')
        self.spin_guard(ld)
        a('s_waitcnt lgkmcnt(0)')
        a(f's_and_b32 s{T}, s{T}, {CNT_MASK}')
        a(f's_cmp_ge_u32 s{T}, {target}')
        a(f's_cbranch_scc1 {ld}')
        a('s_sleep 32')
        a(f's_branch {lp}')
        a.label(ld)
        a('s_waitcnt lgkmcnt(0)')
        a('s_barrier')

    def softmax(self, regs, V_M, V_M2, V_SUM, G_C=G_C):
        a = self.a
        a(f'v_max3_f32 v{V_M}, v{regs[0]}, v{regs[1]}, v{regs[2]}')
        r = regs[3:]
        while len(r) >= 2:
            a(f'v_max3_f32 v{V_M}, v{V_M}, v{r[0]}, v{r[1]}'); r = r[2:]
        if r: a(f'v_max_f32 v{V_M}, v{V_M}, v{r[0]}')
        a(f'v_mov_b32 v{V_M2}, v{V_M}')
        a(f'v_permlane32_swap_b32 v{V_M}, v{V_M2}')
        a(f'v_max_f32 v{V_M}, v{V_M}, v{V_M2}')
        a(f'v_mul_f32 v{V_M}, s{G_C}, v{V_M}')
        for x in regs: a(f'v_fma_f32 v{x}, v{x}, s{G_C}, -v{V_M}')
        for x in regs: a(f'v_exp_f32 v{x}, v{x}')
        a(f'v_add_f32 v{V_SUM}, v{regs[0]}, v{regs[1]}')
        a(f'v_add_f32 v{V_M2}, v{regs[2]}, v{regs[3]}')
        for i in range(4, len(regs), 2):
            a(f'v_add_f32 v{V_SUM}, v{V_SUM}, v{regs[i]}')
            a(f'v_add_f32 v{V_M2}, v{V_M2}, v{regs[i+1]}')
        a(f'v_add_f32 v{V_SUM}, v{V_SUM}, v{V_M2}')
        a(f'v_mov_b32 v{V_M2}, v{V_SUM}')
        a(f'v_permlane32_swap_b32 v{V_SUM}, v{V_M2}')
        a(f'v_add_f32 v{V_SUM}, v{V_SUM}, v{V_M2}')
        a(f'v_rcp_f32 v{V_SUM}, v{V_SUM}')

    def att(self, LNEXT):
        a = self.a; L = self.L; S = self.S
        V_BL, V_BS, V_AL, V_KML, V_VML, V_D0, V_FLA, V_FLB = 6, 7, 8, 9, 10, 11, 12, 13
        V_M, V_M2, V_SUM = 14, 15, 26
        V_PP = 16
        V_PP = 28
        V_PM = 40
        V_PK = 208
        V_BC, V_BP, V_BA = 64, 80, 96
        V_SC, V_SP = 112, 128
        V_O = 144
        A_Q, A_K, A_KM, A_V, A_VM = 0, 32, 64, 96, 128
        B_Q, B_K, B_V, B_KP, B_VP, B_VC = 160, 168, 176, 184, 192, 196
        NEG = f32(-1e30)
        T = G_PTR
        a(f's_mov_b32 s{G_C}, {f32(128 ** -0.5 * math.log2(math.e))}')
        a(f's_mov_b32 s{G_C2}, {f32(32 ** -0.5 * math.log2(math.e))}')
        G_STR, G_AEND, G_S2 = G_PS, G_WSO, G_WST
        G_NX = G_OUO
        S(G_J, [(G_ID, 0, 3, 2), (G_WV, 0, None, 0)])
        a(f's_lshl_b32 s{G_T0}, s{G_J}, 11')
        a(f'v_add_u32 v{V_BL}, s{G_T0}, v{V_L16}')
        L(V_KML, [(5, 1, 7), (0, 3, 4)], f's{G_T0}')
        a(f's_add_u32 s{G_T0}, s{G_T0}, {VM - KM}')
        L(V_VML, [(0, 5, 4), (5, 1, 3)], f's{G_T0}')
        a(f's_lshl_b32 s{G_T0}, s{G_J}, 13')
        a(f'v_add_u32 v{V_AL}, s{G_T0}, v{V_L16}')
        a(f'v_mov_b32 v{V_BS}, v{V_AL}')
        S(G_FA, [(G_J, 0, None, 7)], FLG + F_SLA)
        S(G_FB, [(G_J, 2, None, 7)], FLG + F_SLB)
        S(G_FR, [(G_J, 0, None, 7)], FLG + F_REC)
        S(G_T0, [(G_J, 0, None, 7)], FLG)
        a(f'v_mov_b32 v{V_FLA}, s{G_T0}')
        a(f'v_lshl_add_u32 v{V_FLB}, v{V_L}, 12, s{G_T0}')
        self.keep(V_FLA, 's_mov_b64 vcc, 1')
        lhelp = a.newlabel('at_help'); lcom = a.newlabel('at_com')
        a(f's_cmp_lt_u32 s{G_ID}, 120')
        a(f's_cbranch_scc1 {lhelp}')
        a(f's_mov_b32 s{G_SA}, 0')
        a(f's_mov_b32 s{G_SB}, 0')
        a(f's_mov_b32 s{G_STR}, 1')
        a(f's_mov_b32 s{G_AEND}, {N0}')
        a(f's_mov_b32 s{G_S2}, {N1 + 2}')
        if self.sync:
            li = a.newlabel('at_i')
            a(f'v_mov_b32 v{V_T0}, 0')
            a(f's_mov_b32 s{G_T0}, {F_ATB}')
            a(f'buffer_store_dword v{V_T0}, v{V_FLA}, {WS}, s{G_T0} offen sc1')
            a(f's_mov_b32 s{G_T0}, {F_ATA}')
            a(f'buffer_store_dword v{V_T0}, v{V_FLB}, {WS}, s{G_T0} offen sc1')
            if not self.GV:
                a('s_waitcnt vmcnt(0)')
                a('s_barrier')
                a(f's_cmp_lg_u32 s{G_WV}, 0')
                a(f's_cbranch_scc1 {li}')
            if self.GV: self.late_arrive()
            else:
                self.mark(7)
                a('s_mov_b64 exec, 1')
                self.arrive()
            a.label(li)
        if not self.GV: self.touch_wo()
        a(f's_load_dwordx2 s[{T}:{T+1}], s[0:1], {K_AX}')
        a(f's_load_dwordx2 s[{T+2}:{T+3}], s[0:1], {K_BX}')
        a(f's_load_dwordx2 s[{T+4}:{T+5}], s[0:1], {K_BWO}')
        a('s_waitcnt lgkmcnt(0)')
        srd(a, G_W, T, 4 * MB)
        srd(a, G_X, T + 2, 4 * MB)
        srd(a, G_W2, T + 4, 2 * MB)
        a(f's_lshl_b32 s{G_T0}, s{G_J}, 13')
        a(f'v_lshl_add_u32 v{V_D0}, v{V_L}, 7, s{G_T0}')
        a(f'buffer_load_dword v{V_O}, v{V_D0}, s[{G_W}:{G_W+3}], 0 offen')
        self.wait_start()
        for i in range(16 if self.XT else 0):
            a(f's_mov_b32 s{G_T0}, {i * 262144}')
            a(f'buffer_load_dword v{V_O+2*i}, v{V_D0}, s[{G_W}:{G_W+3}], s{G_T0} offen')
            a(f'buffer_load_dword v{V_O+2*i+1}, v{V_D0}, s[{G_X}:{G_X+3}], s{G_T0} offen')
            if self.XT >= 2: a('s_waitcnt vmcnt(0)')
        for i in range(8 if self.XT & 1 else 0):
            if self.XT >= 2 and i % 2 == 0: a('s_waitcnt vmcnt(0)')
            a(f's_mov_b32 s{G_T0}, {i * 262144}')
            a(f'buffer_load_dword v{V_O+32+i}, v{V_D0}, s[{G_W2}:{G_W2+3}], s{G_T0} offen')
        a(f's_branch {lcom}')
        a.label(lhelp)
        S(G_SA, [(G_ID, 3, None, 0)], N0)
        a(f's_mov_b32 s{G_SB}, {NSEG}')
        a(f's_mov_b32 s{G_STR}, 12')
        a(f's_mov_b32 s{G_AEND}, {N1}')
        S(G_S2, [(G_ID, 3, 1, 0)], N1)
        a(f's_cmp_lt_u32 s{G_ID}, {NOUT}')
        a(f's_cselect_b32 s{G_S2}, {NSEG}, s{G_S2}')
        a.label(lcom)
        L(V_D0, [(0, 5, 0)])
        L(V_T1, [(5, 1, 2)])
        a(f'v_sub_u32 v{V_D0}, v{V_D0}, v{V_T1}')
        def bias(dst, add):
            a(f'v_mov_b32 v{V_M}, {NEG}')
            for j in range(16):
                a(f'v_add_u32 v{V_T1}, {add - (8*(j>>2)+(j&3))}, v{V_D0}')
                a(f'v_and_b32 v{V_T1}, 0xfffffff1, v{V_T1}')
                a(f'v_cmp_ne_u32 vcc, 0, v{V_T1}')
                a(f'v_cndmask_b32 v{dst+j}, 0, v{V_M}, vcc')
        bias(V_BC, 0)
        for j in range(16):
            a(f'v_cmp_gt_i32 vcc, {8*(j>>2)+(j&3)}, v{V_D0}')
            a(f'v_cndmask_b32 v{V_BA+j}, 0, v{V_M}, vcc')
        for j in range(16): a(f'v_mov_b32 v{V_BP+j}, {NEG}')
        for j in range(12): a(f'v_accvgpr_write_b32 a{B_KP+j}, 0')
        for j in range(16): a(f'v_accvgpr_write_b32 a{A_VM+j}, 0')
        for j in range(4): a(f'v_mov_b32 v{V_PM+j}, 0')
        self.wait_dbg(D_INIT, NARR if self.GV else NWG)
        top = a.newlabel('at_top'); la = a.newlabel('at_a'); lb = a.newlabel('at_b'); lend = a.newlabel('at_end'); lnb = a.newlabel('at_nb')
        lpoll = a.newlabel('at_poll'); lnf = a.newlabel('at_nf')
        G_DIRTY = G_SEEN
        def poll():
            if not self.sync: return
            a(f's_load_dwordx16 s[8:23], s[{G_WSP}:{G_WSP+1}], s{G_FR} glc')
            a(f's_load_dwordx4 s[{T+4}:{T+7}], s[{G_WSP}:{G_WSP+1}], s{G_FA} glc')
            a(f's_load_dwordx4 s[{T+8}:{T+11}], s[{G_WSP}:{G_WSP+1}], s{G_FB} glc')
        G_PV = G_R
        def post():
            a(f'v_mov_b32 v{V_T0}, s{G_PV}')
            a(f'buffer_store_dword v{V_T0}, v{V_FLA}, {WS}, s{G_DIRTY} offen sc1')
        def ld8(dst, base):
            for t in range(8):
                if t % 4 == 0: a(f's_add_u32 s{G_T0}, s{G_PO}, {base + t*1024}')
                a(f'buffer_load_dwordx4 {ar(dst+4*t,4)}, v{V_BS}, {WS}, s{G_T0} offen offset:{(t&3)*1024} sc1')
        def ldB(m, dst):
            a(f's_add_u32 s{G_T0}, s{G_XO}, {PB + m * PB_M}')
            for t in range(2): a(f'buffer_load_dwordx4 {ar(dst+4*t,4)}, v{V_BL}, {WS}, s{G_T0} offen offset:{t*1024} sc1')
        def nextseg():
            ln = a.newlabel('at_nx')
            a(f's_add_u32 s{G_NX}, s{G_SA}, s{G_STR}')
            a(f's_cmp_lt_u32 s{G_NX}, s{G_AEND}')
            a(f's_cbranch_scc1 {ln}')
            a(f's_max_u32 s{G_NX}, s{G_NX}, s{G_S2}')
            a(f's_cmp_eq_u32 s{G_AEND}, 255')
            a(f's_cselect_b32 s{G_NX}, s{G_NX}, s{G_S2}')
            a(f's_mov_b32 s{G_STR}, 3')
            a(f's_mov_b32 s{G_AEND}, 255')
            a.label(ln)
        nextseg()
        self.wait_flags_s(G_FB, 4, [0, 1, 2], 1)
        a(f's_mov_b32 s{G_XO}, 0')
        for m, dst in enumerate((B_Q, B_K, B_V)): ldB(m, dst)
        a(f's_add_u32 s{G_T1}, s{G_SA}, 1')
        self.wait_flags_s(G_FA, 4, [0, 1, 2], f's{G_T1}')
        a(f's_lshl_b32 s{G_PO}, s{G_SA}, 18')
        ld8(A_Q, PA); ld8(A_K, PA + PA_M); ld8(A_V, PA + 2 * PA_M)
        a(f's_mov_b32 s{G_DIRTY}, {F_DUM}')
        a(f's_mov_b32 s{G_PV}, 0')
        a(f's_mov_b32 s{G_END}, 0')
        a('s_waitcnt vmcnt(0)')
        self.acc(None)
        a.label(lpoll)
        poll()
        a.label(top)
        if self.sync:
            a('s_waitcnt lgkmcnt(0)')
            a(f's_min_u32 s{T}, s8, s12')
            for i in (16, 20): a(f's_min_u32 s{T}, s{T}, s{i}')
            for b in (4, 8):
                for i in (1, 2): a(f's_min_u32 s{T+b}, s{T+b}, s{T+b+i}')
            a(f's_min_u32 s{T+5}, s{G_NX}, {NSEG-1}')
            a(f's_cmp_gt_u32 s{T+4}, s{T+5}')
            a(f's_cselect_b32 s{T}, s{T}, 0')
            a(f's_min_u32 s{T}, s{T}, {NSEG}')
            a(f's_sub_u32 s{T+9}, s{T+8}, 1')
            a(f's_cmp_ge_u32 s{T+8}, {NSEG}')
            a(f's_cselect_b32 s{T+8}, {NSEG}, s{T+9}')
        else:
            a(f's_mov_b32 s{T}, {NSEG}'); a(f's_mov_b32 s{T+8}, {NSEG}')
        a(f's_cmp_lt_u32 s{G_SB}, s{T+8}')
        a(f's_cbranch_scc1 {lb}')
        a(f's_cmp_lt_u32 s{G_SA}, s{T}')
        a(f's_cbranch_scc1 {la}')
        a(f's_cmp_eq_u32 s{G_DIRTY}, {F_DUM}')
        a(f's_cbranch_scc1 {lnf}')
        a('s_waitcnt vmcnt(0)')
        post()
        a(f's_mov_b32 s{G_DIRTY}, {F_DUM}')
        a.label(lnf)
        a(f's_cmp_ge_u32 s{G_SA}, {NSEG}')
        a(f's_cselect_b32 s{G_T0}, s{G_SB}, 0')
        a(f's_cmp_ge_u32 s{G_T0}, {NSEG}')
        a(f's_cbranch_scc1 {lend}')
        self.spin_guard(lend)
        a('s_sleep 1')
        a(f's_branch {lpoll}')
        a.label(la)
        self.acc(0)
        G_KOK = G_END
        def ldkm():
            a('s_mov_b32 exec_lo, 0xff'); a('s_mov_b32 exec_hi, 0xff')
            for t in range(8): a(f'buffer_load_dwordx4 {ar(A_KM+4*t,4)}, v{V_KML}, {WS}, s{G_KMO} offen offset:{t*256} sc1')
            a('s_mov_b64 exec, -1')
        def ldvm():
            for e in range(4): a(f'buffer_load_dwordx2 {ar(A_VM+4*e,2)}, v{V_VML}, {WS}, s{G_KMO} offen offset:{e*512} sc1')
        lk1 = a.newlabel('at_k1'); lk2 = a.newlabel('at_k2'); lk3 = a.newlabel('at_k3'); lk4 = a.newlabel('at_k4')
        S(G_KMO, [(G_SA, 0, None, 16)], KM)
        a(f's_cmp_lg_u32 s{G_KOK}, 0')
        a(f's_cbranch_scc1 {lk1}')
        ldkm(); ldvm()
        a.label(lk1)
        S(G_OAO, [(G_SA, 0, None, 18)], OA)
        a(f's_cmp_lt_u32 s{G_NX}, s{T}')
        a(f's_cselect_b32 s{G_XMAX}, 1, 0')
        a(f's_cmp_lt_u32 s{G_NX}, {NSEG}')
        a(f's_cselect_b32 s{G_T1}, s{G_NX}, s{G_SA}')
        a(f's_cselect_b32 s{G_T0}, 0, {OOB}')
        a(f'v_or_b32 v{V_BS}, s{G_T0}, v{V_AL}')
        a(f's_lshl_b32 s{G_PO}, s{G_T1}, 18')
        S(G_KMO, [(G_T1, 0, None, 16)], KM)
        poll()
        for t in range(8):
            a(f'v_mfma_f32_32x32x16_bf16 {vr(V_SC,16)}, {ar(A_K+4*t,4)}, {ar(A_Q+4*t,4)}, {vr(V_SC if t else V_BA,16)}')
        a(f's_cmp_lg_u32 s{G_KOK}, 0')
        a(f's_cbranch_scc1 {lk2}')
        a('s_waitcnt vmcnt(4)')
        a.label(lk2)
        ld8(A_K, PA + PA_M)
        for t in range(8):
            a(f'v_mfma_f32_32x32x16_bf16 {vr(V_SP,16)}, {ar(A_KM+4*t,4)}, {ar(A_Q+4*t,4)}, {vr(V_SP,16) if t else 0}')
        self.acc(1)
        a(f's_mov_b32 s{G_KOK}, s{G_XMAX}')
        ld8(A_Q, PA)
        a(f's_cmp_eq_u32 s{G_KOK}, 0')
        a(f's_cbranch_scc1 {lk3}')
        ldkm()
        a.label(lk3)
        self.softmax([V_SC + j for j in range(16)] + [V_SP + j for j in range(4)], V_M, V_M2, V_SUM)
        for j in range(8): a(f'v_cvt_pk_bf16_f32 v{V_PP+j}, v{V_SC+2*j}, v{V_SC+2*j+1}')
        for j in range(2): a(f'v_cvt_pk_bf16_f32 v{V_PM+j}, v{V_SP+2*j}, v{V_SP+2*j+1}')
        def fin(e):
            O = V_O + 16 * e; PK = V_PK + 8 * e
            r = [f'v_mul_f32 v{O+j}, v{O+j}, v{V_SUM}' for j in range(16)]
            r += [f'v_cvt_pk_bf16_f32 v{PK+j}, v{O+2*j}, v{O+2*j+1}' for j in range(8)]
            return r
        def pv(e):
            O = vr(V_O + 16 * e, 16)
            return [f'v_mfma_f32_32x32x16_bf16 {O}, {ar(A_V+8*e,4)}, {vr(V_PP,4)}, 0',
                    f'v_mfma_f32_32x32x16_bf16 {O}, {ar(A_V+8*e+4,4)}, {vr(V_PP+4,4)}, {O}',
                    f'v_mfma_f32_32x32x16_bf16 {O}, {ar(A_VM+4*e,4)}, {vr(V_PM,4)}, {O}']
        a('s_waitcnt vmcnt(16)')
        post()
        for m in pv(0) + pv(1): a(m)
        q = fin(0) + fin(1)
        for m in pv(2) + pv(3):
            a(m)
            for _ in range(6): a(q.pop(0))
        ld8(A_V, PA + 2 * PA_M)
        a(f's_cmp_eq_u32 s{G_KOK}, 0')
        a(f's_cbranch_scc1 {lk4}')
        ldvm()
        a.label(lk4)
        for x in q + fin(2) + fin(3): a(x)
        for e in range(4):
            if e % 2 == 0: a(f's_add_u32 s{G_T0}, s{G_OAO}, {e*2048}')
            for t in range(2): a(f'buffer_store_dwordx4 {vr(V_PK+8*e+4*t,4)}, v{V_AL}, {WS}, s{G_T0} offen offset:{(e&1)*2048+t*1024} sc1')
        a(f's_mov_b32 s{G_PV}, 1')
        S(G_DIRTY, [(G_SA, 0, None, 12)], F_ATA)
        a(f's_mov_b32 s{G_SA}, s{G_NX}')
        nextseg()
        self.acc(2)
        a('s_waitcnt vmcnt(17)')
        self.acc(3)
        a(f's_branch {top}')
        a.label(lb)
        self.acc(0)
        poll()
        S(G_OBO, [(G_SB, 0, None, 16)], OB)
        a(f's_add_u32 s{G_T1}, s{G_SB}, 1')
        a(f's_min_u32 s{G_T1}, s{G_T1}, {NSEG-1}')
        a(f's_lshl_b32 s{G_XO}, s{G_T1}, 16')
        a(f'v_mfma_f32_32x32x16_bf16 {vr(V_SP,16)}, {ar(B_KP,4)}, {ar(B_Q,4)}, {vr(V_BP,16)}')
        a(f'v_mfma_f32_32x32x16_bf16 {vr(V_SP,16)}, {ar(B_KP+4,4)}, {ar(B_Q+4,4)}, {vr(V_SP,16)}')
        a(f'v_mfma_f32_32x32x16_bf16 {vr(V_SC,16)}, {ar(B_K,4)}, {ar(B_Q,4)}, {vr(V_BC,16)}')
        a(f'v_mfma_f32_32x32x16_bf16 {vr(V_SC,16)}, {ar(B_K+4,4)}, {ar(B_Q+4,4)}, {vr(V_SC,16)}')
        for j in range(8): a(f'v_accvgpr_mov_b32 a{B_KP+j}, a{B_K+j}')
        for j in range(8): a(f'v_accvgpr_mov_b32 a{B_VC+j}, a{B_V+j}')
        for m, dst in enumerate((B_Q, B_K, B_V)): ldB(m, dst)
        self.softmax([V_SP + 8 + j for j in range(8)] + [V_SC + j for j in range(16)], V_M, V_M2, V_SUM, G_C2)
        for j in range(8): a(f'v_cvt_pk_bf16_f32 v{V_PP+j}, v{V_SC+2*j}, v{V_SC+2*j+1}')
        for j in range(4): a(f'v_cvt_pk_bf16_f32 v{V_PP+8+j}, v{V_SP+8+2*j}, v{V_SP+8+2*j+1}')
        O = vr(V_O, 16)
        a(f'v_mfma_f32_32x32x16_bf16 {O}, {ar(B_VC,4)}, {vr(V_PP,4)}, 0')
        a(f'v_mfma_f32_32x32x16_bf16 {O}, {ar(B_VC+4,4)}, {vr(V_PP+4,4)}, {O}')
        a(f'v_mfma_f32_32x32x16_bf16 {O}, {ar(B_VP,4)}, {vr(V_PP+8,4)}, {O}')
        for j in range(4): a(f'v_accvgpr_mov_b32 a{B_VP+j}, a{B_VC+4+j}')
        self.acc(4)
        a('s_waitcnt vmcnt(6)')
        self.acc(5)
        post()
        a(f's_cmp_lg_u32 s{G_SB}, 0')
        a(f's_cbranch_scc1 {lnb}')
        bias(V_BP, 32)
        a.label(lnb)
        for j in range(16): a(f'v_mul_f32 v{V_O+j}, v{V_O+j}, v{V_SUM}')
        for j in range(8): a(f'v_cvt_pk_bf16_f32 v{V_PK+j}, v{V_O+2*j}, v{V_O+2*j+1}')
        for t in range(2):
            for j in range(2): a(f'v_permlane32_swap_b32 v{V_PK+4*t+j}, v{V_PK+4*t+2+j}')
        for t in range(2): a(f'buffer_store_dwordx4 {vr(V_PK+4*t,4)}, v{V_BL}, {WS}, s{G_OBO} offen offset:{t*1024} sc1')
        a(f's_add_u32 s{G_SB}, s{G_SB}, 1')
        a(f's_mov_b32 s{G_DIRTY}, {F_ATB}')
        a(f's_mov_b32 s{G_PV}, s{G_SB}')
        if self.prof:
            lm = a.newlabel('at_m')
            a(f's_cmp_lg_u32 s{G_SB}, {NSEG}')
            a(f's_cbranch_scc1 {lm}')
            self.mark(1)
            a.label(lm)
        self.acc(6)
        a('s_waitcnt vmcnt(3)')
        self.acc(7)
        a(f's_branch {top}')
        a.label(lend)
        a('s_waitcnt vmcnt(0) lgkmcnt(0)')
        self.mark(5)
        self.mark(6)
        a(f's_branch {LNEXT}')

    def out64(self, LNEXT, NF=16, SLP=10):
        a = self.a; L = self.L; S = self.S
        P = G_PTR
        NR = NOUT // 16
        V_G, V_TR, V_FA, V_RW, V_RR, V_OUT, V_FP, V_FR = 6, 7, 8, 9, 10, 11, 12, 13
        V_LW = 16
        V_AC = 32
        V_F = 64
        V_W = 128
        RB = 131072
        G_NXT, G_NOK, G_FSO = G_XO, G_END, G_XMAX
        a(f's_load_dwordx2 s[{P}:{P+1}], s[0:1], {K_WO}')
        a(f's_load_dwordx2 s[{P+2}:{P+3}], s[0:1], {K_OUT}')
        a(f's_mul_i32 s{G_J}, s{G_ID}, {-(-1024 // NR)}')
        a(f's_lshr_b32 s{G_J}, s{G_J}, 10')
        assert all((i * -(-1024 // NR)) >> 10 == i // NR for i in range(NOUT))
        a(f's_mul_i32 s{G_T0}, s{G_J}, {NR}')
        a(f's_sub_u32 s{G_SEG}, s{G_ID}, s{G_T0}')
        if self.OM:
            S(G_J, [(G_ID, 5, 1, 3), (G_ID, 0, 3, 0)])
            S(G_SEG, [(G_ID, 3, 2, 0)])
            a(f's_and_b32 s{G_T0}, s{G_ID}, 15')
            a(f's_cmp_lt_u32 s{G_ID}, 64')
            a(f's_cselect_b32 s{G_J}, s{G_J}, s{G_T0}')
            a(f's_cselect_b32 s{G_SEG}, s{G_SEG}, 4')
        a('s_waitcnt lgkmcnt(0)')
        srd(a, G_W, P, 8 * MB)
        srd(a, G_OUT, P + 2, 8 * MB)
        S(G_T0, [(G_WV, 0, None, 21), (G_J, 0, None, 7)])
        L(V_G, [(3, 3, 11), (0, 3, 4)], f's{G_T0}')
        a(f's_lshl_b32 s{G_T0}, s{G_WV}, 15')
        L(V_TR, [(5, 1, 9), (2, 2, 7), (4, 1, 5), (0, 2, 3)], f's{G_T0}')
        def wreg(t, tile):
            return f'a[{8*t+4*tile}:{8*t+4*tile+3}]' if t < 32 else vr(V_W + 8 * (t - 32) + 4 * tile, 4)
        def rds(p):
            if p >= 48: return []
            f, b = ('a', 8 * p) if p < 32 else ('v', V_W + 8 * (p - 32))
            return [(f'{f}[{b+4*tl+2*q}:{b+4*tl+2*q+1}]', V_TR, tl * 64 + q * 1024) for tl in range(2) for q in range(2)]
        self.load_weights([(G_W, V_G, 64, rds, '0', '16384')])
        self.mark(4)
        a(f's_lshl_b32 s{G_T0}, s{G_WV}, 16')
        a(f'v_add_u32 v{V_FA}, s{G_T0}, v{V_L16}')
        S(G_T0, [(G_WV, 0, None, 13)], RB)
        a(f'v_add_u32 v{V_RW}, s{G_T0}, v{V_L16}')
        S(G_T0, [(G_WV, 0, None, 7)], RB)
        L(V_RR, [(1, 2, 10), (0, 1, 9), (3, 3, 4)], f's{G_T0}')
        S(G_T0, [(G_WV, 0, None, 15), (G_J, 0, None, 7)])
        L(V_OUT, [(3, 3, 12), (0, 3, 3)], f's{G_T0}')
        L(V_FP, [(0, 5, 7)], FLG)
        V_TC, V_FR2 = 14, 15
        G_N2, G_FS2 = G_SA, G_SB
        TC = self.TC
        S(G_T0, [(G_WV, 0, None, 16), (G_J, 0, 3, 13)])
        a(f'v_lshl_add_u32 v{V_TC}, v{V_L}, 7, s{G_T0}')
        def touch(base): a(f'buffer_load_dword v{V_T1}, v{V_TC}, {WS}, s{base} offen sc1')
        self.wait_dbg(D_INIT, NARR if self.GV else NWG)
        def flagoff(seg):
            S(G_FSO, [(seg, 0, 6, 12)], F_ATA)
        order = []
        for i in range(16): order += [3 * i, 3 * i + 1, 3 * i + 2, 48 + i]
        def ldA(n, base):
            t = order[n]
            a(f's_add_u32 s{G_T0}, s{base}, {t*1024}')
            a(f'buffer_load_dwordx4 {vr(V_F+4*(n%NF),4)}, v{V_FA}, {WS}, s{G_T0} offen sc1')
        def ldW(i):
            for tl in range(2):
                for q in range(2):
                    r = V_LW + 8 * (i % 2) + 4 * tl + 2 * q
                    a(f'ds_read_b64_tr_b16 v[{r}:{r+1}], v{V_TR} offset:{i*2048+tl*64+q*1024}')
        lp = a.newlabel('o6_loop'); lgo = a.newlabel('o6_go'); lw = a.newlabel('o6_w'); lwd = a.newlabel('o6_wd')
        self.acc(None)
        a.label(lp)
        S(G_OAO, [(G_SEG, 0, None, 18)], OA)
        if self.sync:
            flagoff(G_SEG)
            a.label(lw)
            a(f'buffer_load_dword v{V_FR}, v{V_FP}, {WS}, s{G_FSO} offen sc1')
            self.spin_guard(lwd)
            a('s_waitcnt vmcnt(0)')
            a(f'v_cmp_eq_u32 vcc, 0, v{V_FR}')
            a(f's_cbranch_vccz {lwd}')
            a(f's_sleep {SLP}')
            a(f's_branch {lw}')
            a.label(lwd)
        if TC & 1: touch(G_OAO)
        for n in range(NF - 1): ldA(n, G_OAO)
        a.label(lgo)
        self.acc(0)
        a(f's_lshl_b32 s{G_OUO}, s{G_SEG}, 17')
        a(f's_add_u32 s{G_NXT}, s{G_SEG}, {NR}')
        flagoff(G_NXT)
        if TC & 2:
            a(f's_add_u32 s{G_N2}, s{G_SEG}, {2*NR}')
            S(G_FS2, [(G_N2, 0, 6, 12)], F_ATA)
        ldW(0)
        FL = 24
        for n in range(64):
            t = order[n]
            extra = (2 if TC & 2 else 1) if (FL < n <= FL + NF - 1) else 0
            a(f's_waitcnt vmcnt({NF - 2 + extra})')
            x = vr(V_F + 4 * (n % NF), 4)
            if t >= 48: a('s_waitcnt lgkmcnt(0)')
            for tl in range(2):
                w = wreg(t, tl) if t < 48 else vr(V_LW + 8 * ((t - 48) % 2) + 4 * tl, 4)
                D = vr(V_AC + 16 * tl, 16)
                a(f'v_mfma_f32_32x32x16_bf16 {D}, {w}, {x}, {D if n else 0}')
                if tl == 0:
                    m = n + NF - 1
                    if m == 64:
                        a(f'v_cmp_eq_u32 vcc, 0, v{V_FR}')
                        S(G_KMO, [(G_NXT, 0, None, 18)], OA)
                        a(f's_cmp_eq_u64 vcc, 0')
                        a(f's_cselect_b32 s{G_NOK}, 1, 0')
                        a(f's_cmp_ge_u32 s{G_NXT}, {NSEG}')
                        a(f's_cselect_b32 s{G_NOK}, 0, s{G_NOK}')
                        a(f's_cmp_eq_u32 s{G_NOK}, 0')
                        a(f's_cselect_b32 s{G_KMO}, s{G_OAO}, s{G_KMO}')
                    ldA(m % 64, G_OAO if m < 64 else G_KMO)
                    if n == FL:
                        if self.sync: a(f'buffer_load_dword v{V_FR}, v{V_FP}, {WS}, s{G_FSO} offen sc1')
                        else: a(f'buffer_load_dword v{V_T1}, v{V_FP}, {WS}, s{G_FSO} offen sc1'); a(f'v_mov_b32 v{V_FR}, 127')
                        if TC & 2: a(f'buffer_load_dword v{V_FR2}, v{V_FP}, {WS}, s{G_FS2} offen sc1')
                    if n == 60 and TC & 2:
                        a(f'v_cmp_eq_u32 vcc, 0, v{V_FR2}')
                        S(G_FS2, [(G_N2, 0, None, 18)], OA)
                        a(f's_cmp_eq_u64 vcc, 0')
                        a(f's_cselect_b32 s{G_FS2}, s{G_FS2}, s{G_OAO}')
                        a(f's_cmp_ge_u32 s{G_N2}, {NSEG}')
                        a(f's_cselect_b32 s{G_FS2}, s{G_OAO}, s{G_FS2}')
                    if n == 63 and TC & 2: touch(G_FS2)
                    if m == 64 and TC & 4: touch(G_KMO)
            if t >= 48 and t < 63: ldW(t - 48 + 1)
        self.acc(1)
        a('s_barrier')
        for b in range(8): a(f'ds_write_b128 v{V_RW}, {vr(V_AC+4*b,4)} offset:{b*1024}')
        a('s_waitcnt lgkmcnt(0)')
        a('s_barrier')
        for h in range(2):
            for w in range(4): a(f'ds_read_b128 {vr(V_AC+16*h+4*w,4)}, v{V_RR} offset:{h*4096+w*8192}')
        for h in range(2):
            R = V_AC + 16 * h
            a(f's_waitcnt lgkmcnt({4-4*h})')
            for j in (0, 2): a(f'v_pk_add_f32 {vr(R+j,2)}, {vr(R+j,2)}, {vr(R+4+j,2)}')
            for j in (0, 2): a(f'v_pk_add_f32 {vr(R+8+j,2)}, {vr(R+8+j,2)}, {vr(R+12+j,2)}')
            for j in (0, 2): a(f'v_pk_add_f32 {vr(R+j,2)}, {vr(R+j,2)}, {vr(R+8+j,2)}')
            for j in range(2): a(f'v_cvt_pk_bf16_f32 v{V_LW+8+2*h+j}, v{R+2*j}, v{R+2*j+1}')
            a(f'buffer_store_dwordx2 {vr(V_LW+8+2*h,2)}, v{V_OUT}, s[{G_OUT}:{G_OUT+3}], s{G_OUO} offen offset:{h*64}{self.ost}')
        self.acc(2)
        a(f's_mov_b32 s{G_SEG}, s{G_NXT}')
        a(f's_mov_b32 s{G_OAO}, s{G_KMO}')
        a(f's_cmp_lg_u32 s{G_NOK}, 0')
        a(f's_cbranch_scc1 {lgo}')
        a(f's_cmp_lt_u32 s{G_SEG}, {NSEG}')
        a(f's_cbranch_scc1 {lp}')
        self.mark(5)
        a(f's_branch {LNEXT}')
```

```python
from asmlib import *
from layout import *
import math, struct

def srd(a, s, ptr, nbytes):
    a(f's_mov_b32 s{s}, s{ptr}')
    a(f's_and_b32 s{s+1}, s{ptr+1}, 0xffff')
    a(f's_mov_b32 s{s+2}, {nbytes}')
    a(f's_mov_b32 s{s+3}, 0x00020000')

def lane(a, dst, tmp, VL, terms, add=None):
    first = True
    for sh, w, out in terms:
        t = dst if first else tmp
        if sh + w >= 6: a(f'v_lshrrev_b32 v{t}, {sh}, v{VL}')
        elif sh == 0: a(f'v_and_b32 v{t}, {(1 << w) - 1}, v{VL}')
        else: a(f'v_bfe_u32 v{t}, v{VL}, {sh}, {w}')
        if first:
            if out: a(f'v_lshlrev_b32 v{dst}, {out}, v{dst}')
        else: a(f'v_lshl_add_u32 v{dst}, v{tmp}, {out}, v{dst}')
        first = False
    if add is not None: a(f'v_add_u32 v{dst}, {add}, v{dst}')

def sexpr(a, dst, tmp, terms, const=0):
    first = True
    for sreg, sh, w, out in terms:
        t = dst if first else tmp
        src = sreg
        if sh: a(f's_lshr_b32 s{t}, s{src}, {sh}'); src = t
        if w is not None: a(f's_and_b32 s{t}, s{src}, {(1 << w) - 1}'); src = t
        if out: a(f's_lshl_b32 s{t}, s{src}, {out}'); src = t
        if first:
            if src != dst: a(f's_mov_b32 s{dst}, s{src}')
        else: a(f's_add_u32 s{dst}, s{dst}, s{src}')
        first = False
    if const: a(f's_add_u32 s{dst}, s{dst}, {const}')

S_PFL = 3
S_WS = 4
S_WQ = 8
S_WO = 20
S_M0 = 24
S_RID, S_H, S_I, S_W, S_STEP = 28, 29, 30, 31, 32
S_SL0, S_SL1, S_SL2 = 33, 34, 35
S_SC, S_KV = 36, 37
S_T0, S_T1, S_T2 = 38, 39, 40
S_SPIN = 41
S_MLO8 = 42
S_MHI = 44
S_MHI8 = 46
S_PAR = 48
S_HB = 49
S_C = 50
S_KXB = 51
S_TS = 52
S_TAG = 54
S_MBO = 55
S_MK = 56
S_PTR = 72
S_NSO = 88
S_WSP = 90
S_DBG = 92
S_SEEN, S_FKV, S_FAST, S_FRO = 94, 95, 96, 97
S_NSI, S_NBO, S_NBI = 89, 98, 99

L_QK = 0
L_V = 10240
L_OP = 14336
L_X = 15360
L_KX = 131072

def gen_rec(a, prof=0, nsteps=NSEG, sync=False, DA=1, DB=2, DC=0, PLAINB=1, TPOS=1, TA=0, NEAR=1, ILA=4, ILC=4, SEP=0, ROT=0, OMAP=0, RDYP=26, MIX=0, TW=1, KC=2, KA=1, CJ=3, LB=1, RING=0, ASY=1, NSP=0, ZD=0, XP=0, PMK=0, TLBW=0, GV=0, STG=0, FS=0, POLP=38, WPF=0, ARP=18, WFL=0, QFL=0):
    V_L, V_T0, V_T1, V_T2 = 1, 2, 3, 4
    V_IDX = 5
    V_MEMST, V_AOFF, V_COFF, V_COFF2 = 6, 7, 12, 13
    V_FF = 8
    V_QKW, V_QKW2, V_L16, V_VW, V_QKR, V_SCST, V_SCST2, V_SCLM = 14, 15, 16, 17, 18, 19, 20, 21
    V_SCL = [22, 23, 24]
    V_VR, V_VR2, V_OST, V_OPW, V_OPR, V_PFG, V_CK = 25, 26, 27, 28, 29, 30, 31
    V_ONE = 32
    V_MA = 36
    V_VX, V_KX = 52, 60
    V_D = 68
    V_S = 68
    V_PTG, V_NSA, V_SCCL, V_OCL = 92, 93, 94, 95
    V_X = 96
    V_R = 100
    V_TKST, V_TKSA, V_TG, V_M, V_M2 = 132, 133, 134, 135, 136
    V_VM = 138
    V_ZZ = 144
    V_TR = 148
    V_P = 156
    V_LD = 164
    V_NS = 180
    V_GQ, V_GO, V_TRQ, V_TRO = 184, 185, 186, 187
    V_FRA, V_NBA = 137, 26
    V_NB = 188
    V_FRV = V_NB
    V_CK2 = 4
    TRMAP = {0: 0, 2: 1, 5: 3, 8: 4, 10: 5, 'b': 2, 7: 6, 11: 7}
    TSR = [8, 10, 12, 14, 16, 18, 58, 20, 22, 24, 26, 56]
    def ts(k):
        if prof != 3: return
        r = 56 if k == 0 else (58 if k == 'o' else 8 + 2 * k)
        a(f's_memtime s[{r}:{r+1}]')
    def harvest():
        if prof != 3: return
        a('s_waitcnt lgkmcnt(0)')
        lh = a.newlabel('hv')
        a(f's_cmp_le_u32 s{S_STEP}, 3')
        a(f's_cbranch_scc1 {lh}')
        for k in range(1, 12):
            a(f's_sub_u32 s{S_TS}, s{TSR[k]}, s{TSR[k-1]}')
            a(f'v_readlane_b32 s{S_TS+1}, v{V_TR+1}, {k}')
            a(f's_add_u32 s{S_TS}, s{S_TS}, s{S_TS+1}')
            a(f'v_writelane_b32 v{V_TR+1}, s{S_TS}, {k}')
        a.label(lh)
        a('s_mov_b32 s8, s56')
    def stamp(k):
        if prof not in (1, 2): return
        e = TRMAP[k]
        if prof == 2 and k not in (5, 10, 7, 11): return
        lsk = a.newlabel('st')
        a(f's_cmp_eq_u32 s{S_W}, 3')
        a(f's_cbranch_scc1 {lsk}')
        a(f's_memrealtime s[{S_TS}:{S_TS+1}]')
        a('s_waitcnt lgkmcnt(0)')
        if k in (10, 11):
            a(f's_sub_u32 s{S_TS+1}, s{S_STEP}, 1')
            a(f's_mov_b32 m0, s{S_TS+1}')
        else:
            a(f's_mov_b32 m0, s{S_STEP}')
        a(f's_lshl_b32 s{S_TS}, s{S_TS}, 8')
        a(f's_and_b32 s{S_TS+1}, s{S_SPIN}, 0xff')
        a(f's_or_b32 s{S_TS}, s{S_TS}, s{S_TS+1}')
        a(f'v_writelane_b32 v{V_TR+e}, s{S_TS}, m0')
        a.label(lsk)
    def pmark(e, alt=0):
        if e in (2, 5, 6) and alt != PMK: return
        if prof == 5:
            if e in (2, 3, 7, 0):
                a(f's_memrealtime s[{S_TS}:{S_TS+1}]')
                a('s_waitcnt lgkmcnt(0)')
                a(f'v_mov_b32 v{V_TR}, s{S_TS}'); a(f'v_mov_b32 v{V_TR+1}, 0')
                a('s_mov_b64 exec, 1')
                a(f'global_atomic_umax v{V_TR+1}, v{V_TR}, s[{S_DBG}:{S_DBG+1}] offset:{4*{2: 1, 3: 2, 7: 3, 0: 4}[e]} sc1')
                a('s_mov_b64 exec, -1')
            return
        if not prof: return
        a(f's_memrealtime s[{S_TS}:{S_TS+1}]')
        a('s_waitcnt lgkmcnt(0)')
        a(f's_lshl_b32 s{S_TS}, s{S_TS}, 8')
        a(f'v_writelane_b32 v{V_TR+e}, s{S_TS}, 63')
    def L(dst, terms, add=None): lane(a, dst, V_T2, V_L, terms, add)
    def S(dst, terms, const=0): sexpr(a, dst, S_T2, terms, const)
    def spin_guard(lgive):
        a(f's_add_u32 s{S_SPIN}, s{S_SPIN}, 1')
        a(f's_cmp_ge_u32 s{S_SPIN}, 0x80000')
        a(f's_cbranch_scc1 {lgive}')
    def keep(reg, cond):
        a(cond)
        a(f'v_mov_b32 v{V_T2}, {OOB}')
        a(f'v_cndmask_b32 v{reg}, v{V_T2}, v{reg}, vcc')

    P = S_PTR
    a(f's_load_dwordx2 s[{P}:{P+1}], s[0:1], {K_MEM0}')
    a(f's_load_dwordx4 s[{P+4}:{P+7}], s[0:1], {K_WQ}')
    a(f's_load_dwordx4 s[{P+8}:{P+11}], s[0:1], {K_WV}')
    a(f's_load_dwordx2 s[{S_WSP}:{S_WSP+1}], s[0:1], {K_WS}')
    a(f's_load_dwordx2 s[{S_DBG}:{S_DBG+1}], s[0:1], {K_DBG}')
    a(f'v_and_b32 v{V_L}, 63, v0')
    a(f'v_lshrrev_b32 v{V_T0}, 6, v0')
    a(f'v_readfirstlane_b32 s{S_W}, v{V_T0}')
    a(f's_lshr_b32 s{S_H}, s{S_RID}, 2')
    a(f's_and_b32 s{S_I}, s{S_RID}, 3')
    a(f's_mov_b32 s{S_SPIN}, 0')
    if prof: a('s_mov_b32 s100, 0'); a('s_mov_b32 s101, 0')
    a('s_waitcnt lgkmcnt(0)')
    srd(a, S_M0, P, 16384)
    srd(a, S_WQ, P + 4, 8 * MB)
    srd(a, S_WQ + 4, P + 6, 8 * MB)
    srd(a, S_WQ + 8, P + 8, 8 * MB)
    srd(a, S_WO, P + 10, 8 * MB)
    srd(a, S_WS, S_WSP, WS_BYTES)
    WS = f's[{S_WS}:{S_WS+3}]'
    a(f's_sub_u32 s{S_HB}, 0, s{S_WSP}')
    a(f's_and_b32 s{S_HB}, s{S_HB}, {2*MB-1}')
    a(f's_add_u32 s{S_HB}, s{S_HB}, {HOFF}')

    if prof:
        for e in range(8): a(f'v_mov_b32 v{V_TR+e}, 0')
    lsk = a.newlabel('rec_cal')
    a(f's_mov_b32 s{S_PAR}, 1')
    cal0 = len(a.lines)
    a(f's_cmp_lg_u32 s{S_W}, 3')
    a(f's_cbranch_scc1 {lsk}')
    S(S_T0, [(S_RID, 0, 3, 21), (S_RID, 3, 1, 13), (S_RID, 4, 3, 8), (S_HB, 0, None, 0)], 15 * 16384)
    S(S_T1, [(S_RID, 3, 1, 14)])
    a(f's_sub_u32 s{S_T1}, s{S_T0}, s{S_T1}')
    a(f's_add_u32 s{S_T1}, s{S_T1}, 8192')
    a(f's_load_dword s{P+8}, s[{S_WSP}:{S_WSP+1}], s{S_T0} glc')
    a(f's_load_dword s{P+9}, s[{S_WSP}:{S_WSP+1}], s{S_T1} glc')
    for k in range(2):
        a('s_waitcnt lgkmcnt(0)')
        a(f's_memtime s[{P+4}:{P+5}]')
        a('s_waitcnt lgkmcnt(0)')
        a(f's_load_dword s{P+8}, s[{S_WSP}:{S_WSP+1}], s{S_T0+k} glc')
        a('s_waitcnt lgkmcnt(0)')
        a(f's_memtime s[{P+6}:{P+7}]')
        a('s_waitcnt lgkmcnt(0)')
        a(f's_sub_u32 s{P+k}, s{P+6}, s{P+4}')
    a(f's_cmp_lt_u32 s{P+1}, s{P}')
    a(f's_cselect_b32 s{S_T0}, 1, 0')
    a(f's_lshr_b32 s{S_T1}, s{S_RID}, 3')
    a(f's_xor_b32 s{S_T0}, s{S_T0}, s{S_T1}')
    a(f's_xor_b32 s{S_T0}, s{S_T0}, s{S_RID}')
    S(S_PAR, [(S_T0, 0, 1, VOTE_SH)], 1)
    if GV: del a.lines[cal0:]
    a.label(lsk)
    pmark(2)
    S(S_T0, [(S_W, 0, None, 21), (S_RID, 0, None, 6)])
    L(V_GQ, [(2, 4, 13), (0, 2, 4)], f's{S_T0}')
    S(S_T0, [(S_W, 0, None, 21), (S_RID, 1, None, 5)])
    L(V_GO, [(1, 5, 11), (0, 1, 4)], f's{S_T0}')
    S_LB = S_SL0
    a(f's_lshl_b32 s{S_LB}, s{S_W}, 15')
    L(V_TRQ, [(4, 2, 9), (2, 2, 6), (0, 2, 3)], f's{S_LB}')
    L(V_TRO, [(4, 2, 8), (2, 2, 5), (0, 2, 3)], f's{S_LB}')
    pairs = []
    def wq_reg(kb, tile): return ('a', (kb * 6 + tile) * 8)
    def wo_reg(kb):
        return ('a', 192 + kb * 8) if kb < 8 else ('v', 192 + (kb - 8) * 8)
    for kb in range(4):
        for hf32 in range(2):
            for m in range(3):
                k0 = kb * 64 + hf32 * 32
                ld = [(S_WQ + 4 * m, V_GQ, (k0 + 16 * j) * 8192) for j in range(2)]
                rd = []
                for t in range(2):
                    f, b = wq_reg(kb, m * 2 + t)
                    for q in range(2):
                        r0 = b + hf32 * 4 + q * 2
                        rd.append((f'{f}[{r0}:{r0+1}]', V_TRQ, t * 32 + q * 256))
                pairs.append((ld, rd))
    NW = 0
    wop = []
    for kb in range(16):
        ld = [(S_WO, V_GO, (kb * 64 + 32 * j) * 2048) for j in range(2)]
        rd = []
        f, b = wo_reg(kb)
        for j in range(2):
            for q in range(2):
                r0 = b + j * 4 + q * 2
                rd.append((f'{f}[{r0}:{r0+1}]', V_TRO, j * 1024 + q * 128))
        wop.append((ld, rd))
    mix = []
    for g in range(8): mix += [wop[2*g], pairs[3*g], pairs[3*g+1], wop[2*g+1], pairs[3*g+2]]
    if MIX == 2: pairs = wop + pairs[0::3] + [x for i, x in enumerate(pairs) if i % 3]
    elif MIX == 4: pairs = wop + pairs
    elif MIX == 5:
        q = pairs; pairs = q[:8]
        for g in range(16): pairs += [wop[g], q[8+g]]
    elif MIX == 3: pairs = pairs[0::3] + wop + [x for i, x in enumerate(pairs) if i % 3]
    else: pairs = mix if MIX else pairs + wop
    NSL = 16
    def issue(p):
        ld, _ = pairs[p]
        for j, (sd, vo, so) in enumerate(ld):
            a(f's_add_u32 m0, s{S_LB}, {(p % NSL) * 2048 + j * 1024}')
            if (STG & 1) and sd == S_WO: a(f's_xor_b32 s{S_T0}, s{S_XO}, {so}')
            elif (STG & 2) and sd != S_WO: a(f's_xor_b32 s{S_T0}, s{S_XQ}, {so}')
            else: a(f's_mov_b32 s{S_T0}, {so}')
            fl = ['', ' nt', ' sc1', ' sc0 sc1', ' sc0 sc1 nt', ' sc1 nt'][WFL if sd == S_WO else QFL]
            a(f'buffer_load_dwordx4 v{vo}, s[{sd}:{sd+3}], s{S_T0} offen{fl} lds')
        ops[0] += 2; pos[p] = ops[0]
        if WPF and WPF <= p < WPF + 16:
            a(f's_mov_b32 s{S_T0}, {(p - WPF) * 64 * 2048}')
            a(f'buffer_load_dwordx4 v[252:255], v{V_X}, s[{S_WO}:{S_WO+3}], s{S_T0} offen')
            ops[0] += 1
    ops = [0]; pos = {}
    S(S_T0, [(S_W, 0, None, 21), (S_RID, 0, 3, 14), (S_RID, 3, None, 7)])
    L(V_X, [(3, 3, 11), (0, 3, 4)], f's{S_T0}')
    S_XO, S_XQ = 60, 61
    S(S_XO, [(S_RID, 0, 3, 18)])
    S(S_XQ, [(S_RID, 0, 1, 20)])
    issued = 0
    FB = NSL if NW else 6
    for p in range(FB):
        issue(p); issued += 1
    pmark(2, 2)
    L(V_T0, [(1, 1, 0)])
    a(f'v_mov_b32 v{V_T1}, 0xaaaa')
    a(f'v_mul_u32_u24 v{V_T0}, v{V_T0}, v{V_T1}')
    a(f'v_add_u32 v{V_IDX}, 0x4444, v{V_T0}')
    a(f'v_lshlrev_b32 v{V_L16}, 4, v{V_L}')
    BLK = 16384
    S(S_T0, [(S_RID, 6, None, 14), (S_RID, 0, 6, 7)], 8 * BLK)
    a(f'v_lshl_add_u32 v{V_MEMST}, v{V_L}, 2, s{S_T0}')
    S(S_T0, [(S_W, 1, None, 14), (S_W, 0, 1, 12)], 8 * BLK)
    a(f'v_add_u32 v{V_AOFF}, s{S_T0}, v{V_L16}')
    S(S_T0, [(S_RID, 0, 1, 16), (S_W, 0, None, 14)])
    a(f'v_add_u32 v{V_COFF}, s{S_T0}, v{V_L16}')
    a(f'v_add_u32 v{V_COFF2}, 4096, v{V_COFF}')
    a(f'v_lshrrev_b32 v{V_T0}, 4, v{V_L}')
    a(f'v_mul_u32_u24 v{V_T0}, 320, v{V_T0}')
    a(f'v_and_b32 v{V_T1}, 15, v{V_L}')
    a(f'v_lshl_add_u32 v{V_T0}, v{V_T1}, 2, v{V_T0}')
    a(f's_mul_i32 s{S_T0}, s{S_W}, 2560')
    a(f'v_add_u32 v{V_QKW}, s{S_T0}, v{V_T0}')
    a(f'v_add_u32 v{V_QKW2}, 1280, v{V_QKW}')
    S(S_T0, [(S_W, 0, None, 10)], L_V)
    a(f'v_add_u32 v{V_VW}, s{S_T0}, v{V_L16}')
    L(V_T0, [(0, 2, 1), (2, 1, 0)], 8)
    a(f'v_and_b32 v{V_T1}, 15, v{V_L}')
    a(f'v_cmp_gt_u32 vcc, 8, v{V_T1}')
    a(f'v_cndmask_b32 v{V_T1}, v{V_T0}, v{V_T1}, vcc')
    a(f'v_mul_u32_u24 v{V_T1}, 160, v{V_T1}')
    L(V_T0, [(5, 1, 6), (4, 1, 4)])
    a(f'v_add_u32 v{V_QKR}, v{V_T0}, v{V_T1}')
    a(f's_lshl_b32 s{S_T0}, s{S_RID}, 11')
    a(f'v_add_u32 v{V_SCST}, s{S_T0}, v{V_L16}')
    L(V_SCST2, [(4, 1, 7), (0, 3, 4)], f's{S_T0}')
    for k in range(3):
        a(f's_add_u32 s{S_T1}, s{S_I}, {k+1}')
        S(S_T0, [(S_T1, 0, 2, 11), (S_H, 0, None, 13)])
        a(f'v_add_u32 v{V_SCL[k]}, s{S_T0}, v{V_L16}')
    a(f's_lshl_b32 s{S_T0}, s{S_H}, 13')
    L(V_SCLM, [(4, 2, 11), (0, 4, 4)], f's{S_T0}')
    E0 = [(3, 1, 8), (1, 1, 6), (2, 1, 5), (0, 1, 4)]
    L(V_VR, [(4, 2, 8), (3, 1, 3)] + E0[1:], L_V)
    S(S_T0, [(S_RID, 0, None, 11), (S_W, 0, 1, 7)], PA + PA_M)
    L(V_T0, [(3, 1, 8), (0, 3, 4), (4, 1, 9), (5, 1, 10)], f's{S_T0}')
    a(f's_add_u32 s{S_T0}, s{S_T0}, {PA_M}')
    L(V_T1, E0 + [(4, 1, 9), (5, 1, 10)], f's{S_T0}')
    a(f's_cmp_lt_u32 s{S_W}, 2')
    a(f's_cselect_b64 vcc, -1, 0')
    a(f'v_cndmask_b32 v{V_PFG}, v{V_T1}, v{V_T0}, vcc')
    a(f's_lshl_b32 s{S_PFL}, s{S_W}, 10')
    S(S_T0, [(S_H, 3, None, 14), (S_H, 0, 3, 10), (S_I, 0, 1, 9), (S_I, 1, None, 7)])
    L(V_OST, [(2, 1, 16), (5, 1, 8), (1, 1, 6), (4, 1, 5), (0, 1, 4)], f's{S_T0}')
    S(S_T1, [(S_W, 1, None, 16), (S_W, 0, 1, 8), (S_T0, 0, None, 0)])
    a(f'v_add_u32 v{V_OCL}, s{S_T1}, v{V_L16}')
    keep(V_OCL, f'v_cmp_gt_u32 vcc, 8, v{V_L}')
    S(S_T0, [(S_W, 0, None, 8)], L_OP)
    a(f'v_lshl_add_u32 v{V_OPW}, v{V_L}, 2, s{S_T0}')
    L(V_OPR, [(2, 1, 7), (4, 1, 6), (0, 2, 4), (3, 1, 3)], L_OP)
    a(f's_mul_i32 s{S_T1}, s{S_W}, 320')
    S(S_T0, [(S_RID, 0, None, 11), (S_T1, 0, None, 0)])
    a(f'v_add_u32 v{V_SCCL}, s{S_T0}, v{V_L16}')
    keep(V_SCCL, f'v_cmp_gt_u32 vcc, 20, v{V_L}')
    a(f's_mul_i32 s{S_T0}, s{S_W}, 3')
    a(f'v_min_u32 v{V_T0}, 2, v{V_L}')
    a(f'v_add_u32 v{V_T0}, s{S_T0}, v{V_T0}')
    a(f'v_min_u32 v{V_T0}, 9, v{V_T0}')
    S(S_T0, [(S_RID, 0, None, 11)], 128 * 2048)
    a(f'v_lshl_add_u32 v{V_PTG}, v{V_T0}, 7, s{S_T0}')
    lw = a.newlabel('rec_ns')
    a(f's_lshl_b32 s{S_T0}, s{S_RID}, 9')
    L(V_NSA, [(4, 2, 7), (0, 2, 5), (2, 1, 4)], f's{S_T0}')
    a('s_mov_b32 vcc_lo, 0xff00ff00'); a('s_mov_b32 vcc_hi, 0xff00ff00')
    a(f's_cmp_eq_u32 s{S_W}, 1')
    a(f's_cbranch_scc1 {lw}')
    a(f's_add_u32 s{S_T0}, s{S_T0}, {VM - KM}')
    a(f'v_add_u32 v{V_NSA}, s{S_T0}, v{V_L16}')
    a('s_mov_b32 vcc_lo, -1'); a('s_mov_b32 vcc_hi, 0')
    a(f's_cmp_eq_u32 s{S_W}, 2')
    a(f's_cbranch_scc1 {lw}')
    S(S_T0, [(S_RID, 6, None, 14), (S_RID, 0, 6, 7)], 8 * BLK)
    a(f'v_add_u32 v{V_NSA}, s{S_T0}, v{V_L16}')
    a(f's_cmp_eq_u32 s{S_W}, 3')
    a('s_cselect_b32 vcc_lo, 0xff, 0')
    a.label(lw)
    keep(V_NSA, 's_nop 0')
    for j in range(4): a(f'v_mov_b32 v{V_ONE+j}, 0x3f803f80')
    for j in range(4): a(f'v_mov_b32 v{V_FF+j}, -1')
    for j in range(4): a(f'v_mov_b32 v{V_ZZ+j}, 0')
    for j in range(4): a(f'v_mov_b32 v{V_NS+j}, 0')
    for j in range(5, 8): a(f'v_mov_b32 v{V_P+j}, 0')
    for j in range(6): a(f'v_mov_b32 v{V_VM+j}, 0')
    a(f's_mov_b32 s{S_MLO8}, 0x00ff00ff'); a(f's_mov_b32 s{S_MLO8+1}, 0x00ff00ff')
    a(f's_mov_b32 s{S_MHI}, 0'); a(f's_mov_b32 s{S_MHI+1}, -1')
    a(f's_mov_b32 s{S_MHI8}, 0'); a(f's_mov_b32 s{S_MHI8+1}, 0x00ff00ff')
    c = (128 ** -0.5) * math.log2(math.e)
    a(f's_mov_b32 s{S_C}, 0x{struct.unpack("<I", struct.pack("<f", c))[0]:08x}')
    a(f's_mov_b32 s{S_SC}, {SCB}')
    a(f's_mov_b32 s{S_KV}, 0')
    a(f's_mov_b32 s{S_STEP}, 0')
    a(f's_mov_b32 s{S_KXB}, {L_KX}')
    a(f's_mov_b32 s{S_TAG}, 1')
    a(f's_min_u32 s{S_T0}, s{S_W}, 1')
    a(f's_add_u32 s{S_T0}, s{S_T0}, 1')
    a(f'v_mov_b32 v{V_TG}, s{S_T0}')

    S(S_FKV, [(S_H, 0, None, 7), (S_W, 1, None, 2)], FLG + F_SLA + 4)
    S(S_FRO, [(S_H, 0, None, 7)], FLG + F_REC)
    S(S_T0, [(S_I, 0, None, 4), (S_FRO, 0, None, 0)])
    a(f'v_mov_b32 v{V_FRA}, s{S_T0}')
    a(f's_cmp_eq_u32 s{S_W}, 2')
    keep(V_FRA, 's_cselect_b64 vcc, 1, 0')
    a(f's_mov_b32 s{S_SEEN}, 0')
    def wait_kv(target):
        if not sync: return
        lp = a.newlabel('rec_kv'); ld = a.newlabel('rec_kvd')
        a(f's_cmp_gt_u32 s{S_SEEN}, {target}')
        a(f's_cbranch_scc0 {lp}')
        a.label(ld)
        def tl():
            a.label(lp)
            a(f's_load_dword s{S_SEEN}, s[{S_WSP}:{S_WSP+1}], s{S_FKV} glc')
            spin_guard(ld)
            a('s_waitcnt lgkmcnt(0)')
            a(f's_cmp_gt_u32 s{S_SEEN}, {target}')
            a(f's_cbranch_scc1 {ld}')
            a('s_sleep 2')
            a(f's_branch {lp}')
        tails.append(tl)
    tails = []
    for par in range(2):
        for sl in range(2):
            a(f's_add_u32 s{S_T0}, s{S_HB}, {par*8192 + sl*SLOT}')
            a(f'buffer_store_dwordx4 {vr(V_ZZ,4)}, v{V_OCL}, {WS}, s{S_T0} offen sc1')
    a(f'buffer_store_dwordx4 {vr(V_FF,4)}, v{V_SCCL}, {WS}, s{S_SC} offen sc1')
    a(f'v_add_u32 v{V_SCCL}, {128*2048}, v{V_SCCL}')
    a(f'buffer_store_dwordx4 {vr(V_FF,4)}, v{V_SCCL}, {WS}, s{S_SC} offen sc1')
    a(f'v_add_u32 v{V_SCCL}, {128*2048}, v{V_SCCL}')
    a(f'buffer_store_dwordx4 {vr(V_FF,4)}, v{V_SCCL}, {WS}, s{S_SC} offen sc1')
    a(f'buffer_store_dword v{V_ZZ}, v{V_FRA}, {WS}, 0 offen sc1')
    l3 = a.newlabel('rec_i3')
    a(f's_cmp_lg_u32 s{S_W}, 3')
    a(f's_cbranch_scc1 {l3}')
    for par in range(2):
        a(f's_add_u32 s{S_T0}, s{S_HB}, {par*8192 + SLOT}')
        a(f'buffer_store_dwordx4 {vr(V_ZZ,4)}, v{V_NSA}, {WS}, s{S_T0} offen sc1')
    S(S_T1, [(S_RID, 5, None, 14), (S_RID, 0, 5, 8), (S_HB, 0, None, 0)], 10 * BLK)
    a('s_mov_b64 exec, 0xffff')
    for par in range(2):
        a(f's_add_u32 s{S_T0}, s{S_T1}, {par*8192}')
        a(f'buffer_store_dwordx4 {vr(V_ZZ,4)}, v{V_L16}, {WS}, s{S_T0} offen sc1')
    a('s_mov_b64 exec, -1')
    a.label(l3)
    a(f's_lshl_b32 s{S_T0}, s{S_W}, 9')
    L(V_T0, [(2, 2, 12), (0, 1, 11), (4, 2, 5), (1, 1, 2)], f's{S_T0}')
    for c in range(4):
        if c % 2 == 0:
            a(f's_lshr_b32 s{S_T0}, s{S_XQ}, 12') if STG & 2 else a(f's_mov_b32 s{S_T0}, 0')
            a(f's_xor_b32 s{S_T0}, s{S_T0}, {c*128}')
        for p in range(4):
            a(f'buffer_load_dword v{V_MA+4*c+p}, v{V_T0}, s[{S_M0}:{S_M0+3}], s{S_T0} offen offset:{(c&1)*128+p*8}')
    ops[0] += 24
    for p in range(FB, NSL):
        issue(p); issued += 1
    pmark(5, 2)
    for p in range(NW, len(pairs)):
        if p == 1: pmark(6, 2)
        a(f's_waitcnt vmcnt({min(63, ops[0] - pos[p])})')
        if FS and p == ARP:
            srd(a, S_M0, S_DBG, 256)
            a(f's_add_u32 s{S_PAR}, s{S_PAR}, s{S_BAD}')
            a(f's_mov_b32 s{S_T0}, {OOB}')
            a(f's_cmp_eq_u32 s{S_W}, 0')
            a(f's_cselect_b32 s{S_T0}, {4*D_RDY}, s{S_T0}')
            a(f's_cselect_b32 s{S_T1}, 1, s{S_PAR}')
            a(f's_cmp_eq_u32 s{S_W}, 3')
            a(f's_cselect_b32 s{S_T0}, {4*D_INIT}, s{S_T0}')
            a(f'v_mov_b32 v{V_T0}, s{S_T0}')
            a(f'v_mov_b32 v{V_T1}, s{S_T1}')
            a('s_mov_b64 exec, 1')
            a(f'buffer_atomic_add v{V_T1}, v{V_T0}, s[{S_M0}:{S_M0+3}], 0 offen sc1')
            a('s_mov_b64 exec, -1')
            ops[0] += 1
        if FS and p == POLP:
            a(f'global_load_dword v{V_CK}, v{V_ZZ}, s[{S_DBG}:{S_DBG+1}] offset:{4*D_INIT} sc1')
            ops[0] += 1
        if p in (0, 8, 28): pmark({0: 2, 8: 5, 28: 6}[p], 1)
        if p == TLBW and TLBW:
            a(f'v_lshlrev_b32 v{V_T0}, 21, v{V_L}')
            a(f'v_add_u32 v{V_T1}, {KM - 17*2*MB + 1920}, v{V_T0}')
            a(f'v_add_u32 v{V_T0}, {PA + PA_M + 1920}, v{V_T0}')
            a(f'v_cmp_gt_u32 vcc, 17, v{V_L}')
            a(f'v_cndmask_b32 v{V_T0}, v{V_T1}, v{V_T0}, vcc')
            keep(V_T0, f'v_cmp_gt_u32 vcc, {17 + (FLG - KM) // (2*MB)}, v{V_L}')
            a(f'buffer_load_dword v{V_CK}, v{V_T0}, {WS}, 0 offen sc1')
        if p == 2 and sync:
            a(f'global_load_dword v{V_CK}, v{V_ZZ}, s[{S_DBG}:{S_DBG+1}] offset:{4*D_ROT} sc1')
            ops[0] += 1
        if p == (NSL + 1 if sync else FB):
            lar = a.newlabel('rec_arr')
            if sync: validate(a, V_CK, V_T0, S_DBG, S_SPIN, S_T0)
            a('s_barrier')
            pmark(1)
            arr0 = len(a.lines)
            a(f's_cmp_lg_u32 s{S_W}, 3')
            a(f's_cbranch_scc1 {lar}')
            a(f'v_mov_b32 v{V_T0}, 0')
            if sync: a(f's_add_u32 s{S_PAR}, s{S_PAR}, s{S_BAD}')
            a(f'v_mov_b32 v{V_T1}, s{S_PAR}')
            a('s_mov_b64 exec, 1')
            a(f'global_atomic_add v{V_T0}, v{V_T1}, s[{S_DBG}:{S_DBG+1}] offset:{4*D_INIT} sc1')
            a('s_mov_b64 exec, -1')
            if FS: del a.lines[arr0:]
            a.label(lar)
        if p == RDYP and sync and not FS:
            lar = a.newlabel('rec_rdy')
            a(f's_cmp_lg_u32 s{S_W}, 0')
            a(f's_cbranch_scc1 {lar}')
            a(f'v_mov_b32 v{V_T0}, 0')
            a(f'v_mov_b32 v{V_T1}, 1')
            a('s_mov_b64 exec, 1')
            a(f'global_atomic_add v{V_T0}, v{V_T1}, s[{S_DBG}:{S_DBG+1}] offset:{4*D_RDY} sc1')
            a('s_mov_b64 exec, -1')
            a.label(lar)
        for dst, va, off in pairs[p][1]:
            a(f'ds_read_b64_tr_b16 {dst}, v{va} offset:{(p % NSL) * 2048 + off}')
        if p >= NW + 1 and issued < len(pairs):
            a('s_waitcnt lgkmcnt(4)')
            issue(issued); issued += 1
    a('s_waitcnt lgkmcnt(0)')

    pmark(3)
    V_CO = [V_COFF2, 184, 185, 186, 187, V_SCCL, V_OCL, V_COFF]
    V_AOFF2 = V_FF
    if STG & 1:
        for c in range(8):
            a(f's_lshr_b32 s{S_T0}, s{S_XO}, 8')
            a(f's_xor_b32 s{S_T0}, s{S_T0}, {c*1024}')
            a(f'v_add_u32 v{V_CO[c]}, s{S_T0}, v{V_COFF}')
    if STG & 2:
        a(f's_lshr_b32 s{S_T0}, s{S_XQ}, 9')
        a(f's_xor_b32 s{S_T1}, s{S_T0}, 2048')
        a(f'v_add_u32 v{V_AOFF2}, s{S_T1}, v{V_AOFF}')
        a(f'v_add_u32 v{V_AOFF}, s{S_T0}, v{V_AOFF}')
    for j in range(16): a(f'v_max_u32 v{V_MA+j}, 1, v{V_MA+j}')
    for j in range(24): a(f'v_mov_b32 v{V_D+j}, 0')
    for j in range(16): a(f's_mov_b32 s{P+j}, 0')
    lb = a.newlabel('rec_ib'); lbp = a.newlabel('rec_ibp'); lbq = a.newlabel('rec_ibq')
    a(f'v_mov_b32 v{V_T0}, 0')
    a(f's_branch {lbq}')
    a.label(lbp)
    a('s_sleep 16')
    if not FS: a.label(lbq)
    a(f'global_load_dword v{V_CK}, v{V_T0}, s[{S_DBG}:{S_DBG+1}] offset:{4*D_INIT} sc1')
    spin_guard(lb)
    if FS: a.label(lbq)
    a('s_waitcnt vmcnt(0)')
    a(f'v_readfirstlane_b32 s{S_T0}, v{V_CK}')
    a(f's_and_b32 s{S_T1}, s{S_T0}, {CNT_MASK}')
    a(f's_cmp_lt_u32 s{S_T1}, {(NARR if GV else NWG) if sync else 128}')
    a(f's_cbranch_scc1 {lbp}')
    a.label(lb)
    if FS:
        a(f's_mov_b32 s{S_SEEN}, 1')
        a(f's_add_u32 m0, s{S_KXB}, s{S_PFL}')
        a(f'buffer_load_dwordx4 v{V_PFG}, {WS}, s{S_KV} offen sc1 lds')
    a(f's_lshr_b32 s{S_FAST}, s{S_T0}, {BAD_SH}')
    a(f's_bfe_u32 s{S_T0}, s{S_T0}, {(9 << 16) | VOTE_SH}')
    a(f's_cmp_ge_u32 s{S_T0}, {64 if NEAR else 999}')
    a(f's_cselect_b32 s{S_PAR}, -1, 0')
    a(f's_xor_b32 s{S_PAR}, s{S_PAR}, 0xaaa')
    pmark(4)
    S(S_SL0, [(S_PAR, 0, 1, 13), (S_HB, 0, None, 0)])
    a(f's_add_u32 s{S_SL1}, s{S_SL0}, {SLOT}')
    a(f's_add_u32 s{S_SL2}, s{S_SL0}, {2*SLOT}')
    S(S_T0, [(S_RID, 5, None, 4), (S_I, 0, None, 14), (S_SL0, 0, None, 0)], 10 * BLK)
    L(V_TKST, [(0, 5, 8)], f's{S_T0}')
    a(f's_and_b32 s{S_T1}, s{S_H}, { {4: 7, 2: 23, 1: 31}[KC] }')
    a(f's_cmp_eq_u32 s{S_T1}, {CJ}')
    a('s_mov_b32 vcc_hi, 0')
    keep(V_TKST, 's_cselect_b32 vcc_lo, -1, 0')
    a(f'v_add_u32 v{V_TKSA}, 128, v{V_TKST}')
    a(f's_and_b32 s{S_T1}, s{S_H}, { {4: 7, 2: 23, 1: 31}[KA] }')
    a(f's_cmp_eq_u32 s{S_T1}, {CJ}')
    a(f's_cselect_b32 s{S_T1}, s{S_W}, 99')
    a(f's_cmp_eq_u32 s{S_T1}, {TW}')
    keep(V_TKSA, 's_cselect_b64 vcc, -1, 0')
    S(S_MBO, [(S_RID, 5, None, 14), (S_RID, 0, 5, 8), (S_SL0, 0, None, 0)], 10 * BLK)
    a(f's_add_u32 s{S_MHI}, s{S_MBO}, 128')
    lq = a.newlabel('rec_gs'); lq1 = a.newlabel('rec_gs1'); lq2 = a.newlabel('rec_gs2'); lq3 = a.newlabel('rec_gs3')
    a(f'v_mov_b32 v{V_NBA}, {OOB}')
    a(f's_mov_b32 s{S_NBO}, 0'); a(f's_mov_b32 s{S_NBI}, 0')
    a(f's_mov_b32 s{S_NSO}, {KM}'); a(f's_mov_b32 s{S_NSI}, 65536')
    for j in range(4): a(f'v_mov_b32 v{V_NB+j}, 0')
    a(f's_cmp_eq_u32 s{S_W}, 1'); a(f's_cbranch_scc1 {lq1}')
    a(f's_cmp_eq_u32 s{S_W}, 2'); a(f's_cbranch_scc1 {lq2}')
    a(f's_cmp_eq_u32 s{S_W}, 3'); a(f's_cbranch_scc1 {lq3}')
    a(f'v_mov_b32 v{V_NSA}, v{V_SCST}')
    for j in range(4): a(f'v_mov_b32 v{V_NS+j}, -1')
    a(f's_mov_b32 s{S_NSO}, {SCB + 3*128*2048}'); a(f's_mov_b32 s{S_NSI}, {128*2048}')
    a(f's_branch {lq}')
    a.label(lq1)
    a(f'v_mov_b32 v{V_NBA}, v{V_SCST}')
    keep(V_NBA, 's_mov_b64 vcc, 0xffff')
    for j in range(4): a(f'v_mov_b32 v{V_NB+j}, -1')
    a(f's_mov_b32 s{S_NBO}, {SCB + 3*128*2048 + 1024}'); a(f's_mov_b32 s{S_NBI}, {128*2048}')
    a(f's_branch {lq}')
    a.label(lq2)
    a(f'v_mov_b32 v{V_NBA}, v{V_FRA}')
    a(f's_branch {lq}')
    a.label(lq3)
    S(S_T0, [(S_H, 3, None, 14), (S_H, 0, 3, 10), (S_I, 0, 1, 9), (S_I, 1, None, 7)])
    L(V_T0, [(4, 1, 16), (3, 1, 8), (0, 3, 4)], f's{S_T0}')
    a('s_mov_b32 vcc_lo, 0'); a('s_mov_b32 vcc_hi, -1')
    a(f'v_cndmask_b32 v{V_NSA}, v{V_NSA}, v{V_T0}, vcc')
    a(f's_mov_b32 s{S_NSO}, s{S_SL2}')
    a.label(lq)
    a(f's_cmp_eq_u32 s{S_W}, 2')
    a(f's_cselect_b32 s{S_MHI+1}, 1, 0')

    pmark(5)
    if not FS: a('s_barrier')
    pmark(6)
    if not PLAINB: a(f's_mov_b32 s{S_FAST}, 1')
    for j in range(16): a(f's_mov_b32 s{P+j}, 0')
    if not FS: wait_kv(0)
    pmark(7)
    if not FS:
        a(f's_add_u32 m0, s{S_KXB}, s{S_PFL}')
        a(f'buffer_load_dwordx4 v{V_PFG}, {WS}, s{S_KV} offen sc1 lds')
    a('s_waitcnt vmcnt(0)')
    a('s_barrier')
    ENTRY = a.newlabel('rec_entry')
    ts(0)
    a(f's_branch {ENTRY}')

    def gather(name, n, load, mf, nacc, noise, ilv, entry=None, pre=None, post=None):
        ok = a.newlabel(name + 'ok'); fix = a.newlabel(name + 'fix')
        def body(first):
            for c in range(n):
                load(c, V_MA + 4 * c)
                if first and ilv and c < n - 1: a(f's_nop {ilv-1}')
            if not first:
                for j in range(0, nacc, 2): a(f'v_mov_b64 {vr(V_D+j,2)}, 0')
            if first and entry: a.label(entry)
            if first and pre: pre()
            iss = 0
            for c in range(n):
                b = V_MA + 4 * c
                a(f's_waitcnt vmcnt({n-1-c+iss})')
                if first and c == 0: ts(1 if n == 4 else 7)
                ms = mf(c)
                if c == 0: seq = [f'v_min_u32 v{V_CK}, v{b}, v{b+1}', f'v_min_u32 v{V_CK2}, v{b+2}, v{b+3}']
                elif c < n - 1: seq = [f'v_min3_u32 v{V_CK}, v{V_CK}, v{b}, v{b+1}', f'v_min3_u32 v{V_CK2}, v{V_CK2}, v{b+2}, v{b+3}']
                else:
                    a(f'v_min3_u32 v{V_CK}, v{V_CK}, v{b}, v{b+1}')
                    seq = [f'v_min3_u32 v{V_CK}, v{V_CK}, v{b+2}, v{b+3}', f'v_cmp_eq_u32 vcc, 0, v{V_CK}']
                if c == n - 2: seq.append(f'v_min_u32 v{V_CK}, v{V_CK}, v{V_CK2}')
                k = 0
                for m in ms:
                    a(m)
                    if k < len(seq): a(seq[k]); k += 1
                while k < len(seq): a(seq[k]); k += 1
                if first and c < len(noise): noise[c](); iss += 1
            if first and post: post()
        body(True)
        a(f's_cbranch_vccnz {fix}')
        a.label(ok)
        def tl():
            a.label(fix)
            if prof: a(f's_add_u32 s{100 if nacc == 16 else 101}, s{100 if nacc == 16 else 101}, 1')
            spin_guard(ok)
            body(False)
            a(f's_cbranch_vccnz {fix}')
            a(f's_branch {ok}')
        tails.append(tl)

    def halves(m):
        b = V_D + 8 * m
        a(f'v_pk_add_f32 {vr(b,2)}, {vr(b,2)}, {vr(b+2,2)}')
        a(f'v_pk_add_f32 {vr(b+2,2)}, {vr(b+4,2)}, {vr(b+6,2)}')
    S_MB2 = S_MHI
    def tpoll(off):
        T = S_PTR
        K = KA if off else KC
        so = S_MB2 if off else S_MBO
        if K == 2: a(f's_load_dwordx8 s[{T}:{T+7}], s[{S_WSP}:{S_WSP+1}], s{so} glc')
        elif K == 4: a(f's_load_dwordx16 s[{T}:{T+15}], s[{S_WSP}:{S_WSP+1}], s{so} glc')
        else: a(f's_load_dword s{T}, s[{S_WSP}:{S_WSP+1}], s{so} glc')
    def tickwait(off, extra):
        lp = a.newlabel('rec_tk'); ld = a.newlabel('rec_tkd'); lc = a.newlabel('rec_tkc')
        T = S_PTR
        K = KA if off else KC
        a(f's_branch {lc}')
        a.label(lp)
        tpoll(off)
        spin_guard(ld)
        a(f's_sleep {TPOS}' if TPOS else 's_nop 7')
        a.label(lc)
        if K == 4:
            a(f's_min_u32 s{S_T0}, s{T}, s{T+4}')
            a(f's_min_u32 s{S_T1}, s{T+8}, s{T+12}')
            a(f's_min_u32 s{S_T0}, s{S_T0}, s{S_T1}')
        elif K == 2: a(f's_min_u32 s{S_T0}, s{T}, s{T+4}')
        else: a(f's_mov_b32 s{S_T0}, s{T}')
        a(f's_cmp_lt_u32 s{S_T0}, s{S_TAG}')
        a(f's_cbranch_scc1 {lp}')
        a.label(ld)
        a(f's_add_u32 s{S_TAG}, s{S_TAG}, 1')
        if extra: a(f's_sleep {extra}')
    def vmfl():
        r = []
        for c in range(4):
            for t in (4, 5):
                f, b = wq_reg(c, t)
                r.append(f'v_smfmac_f32_16x16x64_bf16 {vr(V_D+4*t,4)}, {vr(V_MA+4*c,4)}, {f}[{b}:{b+7}], v{V_IDX}')
        return r
    def vmf():
        for m in vmfl(): a(m)
    def red4(n):
        for j in range(0, n, 2): a(f'v_pk_add_f32 {vr(V_R+j,2)}, {vr(V_R+j,2)}, {vr(V_R+n+j,2)}')
        for j in range(0, n, 2): a(f'v_pk_add_f32 {vr(V_R+2*n+j,2)}, {vr(V_R+2*n+j,2)}, {vr(V_R+3*n+j,2)}')
        for j in range(0, n, 2): a(f'v_pk_add_f32 {vr(V_R+j,2)}, {vr(V_R+j,2)}, {vr(V_R+2*n+j,2)}')

    LOOP = a.newlabel('rec_loop'); DONE = a.newlabel('rec_done')
    a.label(LOOP)
    a('s_barrier')
    stamp(11)
    ts(0)
    def loadA(c, r):
        if STG & 2: a(f'buffer_load_dwordx4 {vr(r,4)}, v{V_AOFF if c < 2 else V_AOFF2}, {WS}, s{S_SL0} offen offset:{(c&1)*1024} sc1')
        else: a(f'buffer_load_dwordx4 {vr(r,4)}, v{V_AOFF}, {WS}, s{S_SL0} offen offset:{c*1024} sc1')
    def mfA(c):
        r = []
        for t in range(4):
            f, b = wq_reg(c, t)
            r.append(f'v_smfmac_f32_16x16x64_bf16 {vr(V_D+4*t,4)}, {vr(V_MA+4*c,4)}, {f}[{b}:{b+7}], v{V_IDX}')
        return r
    def noiseA():
        a(f'buffer_store_dwordx4 {vr(V_FF,4)}, v{V_SCCL}, {WS}, s{S_SC} offen sc1')
    def preA():
        harvest()
        a(f'v_add_u32 v{V_T0}, s{S_KXB}, v{V_L16}')
        for t in range(2): a(f'ds_read_b128 {vr(V_KX+4*t,4)}, v{V_T0} offset:{t*1024}')
        for t in range(2): a(f'ds_read_b128 {vr(V_VX+4*t,4)}, v{V_T0} offset:{2048+t*1024}')
    gather('rec_ga', 4, loadA, mfA, 16, [], ILA, entry=ENTRY, pre=preA)
    stamp(0)
    ts(2)
    for m in range(2):
        halves(m)
        va = V_QKW if m == 0 else V_QKW2
        a(f'ds_write2_b32 v{va}, v{V_D+8*m}, v{V_D+8*m+1} offset0:0 offset1:40')
        a(f'ds_write2_b32 v{va}, v{V_D+8*m+2}, v{V_D+8*m+3} offset0:16 offset1:56')
    LB2 = a.newlabel('rec_b2'); LW1 = a.newlabel('rec_w1')
    a(f's_cmp_lg_u32 s{S_W}, 0')
    a(f's_cbranch_scc1 {LW1}')
    a('s_waitcnt lgkmcnt(0)')
    a('s_barrier')
    ts(3)
    vm = vmfl()
    for w in range(4):
        for q in range(2):
            a(f'ds_read_b128 {vr(V_R+8*w+4*q,4)}, v{V_QKR} offset:{L_QK+w*2560+q*32}')
            a(vm.pop(0))
    a('s_waitcnt lgkmcnt(4)')
    for j in range(0, 8, 2): a(f'v_pk_add_f32 {vr(V_R+j,2)}, {vr(V_R+j,2)}, {vr(V_R+8+j,2)}')
    a('s_waitcnt lgkmcnt(2)')
    for j in range(0, 8, 2): a(f'v_pk_add_f32 {vr(V_R+j,2)}, {vr(V_R+j,2)}, {vr(V_R+16+j,2)}')
    a('s_waitcnt lgkmcnt(0)')
    for j in range(0, 8, 2): a(f'v_pk_add_f32 {vr(V_R+j,2)}, {vr(V_R+j,2)}, {vr(V_R+24+j,2)}')
    for j in range(4): a(f'v_cvt_pk_bf16_f32 v{V_X+j}, v{V_R+2*j}, v{V_R+2*j+1}')
    a(f'v_mfma_f32_16x16x32_bf16 {vr(V_S,4)}, {vr(V_KX,4)}, {vr(V_X,4)}, 0')
    a(f'v_mfma_f32_16x16x32_bf16 {vr(V_S+4,4)}, {vr(V_KX+4,4)}, {vr(V_X,4)}, 0')
    a(f'v_mfma_f32_16x16x32_bf16 {vr(V_S+8,4)}, {vr(V_X,4)}, {vr(V_X,4)}, 0')
    a(f's_cmp_lg_u32 s{S_FAST}, 0')
    halves(2)
    def scst(f):
        a(f's_mov_b64 exec, s[{S_MLO8}:{S_MLO8+1}]')
        a(f'buffer_store_dwordx4 {vr(V_S,4)}, v{V_SCST}, {WS}, s{S_SC} offen{f}')
        a(f'buffer_store_dwordx4 {vr(V_S+4,4)}, v{V_SCST}, {WS}, s{S_SC} offen offset:128{f}')
        a(f's_mov_b64 exec, s[{S_MHI8}:{S_MHI8+1}]')
        a(f'buffer_store_dwordx4 {vr(V_S+8,4)}, v{V_SCST2}, {WS}, s{S_SC} offen offset:1024{f}')
        a('s_mov_b64 exec, -1')
    lsl = a.newlabel('rec_slow'); lsr = a.newlabel('rec_slowr')
    a(f's_cbranch_scc1 {lsl}')
    scst('')
    a.label(lsr)
    tails.append(lambda: (a.label(lsl), scst(' sc1'), a(f's_branch {lsr}')))
    a(f'ds_write_b128 v{V_VW}, {vr(V_D+16,4)}')
    a(f'ds_write_b128 v{V_L16}, {vr(V_X,4)} offset:{L_X}')
    stamp(2)
    ts(4)
    LBR = a.newlabel('rec_gbr'); LBO = a.newlabel('rec_gbo'); LBW = a.newlabel('rec_gbw')
    V_Q = V_R + 20
    SETS = [V_LD, V_MA]
    def loadB(LD):
        a(f'buffer_load_dwordx4 {vr(LD+12,4)}, v{V_SCLM}, {WS}, s{S_SC} offen offset:1024 sc1')
        for k in range(3):
            a(f'buffer_load_dwordx4 {vr(LD+4*k,4)}, v{V_SCL[k]}, {WS}, s{S_SC} offen sc1')
    def sumB(LD, base):
        LM = LD + 12
        a(f's_waitcnt vmcnt({base+3})')
        a(f'v_permlane32_swap_b32 v{LM}, v{LM+2}')
        a(f'v_permlane32_swap_b32 v{LM+1}, v{LM+3}')
        a(f'v_pk_add_f32 {vr(V_Q+4,2)}, {vr(LM,2)}, {vr(LM+2,2)}')
        a(f's_waitcnt vmcnt({base+2})')
        for j in range(0, 4, 2): a(f'v_pk_add_f32 {vr(V_Q+j,2)}, {vr(V_S+j,2)}, {vr(LD+j,2)}')
        a(f'v_permlane16_swap_b32 v{V_Q+4}, v{V_Q+5}')
        a(f's_waitcnt vmcnt({base+1})')
        for j in range(0, 4, 2): a(f'v_pk_add_f32 {vr(V_Q+j,2)}, {vr(V_Q+j,2)}, {vr(LD+4+j,2)}')
        a(f'v_add_f32 v{V_Q+4}, v{V_Q+4}, v{V_Q+5}')
        a(f's_waitcnt vmcnt({base})')
        for j in range(0, 4, 2): a(f'v_pk_add_f32 {vr(V_Q+j,2)}, {vr(V_Q+j,2)}, {vr(LD+8+j,2)}')
        a(f'v_maximum3_f32 v{V_M}, v{V_Q}, v{V_Q+1}, v{V_Q+4}')
        a(f'v_maximum3_f32 v{V_M}, v{V_M}, v{V_Q+2}, v{V_Q+3}')
        a(f'v_cmp_u_f32 vcc, v{V_M}, v{V_M}')
        a(f'v_max_f32_dpp v{V_M}, v{V_M}, v{V_M} row_ror:8 row_mask:0xf bank_mask:0xf')
        a(f'v_mov_b32 v{V_M2}, v{V_M}')
    if DB == 0: loadB(SETS[0])
    a('s_waitcnt lgkmcnt(0)')
    a('s_barrier')
    if DB == 1: loadB(SETS[0])
    for w in range(4):
        for t in range(2):
            a(f'ds_read_b64 {vr(V_R+4*w+2*t,2)}, v{V_VR} offset:{w*1024+t*128}')
    for j in range(4): a(f'v_mov_b32_dpp v{V_S+j}, v{V_S+4+j} row_ror:8 row_mask:0xf bank_mask:0xc')
    if DB == 0: loadB(SETS[1])
    if DB == 2: loadB(SETS[0])
    a('s_waitcnt lgkmcnt(0)')
    red4(4)
    if DB == 1: loadB(SETS[1])
    for t in range(2): a(f'v_cvt_pk_bf16_f32 v{V_VM+2*t}, v{V_R+2*t}, v{V_R+2*t+1}')
    if DB == 2: a('s_nop 15'); loadB(SETS[1])
    a(f's_cmp_eq_u32 s{S_STEP}, {nsteps-1}')
    a(f's_cbranch_scc1 {LB2}')
    sumB(SETS[0], 4)
    a(f's_cbranch_vccnz {LBR}')
    a.label(LBO)
    def tlB():
        a.label(LBR)
        for k in range(2):
            LD = SETS[k]
            a(f'v_max3_u32 v{V_CK}, v{LD}, v{LD+1}, v{LD+2}')
            for j in range(3, 15, 2): a(f'v_max3_u32 v{V_CK}, v{V_CK}, v{LD+j}, v{LD+j+1}')
            a(f'v_max_u32 v{V_CK}, v{V_CK}, v{LD+15}')
            loadB(LD)
            a(f'v_cmp_eq_u32 vcc, -1, v{V_CK}')
            spin_guard(LBO)
            a(f's_cbranch_vccz {LBO}')
            sumB(SETS[k ^ 1], 4)
            a(f's_cbranch_vccz {LBO}')
        a(f's_branch {LBR}')
    tails.append(tlB)
    a(f'buffer_store_dword v{V_TG}, v{V_TKST}, {WS}, 0 offen sc1')
    stamp('b')
    ts(5)
    a(f'v_permlane16_swap_b32 v{V_M}, v{V_M2}')
    a(f'v_max_f32 v{V_M}, v{V_M}, v{V_M2}')
    a(f'v_mov_b32 v{V_M2}, v{V_M}')
    a(f'v_permlane32_swap_b32 v{V_M}, v{V_M2}')
    a(f'v_max_f32 v{V_M}, v{V_M}, v{V_M2}')
    a(f'v_mul_f32 v{V_M}, s{S_C}, v{V_M}')
    for j in (4, 0, 1, 2, 3): a(f'v_fma_f32 v{V_Q+j}, v{V_Q+j}, s{S_C}, -v{V_M}')
    for j in (4, 0, 1, 2, 3): a(f'v_exp_f32 v{V_Q+j}, v{V_Q+j}')
    a(f'v_mov_b32_dpp v{V_Q+5}, v{V_Q+4} row_ror:8 row_mask:0xf bank_mask:0xf')
    for j in range(2): a(f'v_cvt_pk_bf16_f32 v{V_P+j}, v{V_Q+2*j}, v{V_Q+2*j+1}')
    a(f'v_cvt_pk_bf16_f32 v{V_P+4}, v{V_Q+4}, v{V_Q+5}')
    for j in range(2): a(f'v_mov_b32_dpp v{V_P+2+j}, v{V_P+j} row_ror:8 row_mask:0xf bank_mask:0xf')
    V_O = V_R + 8
    a(f'v_mfma_f32_16x16x32_bf16 {vr(V_O+8,4)}, {vr(V_ONE,4)}, {vr(V_P+4,4)}, 0')
    a(f'v_mfma_f32_16x16x32_bf16 {vr(V_O+8,4)}, {vr(V_ONE,4)}, {vr(V_P,4)}, {vr(V_O+8,4)}')
    for t in range(2):
        a(f'v_mfma_f32_16x16x32_bf16 {vr(V_O+4*t,4)}, {vr(V_VX+4*t,4)}, {vr(V_P,4)}, 0')
        a(f'v_mfma_f32_16x16x32_bf16 {vr(V_O+4*t,4)}, {vr(V_VM+2*t,4)}, {vr(V_P+4,4)}, {vr(V_O+4*t,4)}')
    V_RC = V_R
    a(f'v_rcp_f32 v{V_RC}, v{V_O+8}')
    a(f'v_mov_b32 v{V_RC+1}, v{V_RC}')
    for j in range(0, 8, 2): a(f'v_pk_mul_f32 {vr(V_O+j,2)}, {vr(V_O+j,2)}, {vr(V_RC,2)}')
    for j in range(4): a(f'v_cvt_pk_bf16_f32 v{V_O+j}, v{V_O+2*j}, v{V_O+2*j+1}')
    for j in range(4): a(f'v_max_u32 v{V_O+j}, 1, v{V_O+j}')
    a(f's_mov_b64 exec, s[{S_MLO8}:{S_MLO8+1}]')
    a(f'buffer_store_dwordx4 {vr(V_O,4)}, v{V_OST}, {WS}, s{S_SL0} offen sc1')
    a('s_mov_b64 exec, -1')
    stamp(5)
    ts('o')
    for j in range(0, 24, 2): a(f'v_mov_b64 {vr(V_D+j,2)}, 0')
    LCS = a.newlabel('rec_cs')
    a.label(LCS)
    a('s_barrier')
    def w123():
        a.label(LW1)
        a('s_waitcnt lgkmcnt(0)')
        a('s_barrier')
        vmf()
        halves(2)
        a(f'ds_write_b128 v{V_VW}, {vr(V_D+16,4)}')
        a('s_waitcnt lgkmcnt(0)')
        a('s_barrier')
        if ZD: a(f's_sleep {ZD}')
        for j in range(0, 24, 2): a(f'v_mov_b64 {vr(V_D+j,2)}, 0')
        LW2 = a.newlabel('rec_w2'); LW3 = a.newlabel('rec_w3')
        a(f's_cmp_eq_u32 s{S_W}, 3')
        a(f's_cbranch_scc1 {LW3}')
        a(f's_cmp_eq_u32 s{S_W}, 2')
        a(f's_cbranch_scc1 {LW2}')
        a(f'ds_read_b128 {vr(V_NS,4)}, v{V_L16} offset:{L_X}')
        a(f's_branch {LB2}')
        a.label(LW2)
        for w in range(4): a(f'ds_read_b128 {vr(V_R+4*w,4)}, v{V_L16} offset:{L_V+w*1024}')
        a('s_waitcnt lgkmcnt(0)')
        red4(4)
        for j in range(2): a(f'v_cvt_pk_bf16_f32 v{V_NS+j}, v{V_R+2*j}, v{V_R+2*j+1}')
        for j in range(2): a(f'v_permlane32_swap_b32 v{V_NS+j}, v{V_NS+2+j}')
        for j in (0, 2): a(f'v_permlane16_swap_b32 v{V_NS+j}, v{V_NS+j+1}')
        a.label(LB2)
        a('s_waitcnt lgkmcnt(0)')
        a(f's_cmp_eq_u32 s{S_STEP}, {nsteps-1}')
        a(f's_cbranch_scc1 {DONE}')
        a(f's_branch {LCS}')
        a.label(LW3)
        a(f's_cmp_eq_u32 s{S_STEP}, {nsteps-1}')
        a(f's_cbranch_scc1 {DONE}')
        tickwait(0, DC)
        a(f's_branch {LCS}')
    tails.append(w123)
    stamp(7)
    ts(6)
    def loadC(c, r):
        if STG & 1: a(f'buffer_load_dwordx4 {vr(r,4)}, v{V_CO[c]}, {WS}, s{S_SL0} offen sc1'); return
        a(f'buffer_load_dwordx4 {vr(r,4)}, v{V_COFF if c < 4 else V_COFF2}, {WS}, s{S_SL0} offen offset:{(c&3)*1024} sc1')
    def mfC(c):
        r = []
        for sel in range(2):
            f, b = wo_reg(2 * c + sel)
            r.append(f'v_smfmac_f32_16x16x64_bf16 {vr(V_D+4*sel,4)}, {vr(V_MA+4*c,4)}, {f}[{b}:{b+7}], v{V_IDX}')
        return r
    def nC3():
        a(f's_add_u32 s{S_T0}, s{S_STEP}, 1')
        wait_kv(f's{S_T0}')
        a(f's_xor_b32 s{S_KXB}, s{S_KXB}, 4096')
        a(f's_add_u32 m0, s{S_KXB}, s{S_PFL}')
        if XP != 1: a(f's_add_u32 s{S_KV}, s{S_KV}, {256*1024}')
        a(f'buffer_load_dwordx4 v{V_PFG}, {WS}, s{S_KV} offen sc1 lds')
    noiseC = [nC3, lambda: a(f'buffer_load_dword v{V_T1}, v{V_PTG}, {WS}, s{S_SC} offen sc1')]
    st4 = [f'buffer_store_dwordx4 {vr(V_NS,4)}, v{V_NSA}, {WS}, s{S_NSO} offen sc1',
           f'buffer_store_dwordx4 {vr(V_NB,4)}, v{V_NBA}, {WS}, s{S_NBO} offen sc1']
    if NSP == 1: noiseC += [(lambda x=x: a(x)) for x in st4]
    def late_stores(pl=False, n=2):
        if not NSP:
            a('s_barrier')
            for k, x in enumerate(st4[:n]):
                if pl: tpoll(128)
                a(x)
        a(f's_add_u32 s{S_NBO}, s{S_NBO}, s{S_NBI}')
        if n == 2: a(f'v_add_u32 v{V_FRV}, s{S_MHI+1}, v{V_FRV}')
        if sync and ASY:
            lr = a.newlabel('rec_rf')
            a(f's_add_u32 s{S_T0}, s{S_STEP}, 3')
            a(f's_min_u32 s{S_T0}, s{S_T0}, {NSEG-1}')
            a(f's_cmp_gt_u32 s{S_SEEN}, s{S_T0}')
            a(f's_cbranch_scc1 {lr}')
            a(f's_load_dword s{S_SEEN}, s[{S_WSP}:{S_WSP+1}], s{S_FKV} glc')
            a.label(lr)
        a(f's_add_u32 s{S_NSO}, s{S_NSO}, s{S_NSI}')
        a(f's_cmp_eq_u32 s{S_W}, 3')
        a(f's_cselect_b32 s{S_NSO}, s{S_SL2}, s{S_NSO}')
    TKA = f'buffer_store_dword v{V_TG}, v{V_TKSA}, {WS}, 0 offen sc1'
    def postC():
        a(f's_add_u32 s{S_STEP}, s{S_STEP}, 1')
        a(f's_add_u32 s{S_T0}, s{S_STEP}, 2')
        a(f's_lshr_b32 s{S_T1}, s{S_T0}, 3')
        a(f's_lshr_b32 s{S_T1}, s{S_PAR}, s{S_T1}')
    gather('rec_gc', 8, loadC, mfC, 8, noiseC, ILC, post=postC)
    if NSP == 2:
        for x in st4: a(x)
    if TA == 9: a(TKA)
    ts(8)
    a(f's_mov_b32 s{S_SL0}, s{S_SL1}')
    a(f's_mov_b32 s{S_SL1}, s{S_SL2}')
    stamp_c = True
    if prof == 1:
        a(f's_sub_u32 s{S_STEP}, s{S_STEP}, 1'); stamp(8); a(f's_add_u32 s{S_STEP}, s{S_STEP}, 1')
    a(f'v_pk_add_f32 {vr(V_D,2)}, {vr(V_D,2)}, {vr(V_D+2,2)}')
    for r1 in range(2): a(f'v_add_f32_dpp v{V_D+r1}, v{V_D+4+r1}, v{V_D+6+r1} quad_perm:[0,1,2,3] row_mask:0xc bank_mask:0xf')
    a(f'v_permlane32_swap_b32 v{V_D}, v{V_D+1}')
    a(f'v_add_f32 v{V_D}, v{V_D}, v{V_D+1}')
    a(f'ds_write_b32 v{V_OPW}, v{V_D}')
    S(S_SL2, [(S_T1, 0, 1, 13), (S_T0, 0, None, 18), (S_HB, 0, None, 0)])
    a(f's_add_u32 s{S_SC}, s{S_SC}, {128*2048}')
    LB4 = a.newlabel('rec_b4')
    a(f's_cmp_lg_u32 s{S_W}, 0')
    a(f's_cbranch_scc1 {LB4}')
    a('s_waitcnt lgkmcnt(0)')
    a('s_barrier')
    for w in range(4): a(f'ds_read_b64 {vr(V_R+2*w,2)}, v{V_OPR} offset:{w*256}')
    a(f'v_add_u32 v{V_TG}, 2, v{V_TG}')
    a('s_waitcnt lgkmcnt(0)')
    red4(2)
    a(f'v_cvt_pk_bf16_f32 v{V_R}, v{V_R}, v{V_R+1}')
    a(f'v_max_u32 v{V_R}, 1, v{V_R}')
    for j in range(1, 4): a(f'v_mov_b32_dpp v{V_R+j}, v{V_R} quad_perm:[{j},{j},{j},{j}] row_mask:0xf bank_mask:0xf')
    a('s_mov_b64 exec, 0x11111111')
    a(f'buffer_store_dwordx4 {vr(V_R,4)}, v{V_MEMST}, {WS}, s{S_SL0} offen sc1')
    a('s_mov_b64 exec, -1')
    stamp(10)
    ts(9)
    late_stores(False, 1)
    for j in range(0, 8, 2): a(f'v_mov_b64 {vr(V_D+j,2)}, 0')
    a('s_waitcnt vmcnt(2)')
    a(f's_branch {LOOP}')
    a.label(LB4)
    a('s_waitcnt lgkmcnt(0)')
    a('s_barrier')
    if not TA: a(TKA)
    L3B = a.newlabel('rec_w3b')
    a(f's_cmp_eq_u32 s{S_W}, 3')
    a(f's_cbranch_scc1 {L3B}')
    a(f'v_add_u32 v{V_TG}, 2, v{V_TG}')
    for j in range(0, 8, 2): a(f'v_mov_b64 {vr(V_D+j,2)}, 0')
    late_stores()
    a('s_waitcnt vmcnt(2)')
    a(f's_branch {LOOP}')
    a.label(L3B)
    a(f'v_add_u32 v{V_TG}, 2, v{V_TG}')
    for j in range(0, 8, 2): a(f'v_mov_b64 {vr(V_D+j,2)}, 0')
    tpoll(128)
    late_stores(True, 1)
    tpoll(128)
    a('s_waitcnt vmcnt(2)')
    tickwait(128, DA)
    a(f's_branch {LOOP}')
    for t in tails: t()
    a.label(DONE)
    if prof >= 3:
        a(f'v_writelane_b32 v{V_TR}, s100, 10'); a(f'v_writelane_b32 v{V_TR}, s101, 11'); a(f'v_writelane_b32 v{V_TR}, s{S_SPIN}, 12')
    if prof >= 4: pmark(0)
    a(f'buffer_store_dwordx4 {vr(V_NS,4)}, v{V_NSA}, {WS}, s{S_NSO} offen sc1')
    a('s_waitcnt vmcnt(0)')
    a('s_barrier')
    a(f'v_add_u32 v{V_FRV}, 1, v{V_FRV}')
    a(f'buffer_store_dword v{V_FRV}, v{V_FRA}, {WS}, 0 offen sc1')
    if prof and prof != 5:
        S(S_T0, [(S_RID, 0, None, 13), (S_W, 0, None, 11)], TRACE)
        a(f'v_lshlrev_b32 v{V_T0}, 2, v{V_L}')
        for e in range(8):
            a(f'buffer_store_dword v{V_TR+e}, v{V_T0}, {WS}, s{S_T0} offen offset:{e*256}')
```

```python
from asmlib import *
from layout import *
from rec import srd, lane, sexpr
import math, struct

G_WS = 4
G_W = 8
G_X = 12
G_W2 = 16
G_OUT = 20
G_ID, G_WV, G_SEG = 28, 29, 30
G_T0, G_T1, G_T2 = 31, 32, 33
G_LW = 34
G_XO = 35
G_PO = 36
G_PS = 37
G_WSO, G_WST = 38, 39
G_SPIN = 41
G_C = 42
G_SEEN = 43
G_J, G_R = 44, 45
G_KMO, G_OAO, G_OBO, G_OUO = 46, 47, 48, 49
G_FO = 50
G_END, G_XMAX = 51, 52
G_SA, G_SB, G_FA, G_FB, G_FR, G_C2 = 53, 54, 55, 56, 57, 58
G_PTR = 72
G_WSP = 90
G_DBG = 92
WS = f's[{G_WS}:{G_WS+3}]'
V_L, V_T0, V_T1, V_T2, V_L16 = 1, 2, 3, 4, 5
V_VAL = 31

def f32(x): return '0x%08x' % struct.unpack('<I', struct.pack('<f', x))[0]

class Gem:
    LATE = 96; TWO = 1; QTH = 96; TSL = 0; GV = 0; FS = 0; TSW = 0; OM = 0; XT = 1; BTH = 96; TC = 0
    def __init__(self, a, sync=True, prof=False):
        self.a = a; self.sync = sync; self.prof = prof; self.ost = ''
    def L(self, dst, terms, add=None): lane(self.a, dst, V_T2, V_L, terms, add)
    def S(self, dst, terms, const=0): sexpr(self.a, dst, G_T2, terms, const)
    def spin_guard(self, lgive):
        a = self.a
        a(f's_add_u32 s{G_SPIN}, s{G_SPIN}, 1')
        a(f's_cmp_ge_u32 s{G_SPIN}, 0x200000')
        a(f's_cbranch_scc1 {lgive}')
    def keep(self, reg, cond):
        a = self.a
        a(cond)
        a(f'v_mov_b32 v{V_T2}, {OOB}')
        a(f'v_cndmask_b32 v{reg}, v{V_T2}, v{reg}, vcc')

    def mark(self, k):
        if not self.prof: return
        a = self.a
        a(f's_memrealtime s[{G_PTR+14}:{G_PTR+15}]')
        a('s_waitcnt lgkmcnt(0)')
        a(f's_mov_b32 s{94+k}, s{G_PTR+14}')
        if False:
            a(f's_memtime s[{G_PTR+14}:{G_PTR+15}]')
            a('s_waitcnt lgkmcnt(0)')
            a(f's_mov_b32 s{98+k}, s{G_PTR+14}')
    def acc(self, k):
        if self.prof != 2: return
        a = self.a
        a(f's_memtime s[{G_PTR+14}:{G_PTR+15}]')
        a('s_waitcnt lgkmcnt(0)')
        if k is not None:
            a(f's_sub_u32 s{G_PTR+15}, s{G_PTR+14}, s60')
            a(f's_add_u32 s{61+k}, s{61+k}, s{G_PTR+15}')
        a(f's_mov_b32 s60, s{G_PTR+14}')
    def dump(self):
        if not self.prof: return
        a = self.a
        if self.prof == 5:
            a(f's_cmp_lt_u32 s{G_ID}, 96')
            a(f's_cselect_b32 s{G_T0}, 20, 44')
            a(f'v_mov_b32 v{V_T1}, s{G_T0}')
            a('s_mov_b64 exec, 1')
            for i, k in enumerate((1, 3, 6, 4, 5)):
                a(f'v_mov_b32 v{V_T0}, s{94+k}')
                a(f'global_atomic_umax v{V_T1}, v{V_T0}, s[{G_DBG}:{G_DBG+1}] offset:{4*i} sc1')
            return
        self.S(G_T0, [(G_ID, 0, None, 7), (G_WV, 0, None, 5)], TRACE + 4 * MB)
        a(f'v_mov_b32 v{V_T1}, 0')
        for k in range(8):
            a(f'v_mov_b32 v{V_T0}, s{94+k}')
            a(f'buffer_store_dword v{V_T0}, v{V_T1}, {WS}, s{G_T0} offen offset:{4*k}')
        a(f's_add_u32 s{G_T0}, s{G_T0}, {MB}')
        for k in range(8):
            a(f'v_mov_b32 v{V_T0}, s{61+k}')
            a(f'buffer_store_dword v{V_T0}, v{V_T1}, {WS}, s{G_T0} offen offset:{4*k}')

    def setup(self):
        a = self.a
        a(f's_load_dwordx2 s[{G_WSP}:{G_WSP+1}], s[0:1], {K_WS}')
        a(f's_load_dwordx2 s[{G_DBG}:{G_DBG+1}], s[0:1], {K_DBG}')
        a(f'v_and_b32 v{V_L}, 63, v0')
        a(f'v_lshrrev_b32 v{V_T0}, 6, v0')
        a(f'v_readfirstlane_b32 s{G_WV}, v{V_T0}')
        a(f'v_lshlrev_b32 v{V_L16}, 4, v{V_L}')
        a(f's_mov_b32 s{G_SPIN}, 0')
        a(f's_lshl_b32 s{G_LW}, s{G_WV}, 10')
        a('s_waitcnt lgkmcnt(0)')
        srd(a, G_WS, G_WSP, WS_BYTES)
        if self.sync and self.TSW:
            lw = a.newlabel('g_tw')
            P = G_PTR
            a(f's_cmp_lg_u32 s{G_WV}, 1')
            a(f's_cbranch_scc1 {lw}')
            a(f's_load_dwordx2 s[{P}:{P+1}], s[0:1], {K_WO}')
            self.S(G_T0, [(G_ID, 0, None, 16)])
            self.L(V_T0, [(3, 3, 13), (0, 3, 10)], f's{G_T0}')
            a('s_waitcnt lgkmcnt(0)')
            srd(a, G_OUT, P, 8 * MB)
            a(f's_sub_u32 s{G_T0}, 384, s{P}')
            a(f's_and_b32 s{G_T0}, s{G_T0}, 0x380')
            a(f'buffer_load_dword v119, v{V_T0}, s[{G_OUT}:{G_OUT+3}], s{G_T0} offen')
            a.label(lw)
        if self.sync:
            lv = a.newlabel('g_nv')
            a(f'v_mov_b32 v{V_VAL}, 0')
            a(f's_cmp_lt_u32 s{G_ID}, {self.LATE}')
            a(f's_cbranch_scc1 {lv}')
            P = G_PTR
            if self.TSL:
                a(f's_load_dwordx8 s[{P}:{P+7}], s[0:1], {K_WQ}')
                self.S(G_T0, [(G_ID, 0, 5, 18), (G_WV, 0, None, 16)])
                self.L(V_T0, [(3, 3, 13), (0, 3, 10)], f's{G_T0}')
                self.L(V_T1, [(0, 3, 13)], f's{G_T0}')
                a('s_waitcnt lgkmcnt(0)')
                SD = (G_W, G_X, G_W2, G_OUT)[:2+self.TSL]
                for m, sd in enumerate(SD):
                    srd(a, sd, P + 2 * m, 8 * MB)
                    a(f's_sub_u32 s{G_T0}, 384, s{P+2*m}')
                    a(f's_and_b32 s{G_T0}, s{G_T0}, 0x380')
                    a(f'buffer_load_dword v{120+m}, v{V_T0}, s[{sd}:{sd+3}], s{G_T0} offen')
                a('s_mov_b64 exec, 0xff')
                for m, sd in enumerate(SD):
                    a(f's_sub_u32 s{G_T0}, 8064, s{P+2*m}')
                    a(f's_and_b32 s{G_T0}, s{G_T0}, 0x1f80')
                    a(f'buffer_load_dword v{124+m}, v{V_T1}, s[{sd}:{sd+3}], s{G_T0} offen')
                a('s_mov_b64 exec, -1')
            validate(a, V_VAL, V_T0, G_DBG, G_SPIN, G_T0)
            a.label(lv)
        if self.prof:
            for k in range(8): a(f's_mov_b32 s{94+k}, 0'); a(f's_mov_b32 s{61+k}, 0')
        self.mark(0)

    def vote(self):
        a = self.a
        A0, R, M0, TA, TB, D = 60, 59, 62, 64, 66, 68
        self.S(R, [(G_ID, 0, 5, 2), (G_WV, 0, None, 0)])
        a(f's_sub_u32 s{G_T0}, 0, s{G_WSP}')
        a(f's_and_b32 s{G_T0}, s{G_T0}, {2*MB-1}')
        self.S(A0, [(R, 0, 3, 21), (R, 3, 1, 13), (R, 4, 3, 8), (G_T0, 0, None, 0)], HOFF + 15 * 16384)
        self.S(G_T1, [(R, 3, 1, 14)])
        a(f's_sub_u32 s{A0+1}, s{A0}, s{G_T1}')
        a(f's_add_u32 s{A0+1}, s{A0+1}, 8192')
        for k in range(2):
            a(f's_load_dword s{D+k}, s[{G_WSP}:{G_WSP+1}], s{A0+k} glc')
            a(f's_mov_b32 s{M0+k}, -1')
        for r in range(self.GV):
            for k in range(2):
                a('s_waitcnt lgkmcnt(0)')
                a(f's_memtime s[{TA}:{TA+1}]')
                a('s_waitcnt lgkmcnt(0)')
                a(f's_load_dword s{D}, s[{G_WSP}:{G_WSP+1}], s{A0+k} glc')
                a('s_waitcnt lgkmcnt(0)')
                a(f's_memtime s[{TB}:{TB+1}]')
                a('s_waitcnt lgkmcnt(0)')
                a(f's_sub_u32 s{G_T0}, s{TB}, s{TA}')
                a(f's_min_u32 s{M0+k}, s{M0+k}, s{G_T0}')
        a(f's_cmp_gt_u32 s{M0+1}, s{M0}')
        a(f's_cselect_b32 s{G_T0}, 1, 0')
        a(f's_lshr_b32 s{G_T1}, s{R}, 3')
        a(f's_xor_b32 s{G_T0}, s{G_T0}, s{G_T1}')
        a(f's_xor_b32 s{G_T0}, s{G_T0}, s{R}')
        self.S(G_T0, [(G_T0, 0, 1, VOTE_SH)])
        a(f's_add_u32 s{S_BAD}, s{S_BAD}, s{G_T0}')
        if self.prof:
            for k in range(8): a(f's_mov_b32 s{61+k}, 0')

    def late_arrive(self):
        a = self.a
        a('s_mov_b64 exec, -1')
        self.touch_wo()
        self.vote()
        self.mark(7)
        a(f's_waitcnt vmcnt({8 if self.TWO else 0})')
        a('s_mov_b64 exec, 1')
        self.arrive(False)

    def load_weights(self, jobs, hook=None):
        a = self.a
        LB = G_T1
        a(f's_lshl_b32 s{LB}, s{G_WV}, 15')
        pairs = []
        for (sd, vg, n, reads, so0, sst) in jobs:
            for p in range(n): pairs.append((sd, vg, reads(p), so0 if p == 0 else None, sst))
        NSL = 16
        def issue(p):
            sd, vg, _, so0, sst = pairs[p]
            for j in range(2):
                a(f's_add_u32 m0, s{LB}, {(p % NSL) * 2048 + j * 1024}')
                if so0 is not None and j == 0: a(f's_mov_b32 s{G_WSO}, {so0}')
                else: a(f's_add_u32 s{G_WSO}, s{G_WSO}, {sst}')
                a(f'buffer_load_dwordx4 v{vg}, s[{sd}:{sd+3}], s{G_WSO} offen lds')
        issued = 0
        for p in range(min(NSL, len(pairs))):
            issue(p); issued += 1
        for p in range(len(pairs)):
            a(f's_waitcnt vmcnt({2 * (issued - p - 1)})')
            if hook and p == 2:
                a(f'v_mov_b32 v{V_T0}, 0')
                a(f'global_load_dword v{V_VAL}, v{V_T0}, s[{G_DBG}:{G_DBG+1}] offset:{4*D_ROT} sc1')
            if hook and p == NSL + 1: hook(0)
            if hook and p == len(pairs) - 1: hook(1)
            for dst, va, off in pairs[p][2]:
                a(f'ds_read_b64_tr_b16 {dst}, v{va} offset:{(p % NSL) * 2048 + off}')
            if p >= 1 and issued < len(pairs):
                a(f's_waitcnt lgkmcnt({len(pairs[p][2])})')
                issue(issued); issued += 1
        a('s_waitcnt lgkmcnt(0)')

    def touch_wo(self):
        if not self.TWO: return
        a = self.a
        P = G_PTR
        lsk = a.newlabel('tw_skip')
        a(f's_cmp_lt_u32 s{G_ID}, 96')
        a(f's_cbranch_scc1 {lsk}')
        a(f's_load_dwordx2 s[{P}:{P+1}], s[0:1], {K_WO}')
        self.S(G_T0, [(G_ID, 0, 5, 13), (G_WV, 0, None, 21)])
        a(f'v_lshl_add_u32 v{V_T0}, v{V_L}, 7, s{G_T0}')
        a('s_waitcnt lgkmcnt(0)')
        srd(a, G_W, P, 8 * MB)
        for i in range(8):
            a(f's_mov_b32 s{G_T0}, {i * 262144}')
            a(f'buffer_load_dword v{128+i}, v{V_T0}, s[{G_W}:{G_W+3}], s{G_T0} offen')
        a.label(lsk)

    def slab(self, LNEXT, **opt):
        a = self.a; L = self.L; S = self.S
        P = G_PTR
        V_G, V_TR, V_XG, V_ST, V_FL, V_FV = 6, 7, 8, 9, 10, 11
        V_RA = 12
        V_F = 32
        V_ACC = 64
        V_PK = 96
        lB = a.newlabel('sl_b'); lC = a.newlabel('sl_c')
        G_M = G_J
        a(f's_cmp_ge_u32 s{G_ID}, 96')
        a(f's_cbranch_scc1 {lB}')
        a(f's_lshr_b32 s{G_T0}, s{G_ID}, 5')
        a(f's_add_u32 s{G_T0}, s{G_T0}, 1')
        a(f's_cmp_eq_u32 s{G_T0}, 3')
        a(f's_cselect_b32 s{G_M}, 0, s{G_T0}')
        S(G_T0, [(G_M, 0, None, 3)], K_WQ)
        a(f's_load_dwordx2 s[{P}:{P+1}], s[0:1], s{G_T0}')
        a(f's_load_dwordx2 s[{P+2}:{P+3}], s[0:1], {K_AX}')
        a(f's_mov_b32 s{P+4}, {8*MB}')
        a(f's_mov_b32 s{G_WST}, 8192')
        S(G_T0, [(G_ID, 0, 5, 8)])
        S(G_PO, [(G_M, 0, None, 24), (G_ID, 0, 5, 13)], PA)
        a(f's_mov_b32 s{G_PS}, {256*1024}')
        S(G_FO, [(G_ID, 0, 5, 7), (G_M, 0, None, 2)], FLG + F_SLA)
        a(f's_branch {lC}')
        a.label(lB)
        a(f's_sub_u32 s{G_T1}, s{G_ID}, 96')
        a(f's_lshr_b32 s{G_M}, s{G_T1}, 3')
        a(f's_load_dwordx2 s[{P}:{P+1}], s[0:1], {K_WQKV}')
        a(f's_load_dwordx2 s[{P+2}:{P+3}], s[0:1], {K_BX}')
        a(f's_mov_b32 s{P+4}, {6*MB}')
        a(f's_mov_b32 s{G_WST}, 6144')
        S(G_T0, [(G_T1, 0, None, 8)])
        S(G_PO, [(G_M, 0, None, 22), (G_T1, 0, 3, 13)], PB)
        a(f's_mov_b32 s{G_PS}, {64*1024}')
        S(G_FO, [(G_T1, 0, 3, 7), (G_M, 0, None, 2)], FLG + F_SLB)
        a.label(lC)
        a('s_waitcnt lgkmcnt(0)')
        srd(a, G_W, P, f's{P+4}')
        srd(a, G_X, P + 2, 4 * MB)
        a(f's_mov_b64 s[{P+8}:{P+9}], s[{P}:{P+1}]')
        a(f's_mov_b32 s{G_R}, s{G_T0}')
        if self.sync:
            lg = a.newlabel('sl_go'); l2 = a.newlabel('sl_a2')
            a(f's_cmp_lt_u32 s{G_ID}, {self.LATE}')
            a(f's_cbranch_scc1 {lg}')
            if not self.GV:
                a(f's_cmp_lg_u32 s{G_WV}, 0')
                a(f's_cbranch_scc1 {l2}')
            a('s_mov_b64 exec, 1')
            a(f'v_mov_b32 v{V_T0}, 0')
            a(f'buffer_store_dword v{V_T0}, v{V_T0}, {WS}, s{G_FO} offen sc1')
            if self.GV: self.late_arrive()
            else: self.arrive()
            a.label(l2)
            if not self.GV: self.touch_wo()
            srd(a, G_W, P + 8, f's{P+4}')
            self.wait_start()
            a.label(lg)
        a(f'v_lshrrev_b32 v{V_T0}, 2, v{V_L}')
        a(f'v_mul_lo_u32 v{V_G}, v{V_T0}, s{G_WST}')
        S(G_T0, [(G_R, 0, None, 0), (G_WV, 0, None, 6)])
        L(V_T0, [(0, 2, 4)], f's{G_T0}')
        a(f'v_add_u32 v{V_G}, v{V_G}, v{V_T0}')
        a(f's_lshl_b32 s{G_WST}, s{G_WST}, 4')
        a(f's_mov_b32 s{G_SEG}, 0')
        a(f's_mov_b32 s{G_END}, {NSEG}')
        a(f's_mov_b32 s{G_XMAX}, {63*65536}')
        self.stream(LNEXT, [0, 1], **opt)

    def stream(self, LNEXT, variants, RD=6):
        a = self.a; L = self.L; S = self.S
        V_G, V_TR, V_XG, V_ST, V_FL, V_FV = 6, 7, 8, 9, 10, 11
        V_RA = 12
        V_F = 32
        V_ACC = 64
        V_PK = 96
        G_M = G_J
        ob = 2 in variants
        a(f's_lshl_b32 s{G_T0}, s{G_WV}, 15')
        if ob:
            L(V_TR, [(4, 2, 9), (2, 2, 6), (0, 2, 4)], f's{G_T0}')
        else:
            L(V_TR, [(4, 2, 9), (2, 2, 6), (1, 1, 5), (0, 1, 3)], f's{G_T0}')
        eo = 8 if ob else 16
        def wreads(p):
            return [(f'a[{8*p+4*et+2*q}:{8*p+4*et+2*q+1}]', V_TR, et * eo + q * 256) for et in range(2) for q in range(2)]
        def hook(k):
            li = a.newlabel('sl_ar')
            if k == 0: validate(a, V_VAL, V_T0, G_DBG, G_SPIN, G_T0)
            else: self.mark(7)
            if self.FS: return
            a(f's_cmp_lg_u32 s{G_WV}, 0')
            a(f's_cbranch_scc1 {li}')
            a(f's_cmp_ge_u32 s{G_ID}, {self.LATE}')
            a(f's_cbranch_scc1 {li}')
            a('s_mov_b64 exec, 1')
            if k == 0:
                a(f'v_mov_b32 v{V_T0}, 0')
                a(f'buffer_store_dword v{V_T0}, v{V_T0}, {WS}, s{G_FO} offen sc1')
                a('s_mov_b64 exec, -1')
            else: self.arrive(False)
            a.label(li)
        self.load_weights([(G_W, V_G, 32, wreads, '0', f's{G_WST}')], hook if (self.sync and not ob) else None)
        self.mark(4 if ob else 1)
        S(G_T0, [(G_WV, 1, 1, 2)])
        L(V_T0, [(4, 2, 0)], f's{G_T0}')
        a(f'v_and_b32 v{V_T1}, 7, v{V_L}')
        a(f'v_xor_b32 v{V_T0}, v{V_T0}, v{V_T1}')
        a(f's_lshl_b32 s{G_T0}, s{G_WV}, 14')
        L(V_XG, [(3, 3, 11)], f's{G_T0}')
        a(f'v_lshl_add_u32 v{V_XG}, v{V_T0}, 4, v{V_XG}')
        L(V_T0, [(1, 3, 0)])
        a(f'v_lshrrev_b32 v{V_T1}, 4, v{V_L}')
        a(f'v_xor_b32 v{V_T0}, v{V_T0}, v{V_T1}')
        L(V_T1, [(3, 1, 11), (0, 3, 7)])
        for j in range(2):
            a(f'v_xor_b32 v{V_RA+j}, {4*j}, v{V_T0}')
            a(f'v_lshl_add_u32 v{V_RA+j}, v{V_RA+j}, 4, v{V_T1}')
            a(f'v_add_u32 v{V_RA+2+j}, 65536, v{V_RA+j}')
        if ob:
            a(f's_lshl_b32 s{G_T0}, s{G_WV}, 6')
            L(V_ST, [(0, 4, 12), (4, 2, 4)], f's{G_T0}')
            a(f'v_add_u32 v{V_XG}, s{G_LW}, v{V_L16}')
            L(V_RA, [(4, 2, 9), (0, 4, 4)])
            a(f'v_add_u32 v{V_RA+2}, 65536, v{V_RA}')
            self.wait_dbg(D_INIT, NARR if self.GV else NWG)
            self.wait_lines(F_ATB, f's{G_END}')
        else:
            a(f's_lshl_b32 s{G_T0}, s{G_WV}, 11')
            L(V_ST, [(4, 2, 9), (3, 1, 8), (0, 3, 4)], f's{G_T0}')
            a(f'v_mov_b32 v{V_FL}, s{G_FO}')
            a(f's_cmp_eq_u32 s{G_WV}, 0')
            self.keep(V_FL, 's_cselect_b64 vcc, 1, 0')
            a(f'v_mov_b32 v{V_FV}, 0')
            a(f's_cmp_lt_u32 s{G_ID}, {self.LATE}')
            a(f's_cselect_b32 s{G_KMO}, s{G_WV}, 1')
            a(f's_min_u32 s{G_KMO}, s{G_KMO}, 1')
        a(f's_lshl_b32 s{G_XO}, s{G_SEG}, 16')
        a(f's_sub_u32 s{G_PO}, s{G_PO}, s{G_PS}')
        a('s_barrier')
        XS = f's[{G_X}:{G_X+3}]'
        SC = ' sc1' if ob else ''
        def dma(u, i, part=2):
            kb = (u & 1) * 8 + i
            if ob:
                if part != 1:
                    a(f's_add_u32 m0, s{G_LW}, {(u >> 1) * 65536 + kb * 4096}')
                    a(f's_add_u32 s{G_T1}, s{G_XO}, {kb * 4096}')
                if part != 0: a(f'buffer_load_dwordx4 v{V_XG}, {XS}, s{G_T1} offen sc1 lds')
                return
            if part != 1: a(f's_add_u32 m0, s{G_LW}, {(u >> 1) * 65536 + kb * 4096 - kb * 128}')
            if part != 0: a(f'buffer_load_dwordx4 v{V_XG}, {XS}, s{G_XO} offen offset:{kb*128} lds')
        for u in range(3):
            for i in range(8 if u < 2 else 4): dma(u, i)
            if u == 1: a(f's_add_u32 s{G_XO}, s{G_XO}, 65536')
        a('s_waitcnt vmcnt(12)')
        a('s_barrier')
        if not ob: self.mark(2)
        def rd(T):
            T %= 128
            p, t = T >> 6, T & 63
            ks, tt = t >> 1, t & 1
            if ob: a(f'ds_read_b128 {vr(V_F+4*(T%8),4)}, v{V_RA+2*p} offset:{ks*2048+tt*256}')
            else: a(f'ds_read_b128 {vr(V_F+4*(T%8),4)}, v{V_RA+2*p+(ks&1)} offset:{(ks>>1)*4096+tt*1024}')
        def epi(p, k, var):
            A = V_ACC + 16 * p
            if k < 8:
                o, inn, h = k >> 2, (k >> 1) & 1, k & 1
                tt, et = (inn, o) if var == 1 else (o, inn)
                r = A + 4 * (2 * tt + et) + 2 * h
                a(f'v_cvt_pk_bf16_f32 v{V_PK+k}, v{r}, v{r+1}')
            elif k == 8:
                if ob:
                    a(f'buffer_store_dwordx4 {vr(V_PK,4)}, v{V_ST}, s[{G_OUT}:{G_OUT+3}], s{G_PO} offen{self.ost}')
                    a(f's_add_u32 s{G_T0}, s{G_PO}, 65536')
                else: a(f'buffer_store_dwordx4 {vr(V_PK,4)}, v{V_ST}, {WS}, s{G_PO} offen sc1')
            elif k == 9:
                if ob: a(f'buffer_store_dwordx4 {vr(V_PK+4,4)}, v{V_ST}, s[{G_OUT}:{G_OUT+3}], s{G_T0} offen{self.ost}')
                else: a(f'buffer_store_dwordx4 {vr(V_PK+4,4)}, v{V_ST}, {WS}, s{G_PO} offen offset:128 sc1')
                a(f's_add_u32 s{G_PO}, s{G_PO}, s{G_PS}')
        for T in range(RD): rd(T)
        lV = a.newlabel('sl_v'); lE = a.newlabel('sl_e')
        a(f'v_add_u32 v{V_ST}, {OOB}, v{V_ST}')
        if len(variants) > 1:
            a(f's_cmp_eq_u32 s{G_M}, 2')
            a(f's_cbranch_scc1 {lV}')
        for var in variants:
            if var == 1: a.label(lV)
            lp = a.newlabel('sl_loop')
            a.label(lp)
            for T in range(128):
                p, t = T >> 6, T & 63
                u = T >> 5; tu = T & 31
                if tu == 16:
                    a('s_waitcnt vmcnt(8)')
                    a('s_barrier')
                if T % 2 == 0: a(f's_waitcnt lgkmcnt({RD-2})')
                A = V_ACC + 16 * p
                x = vr(V_F + 4 * (T % 8), 4)
                ks, tt = t >> 1, t & 1
                ph = (tu - 16) % 32
                isd = ph % 4 == 1
                if isd:
                    un = (u + 3) if tu >= 16 else (u + 2)
                    i = ph // 4
                for et in range(2):
                    w = f'a[{8*ks+4*et}:{8*ks+4*et+3}]'
                    D = vr(A + 4 * (2 * tt + et), 4)
                    c = D if ks else '0'
                    if var == 1: a(f'v_mfma_f32_16x16x32_bf16 {D}, {x}, {w}, {c}')
                    else: a(f'v_mfma_f32_16x16x32_bf16 {D}, {w}, {x}, {c}')
                    if et == 0:
                        rd(T + RD)
                        if isd: dma(un % 4, i, 0)
                    elif isd: dma(un % 4, i, 1)
                if isd and (un & 1) == 1 and i == 7:
                    a(f's_add_u32 s{G_XO}, s{G_XO}, 65536')
                    a(f's_min_u32 s{G_XO}, s{G_XO}, s{G_XMAX}')
                if tu == 18 and (u & 1) and not ob:
                    a(f'buffer_store_dword v{V_FV}, v{V_FL}, {WS}, 0 offen sc1')
                    a(f'v_add_u32 v{V_FV}, 1, v{V_FV}')
                    if u == 3 and self.FS and self.sync:
                        la = a.newlabel('sl_ar')
                        a(f's_cmp_lg_u32 s{G_SEG}, s{G_KMO}')
                        a(f's_cbranch_scc1 {la}')
                        a('s_mov_b64 exec, 1')
                        self.arrive(False)
                        a.label(la)
                if 4 <= t < 12: epi(p ^ 1, t - 4, var)
                if t == 11: epi(p ^ 1, 8, var)
                if t == 15: epi(p ^ 1, 9, var)
                if t == 20 and p == 0: a(f'v_and_b32 v{V_ST}, 0xffffff, v{V_ST}')
            a(f's_add_u32 s{G_SEG}, s{G_SEG}, 2')
            a(f's_cmp_lt_u32 s{G_SEG}, s{G_END}')
            a(f's_cbranch_scc1 {lp}')
            for k in range(8): epi(1, k, var)
            a(f's_branch {lE}')
        a.label(lE)
        for k in (8, 9): epi(1, k, 0)
        a('s_waitcnt vmcnt(0) lgkmcnt(0)')
        a('s_barrier')
        if not ob: a(f'buffer_store_dword v{V_FV}, v{V_FL}, {WS}, 0 offen sc1')
        self.mark(5 if ob else 3)
        a(f's_branch {LNEXT}')

    def outb(self, LNEXT):
        a = self.a; L = self.L; S = self.S
        P = G_PTR
        V_G = 6
        a(f's_load_dwordx4 s[{P}:{P+3}], s[0:1], {K_BWO}')
        a(f's_add_u32 s{P+4}, s{G_WSP}, {OB}')
        a(f's_addc_u32 s{P+5}, s{G_WSP+1}, 0')
        a(f's_sub_u32 s{G_T1}, s{G_ID}, 96')
        a(f's_lshr_b32 s{G_T1}, s{G_T1}, 3')
        a(f's_mul_i32 s{G_SEG}, s{G_T1}, 22')
        a(f's_add_u32 s{G_END}, s{G_SEG}, 22')
        a(f's_min_u32 s{G_END}, s{G_END}, {NSEG}')
        a(f's_sub_u32 s{G_XMAX}, s{G_END}, 1')
        a(f's_lshl_b32 s{G_XMAX}, s{G_XMAX}, 16')
        a('s_waitcnt lgkmcnt(0)')
        srd(a, G_W, P, 2 * MB)
        srd(a, G_OUT, P + 2, 8 * MB)
        srd(a, G_X, P + 4, 4 * MB)
        S(G_T0, [(G_ID, 0, 3, 8), (G_WV, 0, None, 6)])
        L(V_G, [(2, 4, 11), (0, 2, 4)], f's{G_T0}')
        a(f's_mov_b32 s{G_WST}, 32768')
        S(G_PO, [(G_SEG, 0, None, 17), (G_ID, 0, 3, 8)], 2048)
        a(f's_mov_b32 s{G_PS}, 131072')
        self.stream(LNEXT, [2])

    def wait_flags_s(self, off_sreg, nwords, idx, target, seen=None):
        a = self.a
        if not self.sync: return
        T = G_PTR
        lp = a.newlabel('g_wf'); ld = a.newlabel('g_wfd')
        if seen is not None:
            a(f's_cmp_ge_u32 s{seen}, {target}')
            a(f's_cbranch_scc1 {ld}')
        a.label(lp)
        a(f's_load_dwordx4 s[{T}:{T+3}], s[{G_WSP}:{G_WSP+1}], s{off_sreg} glc')
        self.spin_guard(ld)
        a('s_waitcnt lgkmcnt(0)')
        m = seen if seen is not None else T + 4
        a(f's_min_u32 s{m}, s{T+idx[0]}, s{T+idx[1]}')
        for i in idx[2:]: a(f's_min_u32 s{m}, s{m}, s{T+i}')
        a(f's_cmp_ge_u32 s{m}, {target}')
        a(f's_cbranch_scc1 {ld}')
        a('s_sleep 4')
        a(f's_branch {lp}')
        a.label(ld)
        a('s_waitcnt lgkmcnt(0)')

    def arrive(self, wait=True):
        a = self.a
        a(f'v_mov_b32 v{V_T2}, 0')
        a(f'v_mov_b32 v{V_T0}, 1')
        a(f'v_mov_b32 v{V_T1}, s{S_BAD}')
        if wait: a('s_waitcnt vmcnt(0)')
        a(f'global_atomic_add_x2 v{V_T2}, v[{V_T0}:{V_T1}], s[{G_DBG}:{G_DBG+1}] offset:{4*D_INIT} sc1')
        a('s_mov_b64 exec, -1')

    def wait_lines(self, fo, target, seen=None):
        a = self.a
        if not self.sync: return
        lp = a.newlabel('g_wl'); ld = a.newlabel('g_wld')
        self.L(V_T0, [(0, 5, 7)], FLG + fo)
        a(f's_cmp_lg_u32 s{G_WV}, 0')
        a(f's_cbranch_scc1 {ld}')
        a.label(lp)
        a(f'buffer_load_dword v{V_T1}, v{V_T0}, {WS}, 0 offen sc1')
        self.spin_guard(ld)
        a('s_waitcnt vmcnt(0)')
        a(f'v_cmp_gt_u32 vcc, {target}, v{V_T1}')
        a(f's_cbranch_vccz {ld}')
        a('s_sleep 8')
        a(f's_branch {lp}')
        a.label(ld)
        a('s_barrier')

    def wait_start(self):
        a = self.a
        a(f's_cmp_lt_u32 s{G_ID}, 96')
        a(f's_cselect_b32 s{G_T2}, {self.QTH}, {self.BTH}')
        self.wait_dbg(D_RDY, f's{G_T2}', G_PTR + 12)

    def wait_dbg(self, word, target, T=G_PTR):
        a = self.a
        if not self.sync: return
        lp = a.newlabel('g_wd'); ld = a.newlabel('g_wdd')
        a(f's_cmp_lg_u32 s{G_WV}, 0')
        a(f's_cbranch_scc1 {ld}')
        a.label(lp)
        a(f's_load_dword s{T}, s[{G_DBG}:{G_DBG+1}], {4*word} glc')
        self.spin_guard(ld)
        a('s_waitcnt lgkmcnt(0)')
        a(f's_cmp_ge_u32 s{T}, {target}')
        a(f's_cbranch_scc1 {ld}')
        a('s_sleep 32')
        a(f's_branch {lp}')
        a.label(ld)
        a('s_waitcnt lgkmcnt(0)')
        a('s_barrier')

    def softmax(self, regs, V_M, V_M2, V_SUM, G_C=G_C):
        a = self.a
        a(f'v_max3_f32 v{V_M}, v{regs[0]}, v{regs[1]}, v{regs[2]}')
        r = regs[3:]
        while len(r) >= 2:
            a(f'v_max3_f32 v{V_M}, v{V_M}, v{r[0]}, v{r[1]}'); r = r[2:]
        if r: a(f'v_max_f32 v{V_M}, v{V_M}, v{r[0]}')
        a(f'v_mov_b32 v{V_M2}, v{V_M}')
        a(f'v_permlane32_swap_b32 v{V_M}, v{V_M2}')
        a(f'v_max_f32 v{V_M}, v{V_M}, v{V_M2}')
        a(f'v_mul_f32 v{V_M}, s{G_C}, v{V_M}')
        for x in regs: a(f'v_fma_f32 v{x}, v{x}, s{G_C}, -v{V_M}')
        for x in regs: a(f'v_exp_f32 v{x}, v{x}')
        a(f'v_add_f32 v{V_SUM}, v{regs[0]}, v{regs[1]}')
        a(f'v_add_f32 v{V_M2}, v{regs[2]}, v{regs[3]}')
        for i in range(4, len(regs), 2):
            a(f'v_add_f32 v{V_SUM}, v{V_SUM}, v{regs[i]}')
            a(f'v_add_f32 v{V_M2}, v{V_M2}, v{regs[i+1]}')
        a(f'v_add_f32 v{V_SUM}, v{V_SUM}, v{V_M2}')
        a(f'v_mov_b32 v{V_M2}, v{V_SUM}')
        a(f'v_permlane32_swap_b32 v{V_SUM}, v{V_M2}')
        a(f'v_add_f32 v{V_SUM}, v{V_SUM}, v{V_M2}')
        a(f'v_rcp_f32 v{V_SUM}, v{V_SUM}')

    def att(self, LNEXT):
        a = self.a; L = self.L; S = self.S
        V_BL, V_BS, V_AL, V_KML, V_VML, V_D0, V_FLA, V_FLB = 6, 7, 8, 9, 10, 11, 12, 13
        V_M, V_M2, V_SUM = 14, 15, 26
        V_PP = 16
        V_PP = 28
        V_PM = 40
        V_PK = 208
        V_BC, V_BP, V_BA = 64, 80, 96
        V_SC, V_SP = 112, 128
        V_O = 144
        A_Q, A_K, A_KM, A_V, A_VM = 0, 32, 64, 96, 128
        B_Q, B_K, B_V, B_KP, B_VP, B_VC = 160, 168, 176, 184, 192, 196
        NEG = f32(-1e30)
        T = G_PTR
        a(f's_mov_b32 s{G_C}, {f32(128 ** -0.5 * math.log2(math.e))}')
        a(f's_mov_b32 s{G_C2}, {f32(32 ** -0.5 * math.log2(math.e))}')
        G_STR, G_AEND, G_S2 = G_PS, G_WSO, G_WST
        G_NX = G_OUO
        S(G_J, [(G_ID, 0, 3, 2), (G_WV, 0, None, 0)])
        a(f's_lshl_b32 s{G_T0}, s{G_J}, 11')
        a(f'v_add_u32 v{V_BL}, s{G_T0}, v{V_L16}')
        L(V_KML, [(5, 1, 7), (0, 3, 4)], f's{G_T0}')
        a(f's_add_u32 s{G_T0}, s{G_T0}, {VM - KM}')
        L(V_VML, [(0, 5, 4), (5, 1, 3)], f's{G_T0}')
        a(f's_lshl_b32 s{G_T0}, s{G_J}, 13')
        a(f'v_add_u32 v{V_AL}, s{G_T0}, v{V_L16}')
        a(f'v_mov_b32 v{V_BS}, v{V_AL}')
        S(G_FA, [(G_J, 0, None, 7)], FLG + F_SLA)
        S(G_FB, [(G_J, 2, None, 7)], FLG + F_SLB)
        S(G_FR, [(G_J, 0, None, 7)], FLG + F_REC)
        S(G_T0, [(G_J, 0, None, 7)], FLG)
        a(f'v_mov_b32 v{V_FLA}, s{G_T0}')
        a(f'v_lshl_add_u32 v{V_FLB}, v{V_L}, 12, s{G_T0}')
        self.keep(V_FLA, 's_mov_b64 vcc, 1')
        lhelp = a.newlabel('at_help'); lcom = a.newlabel('at_com')
        a(f's_cmp_lt_u32 s{G_ID}, 120')
        a(f's_cbranch_scc1 {lhelp}')
        a(f's_mov_b32 s{G_SA}, 0')
        a(f's_mov_b32 s{G_SB}, 0')
        a(f's_mov_b32 s{G_STR}, 1')
        a(f's_mov_b32 s{G_AEND}, {N0}')
        a(f's_mov_b32 s{G_S2}, {N1 + 2}')
        if self.sync:
            li = a.newlabel('at_i')
            a(f'v_mov_b32 v{V_T0}, 0')
            a(f's_mov_b32 s{G_T0}, {F_ATB}')
            a(f'buffer_store_dword v{V_T0}, v{V_FLA}, {WS}, s{G_T0} offen sc1')
            a(f's_mov_b32 s{G_T0}, {F_ATA}')
            a(f'buffer_store_dword v{V_T0}, v{V_FLB}, {WS}, s{G_T0} offen sc1')
            if not self.GV:
                a('s_waitcnt vmcnt(0)')
                a('s_barrier')
                a(f's_cmp_lg_u32 s{G_WV}, 0')
                a(f's_cbranch_scc1 {li}')
            if self.GV: self.late_arrive()
            else:
                self.mark(7)
                a('s_mov_b64 exec, 1')
                self.arrive()
            a.label(li)
        if not self.GV: self.touch_wo()
        a(f's_load_dwordx2 s[{T}:{T+1}], s[0:1], {K_AX}')
        a(f's_load_dwordx2 s[{T+2}:{T+3}], s[0:1], {K_BX}')
        a(f's_load_dwordx2 s[{T+4}:{T+5}], s[0:1], {K_BWO}')
        a('s_waitcnt lgkmcnt(0)')
        srd(a, G_W, T, 4 * MB)
        srd(a, G_X, T + 2, 4 * MB)
        srd(a, G_W2, T + 4, 2 * MB)
        a(f's_lshl_b32 s{G_T0}, s{G_J}, 13')
        a(f'v_lshl_add_u32 v{V_D0}, v{V_L}, 7, s{G_T0}')
        a(f'buffer_load_dword v{V_O}, v{V_D0}, s[{G_W}:{G_W+3}], 0 offen')
        self.wait_start()
        for i in range(16 if self.XT else 0):
            a(f's_mov_b32 s{G_T0}, {i * 262144}')
            a(f'buffer_load_dword v{V_O+2*i}, v{V_D0}, s[{G_W}:{G_W+3}], s{G_T0} offen')
            a(f'buffer_load_dword v{V_O+2*i+1}, v{V_D0}, s[{G_X}:{G_X+3}], s{G_T0} offen')
            if self.XT >= 2: a('s_waitcnt vmcnt(0)')
        for i in range(8 if self.XT & 1 else 0):
            if self.XT >= 2 and i % 2 == 0: a('s_waitcnt vmcnt(0)')
            a(f's_mov_b32 s{G_T0}, {i * 262144}')
            a(f'buffer_load_dword v{V_O+32+i}, v{V_D0}, s[{G_W2}:{G_W2+3}], s{G_T0} offen')
        a(f's_branch {lcom}')
        a.label(lhelp)
        S(G_SA, [(G_ID, 3, None, 0)], N0)
        a(f's_mov_b32 s{G_SB}, {NSEG}')
        a(f's_mov_b32 s{G_STR}, 12')
        a(f's_mov_b32 s{G_AEND}, {N1}')
        S(G_S2, [(G_ID, 3, 1, 0)], N1)
        a(f's_cmp_lt_u32 s{G_ID}, {NOUT}')
        a(f's_cselect_b32 s{G_S2}, {NSEG}, s{G_S2}')
        a.label(lcom)
        L(V_D0, [(0, 5, 0)])
        L(V_T1, [(5, 1, 2)])
        a(f'v_sub_u32 v{V_D0}, v{V_D0}, v{V_T1}')
        def bias(dst, add):
            a(f'v_mov_b32 v{V_M}, {NEG}')
            for j in range(16):
                a(f'v_add_u32 v{V_T1}, {add - (8*(j>>2)+(j&3))}, v{V_D0}')
                a(f'v_and_b32 v{V_T1}, 0xfffffff1, v{V_T1}')
                a(f'v_cmp_ne_u32 vcc, 0, v{V_T1}')
                a(f'v_cndmask_b32 v{dst+j}, 0, v{V_M}, vcc')
        bias(V_BC, 0)
        for j in range(16):
            a(f'v_cmp_gt_i32 vcc, {8*(j>>2)+(j&3)}, v{V_D0}')
            a(f'v_cndmask_b32 v{V_BA+j}, 0, v{V_M}, vcc')
        for j in range(16): a(f'v_mov_b32 v{V_BP+j}, {NEG}')
        for j in range(12): a(f'v_accvgpr_write_b32 a{B_KP+j}, 0')
        for j in range(16): a(f'v_accvgpr_write_b32 a{A_VM+j}, 0')
        for j in range(4): a(f'v_mov_b32 v{V_PM+j}, 0')
        self.wait_dbg(D_INIT, NARR if self.GV else NWG)
        top = a.newlabel('at_top'); la = a.newlabel('at_a'); lb = a.newlabel('at_b'); lend = a.newlabel('at_end'); lnb = a.newlabel('at_nb')
        lpoll = a.newlabel('at_poll'); lnf = a.newlabel('at_nf')
        G_DIRTY = G_SEEN
        def poll():
            if not self.sync: return
            a(f's_load_dwordx16 s[8:23], s[{G_WSP}:{G_WSP+1}], s{G_FR} glc')
            a(f's_load_dwordx4 s[{T+4}:{T+7}], s[{G_WSP}:{G_WSP+1}], s{G_FA} glc')
            a(f's_load_dwordx4 s[{T+8}:{T+11}], s[{G_WSP}:{G_WSP+1}], s{G_FB} glc')
        G_PV = G_R
        def post():
            a(f'v_mov_b32 v{V_T0}, s{G_PV}')
            a(f'buffer_store_dword v{V_T0}, v{V_FLA}, {WS}, s{G_DIRTY} offen sc1')
        def ld8(dst, base):
            for t in range(8):
                if t % 4 == 0: a(f's_add_u32 s{G_T0}, s{G_PO}, {base + t*1024}')
                a(f'buffer_load_dwordx4 {ar(dst+4*t,4)}, v{V_BS}, {WS}, s{G_T0} offen offset:{(t&3)*1024} sc1')
        def ldB(m, dst):
            a(f's_add_u32 s{G_T0}, s{G_XO}, {PB + m * PB_M}')
            for t in range(2): a(f'buffer_load_dwordx4 {ar(dst+4*t,4)}, v{V_BL}, {WS}, s{G_T0} offen offset:{t*1024} sc1')
        def nextseg():
            ln = a.newlabel('at_nx')
            a(f's_add_u32 s{G_NX}, s{G_SA}, s{G_STR}')
            a(f's_cmp_lt_u32 s{G_NX}, s{G_AEND}')
            a(f's_cbranch_scc1 {ln}')
            a(f's_max_u32 s{G_NX}, s{G_NX}, s{G_S2}')
            a(f's_cmp_eq_u32 s{G_AEND}, 255')
            a(f's_cselect_b32 s{G_NX}, s{G_NX}, s{G_S2}')
            a(f's_mov_b32 s{G_STR}, 3')
            a(f's_mov_b32 s{G_AEND}, 255')
            a.label(ln)
        nextseg()
        self.wait_flags_s(G_FB, 4, [0, 1, 2], 1)
        a(f's_mov_b32 s{G_XO}, 0')
        for m, dst in enumerate((B_Q, B_K, B_V)): ldB(m, dst)
        a(f's_add_u32 s{G_T1}, s{G_SA}, 1')
        self.wait_flags_s(G_FA, 4, [0, 1, 2], f's{G_T1}')
        a(f's_lshl_b32 s{G_PO}, s{G_SA}, 18')
        ld8(A_Q, PA); ld8(A_K, PA + PA_M); ld8(A_V, PA + 2 * PA_M)
        a(f's_mov_b32 s{G_DIRTY}, {F_DUM}')
        a(f's_mov_b32 s{G_PV}, 0')
        a(f's_mov_b32 s{G_END}, 0')
        a('s_waitcnt vmcnt(0)')
        self.acc(None)
        a.label(lpoll)
        poll()
        a.label(top)
        if self.sync:
            a('s_waitcnt lgkmcnt(0)')
            a(f's_min_u32 s{T}, s8, s12')
            for i in (16, 20): a(f's_min_u32 s{T}, s{T}, s{i}')
            for b in (4, 8):
                for i in (1, 2): a(f's_min_u32 s{T+b}, s{T+b}, s{T+b+i}')
            a(f's_min_u32 s{T+5}, s{G_NX}, {NSEG-1}')
            a(f's_cmp_gt_u32 s{T+4}, s{T+5}')
            a(f's_cselect_b32 s{T}, s{T}, 0')
            a(f's_min_u32 s{T}, s{T}, {NSEG}')
            a(f's_sub_u32 s{T+9}, s{T+8}, 1')
            a(f's_cmp_ge_u32 s{T+8}, {NSEG}')
            a(f's_cselect_b32 s{T+8}, {NSEG}, s{T+9}')
        else:
            a(f's_mov_b32 s{T}, {NSEG}'); a(f's_mov_b32 s{T+8}, {NSEG}')
        a(f's_cmp_lt_u32 s{G_SB}, s{T+8}')
        a(f's_cbranch_scc1 {lb}')
        a(f's_cmp_lt_u32 s{G_SA}, s{T}')
        a(f's_cbranch_scc1 {la}')
        a(f's_cmp_eq_u32 s{G_DIRTY}, {F_DUM}')
        a(f's_cbranch_scc1 {lnf}')
        a('s_waitcnt vmcnt(0)')
        post()
        a(f's_mov_b32 s{G_DIRTY}, {F_DUM}')
        a.label(lnf)
        a(f's_cmp_ge_u32 s{G_SA}, {NSEG}')
        a(f's_cselect_b32 s{G_T0}, s{G_SB}, 0')
        a(f's_cmp_ge_u32 s{G_T0}, {NSEG}')
        a(f's_cbranch_scc1 {lend}')
        self.spin_guard(lend)
        a('s_sleep 1')
        a(f's_branch {lpoll}')
        a.label(la)
        self.acc(0)
        G_KOK = G_END
        def ldkm():
            a('s_mov_b32 exec_lo, 0xff'); a('s_mov_b32 exec_hi, 0xff')
            for t in range(8): a(f'buffer_load_dwordx4 {ar(A_KM+4*t,4)}, v{V_KML}, {WS}, s{G_KMO} offen offset:{t*256} sc1')
            a('s_mov_b64 exec, -1')
        def ldvm():
            for e in range(4): a(f'buffer_load_dwordx2 {ar(A_VM+4*e,2)}, v{V_VML}, {WS}, s{G_KMO} offen offset:{e*512} sc1')
        lk1 = a.newlabel('at_k1'); lk2 = a.newlabel('at_k2'); lk3 = a.newlabel('at_k3'); lk4 = a.newlabel('at_k4')
        S(G_KMO, [(G_SA, 0, None, 16)], KM)
        a(f's_cmp_lg_u32 s{G_KOK}, 0')
        a(f's_cbranch_scc1 {lk1}')
        ldkm(); ldvm()
        a.label(lk1)
        S(G_OAO, [(G_SA, 0, None, 18)], OA)
        a(f's_cmp_lt_u32 s{G_NX}, s{T}')
        a(f's_cselect_b32 s{G_XMAX}, 1, 0')
        a(f's_cmp_lt_u32 s{G_NX}, {NSEG}')
        a(f's_cselect_b32 s{G_T1}, s{G_NX}, s{G_SA}')
        a(f's_cselect_b32 s{G_T0}, 0, {OOB}')
        a(f'v_or_b32 v{V_BS}, s{G_T0}, v{V_AL}')
        a(f's_lshl_b32 s{G_PO}, s{G_T1}, 18')
        S(G_KMO, [(G_T1, 0, None, 16)], KM)
        poll()
        for t in range(8):
            a(f'v_mfma_f32_32x32x16_bf16 {vr(V_SC,16)}, {ar(A_K+4*t,4)}, {ar(A_Q+4*t,4)}, {vr(V_SC if t else V_BA,16)}')
        a(f's_cmp_lg_u32 s{G_KOK}, 0')
        a(f's_cbranch_scc1 {lk2}')
        a('s_waitcnt vmcnt(4)')
        a.label(lk2)
        ld8(A_K, PA + PA_M)
        for t in range(8):
            a(f'v_mfma_f32_32x32x16_bf16 {vr(V_SP,16)}, {ar(A_KM+4*t,4)}, {ar(A_Q+4*t,4)}, {vr(V_SP,16) if t else 0}')
        self.acc(1)
        a(f's_mov_b32 s{G_KOK}, s{G_XMAX}')
        ld8(A_Q, PA)
        a(f's_cmp_eq_u32 s{G_KOK}, 0')
        a(f's_cbranch_scc1 {lk3}')
        ldkm()
        a.label(lk3)
        self.softmax([V_SC + j for j in range(16)] + [V_SP + j for j in range(4)], V_M, V_M2, V_SUM)
        for j in range(8): a(f'v_cvt_pk_bf16_f32 v{V_PP+j}, v{V_SC+2*j}, v{V_SC+2*j+1}')
        for j in range(2): a(f'v_cvt_pk_bf16_f32 v{V_PM+j}, v{V_SP+2*j}, v{V_SP+2*j+1}')
        def fin(e):
            O = V_O + 16 * e; PK = V_PK + 8 * e
            r = [f'v_mul_f32 v{O+j}, v{O+j}, v{V_SUM}' for j in range(16)]
            r += [f'v_cvt_pk_bf16_f32 v{PK+j}, v{O+2*j}, v{O+2*j+1}' for j in range(8)]
            return r
        def pv(e):
            O = vr(V_O + 16 * e, 16)
            return [f'v_mfma_f32_32x32x16_bf16 {O}, {ar(A_V+8*e,4)}, {vr(V_PP,4)}, 0',
                    f'v_mfma_f32_32x32x16_bf16 {O}, {ar(A_V+8*e+4,4)}, {vr(V_PP+4,4)}, {O}',
                    f'v_mfma_f32_32x32x16_bf16 {O}, {ar(A_VM+4*e,4)}, {vr(V_PM,4)}, {O}']
        a('s_waitcnt vmcnt(16)')
        post()
        for m in pv(0) + pv(1): a(m)
        q = fin(0) + fin(1)
        for m in pv(2) + pv(3):
            a(m)
            for _ in range(6): a(q.pop(0))
        ld8(A_V, PA + 2 * PA_M)
        a(f's_cmp_eq_u32 s{G_KOK}, 0')
        a(f's_cbranch_scc1 {lk4}')
        ldvm()
        a.label(lk4)
        for x in q + fin(2) + fin(3): a(x)
        for e in range(4):
            if e % 2 == 0: a(f's_add_u32 s{G_T0}, s{G_OAO}, {e*2048}')
            for t in range(2): a(f'buffer_store_dwordx4 {vr(V_PK+8*e+4*t,4)}, v{V_AL}, {WS}, s{G_T0} offen offset:{(e&1)*2048+t*1024} sc1')
        a(f's_mov_b32 s{G_PV}, 1')
        S(G_DIRTY, [(G_SA, 0, None, 12)], F_ATA)
        a(f's_mov_b32 s{G_SA}, s{G_NX}')
        nextseg()
        self.acc(2)
        a('s_waitcnt vmcnt(17)')
        self.acc(3)
        a(f's_branch {top}')
        a.label(lb)
        self.acc(0)
        poll()
        S(G_OBO, [(G_SB, 0, None, 16)], OB)
        a(f's_add_u32 s{G_T1}, s{G_SB}, 1')
        a(f's_min_u32 s{G_T1}, s{G_T1}, {NSEG-1}')
        a(f's_lshl_b32 s{G_XO}, s{G_T1}, 16')
        a(f'v_mfma_f32_32x32x16_bf16 {vr(V_SP,16)}, {ar(B_KP,4)}, {ar(B_Q,4)}, {vr(V_BP,16)}')
        a(f'v_mfma_f32_32x32x16_bf16 {vr(V_SP,16)}, {ar(B_KP+4,4)}, {ar(B_Q+4,4)}, {vr(V_SP,16)}')
        a(f'v_mfma_f32_32x32x16_bf16 {vr(V_SC,16)}, {ar(B_K,4)}, {ar(B_Q,4)}, {vr(V_BC,16)}')
        a(f'v_mfma_f32_32x32x16_bf16 {vr(V_SC,16)}, {ar(B_K+4,4)}, {ar(B_Q+4,4)}, {vr(V_SC,16)}')
        for j in range(8): a(f'v_accvgpr_mov_b32 a{B_KP+j}, a{B_K+j}')
        for j in range(8): a(f'v_accvgpr_mov_b32 a{B_VC+j}, a{B_V+j}')
        for m, dst in enumerate((B_Q, B_K, B_V)): ldB(m, dst)
        self.softmax([V_SP + 8 + j for j in range(8)] + [V_SC + j for j in range(16)], V_M, V_M2, V_SUM, G_C2)
        for j in range(8): a(f'v_cvt_pk_bf16_f32 v{V_PP+j}, v{V_SC+2*j}, v{V_SC+2*j+1}')
        for j in range(4): a(f'v_cvt_pk_bf16_f32 v{V_PP+8+j}, v{V_SP+8+2*j}, v{V_SP+8+2*j+1}')
        O = vr(V_O, 16)
        a(f'v_mfma_f32_32x32x16_bf16 {O}, {ar(B_VC,4)}, {vr(V_PP,4)}, 0')
        a(f'v_mfma_f32_32x32x16_bf16 {O}, {ar(B_VC+4,4)}, {vr(V_PP+4,4)}, {O}')
        a(f'v_mfma_f32_32x32x16_bf16 {O}, {ar(B_VP,4)}, {vr(V_PP+8,4)}, {O}')
        for j in range(4): a(f'v_accvgpr_mov_b32 a{B_VP+j}, a{B_VC+4+j}')
        self.acc(4)
        a('s_waitcnt vmcnt(6)')
        self.acc(5)
        post()
        a(f's_cmp_lg_u32 s{G_SB}, 0')
        a(f's_cbranch_scc1 {lnb}')
        bias(V_BP, 32)
        a.label(lnb)
        for j in range(16): a(f'v_mul_f32 v{V_O+j}, v{V_O+j}, v{V_SUM}')
        for j in range(8): a(f'v_cvt_pk_bf16_f32 v{V_PK+j}, v{V_O+2*j}, v{V_O+2*j+1}')
        for t in range(2):
            for j in range(2): a(f'v_permlane32_swap_b32 v{V_PK+4*t+j}, v{V_PK+4*t+2+j}')
        for t in range(2): a(f'buffer_store_dwordx4 {vr(V_PK+4*t,4)}, v{V_BL}, {WS}, s{G_OBO} offen offset:{t*1024} sc1')
        a(f's_add_u32 s{G_SB}, s{G_SB}, 1')
        a(f's_mov_b32 s{G_DIRTY}, {F_ATB}')
        a(f's_mov_b32 s{G_PV}, s{G_SB}')
        if self.prof:
            lm = a.newlabel('at_m')
            a(f's_cmp_lg_u32 s{G_SB}, {NSEG}')
            a(f's_cbranch_scc1 {lm}')
            self.mark(1)
            a.label(lm)
        self.acc(6)
        a('s_waitcnt vmcnt(3)')
        self.acc(7)
        a(f's_branch {top}')
        a.label(lend)
        a('s_waitcnt vmcnt(0) lgkmcnt(0)')
        self.mark(5)
        self.mark(6)
        a(f's_branch {LNEXT}')

    def out64(self, LNEXT, NF=16, SLP=10):
        a = self.a; L = self.L; S = self.S
        P = G_PTR
        NR = NOUT // 16
        V_G, V_TR, V_FA, V_RW, V_RR, V_OUT, V_FP, V_FR = 6, 7, 8, 9, 10, 11, 12, 13
        V_LW = 16
        V_AC = 32
        V_F = 64
        V_W = 128
        RB = 131072
        G_NXT, G_NOK, G_FSO = G_XO, G_END, G_XMAX
        a(f's_load_dwordx2 s[{P}:{P+1}], s[0:1], {K_WO}')
        a(f's_load_dwordx2 s[{P+2}:{P+3}], s[0:1], {K_OUT}')
        a(f's_mul_i32 s{G_J}, s{G_ID}, {-(-1024 // NR)}')
        a(f's_lshr_b32 s{G_J}, s{G_J}, 10')
        assert all((i * -(-1024 // NR)) >> 10 == i // NR for i in range(NOUT))
        a(f's_mul_i32 s{G_T0}, s{G_J}, {NR}')
        a(f's_sub_u32 s{G_SEG}, s{G_ID}, s{G_T0}')
        if self.OM:
            S(G_J, [(G_ID, 5, 1, 3), (G_ID, 0, 3, 0)])
            S(G_SEG, [(G_ID, 3, 2, 0)])
            a(f's_and_b32 s{G_T0}, s{G_ID}, 15')
            a(f's_cmp_lt_u32 s{G_ID}, 64')
            a(f's_cselect_b32 s{G_J}, s{G_J}, s{G_T0}')
            a(f's_cselect_b32 s{G_SEG}, s{G_SEG}, 4')
        a('s_waitcnt lgkmcnt(0)')
        srd(a, G_W, P, 8 * MB)
        srd(a, G_OUT, P + 2, 8 * MB)
        S(G_T0, [(G_WV, 0, None, 21), (G_J, 0, None, 7)])
        L(V_G, [(3, 3, 11), (0, 3, 4)], f's{G_T0}')
        a(f's_lshl_b32 s{G_T0}, s{G_WV}, 15')
        L(V_TR, [(5, 1, 9), (2, 2, 7), (4, 1, 5), (0, 2, 3)], f's{G_T0}')
        def wreg(t, tile):
            return f'a[{8*t+4*tile}:{8*t+4*tile+3}]' if t < 32 else vr(V_W + 8 * (t - 32) + 4 * tile, 4)
        def rds(p):
            if p >= 48: return []
            f, b = ('a', 8 * p) if p < 32 else ('v', V_W + 8 * (p - 32))
            return [(f'{f}[{b+4*tl+2*q}:{b+4*tl+2*q+1}]', V_TR, tl * 64 + q * 1024) for tl in range(2) for q in range(2)]
        self.load_weights([(G_W, V_G, 64, rds, '0', '16384')])
        self.mark(4)
        a(f's_lshl_b32 s{G_T0}, s{G_WV}, 16')
        a(f'v_add_u32 v{V_FA}, s{G_T0}, v{V_L16}')
        S(G_T0, [(G_WV, 0, None, 13)], RB)
        a(f'v_add_u32 v{V_RW}, s{G_T0}, v{V_L16}')
        S(G_T0, [(G_WV, 0, None, 7)], RB)
        L(V_RR, [(1, 2, 10), (0, 1, 9), (3, 3, 4)], f's{G_T0}')
        S(G_T0, [(G_WV, 0, None, 15), (G_J, 0, None, 7)])
        L(V_OUT, [(3, 3, 12), (0, 3, 3)], f's{G_T0}')
        L(V_FP, [(0, 5, 7)], FLG)
        V_TC, V_FR2 = 14, 15
        G_N2, G_FS2 = G_SA, G_SB
        TC = self.TC
        S(G_T0, [(G_WV, 0, None, 16), (G_J, 0, 3, 13)])
        a(f'v_lshl_add_u32 v{V_TC}, v{V_L}, 7, s{G_T0}')
        def touch(base): a(f'buffer_load_dword v{V_T1}, v{V_TC}, {WS}, s{base} offen sc1')
        self.wait_dbg(D_INIT, NARR if self.GV else NWG)
        def flagoff(seg):
            S(G_FSO, [(seg, 0, 6, 12)], F_ATA)
        order = []
        for i in range(16): order += [3 * i, 3 * i + 1, 3 * i + 2, 48 + i]
        def ldA(n, base):
            t = order[n]
            a(f's_add_u32 s{G_T0}, s{base}, {t*1024}')
            a(f'buffer_load_dwordx4 {vr(V_F+4*(n%NF),4)}, v{V_FA}, {WS}, s{G_T0} offen sc1')
        def ldW(i):
            for tl in range(2):
                for q in range(2):
                    r = V_LW + 8 * (i % 2) + 4 * tl + 2 * q
                    a(f'ds_read_b64_tr_b16 v[{r}:{r+1}], v{V_TR} offset:{i*2048+tl*64+q*1024}')
        lp = a.newlabel('o6_loop'); lgo = a.newlabel('o6_go'); lw = a.newlabel('o6_w'); lwd = a.newlabel('o6_wd')
        self.acc(None)
        a.label(lp)
        S(G_OAO, [(G_SEG, 0, None, 18)], OA)
        if self.sync:
            flagoff(G_SEG)
            a.label(lw)
            a(f'buffer_load_dword v{V_FR}, v{V_FP}, {WS}, s{G_FSO} offen sc1')
            self.spin_guard(lwd)
            a('s_waitcnt vmcnt(0)')
            a(f'v_cmp_eq_u32 vcc, 0, v{V_FR}')
            a(f's_cbranch_vccz {lwd}')
            a(f's_sleep {SLP}')
            a(f's_branch {lw}')
            a.label(lwd)
        if TC & 1: touch(G_OAO)
        for n in range(NF - 1): ldA(n, G_OAO)
        a.label(lgo)
        self.acc(0)
        a(f's_lshl_b32 s{G_OUO}, s{G_SEG}, 17')
        a(f's_add_u32 s{G_NXT}, s{G_SEG}, {NR}')
        flagoff(G_NXT)
        if TC & 2:
            a(f's_add_u32 s{G_N2}, s{G_SEG}, {2*NR}')
            S(G_FS2, [(G_N2, 0, 6, 12)], F_ATA)
        ldW(0)
        FL = 24
        for n in range(64):
            t = order[n]
            extra = (2 if TC & 2 else 1) if (FL < n <= FL + NF - 1) else 0
            a(f's_waitcnt vmcnt({NF - 2 + extra})')
            x = vr(V_F + 4 * (n % NF), 4)
            if t >= 48: a('s_waitcnt lgkmcnt(0)')
            for tl in range(2):
                w = wreg(t, tl) if t < 48 else vr(V_LW + 8 * ((t - 48) % 2) + 4 * tl, 4)
                D = vr(V_AC + 16 * tl, 16)
                a(f'v_mfma_f32_32x32x16_bf16 {D}, {w}, {x}, {D if n else 0}')
                if tl == 0:
                    m = n + NF - 1
                    if m == 64:
                        a(f'v_cmp_eq_u32 vcc, 0, v{V_FR}')
                        S(G_KMO, [(G_NXT, 0, None, 18)], OA)
                        a(f's_cmp_eq_u64 vcc, 0')
                        a(f's_cselect_b32 s{G_NOK}, 1, 0')
                        a(f's_cmp_ge_u32 s{G_NXT}, {NSEG}')
                        a(f's_cselect_b32 s{G_NOK}, 0, s{G_NOK}')
                        a(f's_cmp_eq_u32 s{G_NOK}, 0')
                        a(f's_cselect_b32 s{G_KMO}, s{G_OAO}, s{G_KMO}')
                    ldA(m % 64, G_OAO if m < 64 else G_KMO)
                    if n == FL:
                        if self.sync: a(f'buffer_load_dword v{V_FR}, v{V_FP}, {WS}, s{G_FSO} offen sc1')
                        else: a(f'buffer_load_dword v{V_T1}, v{V_FP}, {WS}, s{G_FSO} offen sc1'); a(f'v_mov_b32 v{V_FR}, 127')
                        if TC & 2: a(f'buffer_load_dword v{V_FR2}, v{V_FP}, {WS}, s{G_FS2} offen sc1')
                    if n == 60 and TC & 2:
                        a(f'v_cmp_eq_u32 vcc, 0, v{V_FR2}')
                        S(G_FS2, [(G_N2, 0, None, 18)], OA)
                        a(f's_cmp_eq_u64 vcc, 0')
                        a(f's_cselect_b32 s{G_FS2}, s{G_FS2}, s{G_OAO}')
                        a(f's_cmp_ge_u32 s{G_N2}, {NSEG}')
                        a(f's_cselect_b32 s{G_FS2}, s{G_OAO}, s{G_FS2}')
                    if n == 63 and TC & 2: touch(G_FS2)
                    if m == 64 and TC & 4: touch(G_KMO)
            if t >= 48 and t < 63: ldW(t - 48 + 1)
        self.acc(1)
        a('s_barrier')
        for b in range(8): a(f'ds_write_b128 v{V_RW}, {vr(V_AC+4*b,4)} offset:{b*1024}')
        a('s_waitcnt lgkmcnt(0)')
        a('s_barrier')
        for h in range(2):
            for w in range(4): a(f'ds_read_b128 {vr(V_AC+16*h+4*w,4)}, v{V_RR} offset:{h*4096+w*8192}')
        for h in range(2):
            R = V_AC + 16 * h
            a(f's_waitcnt lgkmcnt({4-4*h})')
            for j in (0, 2): a(f'v_pk_add_f32 {vr(R+j,2)}, {vr(R+j,2)}, {vr(R+4+j,2)}')
            for j in (0, 2): a(f'v_pk_add_f32 {vr(R+8+j,2)}, {vr(R+8+j,2)}, {vr(R+12+j,2)}')
            for j in (0, 2): a(f'v_pk_add_f32 {vr(R+j,2)}, {vr(R+j,2)}, {vr(R+8+j,2)}')
            for j in range(2): a(f'v_cvt_pk_bf16_f32 v{V_LW+8+2*h+j}, v{R+2*j}, v{R+2*j+1}')
            a(f'buffer_store_dwordx2 {vr(V_LW+8+2*h,2)}, v{V_OUT}, s[{G_OUT}:{G_OUT+3}], s{G_OUO} offen offset:{h*64}{self.ost}')
        self.acc(2)
        a(f's_mov_b32 s{G_SEG}, s{G_NXT}')
        a(f's_mov_b32 s{G_OAO}, s{G_KMO}')
        a(f's_cmp_lg_u32 s{G_NOK}, 0')
        a(f's_cbranch_scc1 {lgo}')
        a(f's_cmp_lt_u32 s{G_SEG}, {NSEG}')
        a(f's_cbranch_scc1 {lp}')
        self.mark(5)
        a(f's_branch {LNEXT}')
```

```python
from asmlib import *
from layout import *
import math, struct

def srd(a, s, ptr, nbytes):
    a(f's_mov_b32 s{s}, s{ptr}')
    a(f's_and_b32 s{s+1}, s{ptr+1}, 0xffff')
    a(f's_mov_b32 s{s+2}, {nbytes}')
    a(f's_mov_b32 s{s+3}, 0x00020000')

def lane(a, dst, tmp, VL, terms, add=None):
    first = True
    for sh, w, out in terms:
        t = dst if first else tmp
        if sh + w >= 6: a(f'v_lshrrev_b32 v{t}, {sh}, v{VL}')
        elif sh == 0: a(f'v_and_b32 v{t}, {(1 << w) - 1}, v{VL}')
        else: a(f'v_bfe_u32 v{t}, v{VL}, {sh}, {w}')
        if first:
            if out: a(f'v_lshlrev_b32 v{dst}, {out}, v{dst}')
        else: a(f'v_lshl_add_u32 v{dst}, v{tmp}, {out}, v{dst}')
        first = False
    if add is not None: a(f'v_add_u32 v{dst}, {add}, v{dst}')

def sexpr(a, dst, tmp, terms, const=0):
    first = True
    for sreg, sh, w, out in terms:
        t = dst if first else tmp
        src = sreg
        if sh: a(f's_lshr_b32 s{t}, s{src}, {sh}'); src = t
        if w is not None: a(f's_and_b32 s{t}, s{src}, {(1 << w) - 1}'); src = t
        if out: a(f's_lshl_b32 s{t}, s{src}, {out}'); src = t
        if first:
            if src != dst: a(f's_mov_b32 s{dst}, s{src}')
        else: a(f's_add_u32 s{dst}, s{dst}, s{src}')
        first = False
    if const: a(f's_add_u32 s{dst}, s{dst}, {const}')

S_PFL = 3
S_WS = 4
S_WQ = 8
S_WO = 20
S_M0 = 24
S_RID, S_H, S_I, S_W, S_STEP = 28, 29, 30, 31, 32
S_SL0, S_SL1, S_SL2 = 33, 34, 35
S_SC, S_KV = 36, 37
S_T0, S_T1, S_T2 = 38, 39, 40
S_SPIN = 41
S_MLO8 = 42
S_MHI = 44
S_MHI8 = 46
S_PAR = 48
S_HB = 49
S_C = 50
S_KXB = 51
S_TS = 52
S_TAG = 54
S_MBO = 55
S_MK = 56
S_PTR = 72
S_NSO = 88
S_WSP = 90
S_DBG = 92
S_SEEN, S_FKV, S_FAST, S_FRO = 94, 95, 96, 97
S_NSI, S_NBO, S_NBI = 89, 98, 99

L_QK = 0
L_V = 10240
L_OP = 14336
L_X = 15360
L_KX = 131072

def gen_rec(a, prof=0, nsteps=NSEG, sync=False, DA=1, DB=2, DC=0, PLAINB=1, TPOS=1, TA=0, NEAR=1, ILA=4, ILC=4, SEP=0, ROT=0, OMAP=0, RDYP=26, MIX=0, TW=1, KC=2, KA=1, CJ=3, LB=1, RING=0, ASY=1, NSP=0, ZD=0, XP=0, PMK=0, TLBW=0, GV=0, STG=0, FS=0, POLP=38, WPF=0, ARP=18, WFL=0, QFL=0):
    V_L, V_T0, V_T1, V_T2 = 1, 2, 3, 4
    V_IDX = 5
    V_MEMST, V_AOFF, V_COFF, V_COFF2 = 6, 7, 12, 13
    V_FF = 8
    V_QKW, V_QKW2, V_L16, V_VW, V_QKR, V_SCST, V_SCST2, V_SCLM = 14, 15, 16, 17, 18, 19, 20, 21
    V_SCL = [22, 23, 24]
    V_VR, V_VR2, V_OST, V_OPW, V_OPR, V_PFG, V_CK = 25, 26, 27, 28, 29, 30, 31
    V_ONE = 32
    V_MA = 36
    V_VX, V_KX = 52, 60
    V_D = 68
    V_S = 68
    V_PTG, V_NSA, V_SCCL, V_OCL = 92, 93, 94, 95
    V_X = 96
    V_R = 100
    V_TKST, V_TKSA, V_TG, V_M, V_M2 = 132, 133, 134, 135, 136
    V_VM = 138
    V_ZZ = 144
    V_TR = 148
    V_P = 156
    V_LD = 164
    V_NS = 180
    V_GQ, V_GO, V_TRQ, V_TRO = 184, 185, 186, 187
    V_FRA, V_NBA = 137, 26
    V_NB = 188
    V_FRV = V_NB
    V_CK2 = 4
    TRMAP = {0: 0, 2: 1, 5: 3, 8: 4, 10: 5, 'b': 2, 7: 6, 11: 7}
    TSR = [8, 10, 12, 14, 16, 18, 58, 20, 22, 24, 26, 56]
    def ts(k):
        if prof != 3: return
        r = 56 if k == 0 else (58 if k == 'o' else 8 + 2 * k)
        a(f's_memtime s[{r}:{r+1}]')
    def harvest():
        if prof != 3: return
        a('s_waitcnt lgkmcnt(0)')
        lh = a.newlabel('hv')
        a(f's_cmp_le_u32 s{S_STEP}, 3')
        a(f's_cbranch_scc1 {lh}')
        for k in range(1, 12):
            a(f's_sub_u32 s{S_TS}, s{TSR[k]}, s{TSR[k-1]}')
            a(f'v_readlane_b32 s{S_TS+1}, v{V_TR+1}, {k}')
            a(f's_add_u32 s{S_TS}, s{S_TS}, s{S_TS+1}')
            a(f'v_writelane_b32 v{V_TR+1}, s{S_TS}, {k}')
        a.label(lh)
        a('s_mov_b32 s8, s56')
    def stamp(k):
        if prof not in (1, 2): return
        e = TRMAP[k]
        if prof == 2 and k not in (5, 10, 7, 11): return
        lsk = a.newlabel('st')
        a(f's_cmp_eq_u32 s{S_W}, 3')
        a(f's_cbranch_scc1 {lsk}')
        a(f's_memrealtime s[{S_TS}:{S_TS+1}]')
        a('s_waitcnt lgkmcnt(0)')
        if k in (10, 11):
            a(f's_sub_u32 s{S_TS+1}, s{S_STEP}, 1')
            a(f's_mov_b32 m0, s{S_TS+1}')
        else:
            a(f's_mov_b32 m0, s{S_STEP}')
        a(f's_lshl_b32 s{S_TS}, s{S_TS}, 8')
        a(f's_and_b32 s{S_TS+1}, s{S_SPIN}, 0xff')
        a(f's_or_b32 s{S_TS}, s{S_TS}, s{S_TS+1}')
        a(f'v_writelane_b32 v{V_TR+e}, s{S_TS}, m0')
        a.label(lsk)
    def pmark(e, alt=0):
        if e in (2, 5, 6) and alt != PMK: return
        if prof == 5:
            if e in (2, 3, 7, 0):
                a(f's_memrealtime s[{S_TS}:{S_TS+1}]')
                a('s_waitcnt lgkmcnt(0)')
                a(f'v_mov_b32 v{V_TR}, s{S_TS}'); a(f'v_mov_b32 v{V_TR+1}, 0')
                a('s_mov_b64 exec, 1')
                a(f'global_atomic_umax v{V_TR+1}, v{V_TR}, s[{S_DBG}:{S_DBG+1}] offset:{4*{2: 1, 3: 2, 7: 3, 0: 4}[e]} sc1')
                a('s_mov_b64 exec, -1')
            return
        if not prof: return
        a(f's_memrealtime s[{S_TS}:{S_TS+1}]')
        a('s_waitcnt lgkmcnt(0)')
        a(f's_lshl_b32 s{S_TS}, s{S_TS}, 8')
        a(f'v_writelane_b32 v{V_TR+e}, s{S_TS}, 63')
    def L(dst, terms, add=None): lane(a, dst, V_T2, V_L, terms, add)
    def S(dst, terms, const=0): sexpr(a, dst, S_T2, terms, const)
    def spin_guard(lgive):
        a(f's_add_u32 s{S_SPIN}, s{S_SPIN}, 1')
        a(f's_cmp_ge_u32 s{S_SPIN}, 0x80000')
        a(f's_cbranch_scc1 {lgive}')
    def keep(reg, cond):
        a(cond)
        a(f'v_mov_b32 v{V_T2}, {OOB}')
        a(f'v_cndmask_b32 v{reg}, v{V_T2}, v{reg}, vcc')

    P = S_PTR
    a(f's_load_dwordx2 s[{P}:{P+1}], s[0:1], {K_MEM0}')
    a(f's_load_dwordx4 s[{P+4}:{P+7}], s[0:1], {K_WQ}')
    a(f's_load_dwordx4 s[{P+8}:{P+11}], s[0:1], {K_WV}')
    a(f's_load_dwordx2 s[{S_WSP}:{S_WSP+1}], s[0:1], {K_WS}')
    a(f's_load_dwordx2 s[{S_DBG}:{S_DBG+1}], s[0:1], {K_DBG}')
    a(f'v_and_b32 v{V_L}, 63, v0')
    a(f'v_lshrrev_b32 v{V_T0}, 6, v0')
    a(f'v_readfirstlane_b32 s{S_W}, v{V_T0}')
    a(f's_lshr_b32 s{S_H}, s{S_RID}, 2')
    a(f's_and_b32 s{S_I}, s{S_RID}, 3')
    a(f's_mov_b32 s{S_SPIN}, 0')
    if prof: a('s_mov_b32 s100, 0'); a('s_mov_b32 s101, 0')
    a('s_waitcnt lgkmcnt(0)')
    srd(a, S_M0, P, 16384)
    srd(a, S_WQ, P + 4, 8 * MB)
    srd(a, S_WQ + 4, P + 6, 8 * MB)
    srd(a, S_WQ + 8, P + 8, 8 * MB)
    srd(a, S_WO, P + 10, 8 * MB)
    srd(a, S_WS, S_WSP, WS_BYTES)
    WS = f's[{S_WS}:{S_WS+3}]'
    a(f's_sub_u32 s{S_HB}, 0, s{S_WSP}')
    a(f's_and_b32 s{S_HB}, s{S_HB}, {2*MB-1}')
    a(f's_add_u32 s{S_HB}, s{S_HB}, {HOFF}')

    if prof:
        for e in range(8): a(f'v_mov_b32 v{V_TR+e}, 0')
    lsk = a.newlabel('rec_cal')
    assert FS or not sync
    a(f's_mov_b32 s{S_PAR}, 0')
    cal0 = len(a.lines)
    a(f's_cmp_lg_u32 s{S_W}, 3')
    a(f's_cbranch_scc1 {lsk}')
    S(S_T0, [(S_RID, 0, 3, 21), (S_RID, 3, 1, 13), (S_RID, 4, 3, 8), (S_HB, 0, None, 0)], 15 * 16384)
    S(S_T1, [(S_RID, 3, 1, 14)])
    a(f's_sub_u32 s{S_T1}, s{S_T0}, s{S_T1}')
    a(f's_add_u32 s{S_T1}, s{S_T1}, 8192')
    a(f's_load_dword s{P+8}, s[{S_WSP}:{S_WSP+1}], s{S_T0} glc')
    a(f's_load_dword s{P+9}, s[{S_WSP}:{S_WSP+1}], s{S_T1} glc')
    for k in range(2):
        a('s_waitcnt lgkmcnt(0)')
        a(f's_memtime s[{P+4}:{P+5}]')
        a('s_waitcnt lgkmcnt(0)')
        a(f's_load_dword s{P+8}, s[{S_WSP}:{S_WSP+1}], s{S_T0+k} glc')
        a('s_waitcnt lgkmcnt(0)')
        a(f's_memtime s[{P+6}:{P+7}]')
        a('s_waitcnt lgkmcnt(0)')
        a(f's_sub_u32 s{P+k}, s{P+6}, s{P+4}')
    a(f's_cmp_lt_u32 s{P+1}, s{P}')
    a(f's_cselect_b32 s{S_T0}, 1, 0')
    a(f's_lshr_b32 s{S_T1}, s{S_RID}, 3')
    a(f's_xor_b32 s{S_T0}, s{S_T0}, s{S_T1}')
    a(f's_xor_b32 s{S_T0}, s{S_T0}, s{S_RID}')
    S(S_PAR, [(S_T0, 0, 1, VOTE_SH)])
    if GV: del a.lines[cal0:]
    a.label(lsk)
    pmark(2)
    S(S_T0, [(S_W, 0, None, 21), (S_RID, 0, None, 6)])
    L(V_GQ, [(2, 4, 13), (0, 2, 4)], f's{S_T0}')
    S(S_T0, [(S_W, 0, None, 21), (S_RID, 1, None, 5)])
    L(V_GO, [(1, 5, 11), (0, 1, 4)], f's{S_T0}')
    S_LB = S_SL0
    a(f's_lshl_b32 s{S_LB}, s{S_W}, 15')
    L(V_TRQ, [(4, 2, 9), (2, 2, 6), (0, 2, 3)], f's{S_LB}')
    L(V_TRO, [(4, 2, 8), (2, 2, 5), (0, 2, 3)], f's{S_LB}')
    pairs = []
    def wq_reg(kb, tile): return ('a', (kb * 6 + tile) * 8)
    def wo_reg(kb):
        return ('a', 192 + kb * 8) if kb < 8 else ('v', 192 + (kb - 8) * 8)
    for kb in range(4):
        for hf32 in range(2):
            for m in range(3):
                k0 = kb * 64 + hf32 * 32
                ld = [(S_WQ + 4 * m, V_GQ, (k0 + 16 * j) * 8192) for j in range(2)]
                rd = []
                for t in range(2):
                    f, b = wq_reg(kb, m * 2 + t)
                    for q in range(2):
                        r0 = b + hf32 * 4 + q * 2
                        rd.append((f'{f}[{r0}:{r0+1}]', V_TRQ, t * 32 + q * 256))
                pairs.append((ld, rd))
    NW = 0
    wop = []
    for kb in range(16):
        ld = [(S_WO, V_GO, (kb * 64 + 32 * j) * 2048) for j in range(2)]
        rd = []
        f, b = wo_reg(kb)
        for j in range(2):
            for q in range(2):
                r0 = b + j * 4 + q * 2
                rd.append((f'{f}[{r0}:{r0+1}]', V_TRO, j * 1024 + q * 128))
        wop.append((ld, rd))
    mix = []
    for g in range(8): mix += [wop[2*g], pairs[3*g], pairs[3*g+1], wop[2*g+1], pairs[3*g+2]]
    if MIX == 2: pairs = wop + pairs[0::3] + [x for i, x in enumerate(pairs) if i % 3]
    elif MIX == 4: pairs = wop + pairs
    elif MIX == 5:
        q = pairs; pairs = q[:8]
        for g in range(16): pairs += [wop[g], q[8+g]]
    elif MIX == 3: pairs = pairs[0::3] + wop + [x for i, x in enumerate(pairs) if i % 3]
    else: pairs = mix if MIX else pairs + wop
    NSL = 16
    def issue(p):
        ld, _ = pairs[p]
        for j, (sd, vo, so) in enumerate(ld):
            a(f's_add_u32 m0, s{S_LB}, {(p % NSL) * 2048 + j * 1024}')
            if (STG & 1) and sd == S_WO: a(f's_xor_b32 s{S_T0}, s{S_XO}, {so}')
            elif (STG & 2) and sd != S_WO: a(f's_xor_b32 s{S_T0}, s{S_XQ}, {so}')
            else: a(f's_mov_b32 s{S_T0}, {so}')
            fl = ['', ' nt', ' sc1', ' sc0 sc1', ' sc0 sc1 nt', ' sc1 nt'][WFL if sd == S_WO else QFL]
            a(f'buffer_load_dwordx4 v{vo}, s[{sd}:{sd+3}], s{S_T0} offen{fl} lds')
        ops[0] += 2; pos[p] = ops[0]
        if WPF and WPF <= p < WPF + 16:
            a(f's_mov_b32 s{S_T0}, {(p - WPF) * 64 * 2048}')
            a(f'buffer_load_dwordx4 v[252:255], v{V_X}, s[{S_WO}:{S_WO+3}], s{S_T0} offen')
            ops[0] += 1
    ops = [0]; pos = {}
    S(S_T0, [(S_W, 0, None, 21), (S_RID, 0, 3, 14), (S_RID, 3, None, 7)])
    L(V_X, [(3, 3, 11), (0, 3, 4)], f's{S_T0}')
    S_XO, S_XQ = 60, 61
    S(S_XO, [(S_RID, 0, 3, 18)])
    S(S_XQ, [(S_RID, 0, 1, 20)])
    issued = 0
    FB = NSL if NW else 6
    for p in range(FB):
        issue(p); issued += 1
    pmark(2, 2)
    L(V_T0, [(1, 1, 0)])
    a(f'v_mov_b32 v{V_T1}, 0xaaaa')
    a(f'v_mul_u32_u24 v{V_T0}, v{V_T0}, v{V_T1}')
    a(f'v_add_u32 v{V_IDX}, 0x4444, v{V_T0}')
    a(f'v_lshlrev_b32 v{V_L16}, 4, v{V_L}')
    BLK = 16384
    S(S_T0, [(S_RID, 6, None, 14), (S_RID, 0, 6, 7)], 8 * BLK)
    a(f'v_lshl_add_u32 v{V_MEMST}, v{V_L}, 2, s{S_T0}')
    S(S_T0, [(S_W, 1, None, 14), (S_W, 0, 1, 12)], 8 * BLK)
    a(f'v_add_u32 v{V_AOFF}, s{S_T0}, v{V_L16}')
    S(S_T0, [(S_RID, 0, 1, 16), (S_W, 0, None, 14)])
    a(f'v_add_u32 v{V_COFF}, s{S_T0}, v{V_L16}')
    a(f'v_add_u32 v{V_COFF2}, 4096, v{V_COFF}')
    a(f'v_lshrrev_b32 v{V_T0}, 4, v{V_L}')
    a(f'v_mul_u32_u24 v{V_T0}, 320, v{V_T0}')
    a(f'v_and_b32 v{V_T1}, 15, v{V_L}')
    a(f'v_lshl_add_u32 v{V_T0}, v{V_T1}, 2, v{V_T0}')
    a(f's_mul_i32 s{S_T0}, s{S_W}, 2560')
    a(f'v_add_u32 v{V_QKW}, s{S_T0}, v{V_T0}')
    a(f'v_add_u32 v{V_QKW2}, 1280, v{V_QKW}')
    S(S_T0, [(S_W, 0, None, 10)], L_V)
    a(f'v_add_u32 v{V_VW}, s{S_T0}, v{V_L16}')
    L(V_T0, [(0, 2, 1), (2, 1, 0)], 8)
    a(f'v_and_b32 v{V_T1}, 15, v{V_L}')
    a(f'v_cmp_gt_u32 vcc, 8, v{V_T1}')
    a(f'v_cndmask_b32 v{V_T1}, v{V_T0}, v{V_T1}, vcc')
    a(f'v_mul_u32_u24 v{V_T1}, 160, v{V_T1}')
    L(V_T0, [(5, 1, 6), (4, 1, 4)])
    a(f'v_add_u32 v{V_QKR}, v{V_T0}, v{V_T1}')
    a(f's_lshl_b32 s{S_T0}, s{S_RID}, 11')
    a(f'v_add_u32 v{V_SCST}, s{S_T0}, v{V_L16}')
    L(V_SCST2, [(4, 1, 7), (0, 3, 4)], f's{S_T0}')
    for k in range(3):
        a(f's_add_u32 s{S_T1}, s{S_I}, {k+1}')
        S(S_T0, [(S_T1, 0, 2, 11), (S_H, 0, None, 13)])
        a(f'v_add_u32 v{V_SCL[k]}, s{S_T0}, v{V_L16}')
    a(f's_lshl_b32 s{S_T0}, s{S_H}, 13')
    L(V_SCLM, [(4, 2, 11), (0, 4, 4)], f's{S_T0}')
    E0 = [(3, 1, 8), (1, 1, 6), (2, 1, 5), (0, 1, 4)]
    L(V_VR, [(4, 2, 8), (3, 1, 3)] + E0[1:], L_V)
    S(S_T0, [(S_RID, 0, None, 11), (S_W, 0, 1, 7)], PA + PA_M)
    L(V_T0, [(3, 1, 8), (0, 3, 4), (4, 1, 9), (5, 1, 10)], f's{S_T0}')
    a(f's_add_u32 s{S_T0}, s{S_T0}, {PA_M}')
    L(V_T1, E0 + [(4, 1, 9), (5, 1, 10)], f's{S_T0}')
    a(f's_cmp_lt_u32 s{S_W}, 2')
    a(f's_cselect_b64 vcc, -1, 0')
    a(f'v_cndmask_b32 v{V_PFG}, v{V_T1}, v{V_T0}, vcc')
    a(f's_lshl_b32 s{S_PFL}, s{S_W}, 10')
    S(S_T0, [(S_H, 3, None, 14), (S_H, 0, 3, 10), (S_I, 0, 1, 9), (S_I, 1, None, 7)])
    L(V_OST, [(2, 1, 16), (5, 1, 8), (1, 1, 6), (4, 1, 5), (0, 1, 4)], f's{S_T0}')
    S(S_T1, [(S_W, 1, None, 16), (S_W, 0, 1, 8), (S_T0, 0, None, 0)])
    a(f'v_add_u32 v{V_OCL}, s{S_T1}, v{V_L16}')
    keep(V_OCL, f'v_cmp_gt_u32 vcc, 8, v{V_L}')
    S(S_T0, [(S_W, 0, None, 8)], L_OP)
    a(f'v_lshl_add_u32 v{V_OPW}, v{V_L}, 2, s{S_T0}')
    L(V_OPR, [(2, 1, 7), (4, 1, 6), (0, 2, 4), (3, 1, 3)], L_OP)
    a(f's_mul_i32 s{S_T1}, s{S_W}, 320')
    S(S_T0, [(S_RID, 0, None, 11), (S_T1, 0, None, 0)])
    a(f'v_add_u32 v{V_SCCL}, s{S_T0}, v{V_L16}')
    keep(V_SCCL, f'v_cmp_gt_u32 vcc, 20, v{V_L}')
    a(f's_mul_i32 s{S_T0}, s{S_W}, 3')
    a(f'v_min_u32 v{V_T0}, 2, v{V_L}')
    a(f'v_add_u32 v{V_T0}, s{S_T0}, v{V_T0}')
    a(f'v_min_u32 v{V_T0}, 9, v{V_T0}')
    S(S_T0, [(S_RID, 0, None, 11)], 128 * 2048)
    a(f'v_lshl_add_u32 v{V_PTG}, v{V_T0}, 7, s{S_T0}')
    lw = a.newlabel('rec_ns')
    a(f's_lshl_b32 s{S_T0}, s{S_RID}, 9')
    L(V_NSA, [(4, 2, 7), (0, 2, 5), (2, 1, 4)], f's{S_T0}')
    a('s_mov_b32 vcc_lo, 0xff00ff00'); a('s_mov_b32 vcc_hi, 0xff00ff00')
    a(f's_cmp_eq_u32 s{S_W}, 1')
    a(f's_cbranch_scc1 {lw}')
    a(f's_add_u32 s{S_T0}, s{S_T0}, {VM - KM}')
    a(f'v_add_u32 v{V_NSA}, s{S_T0}, v{V_L16}')
    a('s_mov_b32 vcc_lo, -1'); a('s_mov_b32 vcc_hi, 0')
    a(f's_cmp_eq_u32 s{S_W}, 2')
    a(f's_cbranch_scc1 {lw}')
    S(S_T0, [(S_RID, 6, None, 14), (S_RID, 0, 6, 7)], 8 * BLK)
    a(f'v_add_u32 v{V_NSA}, s{S_T0}, v{V_L16}')
    a(f's_cmp_eq_u32 s{S_W}, 3')
    a('s_cselect_b32 vcc_lo, 0xff, 0')
    a.label(lw)
    keep(V_NSA, 's_nop 0')
    for j in range(4): a(f'v_mov_b32 v{V_ONE+j}, 0x3f803f80')
    for j in range(4): a(f'v_mov_b32 v{V_FF+j}, -1')
    for j in range(4): a(f'v_mov_b32 v{V_ZZ+j}, 0')
    for j in range(4): a(f'v_mov_b32 v{V_NS+j}, 0')
    for j in range(5, 8): a(f'v_mov_b32 v{V_P+j}, 0')
    for j in range(6): a(f'v_mov_b32 v{V_VM+j}, 0')
    a(f's_mov_b32 s{S_MLO8}, 0x00ff00ff'); a(f's_mov_b32 s{S_MLO8+1}, 0x00ff00ff')
    a(f's_mov_b32 s{S_MHI}, 0'); a(f's_mov_b32 s{S_MHI+1}, -1')
    a(f's_mov_b32 s{S_MHI8}, 0'); a(f's_mov_b32 s{S_MHI8+1}, 0x00ff00ff')
    c = (128 ** -0.5) * math.log2(math.e)
    a(f's_mov_b32 s{S_C}, 0x{struct.unpack("<I", struct.pack("<f", c))[0]:08x}')
    a(f's_mov_b32 s{S_SC}, {SCB}')
    a(f's_mov_b32 s{S_KV}, 0')
    a(f's_mov_b32 s{S_STEP}, 0')
    a(f's_mov_b32 s{S_KXB}, {L_KX}')
    a(f's_mov_b32 s{S_TAG}, 1')
    a(f's_min_u32 s{S_T0}, s{S_W}, 1')
    a(f's_add_u32 s{S_T0}, s{S_T0}, 1')
    a(f'v_mov_b32 v{V_TG}, s{S_T0}')

    S(S_FKV, [(S_H, 0, None, 7), (S_W, 1, None, 2)], FLG + F_SLA + 4)
    S(S_FRO, [(S_H, 0, None, 7)], FLG + F_REC)
    S(S_T0, [(S_I, 0, None, 4), (S_FRO, 0, None, 0)])
    a(f'v_mov_b32 v{V_FRA}, s{S_T0}')
    a(f's_cmp_eq_u32 s{S_W}, 2')
    keep(V_FRA, 's_cselect_b64 vcc, 1, 0')
    a(f's_mov_b32 s{S_SEEN}, 0')
    def wait_kv(target):
        if not sync: return
        lp = a.newlabel('rec_kv'); ld = a.newlabel('rec_kvd')
        a(f's_cmp_gt_u32 s{S_SEEN}, {target}')
        a(f's_cbranch_scc0 {lp}')
        a.label(ld)
        def tl():
            a.label(lp)
            a(f's_load_dword s{S_SEEN}, s[{S_WSP}:{S_WSP+1}], s{S_FKV} glc')
            spin_guard(ld)
            a('s_waitcnt lgkmcnt(0)')
            a(f's_cmp_gt_u32 s{S_SEEN}, {target}')
            a(f's_cbranch_scc1 {ld}')
            a('s_sleep 2')
            a(f's_branch {lp}')
        tails.append(tl)
    tails = []
    for par in range(2):
        for sl in range(2):
            a(f's_add_u32 s{S_T0}, s{S_HB}, {par*8192 + sl*SLOT}')
            a(f'buffer_store_dwordx4 {vr(V_ZZ,4)}, v{V_OCL}, {WS}, s{S_T0} offen sc1')
    a(f'buffer_store_dwordx4 {vr(V_FF,4)}, v{V_SCCL}, {WS}, s{S_SC} offen sc1')
    a(f'v_add_u32 v{V_SCCL}, {128*2048}, v{V_SCCL}')
    a(f'buffer_store_dwordx4 {vr(V_FF,4)}, v{V_SCCL}, {WS}, s{S_SC} offen sc1')
    a(f'v_add_u32 v{V_SCCL}, {128*2048}, v{V_SCCL}')
    a(f'buffer_store_dwordx4 {vr(V_FF,4)}, v{V_SCCL}, {WS}, s{S_SC} offen sc1')
    a(f'buffer_store_dword v{V_ZZ}, v{V_FRA}, {WS}, 0 offen sc1')
    l3 = a.newlabel('rec_i3')
    a(f's_cmp_lg_u32 s{S_W}, 3')
    a(f's_cbranch_scc1 {l3}')
    for par in range(2):
        a(f's_add_u32 s{S_T0}, s{S_HB}, {par*8192 + SLOT}')
        a(f'buffer_store_dwordx4 {vr(V_ZZ,4)}, v{V_NSA}, {WS}, s{S_T0} offen sc1')
    S(S_T1, [(S_RID, 5, None, 14), (S_RID, 0, 5, 8), (S_HB, 0, None, 0)], 10 * BLK)
    a('s_mov_b64 exec, 0xffff')
    for par in range(2):
        a(f's_add_u32 s{S_T0}, s{S_T1}, {par*8192}')
        a(f'buffer_store_dwordx4 {vr(V_ZZ,4)}, v{V_L16}, {WS}, s{S_T0} offen sc1')
    a('s_mov_b64 exec, -1')
    a.label(l3)
    a(f's_lshl_b32 s{S_T0}, s{S_W}, 9')
    L(V_T0, [(2, 2, 12), (0, 1, 11), (4, 2, 5), (1, 1, 2)], f's{S_T0}')
    for c in range(4):
        if c % 2 == 0:
            a(f's_lshr_b32 s{S_T0}, s{S_XQ}, 12') if STG & 2 else a(f's_mov_b32 s{S_T0}, 0')
            a(f's_xor_b32 s{S_T0}, s{S_T0}, {c*128}')
        for p in range(4):
            a(f'buffer_load_dword v{V_MA+4*c+p}, v{V_T0}, s[{S_M0}:{S_M0+3}], s{S_T0} offen offset:{(c&1)*128+p*8}')
    ops[0] += 24
    for p in range(FB, NSL):
        issue(p); issued += 1
    pmark(5, 2)
    for p in range(NW, len(pairs)):
        if p == 1: pmark(6, 2)
        a(f's_waitcnt vmcnt({min(63, ops[0] - pos[p])})')
        if FS and p == ARP:
            srd(a, S_M0, S_DBG, 256)
            a(f's_add_u32 s{S_PAR}, s{S_PAR}, s{S_BAD}')
            a(f's_mov_b32 s{S_T0}, {OOB}')
            a(f's_cmp_eq_u32 s{S_W}, 0')
            a(f's_cselect_b32 s{S_T0}, {4*D_RDY}, s{S_T0}')
            a(f's_cselect_b32 s{S_T1}, 0, s{S_PAR}')
            a(f's_cmp_eq_u32 s{S_W}, 3')
            a(f's_cselect_b32 s{S_T0}, {4*D_INIT}, s{S_T0}')
            a(f'v_mov_b32 v{V_T2}, s{S_T0}')
            a(f'v_mov_b32 v{V_T0}, 1')
            a(f'v_mov_b32 v{V_T1}, s{S_T1}')
            a('s_mov_b64 exec, 1')
            a(f'buffer_atomic_add_x2 v[{V_T0}:{V_T1}], v{V_T2}, s[{S_M0}:{S_M0+3}], 0 offen sc1')
            a('s_mov_b64 exec, -1')
            ops[0] += 1
        if FS and p == POLP:
            a(f'global_load_dwordx2 {vr(V_X+2,2)}, v{V_ZZ}, s[{S_DBG}:{S_DBG+1}] offset:{4*D_INIT} sc1')
            ops[0] += 1
        if p in (0, 8, 28): pmark({0: 2, 8: 5, 28: 6}[p], 1)
        if p == TLBW and TLBW:
            a(f'v_lshlrev_b32 v{V_T0}, 21, v{V_L}')
            a(f'v_add_u32 v{V_T1}, {KM - 17*2*MB + 1920}, v{V_T0}')
            a(f'v_add_u32 v{V_T0}, {PA + PA_M + 1920}, v{V_T0}')
            a(f'v_cmp_gt_u32 vcc, 17, v{V_L}')
            a(f'v_cndmask_b32 v{V_T0}, v{V_T1}, v{V_T0}, vcc')
            keep(V_T0, f'v_cmp_gt_u32 vcc, {17 + (FLG - KM) // (2*MB)}, v{V_L}')
            a(f'buffer_load_dword v{V_CK}, v{V_T0}, {WS}, 0 offen sc1')
        if p == 2 and sync:
            a(f'global_load_dword v{V_CK}, v{V_ZZ}, s[{S_DBG}:{S_DBG+1}] offset:{4*D_ROT} sc1')
            ops[0] += 1
        if p == (NSL + 1 if sync else FB):
            lar = a.newlabel('rec_arr')
            if sync: validate(a, V_CK, V_T0, S_DBG, S_SPIN, S_T0)
            a('s_barrier')
            pmark(1)
            arr0 = len(a.lines)
            a(f's_cmp_lg_u32 s{S_W}, 3')
            a(f's_cbranch_scc1 {lar}')
            a(f'v_mov_b32 v{V_T0}, 0')
            if sync: a(f's_add_u32 s{S_PAR}, s{S_PAR}, s{S_BAD}')
            a(f'v_mov_b32 v{V_T1}, s{S_PAR}')
            a('s_mov_b64 exec, 1')
            a(f'global_atomic_add v{V_T0}, v{V_T1}, s[{S_DBG}:{S_DBG+1}] offset:{4*D_INIT} sc1')
            a('s_mov_b64 exec, -1')
            if FS: del a.lines[arr0:]
            a.label(lar)
        if p == RDYP and sync and not FS:
            lar = a.newlabel('rec_rdy')
            a(f's_cmp_lg_u32 s{S_W}, 0')
            a(f's_cbranch_scc1 {lar}')
            a(f'v_mov_b32 v{V_T0}, 0')
            a(f'v_mov_b32 v{V_T1}, 1')
            a('s_mov_b64 exec, 1')
            a(f'global_atomic_add v{V_T0}, v{V_T1}, s[{S_DBG}:{S_DBG+1}] offset:{4*D_RDY} sc1')
            a('s_mov_b64 exec, -1')
            a.label(lar)
        for dst, va, off in pairs[p][1]:
            a(f'ds_read_b64_tr_b16 {dst}, v{va} offset:{(p % NSL) * 2048 + off}')
        if p >= NW + 1 and issued < len(pairs):
            a('s_waitcnt lgkmcnt(4)')
            issue(issued); issued += 1
    a('s_waitcnt lgkmcnt(0)')

    pmark(3)
    V_CO = [V_COFF2, 184, 185, 186, 187, V_SCCL, V_OCL, V_COFF]
    V_AOFF2 = V_FF
    if STG & 1:
        for c in range(8):
            a(f's_lshr_b32 s{S_T0}, s{S_XO}, 8')
            a(f's_xor_b32 s{S_T0}, s{S_T0}, {c*1024}')
            a(f'v_add_u32 v{V_CO[c]}, s{S_T0}, v{V_COFF}')
    if STG & 2:
        a(f's_lshr_b32 s{S_T0}, s{S_XQ}, 9')
        a(f's_xor_b32 s{S_T1}, s{S_T0}, 2048')
        a(f'v_add_u32 v{V_AOFF2}, s{S_T1}, v{V_AOFF}')
        a(f'v_add_u32 v{V_AOFF}, s{S_T0}, v{V_AOFF}')
    for j in range(16): a(f'v_max_u32 v{V_MA+j}, 1, v{V_MA+j}')
    for j in range(24): a(f'v_mov_b32 v{V_D+j}, 0')
    for j in range(16): a(f's_mov_b32 s{P+j}, 0')
    lb = a.newlabel('rec_ib'); lbp = a.newlabel('rec_ibp'); lbq = a.newlabel('rec_ibq')
    a(f'v_mov_b32 v{V_T0}, 0')
    a(f's_branch {lbq}')
    a.label(lbp)
    a('s_sleep 16')
    if not FS: a.label(lbq)
    a(f'global_load_dwordx2 {vr(V_X+2,2)}, v{V_ZZ}, s[{S_DBG}:{S_DBG+1}] offset:{4*D_INIT} sc1')
    spin_guard(lb)
    if FS: a.label(lbq)
    a('s_waitcnt vmcnt(0)')
    a(f'v_readfirstlane_b32 s{S_T1}, v{V_X+2}')
    a(f'v_readfirstlane_b32 s{S_T0}, v{V_X+3}')
    a(f's_cmp_lt_u32 s{S_T1}, {(NARR if GV else NWG) if sync else 128}')
    a(f's_cbranch_scc1 {lbp}')
    a.label(lb)
    if FS:
        a(f's_mov_b32 s{S_SEEN}, 1')
        a(f's_add_u32 m0, s{S_KXB}, s{S_PFL}')
        a(f'buffer_load_dwordx4 v{V_PFG}, {WS}, s{S_KV} offen sc1 lds')
    a(f's_lshr_b32 s{S_FAST}, s{S_T0}, {BAD_SH}')
    a(f's_and_b32 s{S_T0}, s{S_T0}, 0xffff')
    a(f's_cmp_ge_u32 s{S_T0}, {64 if NEAR else 999}')
    a(f's_cselect_b32 s{S_PAR}, -1, 0')
    a(f's_xor_b32 s{S_PAR}, s{S_PAR}, 0xaaa')
    pmark(4)
    S(S_SL0, [(S_PAR, 0, 1, 13), (S_HB, 0, None, 0)])
    a(f's_add_u32 s{S_SL1}, s{S_SL0}, {SLOT}')
    a(f's_add_u32 s{S_SL2}, s{S_SL0}, {2*SLOT}')
    S(S_T0, [(S_RID, 5, None, 4), (S_I, 0, None, 14), (S_SL0, 0, None, 0)], 10 * BLK)
    L(V_TKST, [(0, 5, 8)], f's{S_T0}')
    a(f's_and_b32 s{S_T1}, s{S_H}, { {4: 7, 2: 23, 1: 31}[KC] }')
    a(f's_cmp_eq_u32 s{S_T1}, {CJ}')
    a('s_mov_b32 vcc_hi, 0')
    keep(V_TKST, 's_cselect_b32 vcc_lo, -1, 0')
    a(f'v_add_u32 v{V_TKSA}, 128, v{V_TKST}')
    a(f's_and_b32 s{S_T1}, s{S_H}, { {4: 7, 2: 23, 1: 31}[KA] }')
    a(f's_cmp_eq_u32 s{S_T1}, {CJ}')
    a(f's_cselect_b32 s{S_T1}, s{S_W}, 99')
    a(f's_cmp_eq_u32 s{S_T1}, {TW}')
    keep(V_TKSA, 's_cselect_b64 vcc, -1, 0')
    S(S_MBO, [(S_RID, 5, None, 14), (S_RID, 0, 5, 8), (S_SL0, 0, None, 0)], 10 * BLK)
    a(f's_add_u32 s{S_MHI}, s{S_MBO}, 128')
    lq = a.newlabel('rec_gs'); lq1 = a.newlabel('rec_gs1'); lq2 = a.newlabel('rec_gs2'); lq3 = a.newlabel('rec_gs3')
    a(f'v_mov_b32 v{V_NBA}, {OOB}')
    a(f's_mov_b32 s{S_NBO}, 0'); a(f's_mov_b32 s{S_NBI}, 0')
    a(f's_mov_b32 s{S_NSO}, {KM}'); a(f's_mov_b32 s{S_NSI}, 65536')
    for j in range(4): a(f'v_mov_b32 v{V_NB+j}, 0')
    a(f's_cmp_eq_u32 s{S_W}, 1'); a(f's_cbranch_scc1 {lq1}')
    a(f's_cmp_eq_u32 s{S_W}, 2'); a(f's_cbranch_scc1 {lq2}')
    a(f's_cmp_eq_u32 s{S_W}, 3'); a(f's_cbranch_scc1 {lq3}')
    a(f'v_mov_b32 v{V_NSA}, v{V_SCST}')
    for j in range(4): a(f'v_mov_b32 v{V_NS+j}, -1')
    a(f's_mov_b32 s{S_NSO}, {SCB + 3*128*2048}'); a(f's_mov_b32 s{S_NSI}, {128*2048}')
    a(f's_branch {lq}')
    a.label(lq1)
    a(f'v_mov_b32 v{V_NBA}, v{V_SCST}')
    keep(V_NBA, 's_mov_b64 vcc, 0xffff')
    for j in range(4): a(f'v_mov_b32 v{V_NB+j}, -1')
    a(f's_mov_b32 s{S_NBO}, {SCB + 3*128*2048 + 1024}'); a(f's_mov_b32 s{S_NBI}, {128*2048}')
    a(f's_branch {lq}')
    a.label(lq2)
    a(f'v_mov_b32 v{V_NBA}, v{V_FRA}')
    a(f's_branch {lq}')
    a.label(lq3)
    S(S_T0, [(S_H, 3, None, 14), (S_H, 0, 3, 10), (S_I, 0, 1, 9), (S_I, 1, None, 7)])
    L(V_T0, [(4, 1, 16), (3, 1, 8), (0, 3, 4)], f's{S_T0}')
    a('s_mov_b32 vcc_lo, 0'); a('s_mov_b32 vcc_hi, -1')
    a(f'v_cndmask_b32 v{V_NSA}, v{V_NSA}, v{V_T0}, vcc')
    a(f's_mov_b32 s{S_NSO}, s{S_SL2}')
    a.label(lq)
    a(f's_cmp_eq_u32 s{S_W}, 2')
    a(f's_cselect_b32 s{S_MHI+1}, 1, 0')

    pmark(5)
    if not FS: a('s_barrier')
    pmark(6)
    if not PLAINB: a(f's_mov_b32 s{S_FAST}, 1')
    for j in range(16): a(f's_mov_b32 s{P+j}, 0')
    if not FS: wait_kv(0)
    pmark(7)
    if not FS:
        a(f's_add_u32 m0, s{S_KXB}, s{S_PFL}')
        a(f'buffer_load_dwordx4 v{V_PFG}, {WS}, s{S_KV} offen sc1 lds')
    a('s_waitcnt vmcnt(0)')
    a('s_barrier')
    ENTRY = a.newlabel('rec_entry')
    ts(0)
    a(f's_branch {ENTRY}')

    def gather(name, n, load, mf, nacc, noise, ilv, entry=None, pre=None, post=None):
        ok = a.newlabel(name + 'ok'); fix = a.newlabel(name + 'fix')
        def body(first):
            for c in range(n):
                load(c, V_MA + 4 * c)
                if first and ilv and c < n - 1: a(f's_nop {ilv-1}')
            if not first:
                for j in range(0, nacc, 2): a(f'v_mov_b64 {vr(V_D+j,2)}, 0')
            if first and entry: a.label(entry)
            if first and pre: pre()
            iss = 0
            for c in range(n):
                b = V_MA + 4 * c
                a(f's_waitcnt vmcnt({n-1-c+iss})')
                if first and c == 0: ts(1 if n == 4 else 7)
                ms = mf(c)
                if c == 0: seq = [f'v_min_u32 v{V_CK}, v{b}, v{b+1}', f'v_min_u32 v{V_CK2}, v{b+2}, v{b+3}']
                elif c < n - 1: seq = [f'v_min3_u32 v{V_CK}, v{V_CK}, v{b}, v{b+1}', f'v_min3_u32 v{V_CK2}, v{V_CK2}, v{b+2}, v{b+3}']
                else:
                    a(f'v_min3_u32 v{V_CK}, v{V_CK}, v{b}, v{b+1}')
                    seq = [f'v_min3_u32 v{V_CK}, v{V_CK}, v{b+2}, v{b+3}', f'v_cmp_eq_u32 vcc, 0, v{V_CK}']
                if c == n - 2: seq.append(f'v_min_u32 v{V_CK}, v{V_CK}, v{V_CK2}')
                k = 0
                for m in ms:
                    a(m)
                    if k < len(seq): a(seq[k]); k += 1
                while k < len(seq): a(seq[k]); k += 1
                if first and c < len(noise): noise[c](); iss += 1
            if first and post: post()
        body(True)
        a(f's_cbranch_vccnz {fix}')
        a.label(ok)
        def tl():
            a.label(fix)
            if prof: a(f's_add_u32 s{100 if nacc == 16 else 101}, s{100 if nacc == 16 else 101}, 1')
            spin_guard(ok)
            body(False)
            a(f's_cbranch_vccnz {fix}')
            a(f's_branch {ok}')
        tails.append(tl)

    def halves(m):
        b = V_D + 8 * m
        a(f'v_pk_add_f32 {vr(b,2)}, {vr(b,2)}, {vr(b+2,2)}')
        a(f'v_pk_add_f32 {vr(b+2,2)}, {vr(b+4,2)}, {vr(b+6,2)}')
    S_MB2 = S_MHI
    def tpoll(off):
        T = S_PTR
        K = KA if off else KC
        so = S_MB2 if off else S_MBO
        if K == 2: a(f's_load_dwordx8 s[{T}:{T+7}], s[{S_WSP}:{S_WSP+1}], s{so} glc')
        elif K == 4: a(f's_load_dwordx16 s[{T}:{T+15}], s[{S_WSP}:{S_WSP+1}], s{so} glc')
        else: a(f's_load_dword s{T}, s[{S_WSP}:{S_WSP+1}], s{so} glc')
    def tickwait(off, extra):
        lp = a.newlabel('rec_tk'); ld = a.newlabel('rec_tkd'); lc = a.newlabel('rec_tkc')
        T = S_PTR
        K = KA if off else KC
        a(f's_branch {lc}')
        a.label(lp)
        tpoll(off)
        spin_guard(ld)
        a(f's_sleep {TPOS}' if TPOS else 's_nop 7')
        a.label(lc)
        if K == 4:
            a(f's_min_u32 s{S_T0}, s{T}, s{T+4}')
            a(f's_min_u32 s{S_T1}, s{T+8}, s{T+12}')
            a(f's_min_u32 s{S_T0}, s{S_T0}, s{S_T1}')
        elif K == 2: a(f's_min_u32 s{S_T0}, s{T}, s{T+4}')
        else: a(f's_mov_b32 s{S_T0}, s{T}')
        a(f's_cmp_lt_u32 s{S_T0}, s{S_TAG}')
        a(f's_cbranch_scc1 {lp}')
        a.label(ld)
        a(f's_add_u32 s{S_TAG}, s{S_TAG}, 1')
        if extra: a(f's_sleep {extra}')
    def vmfl():
        r = []
        for c in range(4):
            for t in (4, 5):
                f, b = wq_reg(c, t)
                r.append(f'v_smfmac_f32_16x16x64_bf16 {vr(V_D+4*t,4)}, {vr(V_MA+4*c,4)}, {f}[{b}:{b+7}], v{V_IDX}')
        return r
    def vmf():
        for m in vmfl(): a(m)
    def red4(n):
        for j in range(0, n, 2): a(f'v_pk_add_f32 {vr(V_R+j,2)}, {vr(V_R+j,2)}, {vr(V_R+n+j,2)}')
        for j in range(0, n, 2): a(f'v_pk_add_f32 {vr(V_R+2*n+j,2)}, {vr(V_R+2*n+j,2)}, {vr(V_R+3*n+j,2)}')
        for j in range(0, n, 2): a(f'v_pk_add_f32 {vr(V_R+j,2)}, {vr(V_R+j,2)}, {vr(V_R+2*n+j,2)}')

    LOOP = a.newlabel('rec_loop'); DONE = a.newlabel('rec_done')
    a.label(LOOP)
    a('s_barrier')
    stamp(11)
    ts(0)
    def loadA(c, r):
        if STG & 2: a(f'buffer_load_dwordx4 {vr(r,4)}, v{V_AOFF if c < 2 else V_AOFF2}, {WS}, s{S_SL0} offen offset:{(c&1)*1024} sc1')
        else: a(f'buffer_load_dwordx4 {vr(r,4)}, v{V_AOFF}, {WS}, s{S_SL0} offen offset:{c*1024} sc1')
    def mfA(c):
        r = []
        for t in range(4):
            f, b = wq_reg(c, t)
            r.append(f'v_smfmac_f32_16x16x64_bf16 {vr(V_D+4*t,4)}, {vr(V_MA+4*c,4)}, {f}[{b}:{b+7}], v{V_IDX}')
        return r
    def noiseA():
        a(f'buffer_store_dwordx4 {vr(V_FF,4)}, v{V_SCCL}, {WS}, s{S_SC} offen sc1')
    def preA():
        harvest()
        a(f'v_add_u32 v{V_T0}, s{S_KXB}, v{V_L16}')
        for t in range(2): a(f'ds_read_b128 {vr(V_KX+4*t,4)}, v{V_T0} offset:{t*1024}')
        for t in range(2): a(f'ds_read_b128 {vr(V_VX+4*t,4)}, v{V_T0} offset:{2048+t*1024}')
    gather('rec_ga', 4, loadA, mfA, 16, [], ILA, entry=ENTRY, pre=preA)
    stamp(0)
    ts(2)
    for m in range(2):
        halves(m)
        va = V_QKW if m == 0 else V_QKW2
        a(f'ds_write2_b32 v{va}, v{V_D+8*m}, v{V_D+8*m+1} offset0:0 offset1:40')
        a(f'ds_write2_b32 v{va}, v{V_D+8*m+2}, v{V_D+8*m+3} offset0:16 offset1:56')
    LB2 = a.newlabel('rec_b2'); LW1 = a.newlabel('rec_w1')
    a(f's_cmp_lg_u32 s{S_W}, 0')
    a(f's_cbranch_scc1 {LW1}')
    a('s_waitcnt lgkmcnt(0)')
    a('s_barrier')
    ts(3)
    vm = vmfl()
    for w in range(4):
        for q in range(2):
            a(f'ds_read_b128 {vr(V_R+8*w+4*q,4)}, v{V_QKR} offset:{L_QK+w*2560+q*32}')
            a(vm.pop(0))
    a('s_waitcnt lgkmcnt(4)')
    for j in range(0, 8, 2): a(f'v_pk_add_f32 {vr(V_R+j,2)}, {vr(V_R+j,2)}, {vr(V_R+8+j,2)}')
    a('s_waitcnt lgkmcnt(2)')
    for j in range(0, 8, 2): a(f'v_pk_add_f32 {vr(V_R+j,2)}, {vr(V_R+j,2)}, {vr(V_R+16+j,2)}')
    a('s_waitcnt lgkmcnt(0)')
    for j in range(0, 8, 2): a(f'v_pk_add_f32 {vr(V_R+j,2)}, {vr(V_R+j,2)}, {vr(V_R+24+j,2)}')
    for j in range(4): a(f'v_cvt_pk_bf16_f32 v{V_X+j}, v{V_R+2*j}, v{V_R+2*j+1}')
    a(f'v_mfma_f32_16x16x32_bf16 {vr(V_S,4)}, {vr(V_KX,4)}, {vr(V_X,4)}, 0')
    a(f'v_mfma_f32_16x16x32_bf16 {vr(V_S+4,4)}, {vr(V_KX+4,4)}, {vr(V_X,4)}, 0')
    a(f'v_mfma_f32_16x16x32_bf16 {vr(V_S+8,4)}, {vr(V_X,4)}, {vr(V_X,4)}, 0')
    a(f's_cmp_lg_u32 s{S_FAST}, 0')
    halves(2)
    def scst(f):
        a(f's_mov_b64 exec, s[{S_MLO8}:{S_MLO8+1}]')
        a(f'buffer_store_dwordx4 {vr(V_S,4)}, v{V_SCST}, {WS}, s{S_SC} offen{f}')
        a(f'buffer_store_dwordx4 {vr(V_S+4,4)}, v{V_SCST}, {WS}, s{S_SC} offen offset:128{f}')
        a(f's_mov_b64 exec, s[{S_MHI8}:{S_MHI8+1}]')
        a(f'buffer_store_dwordx4 {vr(V_S+8,4)}, v{V_SCST2}, {WS}, s{S_SC} offen offset:1024{f}')
        a('s_mov_b64 exec, -1')
    lsl = a.newlabel('rec_slow'); lsr = a.newlabel('rec_slowr')
    a(f's_cbranch_scc1 {lsl}')
    scst('')
    a.label(lsr)
    tails.append(lambda: (a.label(lsl), scst(' sc1'), a(f's_branch {lsr}')))
    a(f'ds_write_b128 v{V_VW}, {vr(V_D+16,4)}')
    a(f'ds_write_b128 v{V_L16}, {vr(V_X,4)} offset:{L_X}')
    stamp(2)
    ts(4)
    LBR = a.newlabel('rec_gbr'); LBO = a.newlabel('rec_gbo'); LBW = a.newlabel('rec_gbw')
    V_Q = V_R + 20
    SETS = [V_LD, V_MA]
    def loadB(LD):
        a(f'buffer_load_dwordx4 {vr(LD+12,4)}, v{V_SCLM}, {WS}, s{S_SC} offen offset:1024 sc1')
        for k in range(3):
            a(f'buffer_load_dwordx4 {vr(LD+4*k,4)}, v{V_SCL[k]}, {WS}, s{S_SC} offen sc1')
    def sumB(LD, base):
        LM = LD + 12
        a(f's_waitcnt vmcnt({base+3})')
        a(f'v_permlane32_swap_b32 v{LM}, v{LM+2}')
        a(f'v_permlane32_swap_b32 v{LM+1}, v{LM+3}')
        a(f'v_pk_add_f32 {vr(V_Q+4,2)}, {vr(LM,2)}, {vr(LM+2,2)}')
        a(f's_waitcnt vmcnt({base+2})')
        for j in range(0, 4, 2): a(f'v_pk_add_f32 {vr(V_Q+j,2)}, {vr(V_S+j,2)}, {vr(LD+j,2)}')
        a(f'v_permlane16_swap_b32 v{V_Q+4}, v{V_Q+5}')
        a(f's_waitcnt vmcnt({base+1})')
        for j in range(0, 4, 2): a(f'v_pk_add_f32 {vr(V_Q+j,2)}, {vr(V_Q+j,2)}, {vr(LD+4+j,2)}')
        a(f'v_add_f32 v{V_Q+4}, v{V_Q+4}, v{V_Q+5}')
        a(f's_waitcnt vmcnt({base})')
        for j in range(0, 4, 2): a(f'v_pk_add_f32 {vr(V_Q+j,2)}, {vr(V_Q+j,2)}, {vr(LD+8+j,2)}')
        a(f'v_maximum3_f32 v{V_M}, v{V_Q}, v{V_Q+1}, v{V_Q+4}')
        a(f'v_maximum3_f32 v{V_M}, v{V_M}, v{V_Q+2}, v{V_Q+3}')
        a(f'v_cmp_u_f32 vcc, v{V_M}, v{V_M}')
        a(f'v_max_f32_dpp v{V_M}, v{V_M}, v{V_M} row_ror:8 row_mask:0xf bank_mask:0xf')
        a(f'v_mov_b32 v{V_M2}, v{V_M}')
    if DB == 0: loadB(SETS[0])
    a('s_waitcnt lgkmcnt(0)')
    a('s_barrier')
    if DB == 1: loadB(SETS[0])
    for w in range(4):
        for t in range(2):
            a(f'ds_read_b64 {vr(V_R+4*w+2*t,2)}, v{V_VR} offset:{w*1024+t*128}')
    for j in range(4): a(f'v_mov_b32_dpp v{V_S+j}, v{V_S+4+j} row_ror:8 row_mask:0xf bank_mask:0xc')
    if DB == 0: loadB(SETS[1])
    if DB == 2: loadB(SETS[0])
    a('s_waitcnt lgkmcnt(0)')
    red4(4)
    if DB == 1: loadB(SETS[1])
    for t in range(2): a(f'v_cvt_pk_bf16_f32 v{V_VM+2*t}, v{V_R+2*t}, v{V_R+2*t+1}')
    if DB == 2: a('s_nop 15'); loadB(SETS[1])
    a(f's_cmp_eq_u32 s{S_STEP}, {nsteps-1}')
    a(f's_cbranch_scc1 {LB2}')
    sumB(SETS[0], 4)
    a(f's_cbranch_vccnz {LBR}')
    a.label(LBO)
    def tlB():
        a.label(LBR)
        for k in range(2):
            LD = SETS[k]
            a(f'v_max3_u32 v{V_CK}, v{LD}, v{LD+1}, v{LD+2}')
            for j in range(3, 15, 2): a(f'v_max3_u32 v{V_CK}, v{V_CK}, v{LD+j}, v{LD+j+1}')
            a(f'v_max_u32 v{V_CK}, v{V_CK}, v{LD+15}')
            loadB(LD)
            a(f'v_cmp_eq_u32 vcc, -1, v{V_CK}')
            spin_guard(LBO)
            a(f's_cbranch_vccz {LBO}')
            sumB(SETS[k ^ 1], 4)
            a(f's_cbranch_vccz {LBO}')
        a(f's_branch {LBR}')
    tails.append(tlB)
    a(f'buffer_store_dword v{V_TG}, v{V_TKST}, {WS}, 0 offen sc1')
    stamp('b')
    ts(5)
    a(f'v_permlane16_swap_b32 v{V_M}, v{V_M2}')
    a(f'v_max_f32 v{V_M}, v{V_M}, v{V_M2}')
    a(f'v_mov_b32 v{V_M2}, v{V_M}')
    a(f'v_permlane32_swap_b32 v{V_M}, v{V_M2}')
    a(f'v_max_f32 v{V_M}, v{V_M}, v{V_M2}')
    a(f'v_mul_f32 v{V_M}, s{S_C}, v{V_M}')
    for j in (4, 0, 1, 2, 3): a(f'v_fma_f32 v{V_Q+j}, v{V_Q+j}, s{S_C}, -v{V_M}')
    for j in (4, 0, 1, 2, 3): a(f'v_exp_f32 v{V_Q+j}, v{V_Q+j}')
    a(f'v_mov_b32_dpp v{V_Q+5}, v{V_Q+4} row_ror:8 row_mask:0xf bank_mask:0xf')
    for j in range(2): a(f'v_cvt_pk_bf16_f32 v{V_P+j}, v{V_Q+2*j}, v{V_Q+2*j+1}')
    a(f'v_cvt_pk_bf16_f32 v{V_P+4}, v{V_Q+4}, v{V_Q+5}')
    for j in range(2): a(f'v_mov_b32_dpp v{V_P+2+j}, v{V_P+j} row_ror:8 row_mask:0xf bank_mask:0xf')
    V_O = V_R + 8
    a(f'v_mfma_f32_16x16x32_bf16 {vr(V_O+8,4)}, {vr(V_ONE,4)}, {vr(V_P+4,4)}, 0')
    a(f'v_mfma_f32_16x16x32_bf16 {vr(V_O+8,4)}, {vr(V_ONE,4)}, {vr(V_P,4)}, {vr(V_O+8,4)}')
    for t in range(2):
        a(f'v_mfma_f32_16x16x32_bf16 {vr(V_O+4*t,4)}, {vr(V_VX+4*t,4)}, {vr(V_P,4)}, 0')
        a(f'v_mfma_f32_16x16x32_bf16 {vr(V_O+4*t,4)}, {vr(V_VM+2*t,4)}, {vr(V_P+4,4)}, {vr(V_O+4*t,4)}')
    V_RC = V_R
    a(f'v_rcp_f32 v{V_RC}, v{V_O+8}')
    a(f'v_mov_b32 v{V_RC+1}, v{V_RC}')
    for j in range(0, 8, 2): a(f'v_pk_mul_f32 {vr(V_O+j,2)}, {vr(V_O+j,2)}, {vr(V_RC,2)}')
    for j in range(4): a(f'v_cvt_pk_bf16_f32 v{V_O+j}, v{V_O+2*j}, v{V_O+2*j+1}')
    for j in range(4): a(f'v_max_u32 v{V_O+j}, 1, v{V_O+j}')
    a(f's_mov_b64 exec, s[{S_MLO8}:{S_MLO8+1}]')
    a(f'buffer_store_dwordx4 {vr(V_O,4)}, v{V_OST}, {WS}, s{S_SL0} offen sc1')
    a('s_mov_b64 exec, -1')
    stamp(5)
    ts('o')
    for j in range(0, 24, 2): a(f'v_mov_b64 {vr(V_D+j,2)}, 0')
    LCS = a.newlabel('rec_cs')
    a.label(LCS)
    a('s_barrier')
    def w123():
        a.label(LW1)
        a('s_waitcnt lgkmcnt(0)')
        a('s_barrier')
        vmf()
        halves(2)
        a(f'ds_write_b128 v{V_VW}, {vr(V_D+16,4)}')
        a('s_waitcnt lgkmcnt(0)')
        a('s_barrier')
        if ZD: a(f's_sleep {ZD}')
        for j in range(0, 24, 2): a(f'v_mov_b64 {vr(V_D+j,2)}, 0')
        LW2 = a.newlabel('rec_w2'); LW3 = a.newlabel('rec_w3')
        a(f's_cmp_eq_u32 s{S_W}, 3')
        a(f's_cbranch_scc1 {LW3}')
        a(f's_cmp_eq_u32 s{S_W}, 2')
        a(f's_cbranch_scc1 {LW2}')
        a(f'ds_read_b128 {vr(V_NS,4)}, v{V_L16} offset:{L_X}')
        a(f's_branch {LB2}')
        a.label(LW2)
        for w in range(4): a(f'ds_read_b128 {vr(V_R+4*w,4)}, v{V_L16} offset:{L_V+w*1024}')
        a('s_waitcnt lgkmcnt(0)')
        red4(4)
        for j in range(2): a(f'v_cvt_pk_bf16_f32 v{V_NS+j}, v{V_R+2*j}, v{V_R+2*j+1}')
        for j in range(2): a(f'v_permlane32_swap_b32 v{V_NS+j}, v{V_NS+2+j}')
        for j in (0, 2): a(f'v_permlane16_swap_b32 v{V_NS+j}, v{V_NS+j+1}')
        a.label(LB2)
        a('s_waitcnt lgkmcnt(0)')
        a(f's_cmp_eq_u32 s{S_STEP}, {nsteps-1}')
        a(f's_cbranch_scc1 {DONE}')
        a(f's_branch {LCS}')
        a.label(LW3)
        a(f's_cmp_eq_u32 s{S_STEP}, {nsteps-1}')
        a(f's_cbranch_scc1 {DONE}')
        tickwait(0, DC)
        a(f's_branch {LCS}')
    tails.append(w123)
    stamp(7)
    ts(6)
    def loadC(c, r):
        if STG & 1: a(f'buffer_load_dwordx4 {vr(r,4)}, v{V_CO[c]}, {WS}, s{S_SL0} offen sc1'); return
        a(f'buffer_load_dwordx4 {vr(r,4)}, v{V_COFF if c < 4 else V_COFF2}, {WS}, s{S_SL0} offen offset:{(c&3)*1024} sc1')
    def mfC(c):
        r = []
        for sel in range(2):
            f, b = wo_reg(2 * c + sel)
            r.append(f'v_smfmac_f32_16x16x64_bf16 {vr(V_D+4*sel,4)}, {vr(V_MA+4*c,4)}, {f}[{b}:{b+7}], v{V_IDX}')
        return r
    def nC3():
        a(f's_add_u32 s{S_T0}, s{S_STEP}, 1')
        wait_kv(f's{S_T0}')
        a(f's_xor_b32 s{S_KXB}, s{S_KXB}, 4096')
        a(f's_add_u32 m0, s{S_KXB}, s{S_PFL}')
        if XP != 1: a(f's_add_u32 s{S_KV}, s{S_KV}, {256*1024}')
        a(f'buffer_load_dwordx4 v{V_PFG}, {WS}, s{S_KV} offen sc1 lds')
    noiseC = [nC3, lambda: a(f'buffer_load_dword v{V_T1}, v{V_PTG}, {WS}, s{S_SC} offen sc1')]
    st4 = [f'buffer_store_dwordx4 {vr(V_NS,4)}, v{V_NSA}, {WS}, s{S_NSO} offen sc1',
           f'buffer_store_dwordx4 {vr(V_NB,4)}, v{V_NBA}, {WS}, s{S_NBO} offen sc1']
    if NSP == 1: noiseC += [(lambda x=x: a(x)) for x in st4]
    def late_stores(pl=False, n=2):
        if not NSP:
            a('s_barrier')
            for k, x in enumerate(st4[:n]):
                if pl: tpoll(128)
                a(x)
        a(f's_add_u32 s{S_NBO}, s{S_NBO}, s{S_NBI}')
        if n == 2: a(f'v_add_u32 v{V_FRV}, s{S_MHI+1}, v{V_FRV}')
        if sync and ASY:
            lr = a.newlabel('rec_rf')
            a(f's_add_u32 s{S_T0}, s{S_STEP}, 3')
            a(f's_min_u32 s{S_T0}, s{S_T0}, {NSEG-1}')
            a(f's_cmp_gt_u32 s{S_SEEN}, s{S_T0}')
            a(f's_cbranch_scc1 {lr}')
            a(f's_load_dword s{S_SEEN}, s[{S_WSP}:{S_WSP+1}], s{S_FKV} glc')
            a.label(lr)
        a(f's_add_u32 s{S_NSO}, s{S_NSO}, s{S_NSI}')
        a(f's_cmp_eq_u32 s{S_W}, 3')
        a(f's_cselect_b32 s{S_NSO}, s{S_SL2}, s{S_NSO}')
    TKA = f'buffer_store_dword v{V_TG}, v{V_TKSA}, {WS}, 0 offen sc1'
    def postC():
        a(f's_add_u32 s{S_STEP}, s{S_STEP}, 1')
        a(f's_add_u32 s{S_T0}, s{S_STEP}, 2')
        a(f's_lshr_b32 s{S_T1}, s{S_T0}, 3')
        a(f's_lshr_b32 s{S_T1}, s{S_PAR}, s{S_T1}')
    gather('rec_gc', 8, loadC, mfC, 8, noiseC, ILC, post=postC)
    if NSP == 2:
        for x in st4: a(x)
    if TA == 9: a(TKA)
    ts(8)
    a(f's_mov_b32 s{S_SL0}, s{S_SL1}')
    a(f's_mov_b32 s{S_SL1}, s{S_SL2}')
    stamp_c = True
    if prof == 1:
        a(f's_sub_u32 s{S_STEP}, s{S_STEP}, 1'); stamp(8); a(f's_add_u32 s{S_STEP}, s{S_STEP}, 1')
    a(f'v_pk_add_f32 {vr(V_D,2)}, {vr(V_D,2)}, {vr(V_D+2,2)}')
    for r1 in range(2): a(f'v_add_f32_dpp v{V_D+r1}, v{V_D+4+r1}, v{V_D+6+r1} quad_perm:[0,1,2,3] row_mask:0xc bank_mask:0xf')
    a(f'v_permlane32_swap_b32 v{V_D}, v{V_D+1}')
    a(f'v_add_f32 v{V_D}, v{V_D}, v{V_D+1}')
    a(f'ds_write_b32 v{V_OPW}, v{V_D}')
    S(S_SL2, [(S_T1, 0, 1, 13), (S_T0, 0, None, 18), (S_HB, 0, None, 0)])
    a(f's_add_u32 s{S_SC}, s{S_SC}, {128*2048}')
    LB4 = a.newlabel('rec_b4')
    a(f's_cmp_lg_u32 s{S_W}, 0')
    a(f's_cbranch_scc1 {LB4}')
    a('s_waitcnt lgkmcnt(0)')
    a('s_barrier')
    for w in range(4): a(f'ds_read_b64 {vr(V_R+2*w,2)}, v{V_OPR} offset:{w*256}')
    a(f'v_add_u32 v{V_TG}, 2, v{V_TG}')
    a('s_waitcnt lgkmcnt(0)')
    red4(2)
    a(f'v_cvt_pk_bf16_f32 v{V_R}, v{V_R}, v{V_R+1}')
    a(f'v_max_u32 v{V_R}, 1, v{V_R}')
    for j in range(1, 4): a(f'v_mov_b32_dpp v{V_R+j}, v{V_R} quad_perm:[{j},{j},{j},{j}] row_mask:0xf bank_mask:0xf')
    a('s_mov_b64 exec, 0x11111111')
    a(f'buffer_store_dwordx4 {vr(V_R,4)}, v{V_MEMST}, {WS}, s{S_SL0} offen sc1')
    a('s_mov_b64 exec, -1')
    stamp(10)
    ts(9)
    late_stores(False, 1)
    for j in range(0, 8, 2): a(f'v_mov_b64 {vr(V_D+j,2)}, 0')
    a('s_waitcnt vmcnt(2)')
    a(f's_branch {LOOP}')
    a.label(LB4)
    a('s_waitcnt lgkmcnt(0)')
    a('s_barrier')
    if not TA: a(TKA)
    L3B = a.newlabel('rec_w3b')
    a(f's_cmp_eq_u32 s{S_W}, 3')
    a(f's_cbranch_scc1 {L3B}')
    a(f'v_add_u32 v{V_TG}, 2, v{V_TG}')
    for j in range(0, 8, 2): a(f'v_mov_b64 {vr(V_D+j,2)}, 0')
    late_stores()
    a('s_waitcnt vmcnt(2)')
    a(f's_branch {LOOP}')
    a.label(L3B)
    a(f'v_add_u32 v{V_TG}, 2, v{V_TG}')
    for j in range(0, 8, 2): a(f'v_mov_b64 {vr(V_D+j,2)}, 0')
    tpoll(128)
    late_stores(True, 1)
    tpoll(128)
    a('s_waitcnt vmcnt(2)')
    tickwait(128, DA)
    a(f's_branch {LOOP}')
    for t in tails: t()
    a.label(DONE)
    if prof >= 3:
        a(f'v_writelane_b32 v{V_TR}, s100, 10'); a(f'v_writelane_b32 v{V_TR}, s101, 11'); a(f'v_writelane_b32 v{V_TR}, s{S_SPIN}, 12')
    if prof >= 4: pmark(0)
    a(f'buffer_store_dwordx4 {vr(V_NS,4)}, v{V_NSA}, {WS}, s{S_NSO} offen sc1')
    a('s_waitcnt vmcnt(0)')
    a('s_barrier')
    a(f'v_add_u32 v{V_FRV}, 1, v{V_FRV}')
    a(f'buffer_store_dword v{V_FRV}, v{V_FRA}, {WS}, 0 offen sc1')
    if prof and prof != 5:
        S(S_T0, [(S_RID, 0, None, 13), (S_W, 0, None, 11)], TRACE)
        a(f'v_lshlrev_b32 v{V_T0}, 2, v{V_L}')
        for e in range(8):
            a(f'buffer_store_dword v{V_TR+e}, v{V_T0}, {WS}, s{S_T0} offen offset:{e*256}')
```

```python
from asmlib import *
from layout import *
from rec import srd, lane, sexpr
import math, struct

G_WS = 4
G_W = 8
G_X = 12
G_W2 = 16
G_OUT = 20
G_ID, G_WV, G_SEG = 28, 29, 30
G_T0, G_T1, G_T2 = 31, 32, 33
G_LW = 34
G_XO = 35
G_PO = 36
G_PS = 37
G_WSO, G_WST = 38, 39
G_SPIN = 41
G_C = 42
G_SEEN = 43
G_J, G_R = 44, 45
G_KMO, G_OAO, G_OBO, G_OUO = 46, 47, 48, 49
G_FO = 50
G_END, G_XMAX = 51, 52
G_SA, G_SB, G_FA, G_FB, G_FR, G_C2 = 53, 54, 55, 56, 57, 58
G_PTR = 72
G_WSP = 90
G_DBG = 92
WS = f's[{G_WS}:{G_WS+3}]'
V_L, V_T0, V_T1, V_T2, V_L16 = 1, 2, 3, 4, 5
V_VAL = 31

def f32(x): return '0x%08x' % struct.unpack('<I', struct.pack('<f', x))[0]

class Gem:
    LATE = 96; TWO = 1; QTH = 96; TSL = 0; GV = 0; FS = 0; TSW = 0; OM = 0; XT = 1; BTH = 96; BSL = 0; OSL = 0; QL = 0; TC = 0
    def __init__(self, a, sync=True, prof=False):
        self.a = a; self.sync = sync; self.prof = prof; self.ost = ''
    def L(self, dst, terms, add=None): lane(self.a, dst, V_T2, V_L, terms, add)
    def S(self, dst, terms, const=0): sexpr(self.a, dst, G_T2, terms, const)
    def spin_guard(self, lgive):
        a = self.a
        a(f's_add_u32 s{G_SPIN}, s{G_SPIN}, 1')
        a(f's_cmp_ge_u32 s{G_SPIN}, 0x200000')
        a(f's_cbranch_scc1 {lgive}')
    def keep(self, reg, cond):
        a = self.a
        a(cond)
        a(f'v_mov_b32 v{V_T2}, {OOB}')
        a(f'v_cndmask_b32 v{reg}, v{V_T2}, v{reg}, vcc')

    def mark(self, k):
        if not self.prof: return
        a = self.a
        a(f's_memrealtime s[{G_PTR+14}:{G_PTR+15}]')
        a('s_waitcnt lgkmcnt(0)')
        a(f's_mov_b32 s{94+k}, s{G_PTR+14}')
        if False:
            a(f's_memtime s[{G_PTR+14}:{G_PTR+15}]')
            a('s_waitcnt lgkmcnt(0)')
            a(f's_mov_b32 s{98+k}, s{G_PTR+14}')
    def acc(self, k):
        if self.prof != 2: return
        a = self.a
        a(f's_memtime s[{G_PTR+14}:{G_PTR+15}]')
        a('s_waitcnt lgkmcnt(0)')
        if k is not None:
            a(f's_sub_u32 s{G_PTR+15}, s{G_PTR+14}, s60')
            a(f's_add_u32 s{61+k}, s{61+k}, s{G_PTR+15}')
        a(f's_mov_b32 s60, s{G_PTR+14}')
    def dump(self):
        if not self.prof: return
        a = self.a
        if self.prof == 5:
            a(f's_cmp_lt_u32 s{G_ID}, 96')
            a(f's_cselect_b32 s{G_T0}, 20, 44')
            a(f'v_mov_b32 v{V_T1}, s{G_T0}')
            a('s_mov_b64 exec, 1')
            for i, k in enumerate((1, 3, 6, 4, 5)):
                a(f'v_mov_b32 v{V_T0}, s{94+k}')
                a(f'global_atomic_umax v{V_T1}, v{V_T0}, s[{G_DBG}:{G_DBG+1}] offset:{4*i} sc1')
            return
        self.S(G_T0, [(G_ID, 0, None, 7), (G_WV, 0, None, 5)], TRACE + 4 * MB)
        a(f'v_mov_b32 v{V_T1}, 0')
        for k in range(8):
            a(f'v_mov_b32 v{V_T0}, s{94+k}')
            a(f'buffer_store_dword v{V_T0}, v{V_T1}, {WS}, s{G_T0} offen offset:{4*k}')
        a(f's_add_u32 s{G_T0}, s{G_T0}, {MB}')
        for k in range(8):
            a(f'v_mov_b32 v{V_T0}, s{61+k}')
            a(f'buffer_store_dword v{V_T0}, v{V_T1}, {WS}, s{G_T0} offen offset:{4*k}')

    def setup(self):
        a = self.a
        a(f's_load_dwordx2 s[{G_WSP}:{G_WSP+1}], s[0:1], {K_WS}')
        a(f's_load_dwordx2 s[{G_DBG}:{G_DBG+1}], s[0:1], {K_DBG}')
        a(f'v_and_b32 v{V_L}, 63, v0')
        a(f'v_lshrrev_b32 v{V_T0}, 6, v0')
        a(f'v_readfirstlane_b32 s{G_WV}, v{V_T0}')
        a(f'v_lshlrev_b32 v{V_L16}, 4, v{V_L}')
        a(f's_mov_b32 s{G_SPIN}, 0')
        a(f's_lshl_b32 s{G_LW}, s{G_WV}, 10')
        a('s_waitcnt lgkmcnt(0)')
        srd(a, G_WS, G_WSP, WS_BYTES)
        if self.sync and self.TSW:
            lw = a.newlabel('g_tw')
            P = G_PTR
            a(f's_cmp_lg_u32 s{G_WV}, 1')
            a(f's_cbranch_scc1 {lw}')
            a(f's_load_dwordx2 s[{P}:{P+1}], s[0:1], {K_WO}')
            self.S(G_T0, [(G_ID, 0, None, 16)])
            self.L(V_T0, [(3, 3, 13), (0, 3, 10)], f's{G_T0}')
            a('s_waitcnt lgkmcnt(0)')
            srd(a, G_OUT, P, 8 * MB)
            a(f's_sub_u32 s{G_T0}, 384, s{P}')
            a(f's_and_b32 s{G_T0}, s{G_T0}, 0x380')
            a(f'buffer_load_dword v119, v{V_T0}, s[{G_OUT}:{G_OUT+3}], s{G_T0} offen')
            a.label(lw)
        if self.sync:
            lv = a.newlabel('g_nv')
            a(f'v_mov_b32 v{V_VAL}, 0')
            a(f's_cmp_lt_u32 s{G_ID}, {self.LATE}')
            a(f's_cbranch_scc1 {lv}')
            P = G_PTR
            if self.TSL:
                a(f's_load_dwordx8 s[{P}:{P+7}], s[0:1], {K_WQ}')
                self.S(G_T0, [(G_ID, 0, 5, 18), (G_WV, 0, None, 16)])
                self.L(V_T0, [(3, 3, 13), (0, 3, 10)], f's{G_T0}')
                self.L(V_T1, [(0, 3, 13)], f's{G_T0}')
                a('s_waitcnt lgkmcnt(0)')
                SD = (G_W, G_X, G_W2, G_OUT)[:2+self.TSL]
                for m, sd in enumerate(SD):
                    srd(a, sd, P + 2 * m, 8 * MB)
                    a(f's_sub_u32 s{G_T0}, 384, s{P+2*m}')
                    a(f's_and_b32 s{G_T0}, s{G_T0}, 0x380')
                    a(f'buffer_load_dword v{120+m}, v{V_T0}, s[{sd}:{sd+3}], s{G_T0} offen')
                a('s_mov_b64 exec, 0xff')
                for m, sd in enumerate(SD):
                    a(f's_sub_u32 s{G_T0}, 8064, s{P+2*m}')
                    a(f's_and_b32 s{G_T0}, s{G_T0}, 0x1f80')
                    a(f'buffer_load_dword v{124+m}, v{V_T1}, s[{sd}:{sd+3}], s{G_T0} offen')
                a('s_mov_b64 exec, -1')
            validate(a, V_VAL, V_T0, G_DBG, G_SPIN, G_T0)
            a.label(lv)
        if self.prof:
            for k in range(8): a(f's_mov_b32 s{94+k}, 0'); a(f's_mov_b32 s{61+k}, 0')
        self.mark(0)

    def vote(self):
        a = self.a
        A0, R, M0, TA, TB, D = 60, 59, 62, 64, 66, 68
        self.S(R, [(G_ID, 0, 5, 2), (G_WV, 0, None, 0)])
        a(f's_sub_u32 s{G_T0}, 0, s{G_WSP}')
        a(f's_and_b32 s{G_T0}, s{G_T0}, {2*MB-1}')
        self.S(A0, [(R, 0, 3, 21), (R, 3, 1, 13), (R, 4, 3, 8), (G_T0, 0, None, 0)], HOFF + 15 * 16384)
        self.S(G_T1, [(R, 3, 1, 14)])
        a(f's_sub_u32 s{A0+1}, s{A0}, s{G_T1}')
        a(f's_add_u32 s{A0+1}, s{A0+1}, 8192')
        for k in range(2):
            a(f's_load_dword s{D+k}, s[{G_WSP}:{G_WSP+1}], s{A0+k} glc')
            a(f's_mov_b32 s{M0+k}, -1')
        for r in range(self.GV):
            for k in range(2):
                a('s_waitcnt lgkmcnt(0)')
                a(f's_memtime s[{TA}:{TA+1}]')
                a('s_waitcnt lgkmcnt(0)')
                a(f's_load_dword s{D}, s[{G_WSP}:{G_WSP+1}], s{A0+k} glc')
                a('s_waitcnt lgkmcnt(0)')
                a(f's_memtime s[{TB}:{TB+1}]')
                a('s_waitcnt lgkmcnt(0)')
                a(f's_sub_u32 s{G_T0}, s{TB}, s{TA}')
                a(f's_min_u32 s{M0+k}, s{M0+k}, s{G_T0}')
        a(f's_cmp_gt_u32 s{M0+1}, s{M0}')
        a(f's_cselect_b32 s{G_T0}, 1, 0')
        a(f's_lshr_b32 s{G_T1}, s{R}, 3')
        a(f's_xor_b32 s{G_T0}, s{G_T0}, s{G_T1}')
        a(f's_xor_b32 s{G_T0}, s{G_T0}, s{R}')
        self.S(G_T0, [(G_T0, 0, 1, VOTE_SH)])
        a(f's_add_u32 s{S_BAD}, s{S_BAD}, s{G_T0}')
        if self.prof:
            for k in range(8): a(f's_mov_b32 s{61+k}, 0')

    def late_arrive(self):
        a = self.a
        a('s_mov_b64 exec, -1')
        self.touch_wo()
        self.vote()
        self.mark(7)
        a(f's_waitcnt vmcnt({8 if self.TWO else 0})')
        a('s_mov_b64 exec, 1')
        self.arrive(False)

    def load_weights(self, jobs, hook=None, slow=0):
        a = self.a
        LB = G_T1
        a(f's_lshl_b32 s{LB}, s{G_WV}, 15')
        pairs = []
        for (sd, vg, n, reads, so0, sst) in jobs:
            for p in range(n): pairs.append((sd, vg, reads(p), so0 if p == 0 else None, sst))
        NSL = 16
        def issue(p):
            sd, vg, _, so0, sst = pairs[p]
            for j in range(2):
                a(f's_add_u32 m0, s{LB}, {(p % NSL) * 2048 + j * 1024}')
                if so0 is not None and j == 0: a(f's_mov_b32 s{G_WSO}, {so0}')
                else: a(f's_add_u32 s{G_WSO}, s{G_WSO}, {sst}')
                a(f'buffer_load_dwordx4 v{vg}, s[{sd}:{sd+3}], s{G_WSO} offen lds')
            if hook and self.BSL:
                l = a.newlabel('lw_s')
                a(f's_cbranch_vccz {l}')
                a(f's_sleep {self.BSL}')
                a.label(l)
            if slow: a(f's_sleep {slow}')
        if hook and self.BSL:
            a(f's_cmp_ge_u32 s{G_ID}, 96')
            a('s_cselect_b64 vcc, -1, 0')
        issued = 0
        for p in range(min(NSL, len(pairs))):
            issue(p); issued += 1
        for p in range(len(pairs)):
            a(f's_waitcnt vmcnt({2 * (issued - p - 1)})')
            if hook and p == 2:
                a(f'v_mov_b32 v{V_T0}, 0')
                a(f'global_load_dword v{V_VAL}, v{V_T0}, s[{G_DBG}:{G_DBG+1}] offset:{4*D_ROT} sc1')
            if hook and p == NSL + 1: hook(0)
            if hook and p == len(pairs) - 1: hook(1)
            for dst, va, off in pairs[p][2]:
                a(f'ds_read_b64_tr_b16 {dst}, v{va} offset:{(p % NSL) * 2048 + off}')
            if p >= 1 and issued < len(pairs):
                a(f's_waitcnt lgkmcnt({len(pairs[p][2])})')
                issue(issued); issued += 1
        a('s_waitcnt lgkmcnt(0)')

    def touch_wo(self):
        if not self.TWO: return
        a = self.a
        P = G_PTR
        lsk = a.newlabel('tw_skip')
        a(f's_cmp_lt_u32 s{G_ID}, 96')
        a(f's_cbranch_scc1 {lsk}')
        a(f's_load_dwordx2 s[{P}:{P+1}], s[0:1], {K_WO}')
        self.S(G_T0, [(G_ID, 0, 5, 13), (G_WV, 0, None, 21 if self.TWO == 1 else 18)])
        a(f'v_lshl_add_u32 v{V_T0}, v{V_L}, 7, s{G_T0}')
        a('s_waitcnt lgkmcnt(0)')
        srd(a, G_W, P, 8 * MB)
        for i in range(8):
            a(f's_mov_b32 s{G_T0}, {i * (262144 if self.TWO == 1 else MB)}')
            a(f'buffer_load_dword v{128+i}, v{V_T0}, s[{G_W}:{G_W+3}], s{G_T0} offen')
        a.label(lsk)

    def slab(self, LNEXT, **opt):
        a = self.a; L = self.L; S = self.S
        P = G_PTR
        V_G, V_TR, V_XG, V_ST, V_FL, V_FV = 6, 7, 8, 9, 10, 11
        V_RA = 12
        V_F = 32
        V_ACC = 64
        V_PK = 96
        lB = a.newlabel('sl_b'); lC = a.newlabel('sl_c')
        G_M = G_J
        a(f's_cmp_ge_u32 s{G_ID}, 96')
        a(f's_cbranch_scc1 {lB}')
        a(f's_lshr_b32 s{G_T0}, s{G_ID}, 5')
        a(f's_add_u32 s{G_T0}, s{G_T0}, 1')
        a(f's_cmp_eq_u32 s{G_T0}, 3')
        a(f's_cselect_b32 s{G_M}, 0, s{G_T0}')
        S(G_T0, [(G_M, 0, None, 3)], K_WQ)
        a(f's_load_dwordx2 s[{P}:{P+1}], s[0:1], s{G_T0}')
        a(f's_load_dwordx2 s[{P+2}:{P+3}], s[0:1], {K_AX}')
        a(f's_mov_b32 s{P+4}, {8*MB}')
        a(f's_mov_b32 s{G_WST}, 8192')
        S(G_T0, [(G_ID, 0, 5, 8)])
        S(G_PO, [(G_M, 0, None, 24), (G_ID, 0, 5, 13)], PA)
        a(f's_mov_b32 s{G_PS}, {256*1024}')
        S(G_FO, [(G_ID, 0, 5, 7), (G_M, 0, None, 2)], FLG + F_SLA)
        a(f's_branch {lC}')
        a.label(lB)
        a(f's_sub_u32 s{G_T1}, s{G_ID}, 96')
        a(f's_lshr_b32 s{G_M}, s{G_T1}, 3')
        a(f's_load_dwordx2 s[{P}:{P+1}], s[0:1], {K_WQKV}')
        a(f's_load_dwordx2 s[{P+2}:{P+3}], s[0:1], {K_BX}')
        a(f's_mov_b32 s{P+4}, {6*MB}')
        a(f's_mov_b32 s{G_WST}, 6144')
        S(G_T0, [(G_T1, 0, None, 8)])
        S(G_PO, [(G_M, 0, None, 22), (G_T1, 0, 3, 13)], PB)
        a(f's_mov_b32 s{G_PS}, {64*1024}')
        S(G_FO, [(G_T1, 0, 3, 7), (G_M, 0, None, 2)], FLG + F_SLB)
        a.label(lC)
        a('s_waitcnt lgkmcnt(0)')
        srd(a, G_W, P, f's{P+4}')
        srd(a, G_X, P + 2, 4 * MB)
        a(f's_mov_b64 s[{P+8}:{P+9}], s[{P}:{P+1}]')
        a(f's_mov_b32 s{G_R}, s{G_T0}')
        if self.sync:
            lg = a.newlabel('sl_go'); l2 = a.newlabel('sl_a2')
            a(f's_cmp_lt_u32 s{G_ID}, {self.LATE}')
            a(f's_cbranch_scc1 {lg}')
            if not self.GV:
                a(f's_cmp_lg_u32 s{G_WV}, 0')
                a(f's_cbranch_scc1 {l2}')
            a('s_mov_b64 exec, 1')
            a(f'v_mov_b32 v{V_T0}, 0')
            a(f'buffer_store_dword v{V_T0}, v{V_T0}, {WS}, s{G_FO} offen sc1')
            if self.GV: self.late_arrive()
            else: self.arrive()
            a.label(l2)
            if not self.GV: self.touch_wo()
            srd(a, G_W, P + 8, f's{P+4}')
            self.wait_start()
            a.label(lg)
        a(f'v_lshrrev_b32 v{V_T0}, 2, v{V_L}')
        a(f'v_mul_lo_u32 v{V_G}, v{V_T0}, s{G_WST}')
        S(G_T0, [(G_R, 0, None, 0), (G_WV, 0, None, 6)])
        L(V_T0, [(0, 2, 4)], f's{G_T0}')
        a(f'v_add_u32 v{V_G}, v{V_G}, v{V_T0}')
        a(f's_lshl_b32 s{G_WST}, s{G_WST}, 4')
        a(f's_mov_b32 s{G_SEG}, 0')
        a(f's_mov_b32 s{G_END}, {NSEG}')
        a(f's_mov_b32 s{G_XMAX}, {63*65536}')
        self.stream(LNEXT, [0, 1], **opt)

    def stream(self, LNEXT, variants, RD=6):
        a = self.a; L = self.L; S = self.S
        V_G, V_TR, V_XG, V_ST, V_FL, V_FV = 6, 7, 8, 9, 10, 11
        V_RA = 12
        V_F = 32
        V_ACC = 64
        V_PK = 96
        G_M = G_J
        ob = 2 in variants
        a(f's_lshl_b32 s{G_T0}, s{G_WV}, 15')
        if ob:
            L(V_TR, [(4, 2, 9), (2, 2, 6), (0, 2, 4)], f's{G_T0}')
        else:
            L(V_TR, [(4, 2, 9), (2, 2, 6), (1, 1, 5), (0, 1, 3)], f's{G_T0}')
        eo = 8 if ob else 16
        def wreads(p):
            return [(f'a[{8*p+4*et+2*q}:{8*p+4*et+2*q+1}]', V_TR, et * eo + q * 256) for et in range(2) for q in range(2)]
        def hook(k):
            li = a.newlabel('sl_ar')
            if k == 0: validate(a, V_VAL, V_T0, G_DBG, G_SPIN, G_T0)
            else: self.mark(7)
            if self.FS: return
            a(f's_cmp_lg_u32 s{G_WV}, 0')
            a(f's_cbranch_scc1 {li}')
            a(f's_cmp_ge_u32 s{G_ID}, {self.LATE}')
            a(f's_cbranch_scc1 {li}')
            a('s_mov_b64 exec, 1')
            if k == 0:
                a(f'v_mov_b32 v{V_T0}, 0')
                a(f'buffer_store_dword v{V_T0}, v{V_T0}, {WS}, s{G_FO} offen sc1')
                a('s_mov_b64 exec, -1')
            else: self.arrive(False)
            a.label(li)
        self.load_weights([(G_W, V_G, 32, wreads, '0', f's{G_WST}')], hook if (self.sync and not ob) else None)
        self.mark(4 if ob else 1)
        S(G_T0, [(G_WV, 1, 1, 2)])
        L(V_T0, [(4, 2, 0)], f's{G_T0}')
        a(f'v_and_b32 v{V_T1}, 7, v{V_L}')
        a(f'v_xor_b32 v{V_T0}, v{V_T0}, v{V_T1}')
        a(f's_lshl_b32 s{G_T0}, s{G_WV}, 14')
        L(V_XG, [(3, 3, 11)], f's{G_T0}')
        a(f'v_lshl_add_u32 v{V_XG}, v{V_T0}, 4, v{V_XG}')
        L(V_T0, [(1, 3, 0)])
        a(f'v_lshrrev_b32 v{V_T1}, 4, v{V_L}')
        a(f'v_xor_b32 v{V_T0}, v{V_T0}, v{V_T1}')
        L(V_T1, [(3, 1, 11), (0, 3, 7)])
        for j in range(2):
            a(f'v_xor_b32 v{V_RA+j}, {4*j}, v{V_T0}')
            a(f'v_lshl_add_u32 v{V_RA+j}, v{V_RA+j}, 4, v{V_T1}')
            a(f'v_add_u32 v{V_RA+2+j}, 65536, v{V_RA+j}')
        if ob:
            a(f's_lshl_b32 s{G_T0}, s{G_WV}, 6')
            L(V_ST, [(0, 4, 12), (4, 2, 4)], f's{G_T0}')
            a(f'v_add_u32 v{V_XG}, s{G_LW}, v{V_L16}')
            L(V_RA, [(4, 2, 9), (0, 4, 4)])
            a(f'v_add_u32 v{V_RA+2}, 65536, v{V_RA}')
            self.wait_dbg(D_INIT, NARR if self.GV else NWG)
            self.wait_lines(F_ATB, f's{G_END}')
        else:
            a(f's_lshl_b32 s{G_T0}, s{G_WV}, 11')
            L(V_ST, [(4, 2, 9), (3, 1, 8), (0, 3, 4)], f's{G_T0}')
            a(f'v_mov_b32 v{V_FL}, s{G_FO}')
            a(f's_cmp_eq_u32 s{G_WV}, 0')
            self.keep(V_FL, 's_cselect_b64 vcc, 1, 0')
            a(f'v_mov_b32 v{V_FV}, 0')
            a(f's_cmp_lt_u32 s{G_ID}, {self.LATE}')
            a(f's_cselect_b32 s{G_KMO}, s{G_WV}, 1')
            a(f's_min_u32 s{G_KMO}, s{G_KMO}, 1')
        a(f's_lshl_b32 s{G_XO}, s{G_SEG}, 16')
        a(f's_sub_u32 s{G_PO}, s{G_PO}, s{G_PS}')
        a('s_barrier')
        XS = f's[{G_X}:{G_X+3}]'
        SC = ' sc1' if ob else ''
        def dma(u, i, part=2):
            kb = (u & 1) * 8 + i
            if ob:
                if part != 1:
                    a(f's_add_u32 m0, s{G_LW}, {(u >> 1) * 65536 + kb * 4096}')
                    a(f's_add_u32 s{G_T1}, s{G_XO}, {kb * 4096}')
                if part != 0: a(f'buffer_load_dwordx4 v{V_XG}, {XS}, s{G_T1} offen sc1 lds')
                return
            if part != 1: a(f's_add_u32 m0, s{G_LW}, {(u >> 1) * 65536 + kb * 4096 - kb * 128}')
            if part != 0: a(f'buffer_load_dwordx4 v{V_XG}, {XS}, s{G_XO} offen offset:{kb*128} lds')
        for u in range(3):
            for i in range(8 if u < 2 else 4): dma(u, i)
            if u == 1: a(f's_add_u32 s{G_XO}, s{G_XO}, 65536')
        a('s_waitcnt vmcnt(12)')
        a('s_barrier')
        if not ob: self.mark(2)
        def rd(T):
            T %= 128
            p, t = T >> 6, T & 63
            ks, tt = t >> 1, t & 1
            if ob: a(f'ds_read_b128 {vr(V_F+4*(T%8),4)}, v{V_RA+2*p} offset:{ks*2048+tt*256}')
            else: a(f'ds_read_b128 {vr(V_F+4*(T%8),4)}, v{V_RA+2*p+(ks&1)} offset:{(ks>>1)*4096+tt*1024}')
        def epi(p, k, var):
            A = V_ACC + 16 * p
            if k < 8:
                o, inn, h = k >> 2, (k >> 1) & 1, k & 1
                tt, et = (inn, o) if var == 1 else (o, inn)
                r = A + 4 * (2 * tt + et) + 2 * h
                a(f'v_cvt_pk_bf16_f32 v{V_PK+k}, v{r}, v{r+1}')
            elif k == 8:
                if ob:
                    a(f'buffer_store_dwordx4 {vr(V_PK,4)}, v{V_ST}, s[{G_OUT}:{G_OUT+3}], s{G_PO} offen{self.ost}')
                    a(f's_add_u32 s{G_T0}, s{G_PO}, 65536')
                else: a(f'buffer_store_dwordx4 {vr(V_PK,4)}, v{V_ST}, {WS}, s{G_PO} offen sc1')
            elif k == 9:
                if ob: a(f'buffer_store_dwordx4 {vr(V_PK+4,4)}, v{V_ST}, s[{G_OUT}:{G_OUT+3}], s{G_T0} offen{self.ost}')
                else: a(f'buffer_store_dwordx4 {vr(V_PK+4,4)}, v{V_ST}, {WS}, s{G_PO} offen offset:128 sc1')
                a(f's_add_u32 s{G_PO}, s{G_PO}, s{G_PS}')
        for T in range(RD): rd(T)
        lV = a.newlabel('sl_v'); lE = a.newlabel('sl_e')
        a(f'v_add_u32 v{V_ST}, {OOB}, v{V_ST}')
        if len(variants) > 1:
            a(f's_cmp_eq_u32 s{G_M}, 2')
            a(f's_cbranch_scc1 {lV}')
        for var in variants:
            if var == 1: a.label(lV)
            lp = a.newlabel('sl_loop')
            a.label(lp)
            for T in range(128):
                p, t = T >> 6, T & 63
                u = T >> 5; tu = T & 31
                if tu == 16:
                    a('s_waitcnt vmcnt(8)')
                    a('s_barrier')
                if T % 2 == 0: a(f's_waitcnt lgkmcnt({RD-2})')
                A = V_ACC + 16 * p
                x = vr(V_F + 4 * (T % 8), 4)
                ks, tt = t >> 1, t & 1
                ph = (tu - 16) % 32
                isd = ph % 4 == 1
                if isd:
                    un = (u + 3) if tu >= 16 else (u + 2)
                    i = ph // 4
                for et in range(2):
                    w = f'a[{8*ks+4*et}:{8*ks+4*et+3}]'
                    D = vr(A + 4 * (2 * tt + et), 4)
                    c = D if ks else '0'
                    if var == 1: a(f'v_mfma_f32_16x16x32_bf16 {D}, {x}, {w}, {c}')
                    else: a(f'v_mfma_f32_16x16x32_bf16 {D}, {w}, {x}, {c}')
                    if et == 0:
                        rd(T + RD)
                        if isd: dma(un % 4, i, 0)
                    elif isd: dma(un % 4, i, 1)
                if isd and (un & 1) == 1 and i == 7:
                    a(f's_add_u32 s{G_XO}, s{G_XO}, 65536')
                    a(f's_min_u32 s{G_XO}, s{G_XO}, s{G_XMAX}')
                if tu == 18 and (u & 1) and not ob:
                    a(f'buffer_store_dword v{V_FV}, v{V_FL}, {WS}, 0 offen sc1')
                    a(f'v_add_u32 v{V_FV}, 1, v{V_FV}')
                    if u == 3 and self.FS and self.sync:
                        la = a.newlabel('sl_ar')
                        a(f's_cmp_lg_u32 s{G_SEG}, s{G_KMO}')
                        a(f's_cbranch_scc1 {la}')
                        a('s_mov_b64 exec, 1')
                        self.arrive(False)
                        a.label(la)
                if 4 <= t < 12: epi(p ^ 1, t - 4, var)
                if t == 11: epi(p ^ 1, 8, var)
                if t == 15: epi(p ^ 1, 9, var)
                if t == 20 and p == 0: a(f'v_and_b32 v{V_ST}, 0xffffff, v{V_ST}')
            a(f's_add_u32 s{G_SEG}, s{G_SEG}, 2')
            a(f's_cmp_lt_u32 s{G_SEG}, s{G_END}')
            a(f's_cbranch_scc1 {lp}')
            for k in range(8): epi(1, k, var)
            a(f's_branch {lE}')
        a.label(lE)
        for k in (8, 9): epi(1, k, 0)
        a('s_waitcnt vmcnt(0) lgkmcnt(0)')
        a('s_barrier')
        if not ob: a(f'buffer_store_dword v{V_FV}, v{V_FL}, {WS}, 0 offen sc1')
        self.mark(5 if ob else 3)
        a(f's_branch {LNEXT}')

    def outb(self, LNEXT):
        a = self.a; L = self.L; S = self.S
        P = G_PTR
        V_G = 6
        a(f's_load_dwordx4 s[{P}:{P+3}], s[0:1], {K_BWO}')
        a(f's_add_u32 s{P+4}, s{G_WSP}, {OB}')
        a(f's_addc_u32 s{P+5}, s{G_WSP+1}, 0')
        a(f's_sub_u32 s{G_T1}, s{G_ID}, 96')
        a(f's_lshr_b32 s{G_T1}, s{G_T1}, 3')
        a(f's_mul_i32 s{G_SEG}, s{G_T1}, 22')
        a(f's_add_u32 s{G_END}, s{G_SEG}, 22')
        a(f's_min_u32 s{G_END}, s{G_END}, {NSEG}')
        a(f's_sub_u32 s{G_XMAX}, s{G_END}, 1')
        a(f's_lshl_b32 s{G_XMAX}, s{G_XMAX}, 16')
        a('s_waitcnt lgkmcnt(0)')
        srd(a, G_W, P, 2 * MB)
        srd(a, G_OUT, P + 2, 8 * MB)
        srd(a, G_X, P + 4, 4 * MB)
        S(G_T0, [(G_ID, 0, 3, 8), (G_WV, 0, None, 6)])
        L(V_G, [(2, 4, 11), (0, 2, 4)], f's{G_T0}')
        a(f's_mov_b32 s{G_WST}, 32768')
        S(G_PO, [(G_SEG, 0, None, 17), (G_ID, 0, 3, 8)], 2048)
        a(f's_mov_b32 s{G_PS}, 131072')
        self.stream(LNEXT, [2])

    def wait_flags_s(self, off_sreg, nwords, idx, target, seen=None):
        a = self.a
        if not self.sync: return
        T = G_PTR
        lp = a.newlabel('g_wf'); ld = a.newlabel('g_wfd')
        if seen is not None:
            a(f's_cmp_ge_u32 s{seen}, {target}')
            a(f's_cbranch_scc1 {ld}')
        a.label(lp)
        a(f's_load_dwordx4 s[{T}:{T+3}], s[{G_WSP}:{G_WSP+1}], s{off_sreg} glc')
        self.spin_guard(ld)
        a('s_waitcnt lgkmcnt(0)')
        m = seen if seen is not None else T + 4
        a(f's_min_u32 s{m}, s{T+idx[0]}, s{T+idx[1]}')
        for i in idx[2:]: a(f's_min_u32 s{m}, s{m}, s{T+i}')
        a(f's_cmp_ge_u32 s{m}, {target}')
        a(f's_cbranch_scc1 {ld}')
        a('s_sleep 4')
        a(f's_branch {lp}')
        a.label(ld)
        a('s_waitcnt lgkmcnt(0)')

    def arrive(self, wait=True):
        a = self.a
        a(f'v_mov_b32 v{V_T2}, 0')
        a(f'v_mov_b32 v{V_T0}, 1')
        a(f'v_mov_b32 v{V_T1}, s{S_BAD}')
        if wait: a('s_waitcnt vmcnt(0)')
        a(f'global_atomic_add_x2 v{V_T2}, v[{V_T0}:{V_T1}], s[{G_DBG}:{G_DBG+1}] offset:{4*D_INIT} sc1')
        a('s_mov_b64 exec, -1')

    def wait_lines(self, fo, target, seen=None):
        a = self.a
        if not self.sync: return
        lp = a.newlabel('g_wl'); ld = a.newlabel('g_wld')
        self.L(V_T0, [(0, 5, 7)], FLG + fo)
        a(f's_cmp_lg_u32 s{G_WV}, 0')
        a(f's_cbranch_scc1 {ld}')
        a.label(lp)
        a(f'buffer_load_dword v{V_T1}, v{V_T0}, {WS}, 0 offen sc1')
        self.spin_guard(ld)
        a('s_waitcnt vmcnt(0)')
        a(f'v_cmp_gt_u32 vcc, {target}, v{V_T1}')
        a(f's_cbranch_vccz {ld}')
        a('s_sleep 8')
        a(f's_branch {lp}')
        a.label(ld)
        a('s_barrier')

    def wait_start(self):
        a = self.a
        a(f's_cmp_lt_u32 s{G_ID}, 96')
        a(f's_cselect_b32 s{G_T2}, {self.QTH}, {self.BTH}')
        self.wait_dbg(D_RDY, f's{G_T2}', G_PTR + 12)

    def wait_dbg(self, word, target, T=G_PTR):
        a = self.a
        if not self.sync: return
        lp = a.newlabel('g_wd'); ld = a.newlabel('g_wdd')
        a(f's_cmp_lg_u32 s{G_WV}, 0')
        a(f's_cbranch_scc1 {ld}')
        a.label(lp)
        a(f's_load_dword s{T}, s[{G_DBG}:{G_DBG+1}], {4*word} glc')
        self.spin_guard(ld)
        a('s_waitcnt lgkmcnt(0)')
        a(f's_cmp_ge_u32 s{T}, {target}')
        a(f's_cbranch_scc1 {ld}')
        a('s_sleep 32')
        a(f's_branch {lp}')
        a.label(ld)
        a('s_waitcnt lgkmcnt(0)')
        a('s_barrier')

    def softmax(self, regs, V_M, V_M2, V_SUM, G_C=G_C):
        a = self.a
        a(f'v_max3_f32 v{V_M}, v{regs[0]}, v{regs[1]}, v{regs[2]}')
        r = regs[3:]
        while len(r) >= 2:
            a(f'v_max3_f32 v{V_M}, v{V_M}, v{r[0]}, v{r[1]}'); r = r[2:]
        if r: a(f'v_max_f32 v{V_M}, v{V_M}, v{r[0]}')
        a(f'v_mov_b32 v{V_M2}, v{V_M}')
        a(f'v_permlane32_swap_b32 v{V_M}, v{V_M2}')
        a(f'v_max_f32 v{V_M}, v{V_M}, v{V_M2}')
        a(f'v_mul_f32 v{V_M}, s{G_C}, v{V_M}')
        for x in regs: a(f'v_fma_f32 v{x}, v{x}, s{G_C}, -v{V_M}')
        for x in regs: a(f'v_exp_f32 v{x}, v{x}')
        a(f'v_add_f32 v{V_SUM}, v{regs[0]}, v{regs[1]}')
        a(f'v_add_f32 v{V_M2}, v{regs[2]}, v{regs[3]}')
        for i in range(4, len(regs), 2):
            a(f'v_add_f32 v{V_SUM}, v{V_SUM}, v{regs[i]}')
            a(f'v_add_f32 v{V_M2}, v{V_M2}, v{regs[i+1]}')
        a(f'v_add_f32 v{V_SUM}, v{V_SUM}, v{V_M2}')
        a(f'v_mov_b32 v{V_M2}, v{V_SUM}')
        a(f'v_permlane32_swap_b32 v{V_SUM}, v{V_M2}')
        a(f'v_add_f32 v{V_SUM}, v{V_SUM}, v{V_M2}')
        a(f'v_rcp_f32 v{V_SUM}, v{V_SUM}')

    def att(self, LNEXT):
        a = self.a; L = self.L; S = self.S
        V_BL, V_BS, V_AL, V_KML, V_VML, V_D0, V_FLA, V_FLB = 6, 7, 8, 9, 10, 11, 12, 13
        V_M, V_M2, V_SUM = 14, 15, 26
        V_PP = 16
        V_PP = 28
        V_PM = 40
        V_PK = 208
        V_BC, V_BP, V_BA = 64, 80, 96
        V_SC, V_SP = 112, 128
        V_O = 144
        A_Q, A_K, A_KM, A_V, A_VM = 0, 32, 64, 96, 128
        B_Q, B_K, B_V, B_KP, B_VP, B_VC = 160, 168, 176, 184, 192, 196
        NEG = f32(-1e30)
        T = G_PTR
        a(f's_mov_b32 s{G_C}, {f32(128 ** -0.5 * math.log2(math.e))}')
        a(f's_mov_b32 s{G_C2}, {f32(32 ** -0.5 * math.log2(math.e))}')
        G_STR, G_AEND, G_S2 = G_PS, G_WSO, G_WST
        G_NX = G_OUO
        S(G_J, [(G_ID, 0, 3, 2), (G_WV, 0, None, 0)])
        a(f's_lshl_b32 s{G_T0}, s{G_J}, 11')
        a(f'v_add_u32 v{V_BL}, s{G_T0}, v{V_L16}')
        L(V_KML, [(5, 1, 7), (0, 3, 4)], f's{G_T0}')
        a(f's_add_u32 s{G_T0}, s{G_T0}, {VM - KM}')
        L(V_VML, [(0, 5, 4), (5, 1, 3)], f's{G_T0}')
        a(f's_lshl_b32 s{G_T0}, s{G_J}, 13')
        a(f'v_add_u32 v{V_AL}, s{G_T0}, v{V_L16}')
        a(f'v_mov_b32 v{V_BS}, v{V_AL}')
        S(G_FA, [(G_J, 0, None, 7)], FLG + F_SLA)
        S(G_FB, [(G_J, 2, None, 7)], FLG + F_SLB)
        S(G_FR, [(G_J, 0, None, 7)], FLG + F_REC)
        S(G_T0, [(G_J, 0, None, 7)], FLG)
        a(f'v_mov_b32 v{V_FLA}, s{G_T0}')
        a(f'v_lshl_add_u32 v{V_FLB}, v{V_L}, 12, s{G_T0}')
        self.keep(V_FLA, 's_mov_b64 vcc, 1')
        lhelp = a.newlabel('at_help'); lcom = a.newlabel('at_com')
        a(f's_cmp_lt_u32 s{G_ID}, 120')
        a(f's_cbranch_scc1 {lhelp}')
        a(f's_mov_b32 s{G_SA}, 0')
        a(f's_mov_b32 s{G_SB}, 0')
        a(f's_mov_b32 s{G_STR}, 1')
        a(f's_mov_b32 s{G_AEND}, {N0}')
        a(f's_mov_b32 s{G_S2}, {N1 + 2}')
        if self.sync:
            li = a.newlabel('at_i')
            a(f'v_mov_b32 v{V_T0}, 0')
            a(f's_mov_b32 s{G_T0}, {F_ATB}')
            a(f'buffer_store_dword v{V_T0}, v{V_FLA}, {WS}, s{G_T0} offen sc1')
            a(f's_mov_b32 s{G_T0}, {F_ATA}')
            a(f'buffer_store_dword v{V_T0}, v{V_FLB}, {WS}, s{G_T0} offen sc1')
            if not self.GV:
                a('s_waitcnt vmcnt(0)')
                a('s_barrier')
                a(f's_cmp_lg_u32 s{G_WV}, 0')
                a(f's_cbranch_scc1 {li}')
            if self.GV: self.late_arrive()
            else:
                self.mark(7)
                a('s_mov_b64 exec, 1')
                self.arrive()
            a.label(li)
        if not self.GV: self.touch_wo()
        a(f's_load_dwordx2 s[{T}:{T+1}], s[0:1], {K_AX}')
        a(f's_load_dwordx2 s[{T+2}:{T+3}], s[0:1], {K_BX}')
        a(f's_load_dwordx2 s[{T+4}:{T+5}], s[0:1], {K_BWO}')
        a('s_waitcnt lgkmcnt(0)')
        srd(a, G_W, T, 4 * MB)
        srd(a, G_X, T + 2, 4 * MB)
        srd(a, G_W2, T + 4, 2 * MB)
        a(f's_lshl_b32 s{G_T0}, s{G_J}, 13')
        a(f'v_lshl_add_u32 v{V_D0}, v{V_L}, 7, s{G_T0}')
        a(f'buffer_load_dword v{V_O}, v{V_D0}, s[{G_W}:{G_W+3}], 0 offen')
        self.wait_start()
        for i in range(16 if self.XT else 0):
            a(f's_mov_b32 s{G_T0}, {i * 262144}')
            a(f'buffer_load_dword v{V_O+2*i}, v{V_D0}, s[{G_W}:{G_W+3}], s{G_T0} offen')
            a(f'buffer_load_dword v{V_O+2*i+1}, v{V_D0}, s[{G_X}:{G_X+3}], s{G_T0} offen')
            if self.XT >= 2: a('s_waitcnt vmcnt(0)')
        for i in range(8 if self.XT & 1 else 0):
            if self.XT >= 2 and i % 2 == 0: a('s_waitcnt vmcnt(0)')
            a(f's_mov_b32 s{G_T0}, {i * 262144}')
            a(f'buffer_load_dword v{V_O+32+i}, v{V_D0}, s[{G_W2}:{G_W2+3}], s{G_T0} offen')
        a(f's_branch {lcom}')
        a.label(lhelp)
        S(G_SA, [(G_ID, 3, None, 0)], N0)
        a(f's_mov_b32 s{G_SB}, {NSEG}')
        a(f's_mov_b32 s{G_STR}, 12')
        a(f's_mov_b32 s{G_AEND}, {N1}')
        S(G_S2, [(G_ID, 3, 1, 0)], N1)
        a(f's_cmp_lt_u32 s{G_ID}, {NOUT}')
        a(f's_cselect_b32 s{G_S2}, {NSEG}, s{G_S2}')
        a.label(lcom)
        L(V_D0, [(0, 5, 0)])
        L(V_T1, [(5, 1, 2)])
        a(f'v_sub_u32 v{V_D0}, v{V_D0}, v{V_T1}')
        def bias(dst, add):
            a(f'v_mov_b32 v{V_M}, {NEG}')
            for j in range(16):
                a(f'v_add_u32 v{V_T1}, {add - (8*(j>>2)+(j&3))}, v{V_D0}')
                a(f'v_and_b32 v{V_T1}, 0xfffffff1, v{V_T1}')
                a(f'v_cmp_ne_u32 vcc, 0, v{V_T1}')
                a(f'v_cndmask_b32 v{dst+j}, 0, v{V_M}, vcc')
        bias(V_BC, 0)
        for j in range(16):
            a(f'v_cmp_gt_i32 vcc, {8*(j>>2)+(j&3)}, v{V_D0}')
            a(f'v_cndmask_b32 v{V_BA+j}, 0, v{V_M}, vcc')
        for j in range(16): a(f'v_mov_b32 v{V_BP+j}, {NEG}')
        for j in range(12): a(f'v_accvgpr_write_b32 a{B_KP+j}, 0')
        for j in range(16): a(f'v_accvgpr_write_b32 a{A_VM+j}, 0')
        for j in range(4): a(f'v_mov_b32 v{V_PM+j}, 0')
        self.wait_dbg(D_INIT, NARR if self.GV else NWG)
        top = a.newlabel('at_top'); la = a.newlabel('at_a'); lb = a.newlabel('at_b'); lend = a.newlabel('at_end'); lnb = a.newlabel('at_nb')
        lpoll = a.newlabel('at_poll'); lnf = a.newlabel('at_nf')
        G_DIRTY = G_SEEN
        def poll():
            if not self.sync: return
            a(f's_load_dwordx16 s[8:23], s[{G_WSP}:{G_WSP+1}], s{G_FR} glc')
            a(f's_load_dwordx4 s[{T+4}:{T+7}], s[{G_WSP}:{G_WSP+1}], s{G_FA} glc')
            a(f's_load_dwordx4 s[{T+8}:{T+11}], s[{G_WSP}:{G_WSP+1}], s{G_FB} glc')
        G_PV = G_R
        def post():
            a(f'v_mov_b32 v{V_T0}, s{G_PV}')
            a(f'buffer_store_dword v{V_T0}, v{V_FLA}, {WS}, s{G_DIRTY} offen sc1')
        def ld8(dst, base):
            for t in range(8):
                if t % 4 == 0: a(f's_add_u32 s{G_T0}, s{G_PO}, {base + t*1024}')
                a(f'buffer_load_dwordx4 {ar(dst+4*t,4)}, v{V_BS}, {WS}, s{G_T0} offen offset:{(t&3)*1024} sc1')
        def ldB(m, dst):
            a(f's_add_u32 s{G_T0}, s{G_XO}, {PB + m * PB_M}')
            for t in range(2): a(f'buffer_load_dwordx4 {ar(dst+4*t,4)}, v{V_BL}, {WS}, s{G_T0} offen offset:{t*1024} sc1')
        def nextseg():
            ln = a.newlabel('at_nx')
            a(f's_add_u32 s{G_NX}, s{G_SA}, s{G_STR}')
            a(f's_cmp_lt_u32 s{G_NX}, s{G_AEND}')
            a(f's_cbranch_scc1 {ln}')
            a(f's_max_u32 s{G_NX}, s{G_NX}, s{G_S2}')
            a(f's_cmp_eq_u32 s{G_AEND}, 255')
            a(f's_cselect_b32 s{G_NX}, s{G_NX}, s{G_S2}')
            a(f's_mov_b32 s{G_STR}, 3')
            a(f's_mov_b32 s{G_AEND}, 255')
            a.label(ln)
        nextseg()
        self.wait_flags_s(G_FB, 4, [0, 1, 2], 1)
        a(f's_mov_b32 s{G_XO}, 0')
        for m, dst in enumerate((B_Q, B_K, B_V)): ldB(m, dst)
        a(f's_add_u32 s{G_T1}, s{G_SA}, 1')
        self.wait_flags_s(G_FA, 4, [0, 1, 2], f's{G_T1}')
        a(f's_lshl_b32 s{G_PO}, s{G_SA}, 18')
        ld8(A_Q, PA); ld8(A_K, PA + PA_M); ld8(A_V, PA + 2 * PA_M)
        a(f's_mov_b32 s{G_DIRTY}, {F_DUM}')
        a(f's_mov_b32 s{G_PV}, 0')
        a(f's_mov_b32 s{G_END}, 0')
        a('s_waitcnt vmcnt(0)')
        self.acc(None)
        a.label(lpoll)
        poll()
        a.label(top)
        if self.sync:
            a('s_waitcnt lgkmcnt(0)')
            a(f's_min_u32 s{T}, s8, s12')
            for i in (16, 20): a(f's_min_u32 s{T}, s{T}, s{i}')
            for b in (4, 8):
                for i in (1, 2): a(f's_min_u32 s{T+b}, s{T+b}, s{T+b+i}')
            a(f's_min_u32 s{T+5}, s{G_NX}, {NSEG-1}')
            a(f's_cmp_gt_u32 s{T+4}, s{T+5}')
            a(f's_cselect_b32 s{T}, s{T}, 0')
            a(f's_min_u32 s{T}, s{T}, {NSEG}')
            a(f's_sub_u32 s{T+9}, s{T+8}, 1')
            a(f's_cmp_ge_u32 s{T+8}, {NSEG}')
            a(f's_cselect_b32 s{T+8}, {NSEG}, s{T+9}')
        else:
            a(f's_mov_b32 s{T}, {NSEG}'); a(f's_mov_b32 s{T+8}, {NSEG}')
        a(f's_cmp_lt_u32 s{G_SB}, s{T+8}')
        a(f's_cbranch_scc1 {lb}')
        a(f's_cmp_lt_u32 s{G_SA}, s{T}')
        a(f's_cbranch_scc1 {la}')
        a(f's_cmp_eq_u32 s{G_DIRTY}, {F_DUM}')
        a(f's_cbranch_scc1 {lnf}')
        a('s_waitcnt vmcnt(0)')
        post()
        a(f's_mov_b32 s{G_DIRTY}, {F_DUM}')
        a.label(lnf)
        a(f's_cmp_ge_u32 s{G_SA}, {NSEG}')
        a(f's_cselect_b32 s{G_T0}, s{G_SB}, 0')
        a(f's_cmp_ge_u32 s{G_T0}, {NSEG}')
        a(f's_cbranch_scc1 {lend}')
        self.spin_guard(lend)
        a('s_sleep 1')
        a(f's_branch {lpoll}')
        a.label(la)
        self.acc(0)
        G_KOK = G_END
        def ldkm():
            a('s_mov_b32 exec_lo, 0xff'); a('s_mov_b32 exec_hi, 0xff')
            for t in range(8): a(f'buffer_load_dwordx4 {ar(A_KM+4*t,4)}, v{V_KML}, {WS}, s{G_KMO} offen offset:{t*256} sc1')
            a('s_mov_b64 exec, -1')
        def ldvm():
            for e in range(4): a(f'buffer_load_dwordx2 {ar(A_VM+4*e,2)}, v{V_VML}, {WS}, s{G_KMO} offen offset:{e*512} sc1')
        lk1 = a.newlabel('at_k1'); lk2 = a.newlabel('at_k2'); lk3 = a.newlabel('at_k3'); lk4 = a.newlabel('at_k4')
        S(G_KMO, [(G_SA, 0, None, 16)], KM)
        a(f's_cmp_lg_u32 s{G_KOK}, 0')
        a(f's_cbranch_scc1 {lk1}')
        ldkm(); ldvm()
        a.label(lk1)
        S(G_OAO, [(G_SA, 0, None, 18)], OA)
        a(f's_cmp_lt_u32 s{G_NX}, s{T}')
        a(f's_cselect_b32 s{G_XMAX}, 1, 0')
        a(f's_cmp_lt_u32 s{G_NX}, {NSEG}')
        a(f's_cselect_b32 s{G_T1}, s{G_NX}, s{G_SA}')
        a(f's_cselect_b32 s{G_T0}, 0, {OOB}')
        a(f'v_or_b32 v{V_BS}, s{G_T0}, v{V_AL}')
        a(f's_lshl_b32 s{G_PO}, s{G_T1}, 18')
        S(G_KMO, [(G_T1, 0, None, 16)], KM)
        poll()
        for t in range(8):
            a(f'v_mfma_f32_32x32x16_bf16 {vr(V_SC,16)}, {ar(A_K+4*t,4)}, {ar(A_Q+4*t,4)}, {vr(V_SC if t else V_BA,16)}')
        a(f's_cmp_lg_u32 s{G_KOK}, 0')
        a(f's_cbranch_scc1 {lk2}')
        a('s_waitcnt vmcnt(4)')
        a.label(lk2)
        ld8(A_K, PA + PA_M)
        for t in range(8):
            a(f'v_mfma_f32_32x32x16_bf16 {vr(V_SP,16)}, {ar(A_KM+4*t,4)}, {ar(A_Q+4*t,4)}, {vr(V_SP,16) if t else 0}')
        self.acc(1)
        a(f's_mov_b32 s{G_KOK}, s{G_XMAX}')
        ld8(A_Q, PA)
        a(f's_cmp_eq_u32 s{G_KOK}, 0')
        a(f's_cbranch_scc1 {lk3}')
        ldkm()
        a.label(lk3)
        self.softmax([V_SC + j for j in range(16)] + [V_SP + j for j in range(4)], V_M, V_M2, V_SUM)
        for j in range(8): a(f'v_cvt_pk_bf16_f32 v{V_PP+j}, v{V_SC+2*j}, v{V_SC+2*j+1}')
        for j in range(2): a(f'v_cvt_pk_bf16_f32 v{V_PM+j}, v{V_SP+2*j}, v{V_SP+2*j+1}')
        def fin(e):
            O = V_O + 16 * e; PK = V_PK + 8 * e
            r = [f'v_mul_f32 v{O+j}, v{O+j}, v{V_SUM}' for j in range(16)]
            r += [f'v_cvt_pk_bf16_f32 v{PK+j}, v{O+2*j}, v{O+2*j+1}' for j in range(8)]
            return r
        def pv(e):
            O = vr(V_O + 16 * e, 16)
            return [f'v_mfma_f32_32x32x16_bf16 {O}, {ar(A_V+8*e,4)}, {vr(V_PP,4)}, 0',
                    f'v_mfma_f32_32x32x16_bf16 {O}, {ar(A_V+8*e+4,4)}, {vr(V_PP+4,4)}, {O}',
                    f'v_mfma_f32_32x32x16_bf16 {O}, {ar(A_VM+4*e,4)}, {vr(V_PM,4)}, {O}']
        a('s_waitcnt vmcnt(16)')
        post()
        for m in pv(0) + pv(1): a(m)
        q = fin(0) + fin(1)
        for m in pv(2) + pv(3):
            a(m)
            for _ in range(6): a(q.pop(0))
        ld8(A_V, PA + 2 * PA_M)
        a(f's_cmp_eq_u32 s{G_KOK}, 0')
        a(f's_cbranch_scc1 {lk4}')
        ldvm()
        a.label(lk4)
        for x in q + fin(2) + fin(3): a(x)
        for e in range(4):
            if e % 2 == 0: a(f's_add_u32 s{G_T0}, s{G_OAO}, {e*2048}')
            for t in range(2): a(f'buffer_store_dwordx4 {vr(V_PK+8*e+4*t,4)}, v{V_AL}, {WS}, s{G_T0} offen offset:{(e&1)*2048+t*1024} sc1')
        a(f's_mov_b32 s{G_PV}, 1')
        S(G_DIRTY, [(G_SA, 0, None, 12)], F_ATA)
        a(f's_mov_b32 s{G_SA}, s{G_NX}')
        nextseg()
        self.acc(2)
        a('s_waitcnt vmcnt(17)')
        self.acc(3)
        a(f's_branch {top}')
        a.label(lb)
        self.acc(0)
        poll()
        S(G_OBO, [(G_SB, 0, None, 16)], OB)
        a(f's_add_u32 s{G_T1}, s{G_SB}, 1')
        a(f's_min_u32 s{G_T1}, s{G_T1}, {NSEG-1}')
        a(f's_lshl_b32 s{G_XO}, s{G_T1}, 16')
        a(f'v_mfma_f32_32x32x16_bf16 {vr(V_SP,16)}, {ar(B_KP,4)}, {ar(B_Q,4)}, {vr(V_BP,16)}')
        a(f'v_mfma_f32_32x32x16_bf16 {vr(V_SP,16)}, {ar(B_KP+4,4)}, {ar(B_Q+4,4)}, {vr(V_SP,16)}')
        a(f'v_mfma_f32_32x32x16_bf16 {vr(V_SC,16)}, {ar(B_K,4)}, {ar(B_Q,4)}, {vr(V_BC,16)}')
        a(f'v_mfma_f32_32x32x16_bf16 {vr(V_SC,16)}, {ar(B_K+4,4)}, {ar(B_Q+4,4)}, {vr(V_SC,16)}')
        for j in range(8): a(f'v_accvgpr_mov_b32 a{B_KP+j}, a{B_K+j}')
        for j in range(8): a(f'v_accvgpr_mov_b32 a{B_VC+j}, a{B_V+j}')
        for m, dst in enumerate((B_Q, B_K, B_V)): ldB(m, dst)
        self.softmax([V_SP + 8 + j for j in range(8)] + [V_SC + j for j in range(16)], V_M, V_M2, V_SUM, G_C2)
        for j in range(8): a(f'v_cvt_pk_bf16_f32 v{V_PP+j}, v{V_SC+2*j}, v{V_SC+2*j+1}')
        for j in range(4): a(f'v_cvt_pk_bf16_f32 v{V_PP+8+j}, v{V_SP+8+2*j}, v{V_SP+8+2*j+1}')
        O = vr(V_O, 16)
        a(f'v_mfma_f32_32x32x16_bf16 {O}, {ar(B_VC,4)}, {vr(V_PP,4)}, 0')
        a(f'v_mfma_f32_32x32x16_bf16 {O}, {ar(B_VC+4,4)}, {vr(V_PP+4,4)}, {O}')
        a(f'v_mfma_f32_32x32x16_bf16 {O}, {ar(B_VP,4)}, {vr(V_PP+8,4)}, {O}')
        for j in range(4): a(f'v_accvgpr_mov_b32 a{B_VP+j}, a{B_VC+4+j}')
        self.acc(4)
        a('s_waitcnt vmcnt(6)')
        self.acc(5)
        post()
        a(f's_cmp_lg_u32 s{G_SB}, 0')
        a(f's_cbranch_scc1 {lnb}')
        bias(V_BP, 32)
        a.label(lnb)
        for j in range(16): a(f'v_mul_f32 v{V_O+j}, v{V_O+j}, v{V_SUM}')
        for j in range(8): a(f'v_cvt_pk_bf16_f32 v{V_PK+j}, v{V_O+2*j}, v{V_O+2*j+1}')
        for t in range(2):
            for j in range(2): a(f'v_permlane32_swap_b32 v{V_PK+4*t+j}, v{V_PK+4*t+2+j}')
        for t in range(2): a(f'buffer_store_dwordx4 {vr(V_PK+4*t,4)}, v{V_BL}, {WS}, s{G_OBO} offen offset:{t*1024} sc1')
        a(f's_add_u32 s{G_SB}, s{G_SB}, 1')
        a(f's_mov_b32 s{G_DIRTY}, {F_ATB}')
        a(f's_mov_b32 s{G_PV}, s{G_SB}')
        if self.prof:
            lm = a.newlabel('at_m')
            a(f's_cmp_lg_u32 s{G_SB}, {NSEG}')
            a(f's_cbranch_scc1 {lm}')
            self.mark(1)
            a.label(lm)
        self.acc(6)
        a('s_waitcnt vmcnt(3)')
        self.acc(7)
        a(f's_branch {top}')
        a.label(lend)
        a('s_waitcnt vmcnt(0) lgkmcnt(0)')
        self.mark(5)
        self.mark(6)
        a(f's_branch {LNEXT}')

    def out64(self, LNEXT, NF=16, SLP=10):
        a = self.a; L = self.L; S = self.S
        P = G_PTR
        NR = NOUT // 16
        V_G, V_TR, V_FA, V_RW, V_RR, V_OUT, V_FP, V_FR = 6, 7, 8, 9, 10, 11, 12, 13
        V_LW = 16
        V_AC = 32
        V_F = 64
        V_W = 128
        RB = 131072
        G_NXT, G_NOK, G_FSO = G_XO, G_END, G_XMAX
        a(f's_load_dwordx2 s[{P}:{P+1}], s[0:1], {K_WO}')
        a(f's_load_dwordx2 s[{P+2}:{P+3}], s[0:1], {K_OUT}')
        a(f's_mul_i32 s{G_J}, s{G_ID}, {-(-1024 // NR)}')
        a(f's_lshr_b32 s{G_J}, s{G_J}, 10')
        assert all((i * -(-1024 // NR)) >> 10 == i // NR for i in range(NOUT))
        a(f's_mul_i32 s{G_T0}, s{G_J}, {NR}')
        a(f's_sub_u32 s{G_SEG}, s{G_ID}, s{G_T0}')
        if self.OM:
            S(G_J, [(G_ID, 5, 1, 3), (G_ID, 0, 3, 0)])
            S(G_SEG, [(G_ID, 3, 2, 0)])
            a(f's_and_b32 s{G_T0}, s{G_ID}, 15')
            a(f's_cmp_lt_u32 s{G_ID}, 64')
            a(f's_cselect_b32 s{G_J}, s{G_J}, s{G_T0}')
            a(f's_cselect_b32 s{G_SEG}, s{G_SEG}, 4')
        LS = NSEG - 1 if self.QL else NSEG
        G_Q = G_OBO
        a(f's_add_u32 s{G_Q}, s{G_SEG}, {NR - (NSEG - 1) % NR}')
        a(f's_sub_u32 s{G_T0}, s{G_Q}, {NR}')
        a(f's_min_u32 s{G_Q}, s{G_Q}, s{G_T0}')
        a('s_waitcnt lgkmcnt(0)')
        srd(a, G_W, P, 8 * MB)
        srd(a, G_OUT, P + 2, 8 * MB)
        S(G_T0, [(G_WV, 0, None, 21), (G_J, 0, None, 7)])
        L(V_G, [(3, 3, 11), (0, 3, 4)], f's{G_T0}')
        a(f's_lshl_b32 s{G_T0}, s{G_WV}, 15')
        L(V_TR, [(5, 1, 9), (2, 2, 7), (4, 1, 5), (0, 2, 3)], f's{G_T0}')
        def wreg(t, tile):
            return f'a[{8*t+4*tile}:{8*t+4*tile+3}]' if t < 32 else vr(V_W + 8 * (t - 32) + 4 * tile, 4)
        def rds(p):
            if p >= 48: return []
            f, b = ('a', 8 * p) if p < 32 else ('v', V_W + 8 * (p - 32))
            return [(f'{f}[{b+4*tl+2*q}:{b+4*tl+2*q+1}]', V_TR, tl * 64 + q * 1024) for tl in range(2) for q in range(2)]
        self.load_weights([(G_W, V_G, 64, rds, '0', '16384')], slow=self.OSL)
        self.mark(4)
        a(f's_lshl_b32 s{G_T0}, s{G_WV}, 16')
        a(f'v_add_u32 v{V_FA}, s{G_T0}, v{V_L16}')
        S(G_T0, [(G_WV, 0, None, 13)], RB)
        a(f'v_add_u32 v{V_RW}, s{G_T0}, v{V_L16}')
        S(G_T0, [(G_WV, 0, None, 7)], RB)
        L(V_RR, [(1, 2, 10), (0, 1, 9), (3, 3, 4)], f's{G_T0}')
        S(G_T0, [(G_WV, 0, None, 15), (G_J, 0, None, 7)])
        L(V_OUT, [(3, 3, 12), (0, 3, 3)], f's{G_T0}')
        L(V_FP, [(0, 5, 7)], FLG)
        V_TC, V_FR2 = 14, 15
        G_N2, G_FS2 = G_SA, G_SB
        TC = self.TC
        S(G_T0, [(G_WV, 0, None, 16), (G_J, 0, 3, 13)])
        a(f'v_lshl_add_u32 v{V_TC}, v{V_L}, 7, s{G_T0}')
        def touch(base): a(f'buffer_load_dword v{V_T1}, v{V_TC}, {WS}, s{base} offen sc1')
        self.wait_dbg(D_INIT, NARR if self.GV else NWG)
        def flagoff(seg):
            S(G_FSO, [(seg, 0, 6, 12)], F_ATA)
        order = []
        for i in range(16): order += [3 * i, 3 * i + 1, 3 * i + 2, 48 + i]
        def ldA(n, base):
            t = order[n]
            a(f's_add_u32 s{G_T0}, s{base}, {t*1024}')
            a(f'buffer_load_dwordx4 {vr(V_F+4*(n%NF),4)}, v{V_FA}, {WS}, s{G_T0} offen sc1')
        def ldW(i, tls=(0, 1)):
            for tl in tls:
                for q in range(2):
                    r = V_LW + 8 * (i % 2) + 4 * tl + 2 * q
                    a(f'ds_read_b64_tr_b16 v[{r}:{r+1}], v{V_TR} offset:{i*2048+tl*64+q*1024}')
        lp = a.newlabel('o6_loop'); lgo = a.newlabel('o6_go'); lw = a.newlabel('o6_w'); lwd = a.newlabel('o6_wd')
        self.acc(None)
        a.label(lp)
        def start(slp):
            lw = a.newlabel('o6_w'); lwd = a.newlabel('o6_wd')
            S(G_OAO, [(G_SEG, 0, None, 18)], OA)
            flagoff(G_SEG)
            a.label(lw)
            a(f'buffer_load_dword v{V_FR}, v{V_FP}, {WS}, s{G_FSO} offen sc1')
            self.spin_guard(lwd)
            a('s_waitcnt vmcnt(0)')
            a(f'v_cmp_eq_u32 vcc, 0, v{V_FR}')
            a(f's_cbranch_vccz {lwd}')
            a(f's_sleep {slp}')
            a(f's_branch {lw}')
            a.label(lwd)
            if TC & 1: touch(G_OAO)
            for n in range(NF - 1): ldA(n, G_OAO)
        start(SLP)
        a.label(lgo)
        self.acc(0)
        a(f's_lshl_b32 s{G_OUO}, s{G_SEG}, 17')
        a(f's_add_u32 s{G_NXT}, s{G_SEG}, {NR}')
        flagoff(G_NXT)
        if TC & 2:
            a(f's_add_u32 s{G_N2}, s{G_SEG}, {2*NR}')
            S(G_FS2, [(G_N2, 0, 6, 12)], F_ATA)
        ldW(0)
        FL = 24
        for n in range(64):
            t = order[n]
            extra = (2 if TC & 2 else 1) if (FL < n <= FL + NF - 1) else 0
            a(f's_waitcnt vmcnt({NF - 2 + extra})')
            x = vr(V_F + 4 * (n % NF), 4)
            if t >= 48: a('s_waitcnt lgkmcnt(0)')
            for tl in range(2):
                w = wreg(t, tl) if t < 48 else vr(V_LW + 8 * ((t - 48) % 2) + 4 * tl, 4)
                D = vr(V_AC + 16 * tl, 16)
                a(f'v_mfma_f32_32x32x16_bf16 {D}, {w}, {x}, {D if n else 0}')
                if tl == 0:
                    m = n + NF - 1
                    if m == 64:
                        a(f'v_cmp_eq_u32 vcc, 0, v{V_FR}')
                        S(G_KMO, [(G_NXT, 0, None, 18)], OA)
                        a(f's_cmp_eq_u64 vcc, 0')
                        a(f's_cselect_b32 s{G_NOK}, 1, 0')
                        a(f's_cmp_ge_u32 s{G_NXT}, {LS}')
                        a(f's_cselect_b32 s{G_NOK}, 0, s{G_NOK}')
                        a(f's_cmp_eq_u32 s{G_NOK}, 0')
                        a(f's_cselect_b32 s{G_KMO}, s{G_OAO}, s{G_KMO}')
                    ldA(m % 64, G_OAO if m < 64 else G_KMO)
                    if n == FL:
                        if self.sync: a(f'buffer_load_dword v{V_FR}, v{V_FP}, {WS}, s{G_FSO} offen sc1')
                        else: a(f'buffer_load_dword v{V_T1}, v{V_FP}, {WS}, s{G_FSO} offen sc1'); a(f'v_mov_b32 v{V_FR}, 127')
                        if TC & 2: a(f'buffer_load_dword v{V_FR2}, v{V_FP}, {WS}, s{G_FS2} offen sc1')
                    if n == 60 and TC & 2:
                        a(f'v_cmp_eq_u32 vcc, 0, v{V_FR2}')
                        S(G_FS2, [(G_N2, 0, None, 18)], OA)
                        a(f's_cmp_eq_u64 vcc, 0')
                        a(f's_cselect_b32 s{G_FS2}, s{G_FS2}, s{G_OAO}')
                        a(f's_cmp_ge_u32 s{G_N2}, {NSEG}')
                        a(f's_cselect_b32 s{G_FS2}, s{G_OAO}, s{G_FS2}')
                    if n == 63 and TC & 2: touch(G_FS2)
                    if m == 64 and TC & 4: touch(G_KMO)
            if t >= 48 and t < 63: ldW(t - 48 + 1)
        self.acc(1)
        def reduce(hs):
            a('s_barrier')
            for b in range(8):
                if b // 4 in hs: a(f'ds_write_b128 v{V_RW}, {vr(V_AC+4*b,4)} offset:{b*1024}')
            a('s_waitcnt lgkmcnt(0)')
            a('s_barrier')
            for h in hs:
                for w in range(4): a(f'ds_read_b128 {vr(V_AC+16*h+4*w,4)}, v{V_RR} offset:{h*4096+w*8192}')
            for h in hs:
                R = V_AC + 16 * h
                a(f's_waitcnt lgkmcnt({4 * (hs[-1] - h)})')
                for j in (0, 2): a(f'v_pk_add_f32 {vr(R+j,2)}, {vr(R+j,2)}, {vr(R+4+j,2)}')
                for j in (0, 2): a(f'v_pk_add_f32 {vr(R+8+j,2)}, {vr(R+8+j,2)}, {vr(R+12+j,2)}')
                for j in (0, 2): a(f'v_pk_add_f32 {vr(R+j,2)}, {vr(R+j,2)}, {vr(R+8+j,2)}')
                for j in range(2): a(f'v_cvt_pk_bf16_f32 v{V_LW+8+2*h+j}, v{R+2*j}, v{R+2*j+1}')
                a(f'buffer_store_dwordx2 {vr(V_LW+8+2*h,2)}, v{V_OUT}, s[{G_OUT}:{G_OUT+3}], s{G_OUO} offen offset:{h*64}{self.ost}')
        reduce((0, 1))
        self.acc(2)
        a(f's_mov_b32 s{G_SEG}, s{G_NXT}')
        a(f's_mov_b32 s{G_OAO}, s{G_KMO}')
        a(f's_cmp_lg_u32 s{G_NOK}, 0')
        a(f's_cbranch_scc1 {lgo}')
        a(f's_cmp_lt_u32 s{G_SEG}, {LS}')
        a(f's_cbranch_scc1 {lp}')
        if self.QL:
            le = a.newlabel('o6_e'); lt1 = a.newlabel('o6_t1')
            a(f's_cmp_ge_u32 s{G_Q}, 4')
            a(f's_cbranch_scc1 {le}')
            a(f's_mov_b32 s{G_SEG}, {LS}')
            a(f's_lshl_b32 s{G_OUO}, s{G_SEG}, 17')
            a(f's_lshr_b32 s{G_T1}, s{G_Q}, 1')
            a(f'v_bfe_u32 v{V_T0}, v{V_L}, 4, 1')
            self.keep(V_FA, f'v_cmp_eq_u32 vcc, s{G_T1}, v{V_T0}')
            a(f's_lshr_b32 s{G_T0}, s{G_WV}, 1')
            a(f's_cmp_eq_u32 s{G_T0}, s{G_T1}')
            self.keep(V_OUT, 's_cselect_b64 vcc, -1, 0')
            start(self.QL)
            a(f's_bitcmp1_b32 s{G_Q}, 0')
            a(f's_cbranch_scc1 {lt1}')
            for tl in range(2):
                if tl: a.label(lt1)
                ldW(0, (tl,))
                for n in range(64):
                    t = order[n]
                    a(f's_waitcnt vmcnt({min(NF - 2, 63 - n)})')
                    if t >= 48: a('s_waitcnt lgkmcnt(0)')
                    w = wreg(t, tl) if t < 48 else vr(V_LW + 8 * ((t - 48) % 2) + 4 * tl, 4)
                    D = vr(V_AC + 16 * ((n & 1) ^ tl), 16)
                    a(f'v_mfma_f32_32x32x16_bf16 {D}, {w}, {vr(V_F + 4 * (n % NF), 4)}, {D if n > 1 else 0}')
                    if n + NF - 1 < 64: ldA(n + NF - 1, G_OAO)
                    if t >= 48 and t < 63: ldW(t - 48 + 1, (tl,))
                for j in range(0, 16, 2): a(f'v_pk_add_f32 {vr(V_AC+16*tl+j,2)}, {vr(V_AC+j,2)}, {vr(V_AC+16+j,2)}')
                reduce((tl,))
                if not tl: a(f's_branch {le}')
            a.label(le)
        self.mark(5)
        a(f's_branch {LNEXT}')
```

```python
from asmlib import *
from layout import *
import math, struct

def srd(a, s, ptr, nbytes):
    a(f's_mov_b32 s{s}, s{ptr}')
    a(f's_and_b32 s{s+1}, s{ptr+1}, 0xffff')
    a(f's_mov_b32 s{s+2}, {nbytes}')
    a(f's_mov_b32 s{s+3}, 0x00020000')

def lane(a, dst, tmp, VL, terms, add=None):
    first = True
    for sh, w, out in terms:
        t = dst if first else tmp
        if sh + w >= 6: a(f'v_lshrrev_b32 v{t}, {sh}, v{VL}')
        elif sh == 0: a(f'v_and_b32 v{t}, {(1 << w) - 1}, v{VL}')
        else: a(f'v_bfe_u32 v{t}, v{VL}, {sh}, {w}')
        if first:
            if out: a(f'v_lshlrev_b32 v{dst}, {out}, v{dst}')
        else: a(f'v_lshl_add_u32 v{dst}, v{tmp}, {out}, v{dst}')
        first = False
    if add is not None: a(f'v_add_u32 v{dst}, {add}, v{dst}')

def sexpr(a, dst, tmp, terms, const=0):
    first = True
    for sreg, sh, w, out in terms:
        t = dst if first else tmp
        src = sreg
        if sh: a(f's_lshr_b32 s{t}, s{src}, {sh}'); src = t
        if w is not None: a(f's_and_b32 s{t}, s{src}, {(1 << w) - 1}'); src = t
        if out: a(f's_lshl_b32 s{t}, s{src}, {out}'); src = t
        if first:
            if src != dst: a(f's_mov_b32 s{dst}, s{src}')
        else: a(f's_add_u32 s{dst}, s{dst}, s{src}')
        first = False
    if const: a(f's_add_u32 s{dst}, s{dst}, {const}')

S_PFL = 3
S_WS = 4
S_WQ = 8
S_WO = 20
S_M0 = 24
S_RID, S_H, S_I, S_W, S_STEP = 28, 29, 30, 31, 32
S_SL0, S_SL1, S_SL2 = 33, 34, 35
S_SC, S_KV = 36, 37
S_T0, S_T1, S_T2 = 38, 39, 40
S_SPIN = 41
S_MLO8 = 42
S_MHI = 44
S_MHI8 = 46
S_PAR = 48
S_HB = 49
S_C = 50
S_KXB = 51
S_TS = 52
S_TAG = 54
S_MBO = 55
S_MK = 56
S_PTR = 72
S_NSO = 88
S_WSP = 90
S_DBG = 92
S_SEEN, S_FKV, S_FAST, S_FRO = 94, 95, 96, 97
S_NSI, S_NBO, S_NBI = 89, 98, 99

L_QK = 0
L_V = 10240
L_OP = 14336
L_X = 15360
L_KX = 131072

def gen_rec(a, prof=0, nsteps=NSEG, sync=False, DA=1, DB=2, DC=0, PLAINB=1, TPOS=1, TA=0, NEAR=1, ILA=4, ILC=4, SEP=0, ROT=0, OMAP=0, RDYP=26, MIX=0, TW=1, KC=2, KA=1, CJ=3, LB=1, RING=0, ASY=1, NSP=0, ZD=0, XP=0, PMK=0, TLBW=0, GV=0, STG=0, FS=0, POLP=38, WPF=0, ARP=18, WFL=0, QFL=0, LOC=0, ADP=0, ADS=2, ADM=8, EA=0, EC=0):
    V_L, V_T0, V_T1, V_T2 = 1, 2, 3, 4
    V_IDX = 5
    V_MEMST, V_AOFF, V_COFF, V_COFF2 = 6, 7, 12, 13
    V_FF = 8
    V_QKW, V_QKW2, V_L16, V_VW, V_QKR, V_SCST, V_SCST2, V_SCLM = 14, 15, 16, 17, 18, 19, 20, 21
    V_SCL = [22, 23, 24]
    V_VR, V_VR2, V_OST, V_OPW, V_OPR, V_PFG, V_CK = 25, 26, 27, 28, 29, 30, 31
    V_ONE = 32
    V_MA = 36
    V_VX, V_KX = 52, 60
    V_D = 68
    V_S = 68
    V_PTG, V_NSA, V_SCCL, V_OCL = 92, 93, 94, 95
    V_X = 96
    V_R = 100
    V_TKST, V_TKSA, V_TG, V_M, V_M2 = 132, 133, 134, 135, 136
    V_VM = 138
    V_ZZ = 144
    V_TR = 148
    V_P = 156
    V_LD = 164
    V_NS = 180
    V_GQ, V_GO, V_TRQ, V_TRO = 184, 185, 186, 187
    V_FRA, V_NBA = 137, 26
    V_NB = 188
    V_FRV = V_NB
    V_CK2 = 4
    TRMAP = {0: 0, 2: 1, 5: 3, 8: 4, 10: 5, 'b': 2, 7: 6, 11: 7}
    TSR = [8, 10, 12, 14, 16, 18, 58, 20, 22, 24, 26, 56]
    def ts(k):
        if prof != 3: return
        r = 56 if k == 0 else (58 if k == 'o' else 8 + 2 * k)
        a(f's_memtime s[{r}:{r+1}]')
    def harvest():
        if prof != 3: return
        a('s_waitcnt lgkmcnt(0)')
        lh = a.newlabel('hv')
        a(f's_cmp_le_u32 s{S_STEP}, 3')
        a(f's_cbranch_scc1 {lh}')
        for k in range(1, 12):
            a(f's_sub_u32 s{S_TS}, s{TSR[k]}, s{TSR[k-1]}')
            a(f'v_readlane_b32 s{S_TS+1}, v{V_TR+1}, {k}')
            a(f's_add_u32 s{S_TS}, s{S_TS}, s{S_TS+1}')
            a(f'v_writelane_b32 v{V_TR+1}, s{S_TS}, {k}')
        a.label(lh)
        a('s_mov_b32 s8, s56')
    def stamp(k):
        if prof not in (1, 2): return
        e = TRMAP[k]
        if prof == 2 and k not in (5, 10, 7, 11): return
        lsk = a.newlabel('st')
        a(f's_cmp_eq_u32 s{S_W}, 3')
        a(f's_cbranch_scc1 {lsk}')
        a(f's_memrealtime s[{S_TS}:{S_TS+1}]')
        a('s_waitcnt lgkmcnt(0)')
        if k in (10, 11):
            a(f's_sub_u32 s{S_TS+1}, s{S_STEP}, 1')
            a(f's_mov_b32 m0, s{S_TS+1}')
        else:
            a(f's_mov_b32 m0, s{S_STEP}')
        a(f's_lshl_b32 s{S_TS}, s{S_TS}, 8')
        a(f's_and_b32 s{S_TS+1}, s{S_SPIN}, 0xff')
        a(f's_or_b32 s{S_TS}, s{S_TS}, s{S_TS+1}')
        a(f'v_writelane_b32 v{V_TR+e}, s{S_TS}, m0')
        a.label(lsk)
    def pmark(e, alt=0):
        if e in (2, 5, 6) and alt != PMK: return
        if prof == 5:
            if e in (2, 3, 7, 0):
                a(f's_memrealtime s[{S_TS}:{S_TS+1}]')
                a('s_waitcnt lgkmcnt(0)')
                a(f'v_mov_b32 v{V_TR}, s{S_TS}'); a(f'v_mov_b32 v{V_TR+1}, 0')
                a('s_mov_b64 exec, 1')
                a(f'global_atomic_umax v{V_TR+1}, v{V_TR}, s[{S_DBG}:{S_DBG+1}] offset:{4*{2: 1, 3: 2, 7: 3, 0: 4}[e]} sc1')
                a('s_mov_b64 exec, -1')
            return
        if not prof: return
        a(f's_memrealtime s[{S_TS}:{S_TS+1}]')
        a('s_waitcnt lgkmcnt(0)')
        a(f's_lshl_b32 s{S_TS}, s{S_TS}, 8')
        a(f'v_writelane_b32 v{V_TR+e}, s{S_TS}, 63')
    def L(dst, terms, add=None): lane(a, dst, V_T2, V_L, terms, add)
    def S(dst, terms, const=0): sexpr(a, dst, S_T2, terms, const)
    def spin_guard(lgive):
        a(f's_add_u32 s{S_SPIN}, s{S_SPIN}, 1')
        a(f's_cmp_ge_u32 s{S_SPIN}, 0x80000')
        a(f's_cbranch_scc1 {lgive}')
    def keep(reg, cond):
        a(cond)
        a(f'v_mov_b32 v{V_T2}, {OOB}')
        a(f'v_cndmask_b32 v{reg}, v{V_T2}, v{reg}, vcc')

    P = S_PTR
    a(f's_load_dwordx2 s[{P}:{P+1}], s[0:1], {K_MEM0}')
    a(f's_load_dwordx4 s[{P+4}:{P+7}], s[0:1], {K_WQ}')
    a(f's_load_dwordx4 s[{P+8}:{P+11}], s[0:1], {K_WV}')
    a(f's_load_dwordx2 s[{S_WSP}:{S_WSP+1}], s[0:1], {K_WS}')
    a(f's_load_dwordx2 s[{S_DBG}:{S_DBG+1}], s[0:1], {K_DBG}')
    a(f'v_and_b32 v{V_L}, 63, v0')
    a(f'v_lshrrev_b32 v{V_T0}, 6, v0')
    a(f'v_readfirstlane_b32 s{S_W}, v{V_T0}')
    a(f's_lshr_b32 s{S_H}, s{S_RID}, 2')
    a(f's_and_b32 s{S_I}, s{S_RID}, 3')
    a(f's_mov_b32 s{S_SPIN}, 0')
    if prof: a('s_mov_b32 s100, 0'); a('s_mov_b32 s101, 0')
    a('s_waitcnt lgkmcnt(0)')
    srd(a, S_M0, P, 16384)
    srd(a, S_WQ, P + 4, 8 * MB)
    srd(a, S_WQ + 4, P + 6, 8 * MB)
    srd(a, S_WQ + 8, P + 8, 8 * MB)
    srd(a, S_WO, P + 10, 8 * MB)
    srd(a, S_WS, S_WSP, WS_BYTES)
    WS = f's[{S_WS}:{S_WS+3}]'
    a(f's_sub_u32 s{S_HB}, 0, s{S_WSP}')
    a(f's_and_b32 s{S_HB}, s{S_HB}, {2*MB-1}')
    a(f's_add_u32 s{S_HB}, s{S_HB}, {HOFF}')

    if prof:
        for e in range(8): a(f'v_mov_b32 v{V_TR+e}, 0')
    lsk = a.newlabel('rec_cal')
    assert FS or not sync
    a(f's_mov_b32 s{S_PAR}, 0')
    cal0 = len(a.lines)
    a(f's_cmp_lg_u32 s{S_W}, 3')
    a(f's_cbranch_scc1 {lsk}')
    S(S_T0, [(S_RID, 0, 3, 21), (S_RID, 3, 1, 13), (S_RID, 4, 3, 8), (S_HB, 0, None, 0)], 15 * 16384)
    S(S_T1, [(S_RID, 3, 1, 14)])
    a(f's_sub_u32 s{S_T1}, s{S_T0}, s{S_T1}')
    a(f's_add_u32 s{S_T1}, s{S_T1}, 8192')
    a(f's_load_dword s{P+8}, s[{S_WSP}:{S_WSP+1}], s{S_T0} glc')
    a(f's_load_dword s{P+9}, s[{S_WSP}:{S_WSP+1}], s{S_T1} glc')
    for k in range(2):
        a('s_waitcnt lgkmcnt(0)')
        a(f's_memtime s[{P+4}:{P+5}]')
        a('s_waitcnt lgkmcnt(0)')
        a(f's_load_dword s{P+8}, s[{S_WSP}:{S_WSP+1}], s{S_T0+k} glc')
        a('s_waitcnt lgkmcnt(0)')
        a(f's_memtime s[{P+6}:{P+7}]')
        a('s_waitcnt lgkmcnt(0)')
        a(f's_sub_u32 s{P+k}, s{P+6}, s{P+4}')
    a(f's_cmp_lt_u32 s{P+1}, s{P}')
    a(f's_cselect_b32 s{S_T0}, 1, 0')
    a(f's_lshr_b32 s{S_T1}, s{S_RID}, 3')
    a(f's_xor_b32 s{S_T0}, s{S_T0}, s{S_T1}')
    a(f's_xor_b32 s{S_T0}, s{S_T0}, s{S_RID}')
    S(S_PAR, [(S_T0, 0, 1, VOTE_SH)])
    if GV: del a.lines[cal0:]
    a.label(lsk)
    pmark(2)
    S(S_T0, [(S_W, 0, None, 19 if LOC & 2 else 21), (S_RID, 0, None, 6)])
    L(V_GQ, [(2, 4, 13), (0, 2, 4)], f's{S_T0}')
    S(S_T0, [(S_W, 0, None, 19 if LOC & 1 else 21), (S_RID, 1, None, 5)])
    L(V_GO, [(1, 5, 11), (0, 1, 4)], f's{S_T0}')
    S_LB = S_SL0
    a(f's_lshl_b32 s{S_LB}, s{S_W}, 15')
    L(V_TRQ, [(4, 2, 9), (2, 2, 6), (0, 2, 3)], f's{S_LB}')
    L(V_TRO, [(4, 2, 8), (2, 2, 5), (0, 2, 3)], f's{S_LB}')
    pairs = []
    def wq_reg(kb, tile): return ('a', (kb * 6 + tile) * 8)
    def wo_reg(kb):
        return ('a', 192 + kb * 8) if kb < 8 else ('v', 192 + (kb - 8) * 8)
    for kb in range(4):
        for hf32 in range(2):
            for m in range(3):
                k0 = kb * (256 if LOC & 2 else 64) + hf32 * 32
                ld = [(S_WQ + 4 * m, V_GQ, (k0 + 16 * j) * 8192) for j in range(2)]
                rd = [[], [], [], []]
                for X in range(4):
                    for t in range(2):
                        f, b = wq_reg(kb ^ X ^ 3 if LOC & 2 else kb, m * 2 + t)
                        for q in range(2):
                            r0 = b + hf32 * 4 + q * 2
                            rd[X].append((f'{f}[{r0}:{r0+1}]', V_TRQ, t * 32 + q * 256))
                pairs.append((ld, rd))
    NW = 0
    wop = []
    for kb in range(16):
        ld = [(S_WO, V_GO, (kb * 64 + 32 * j) * 2048) for j in range(2)]
        if LOC & 1: ld = [(S_WO, V_GO, ((kb >> 2) * 1024 + (kb & 3) * 64 + 32 * j) * 2048) for j in range(2)]
        rd = [[], [], [], []]
        for X in range(4):
            f, b = wo_reg(kb ^ ((X ^ 3) << 2) if LOC & 1 else kb)
            for j in range(2):
                for q in range(2):
                    r0 = b + j * 4 + q * 2
                    rd[X].append((f'{f}[{r0}:{r0+1}]', V_TRO, j * 1024 + q * 128))
        wop.append((ld, rd))
    mix = []
    for g in range(8): mix += [wop[2*g], pairs[3*g], pairs[3*g+1], wop[2*g+1], pairs[3*g+2]]
    if MIX == 2: pairs = wop + pairs[0::3] + [x for i, x in enumerate(pairs) if i % 3]
    elif MIX == 4: pairs = wop + pairs
    elif MIX == 5:
        q = pairs; pairs = q[:8]
        for g in range(16): pairs += [wop[g], q[8+g]]
    elif MIX == 3: pairs = pairs[0::3] + wop + [x for i, x in enumerate(pairs) if i % 3]
    else: pairs = mix if MIX else pairs + wop
    NSL = 16
    def issue(p):
        ld, _ = pairs[p]
        for j, (sd, vo, so) in enumerate(ld):
            a(f's_add_u32 m0, s{S_LB}, {(p % NSL) * 2048 + j * 1024}')
            if (STG & 1) and sd == S_WO: a(f's_xor_b32 s{S_T0}, s{S_XO}, {so}')
            elif (STG & 2) and sd != S_WO: a(f's_xor_b32 s{S_T0}, s{S_XQ}, {so}')
            else: a(f's_mov_b32 s{S_T0}, {so}')
            fl = ['', ' nt', ' sc1', ' sc0 sc1', ' sc0 sc1 nt', ' sc1 nt'][WFL if sd == S_WO else QFL]
            a(f'buffer_load_dwordx4 v{vo}, s[{sd}:{sd+3}], s{S_T0} offen{fl} lds')
        ops[0] += 2; pos[p] = ops[0]
        if WPF and WPF <= p < WPF + 16:
            a(f's_mov_b32 s{S_T0}, {(p - WPF) * 64 * 2048}')
            a(f'buffer_load_dwordx4 v[252:255], v{V_X}, s[{S_WO}:{S_WO+3}], s{S_T0} offen')
            ops[0] += 1
    ops = [0]; pos = {}
    S(S_T0, [(S_W, 0, None, 21), (S_RID, 0, 3, 14), (S_RID, 3, None, 7)])
    L(V_X, [(3, 3, 11), (0, 3, 4)], f's{S_T0}')
    S_XO, S_XQ = 60, 61
    S(S_XO, [(S_RID, 0, 3, 18)])
    S(S_XQ, [(S_RID, 0, 1, 20)])
    if LOC:
        S(S_XO, [(S_RID, 5, 2, 21)])
        a(f's_xor_b32 s{S_XO}, s{S_XO}, {3 << 21}')
        a(f's_mov_b32 s{S_XQ}, s{S_XO}')
    issued = 0
    FB = NSL if NW else 6
    for p in range(FB):
        issue(p); issued += 1
    pmark(2, 2)
    L(V_T0, [(1, 1, 0)])
    a(f'v_mov_b32 v{V_T1}, 0xaaaa')
    a(f'v_mul_u32_u24 v{V_T0}, v{V_T0}, v{V_T1}')
    a(f'v_add_u32 v{V_IDX}, 0x4444, v{V_T0}')
    a(f'v_lshlrev_b32 v{V_L16}, 4, v{V_L}')
    BLK = 16384
    S(S_T0, [(S_RID, 6, None, 14), (S_RID, 0, 6, 7)], 8 * BLK)
    a(f'v_lshl_add_u32 v{V_MEMST}, v{V_L}, 2, s{S_T0}')
    S(S_T0, [(S_W, 0, None, 10)] if LOC & 2 else [(S_W, 1, None, 14), (S_W, 0, 1, 12)], 8 * BLK)
    a(f'v_add_u32 v{V_AOFF}, s{S_T0}, v{V_L16}')
    S(S_T0, [(S_RID, 0, 1, 16), (S_W, 0, None, 11 if LOC & 1 else 14)])
    a(f'v_add_u32 v{V_COFF}, s{S_T0}, v{V_L16}')
    a(f'v_add_u32 v{V_COFF2}, 4096, v{V_COFF}')
    a(f'v_lshrrev_b32 v{V_T0}, 4, v{V_L}')
    a(f'v_mul_u32_u24 v{V_T0}, 320, v{V_T0}')
    a(f'v_and_b32 v{V_T1}, 15, v{V_L}')
    a(f'v_lshl_add_u32 v{V_T0}, v{V_T1}, 2, v{V_T0}')
    a(f's_mul_i32 s{S_T0}, s{S_W}, 2560')
    a(f'v_add_u32 v{V_QKW}, s{S_T0}, v{V_T0}')
    a(f'v_add_u32 v{V_QKW2}, 1280, v{V_QKW}')
    S(S_T0, [(S_W, 0, None, 10)], L_V)
    a(f'v_add_u32 v{V_VW}, s{S_T0}, v{V_L16}')
    L(V_T0, [(0, 2, 1), (2, 1, 0)], 8)
    a(f'v_and_b32 v{V_T1}, 15, v{V_L}')
    a(f'v_cmp_gt_u32 vcc, 8, v{V_T1}')
    a(f'v_cndmask_b32 v{V_T1}, v{V_T0}, v{V_T1}, vcc')
    a(f'v_mul_u32_u24 v{V_T1}, 160, v{V_T1}')
    L(V_T0, [(5, 1, 6), (4, 1, 4)])
    a(f'v_add_u32 v{V_QKR}, v{V_T0}, v{V_T1}')
    a(f's_lshl_b32 s{S_T0}, s{S_RID}, 11')
    a(f'v_add_u32 v{V_SCST}, s{S_T0}, v{V_L16}')
    L(V_SCST2, [(4, 1, 7), (0, 3, 4)], f's{S_T0}')
    for k in range(3):
        a(f's_add_u32 s{S_T1}, s{S_I}, {k+1}')
        S(S_T0, [(S_T1, 0, 2, 11), (S_H, 0, None, 13)])
        a(f'v_add_u32 v{V_SCL[k]}, s{S_T0}, v{V_L16}')
    a(f's_lshl_b32 s{S_T0}, s{S_H}, 13')
    L(V_SCLM, [(4, 2, 11), (0, 4, 4)], f's{S_T0}')
    E0 = [(3, 1, 8), (1, 1, 6), (2, 1, 5), (0, 1, 4)]
    L(V_VR, [(4, 2, 8), (3, 1, 3)] + E0[1:], L_V)
    S(S_T0, [(S_RID, 0, None, 11), (S_W, 0, 1, 7)], PA + PA_M)
    L(V_T0, [(3, 1, 8), (0, 3, 4), (4, 1, 9), (5, 1, 10)], f's{S_T0}')
    a(f's_add_u32 s{S_T0}, s{S_T0}, {PA_M}')
    L(V_T1, E0 + [(4, 1, 9), (5, 1, 10)], f's{S_T0}')
    a(f's_cmp_lt_u32 s{S_W}, 2')
    a(f's_cselect_b64 vcc, -1, 0')
    a(f'v_cndmask_b32 v{V_PFG}, v{V_T1}, v{V_T0}, vcc')
    a(f's_lshl_b32 s{S_PFL}, s{S_W}, 10')
    S(S_T0, [(S_H, 3, None, 14), (S_H, 0, 3, 10), (S_I, 0, 1, 9), (S_I, 1, None, 7)])
    L(V_OST, [(2, 1, 16), (5, 1, 8), (1, 1, 6), (4, 1, 5), (0, 1, 4)], f's{S_T0}')
    S(S_T1, [(S_W, 1, None, 16), (S_W, 0, 1, 8), (S_T0, 0, None, 0)])
    a(f'v_add_u32 v{V_OCL}, s{S_T1}, v{V_L16}')
    keep(V_OCL, f'v_cmp_gt_u32 vcc, 8, v{V_L}')
    S(S_T0, [(S_W, 0, None, 8)], L_OP)
    a(f'v_lshl_add_u32 v{V_OPW}, v{V_L}, 2, s{S_T0}')
    L(V_OPR, [(2, 1, 7), (4, 1, 6), (0, 2, 4), (3, 1, 3)], L_OP)
    a(f's_mul_i32 s{S_T1}, s{S_W}, 320')
    S(S_T0, [(S_RID, 0, None, 11), (S_T1, 0, None, 0)])
    a(f'v_add_u32 v{V_SCCL}, s{S_T0}, v{V_L16}')
    keep(V_SCCL, f'v_cmp_gt_u32 vcc, 20, v{V_L}')
    a(f's_mul_i32 s{S_T0}, s{S_W}, 3')
    a(f'v_min_u32 v{V_T0}, 2, v{V_L}')
    a(f'v_add_u32 v{V_T0}, s{S_T0}, v{V_T0}')
    a(f'v_min_u32 v{V_T0}, 9, v{V_T0}')
    S(S_T0, [(S_RID, 0, None, 11)], 128 * 2048)
    a(f'v_lshl_add_u32 v{V_PTG}, v{V_T0}, 7, s{S_T0}')
    lw = a.newlabel('rec_ns')
    a(f's_lshl_b32 s{S_T0}, s{S_RID}, 9')
    L(V_NSA, [(4, 2, 7), (0, 2, 5), (2, 1, 4)], f's{S_T0}')
    a('s_mov_b32 vcc_lo, 0xff00ff00'); a('s_mov_b32 vcc_hi, 0xff00ff00')
    a(f's_cmp_eq_u32 s{S_W}, 1')
    a(f's_cbranch_scc1 {lw}')
    a(f's_add_u32 s{S_T0}, s{S_T0}, {VM - KM}')
    a(f'v_add_u32 v{V_NSA}, s{S_T0}, v{V_L16}')
    a('s_mov_b32 vcc_lo, -1'); a('s_mov_b32 vcc_hi, 0')
    a(f's_cmp_eq_u32 s{S_W}, 2')
    a(f's_cbranch_scc1 {lw}')
    S(S_T0, [(S_RID, 6, None, 14), (S_RID, 0, 6, 7)], 8 * BLK)
    a(f'v_add_u32 v{V_NSA}, s{S_T0}, v{V_L16}')
    a(f's_cmp_eq_u32 s{S_W}, 3')
    a('s_cselect_b32 vcc_lo, 0xff, 0')
    a.label(lw)
    keep(V_NSA, 's_nop 0')
    for j in range(4): a(f'v_mov_b32 v{V_ONE+j}, 0x3f803f80')
    for j in range(4): a(f'v_mov_b32 v{V_FF+j}, -1')
    for j in range(4): a(f'v_mov_b32 v{V_ZZ+j}, 0')
    for j in range(4): a(f'v_mov_b32 v{V_NS+j}, 0')
    for j in range(5, 8): a(f'v_mov_b32 v{V_P+j}, 0')
    for j in range(6): a(f'v_mov_b32 v{V_VM+j}, 0')
    a(f's_mov_b32 s{S_MLO8}, 0x00ff00ff'); a(f's_mov_b32 s{S_MLO8+1}, 0x00ff00ff')
    a(f's_mov_b32 s{S_MHI}, 0'); a(f's_mov_b32 s{S_MHI+1}, -1')
    a(f's_mov_b32 s{S_MHI8}, 0'); a(f's_mov_b32 s{S_MHI8+1}, 0x00ff00ff')
    c = (128 ** -0.5) * math.log2(math.e)
    a(f's_mov_b32 s{S_C}, 0x{struct.unpack("<I", struct.pack("<f", c))[0]:08x}')
    a(f's_mov_b32 s{S_SC}, {SCB}')
    a(f's_mov_b32 s{S_KV}, 0')
    a(f's_mov_b32 s{S_STEP}, 0')
    a(f's_mov_b32 s{S_KXB}, {L_KX}')
    a(f's_mov_b32 s{S_TAG}, 1')
    a(f's_min_u32 s{S_T0}, s{S_W}, 1')
    a(f's_add_u32 s{S_T0}, s{S_T0}, 1')
    a(f'v_mov_b32 v{V_TG}, s{S_T0}')

    S(S_FKV, [(S_H, 0, None, 7), (S_W, 1, None, 2)], FLG + F_SLA + 4)
    S(S_FRO, [(S_H, 0, None, 7)], FLG + F_REC)
    S(S_T0, [(S_I, 0, None, 4), (S_FRO, 0, None, 0)])
    a(f'v_mov_b32 v{V_FRA}, s{S_T0}')
    a(f's_cmp_eq_u32 s{S_W}, 2')
    keep(V_FRA, 's_cselect_b64 vcc, 1, 0')
    a(f's_mov_b32 s{S_SEEN}, 0')
    def wait_kv(target):
        if not sync: return
        lp = a.newlabel('rec_kv'); ld = a.newlabel('rec_kvd')
        a(f's_cmp_gt_u32 s{S_SEEN}, {target}')
        a(f's_cbranch_scc0 {lp}')
        a.label(ld)
        def tl():
            a.label(lp)
            a(f's_load_dword s{S_SEEN}, s[{S_WSP}:{S_WSP+1}], s{S_FKV} glc')
            spin_guard(ld)
            a('s_waitcnt lgkmcnt(0)')
            a(f's_cmp_gt_u32 s{S_SEEN}, {target}')
            a(f's_cbranch_scc1 {ld}')
            a('s_sleep 2')
            a(f's_branch {lp}')
        tails.append(tl)
    tails = []
    for par in range(2):
        for sl in range(2):
            a(f's_add_u32 s{S_T0}, s{S_HB}, {par*8192 + sl*SLOT}')
            a(f'buffer_store_dwordx4 {vr(V_ZZ,4)}, v{V_OCL}, {WS}, s{S_T0} offen sc1')
    a(f'buffer_store_dwordx4 {vr(V_FF,4)}, v{V_SCCL}, {WS}, s{S_SC} offen sc1')
    a(f'v_add_u32 v{V_SCCL}, {128*2048}, v{V_SCCL}')
    a(f'buffer_store_dwordx4 {vr(V_FF,4)}, v{V_SCCL}, {WS}, s{S_SC} offen sc1')
    a(f'v_add_u32 v{V_SCCL}, {128*2048}, v{V_SCCL}')
    a(f'buffer_store_dwordx4 {vr(V_FF,4)}, v{V_SCCL}, {WS}, s{S_SC} offen sc1')
    a(f'buffer_store_dword v{V_ZZ}, v{V_FRA}, {WS}, 0 offen sc1')
    l3 = a.newlabel('rec_i3')
    a(f's_cmp_lg_u32 s{S_W}, 3')
    a(f's_cbranch_scc1 {l3}')
    for par in range(2):
        a(f's_add_u32 s{S_T0}, s{S_HB}, {par*8192 + SLOT}')
        a(f'buffer_store_dwordx4 {vr(V_ZZ,4)}, v{V_NSA}, {WS}, s{S_T0} offen sc1')
    S(S_T1, [(S_RID, 5, None, 14), (S_RID, 0, 5, 8), (S_HB, 0, None, 0)], 10 * BLK)
    a('s_mov_b64 exec, 0xffff')
    for par in range(2):
        a(f's_add_u32 s{S_T0}, s{S_T1}, {par*8192}')
        a(f'buffer_store_dwordx4 {vr(V_ZZ,4)}, v{V_L16}, {WS}, s{S_T0} offen sc1')
    a('s_mov_b64 exec, -1')
    a.label(l3)
    a(f's_lshl_b32 s{S_T0}, s{S_W}, {7 if LOC & 2 else 9}')
    L(V_T0, [(2, 2, 12), (0, 1, 11), (4, 2, 5), (1, 1, 2)], f's{S_T0}')
    for c in range(4):
        if LOC & 2:
            a(f's_lshr_b32 s{S_T0}, s{S_XQ}, 12')
            a(f's_xor_b32 s{S_T0}, s{S_T0}, {c*512}')
        elif c % 2 == 0:
            a(f's_lshr_b32 s{S_T0}, s{S_XQ}, 12') if STG & 2 else a(f's_mov_b32 s{S_T0}, 0')
            a(f's_xor_b32 s{S_T0}, s{S_T0}, {c*128}')
        for p in range(4):
            a(f'buffer_load_dword v{V_MA+4*c+p}, v{V_T0}, s[{S_M0}:{S_M0+3}], s{S_T0} offen offset:{(0 if LOC & 2 else (c&1)*128)+p*8}')
    ops[0] += 24
    for p in range(FB, NSL):
        issue(p); issued += 1
    pmark(5, 2)
    NV = 4 if LOC else 1
    lv = [a.newlabel('rec_wv') for _ in range(NV)]; lvj = a.newlabel('rec_wj')
    for X in range(1, NV):
        a(f's_cmp_eq_u32 s{S_XO}, {(X ^ 3) << 21}')
        a(f's_cbranch_scc1 {lv[X]}')
    st0 = (issued, ops[0], dict(pos))
    for X in range(NV):
        a.label(lv[X])
        issued = st0[0]; ops[0] = st0[1]; pos.clear(); pos.update(st0[2])
        for p in range(NW, len(pairs)):
            if p == 1: pmark(6, 2)
            a(f's_waitcnt vmcnt({min(63, ops[0] - pos[p])})')
            if FS and p == ARP:
                srd(a, S_M0, S_DBG, 256)
                a(f's_add_u32 s{S_PAR}, s{S_PAR}, s{S_BAD}')
                a(f's_mov_b32 s{S_T0}, {OOB}')
                a(f's_cmp_eq_u32 s{S_W}, 0')
                a(f's_cselect_b32 s{S_T0}, {4*D_RDY}, s{S_T0}')
                a(f's_cselect_b32 s{S_T1}, 0, s{S_PAR}')
                a(f's_cmp_eq_u32 s{S_W}, 3')
                a(f's_cselect_b32 s{S_T0}, {4*D_INIT}, s{S_T0}')
                a(f'v_mov_b32 v{V_T2}, s{S_T0}')
                a(f'v_mov_b32 v{V_T0}, 1')
                a(f'v_mov_b32 v{V_T1}, s{S_T1}')
                a('s_mov_b64 exec, 1')
                a(f'buffer_atomic_add_x2 v[{V_T0}:{V_T1}], v{V_T2}, s[{S_M0}:{S_M0+3}], 0 offen sc1')
                a('s_mov_b64 exec, -1')
                ops[0] += 1
            if FS and p == POLP:
                a(f'global_load_dwordx2 {vr(V_X+2,2)}, v{V_ZZ}, s[{S_DBG}:{S_DBG+1}] offset:{4*D_INIT} sc1')
                ops[0] += 1
            if p in (0, 8, 28): pmark({0: 2, 8: 5, 28: 6}[p], 1)
            if p == TLBW and TLBW:
                a(f'v_lshlrev_b32 v{V_T0}, 21, v{V_L}')
                a(f'v_add_u32 v{V_T1}, {KM - 17*2*MB + 1920}, v{V_T0}')
                a(f'v_add_u32 v{V_T0}, {PA + PA_M + 1920}, v{V_T0}')
                a(f'v_cmp_gt_u32 vcc, 17, v{V_L}')
                a(f'v_cndmask_b32 v{V_T0}, v{V_T1}, v{V_T0}, vcc')
                keep(V_T0, f'v_cmp_gt_u32 vcc, {17 + (FLG - KM) // (2*MB)}, v{V_L}')
                a(f'buffer_load_dword v{V_CK}, v{V_T0}, {WS}, 0 offen sc1')
            if p == 2 and sync:
                a(f'global_load_dword v{V_CK}, v{V_ZZ}, s[{S_DBG}:{S_DBG+1}] offset:{4*D_ROT} sc1')
                ops[0] += 1
            if p == (NSL + 1 if sync else FB):
                lar = a.newlabel('rec_arr')
                if sync: validate(a, V_CK, V_T0, S_DBG, S_SPIN, S_T0)
                a('s_barrier')
                pmark(1)
                arr0 = len(a.lines)
                a(f's_cmp_lg_u32 s{S_W}, 3')
                a(f's_cbranch_scc1 {lar}')
                a(f'v_mov_b32 v{V_T0}, 0')
                if sync: a(f's_add_u32 s{S_PAR}, s{S_PAR}, s{S_BAD}')
                a(f'v_mov_b32 v{V_T1}, s{S_PAR}')
                a('s_mov_b64 exec, 1')
                a(f'global_atomic_add v{V_T0}, v{V_T1}, s[{S_DBG}:{S_DBG+1}] offset:{4*D_INIT} sc1')
                a('s_mov_b64 exec, -1')
                if FS: del a.lines[arr0:]
                a.label(lar)
            if p == RDYP and sync and not FS:
                lar = a.newlabel('rec_rdy')
                a(f's_cmp_lg_u32 s{S_W}, 0')
                a(f's_cbranch_scc1 {lar}')
                a(f'v_mov_b32 v{V_T0}, 0')
                a(f'v_mov_b32 v{V_T1}, 1')
                a('s_mov_b64 exec, 1')
                a(f'global_atomic_add v{V_T0}, v{V_T1}, s[{S_DBG}:{S_DBG+1}] offset:{4*D_RDY} sc1')
                a('s_mov_b64 exec, -1')
                a.label(lar)
            for dst, va, off in pairs[p][1][X]:
                a(f'ds_read_b64_tr_b16 {dst}, v{va} offset:{(p % NSL) * 2048 + off}')
            if p >= NW + 1 and issued < len(pairs):
                a('s_waitcnt lgkmcnt(4)')
                issue(issued); issued += 1
        if X < NV - 1: a(f's_branch {lvj}')
    a.label(lvj)
    a('s_waitcnt lgkmcnt(0)')

    pmark(3)
    V_CO = [V_COFF2, 184, 185, 186, 187, V_SCCL, V_OCL, V_COFF]
    V_AOFF2 = V_FF
    V_AO = [V_FF, V_FF + 1, V_FF + 2, V_AOFF]
    if LOC & 1:
        for c in range(4):
            a(f's_lshr_b32 s{S_T0}, s{S_XO}, 7')
            a(f's_xor_b32 s{S_T0}, s{S_T0}, {c << 14}')
            a(f'v_add_u32 v{V_CO[4+c]}, s{S_T0}, v{V_COFF}')
    if LOC & 2:
        for c in range(4):
            a(f's_lshr_b32 s{S_T1}, s{S_XQ}, 21')
            a(f's_xor_b32 s{S_T1}, s{S_T1}, {c}')
            S(S_T0, [(S_T1, 1, 1, 14), (S_T1, 0, 1, 12)])
            a(f'v_add_u32 v{V_AO[c]}, s{S_T0}, v{V_AOFF}')
    if STG & 1:
        for c in range(8):
            a(f's_lshr_b32 s{S_T0}, s{S_XO}, 8')
            a(f's_xor_b32 s{S_T0}, s{S_T0}, {c*1024}')
            a(f'v_add_u32 v{V_CO[c]}, s{S_T0}, v{V_COFF}')
    if STG & 2:
        a(f's_lshr_b32 s{S_T0}, s{S_XQ}, 9')
        a(f's_xor_b32 s{S_T1}, s{S_T0}, 2048')
        a(f'v_add_u32 v{V_AOFF2}, s{S_T1}, v{V_AOFF}')
        a(f'v_add_u32 v{V_AOFF}, s{S_T0}, v{V_AOFF}')
    for j in range(16): a(f'v_max_u32 v{V_MA+j}, 1, v{V_MA+j}')
    for j in range(24): a(f'v_mov_b32 v{V_D+j}, 0')
    for j in range(16): a(f's_mov_b32 s{P+j}, 0')
    lb = a.newlabel('rec_ib'); lbp = a.newlabel('rec_ibp'); lbq = a.newlabel('rec_ibq')
    a(f'v_mov_b32 v{V_T0}, 0')
    a(f's_branch {lbq}')
    a.label(lbp)
    a('s_sleep 16')
    if not FS: a.label(lbq)
    a(f'global_load_dwordx2 {vr(V_X+2,2)}, v{V_ZZ}, s[{S_DBG}:{S_DBG+1}] offset:{4*D_INIT} sc1')
    spin_guard(lb)
    if FS: a.label(lbq)
    a('s_waitcnt vmcnt(0)')
    a(f'v_readfirstlane_b32 s{S_T1}, v{V_X+2}')
    a(f'v_readfirstlane_b32 s{S_T0}, v{V_X+3}')
    a(f's_cmp_lt_u32 s{S_T1}, {(NARR if GV else NWG) if sync else 128}')
    a(f's_cbranch_scc1 {lbp}')
    a.label(lb)
    if FS:
        a(f's_mov_b32 s{S_SEEN}, 1')
        a(f's_add_u32 m0, s{S_KXB}, s{S_PFL}')
        a(f'buffer_load_dwordx4 v{V_PFG}, {WS}, s{S_KV} offen sc1 lds')
    a(f's_lshr_b32 s{S_FAST}, s{S_T0}, {BAD_SH}')
    a(f's_and_b32 s{S_T0}, s{S_T0}, 0xffff')
    a(f's_cmp_ge_u32 s{S_T0}, {64 if NEAR else 999}')
    a(f's_cselect_b32 s{S_PAR}, -1, 0')
    a(f's_xor_b32 s{S_PAR}, s{S_PAR}, 0xaaa')
    pmark(4)
    S(S_SL0, [(S_PAR, 0, 1, 13), (S_HB, 0, None, 0)])
    a(f's_add_u32 s{S_SL1}, s{S_SL0}, {SLOT}')
    a(f's_add_u32 s{S_SL2}, s{S_SL0}, {2*SLOT}')
    S(S_T0, [(S_RID, 5, None, 4), (S_I, 0, None, 14), (S_SL0, 0, None, 0)], 10 * BLK)
    L(V_TKST, [(0, 5, 8)], f's{S_T0}')
    a(f's_and_b32 s{S_T1}, s{S_H}, { {4: 7, 2: 23, 1: 31}[KC] }')
    a(f's_cmp_eq_u32 s{S_T1}, {CJ}')
    a('s_mov_b32 vcc_hi, 0')
    keep(V_TKST, 's_cselect_b32 vcc_lo, -1, 0')
    a(f'v_add_u32 v{V_TKSA}, 128, v{V_TKST}')
    a(f's_and_b32 s{S_T1}, s{S_H}, { {4: 7, 2: 23, 1: 31}[KA] }')
    a(f's_cmp_eq_u32 s{S_T1}, {CJ}')
    a(f's_cselect_b32 s{S_T1}, s{S_W}, 99')
    a(f's_cmp_eq_u32 s{S_T1}, {TW}')
    keep(V_TKSA, 's_cselect_b64 vcc, -1, 0')
    S(S_MBO, [(S_RID, 5, None, 14), (S_RID, 0, 5, 8), (S_SL0, 0, None, 0)], 10 * BLK)
    a(f's_add_u32 s{S_MHI}, s{S_MBO}, 128')
    lq = a.newlabel('rec_gs'); lq1 = a.newlabel('rec_gs1'); lq2 = a.newlabel('rec_gs2'); lq3 = a.newlabel('rec_gs3')
    a(f'v_mov_b32 v{V_NBA}, {OOB}')
    a(f's_mov_b32 s{S_NBO}, 0'); a(f's_mov_b32 s{S_NBI}, 0')
    a(f's_mov_b32 s{S_NSO}, {KM}'); a(f's_mov_b32 s{S_NSI}, 65536')
    for j in range(4): a(f'v_mov_b32 v{V_NB+j}, 0')
    a(f's_cmp_eq_u32 s{S_W}, 1'); a(f's_cbranch_scc1 {lq1}')
    a(f's_cmp_eq_u32 s{S_W}, 2'); a(f's_cbranch_scc1 {lq2}')
    a(f's_cmp_eq_u32 s{S_W}, 3'); a(f's_cbranch_scc1 {lq3}')
    a(f'v_mov_b32 v{V_NSA}, v{V_SCST}')
    for j in range(4): a(f'v_mov_b32 v{V_NS+j}, -1')
    a(f's_mov_b32 s{S_NSO}, {SCB + 3*128*2048}'); a(f's_mov_b32 s{S_NSI}, {128*2048}')
    a(f's_branch {lq}')
    a.label(lq1)
    a(f'v_mov_b32 v{V_NBA}, v{V_SCST}')
    keep(V_NBA, 's_mov_b64 vcc, 0xffff')
    for j in range(4): a(f'v_mov_b32 v{V_NB+j}, -1')
    a(f's_mov_b32 s{S_NBO}, {SCB + 3*128*2048 + 1024}'); a(f's_mov_b32 s{S_NBI}, {128*2048}')
    a(f's_branch {lq}')
    a.label(lq2)
    a(f'v_mov_b32 v{V_NBA}, v{V_FRA}')
    a(f's_branch {lq}')
    a.label(lq3)
    S(S_T0, [(S_H, 3, None, 14), (S_H, 0, 3, 10), (S_I, 0, 1, 9), (S_I, 1, None, 7)])
    L(V_T0, [(4, 1, 16), (3, 1, 8), (0, 3, 4)], f's{S_T0}')
    a('s_mov_b32 vcc_lo, 0'); a('s_mov_b32 vcc_hi, -1')
    a(f'v_cndmask_b32 v{V_NSA}, v{V_NSA}, v{V_T0}, vcc')
    a(f's_mov_b32 s{S_NSO}, s{S_SL2}')
    a.label(lq)
    a(f's_cmp_eq_u32 s{S_W}, 2')
    a(f's_cselect_b32 s{S_MHI+1}, 1, 0')

    pmark(5)
    if not FS: a('s_barrier')
    pmark(6)
    if not PLAINB: a(f's_mov_b32 s{S_FAST}, 1')
    for j in range(16): a(f's_mov_b32 s{P+j}, 0')
    if not FS: wait_kv(0)
    pmark(7)
    if not FS:
        a(f's_add_u32 m0, s{S_KXB}, s{S_PFL}')
        a(f'buffer_load_dwordx4 v{V_PFG}, {WS}, s{S_KV} offen sc1 lds')
    a('s_waitcnt vmcnt(0)')
    a('s_barrier')
    S_DLA, S_DLC = 62, 63
    if ADP: a(f's_mov_b32 s{S_DLA}, {(DA + 2) << ADS}'); a(f's_mov_b32 s{S_DLC}, {(DC + 2) << ADS}')
    ENTRY = a.newlabel('rec_entry')
    ts(0)
    a(f's_branch {ENTRY}')

    def gather(name, n, load, mf, nacc, noise, ilv, entry=None, pre=None, post=None, E=0):
        ok = a.newlabel(name + 'ok'); fix = a.newlabel(name + 'fix'); efx = a.newlabel(name + 'efx')
        def chunk(c, k, cnt, early=False):
            b = V_MA + 4 * c
            a(f's_waitcnt vmcnt({cnt})')
            ms = mf(c)
            if k == 0: seq = [f'v_min_u32 v{V_CK}, v{b}, v{b+1}', f'v_min_u32 v{V_CK2}, v{b+2}, v{b+3}']
            elif k < n - 1: seq = [f'v_min3_u32 v{V_CK}, v{V_CK}, v{b}, v{b+1}', f'v_min3_u32 v{V_CK2}, v{V_CK2}, v{b+2}, v{b+3}']
            else:
                a(f'v_min3_u32 v{V_CK}, v{V_CK}, v{b}, v{b+1}')
                seq = [f'v_min3_u32 v{V_CK}, v{V_CK}, v{b+2}, v{b+3}', f'v_cmp_eq_u32 vcc, 0, v{V_CK}']
            if k == n - 2 or early: seq.append(f'v_min_u32 v{V_CK}, v{V_CK}, v{V_CK2}')
            if early:
                seq.append(f'v_cmp_eq_u32 vcc, 0, v{V_CK}')
                if len(ms) < 4: a(seq.pop(0)); a(seq.pop(0))
            j = 0
            for m in ms:
                a(m)
                if j < len(seq): a(seq[j]); j += 1
            while j < len(seq): a(seq[j]); j += 1
        def body(first):
            for c in range(n):
                load(c, V_MA + 4 * c)
                if first and ilv and c < n - 1: a(f's_nop {ilv-1}')
            if not first:
                for j in range(0, nacc, 2): a(f'v_mov_b64 {vr(V_D+j,2)}, 0')
            if first and entry: a.label(entry)
            if first and pre: pre()
            iss = 0
            for c in range(n):
                chunk(c, c, n - 1 - c + iss, first and c == E - 1)
                if first and c < len(noise): noise[c](); iss += 1
                if first and c == E - 1:
                    assert iss == len(noise)
                    a(f's_cbranch_vccnz {efx}')
            if first and post: post()
        def tle():
            a.label(efx)
            for c in range(E): load(c, V_MA + 4 * c)
            if prof: a(f's_add_u32 s{100 if nacc == 16 else 101}, s{100 if nacc == 16 else 101}, 256')
            a('s_nop 7')
            for j in range(0, nacc, 2): a(f'v_mov_b64 {vr(V_D+j,2)}, 0')
            for k in range(n):
                c = (k + E) % n
                chunk(c, k, n - 1 - k + (len(noise) if c >= E else 0))
            if post: post()
            a(f's_cbranch_vccnz {fix}')
            a(f's_branch {ok}')
        if E: tails.append(tle)
        body(True)
        a(f's_cbranch_vccnz {fix}')
        a.label(ok)
        def tl():
            a.label(fix)
            if prof: a(f's_add_u32 s{100 if nacc == 16 else 101}, s{100 if nacc == 16 else 101}, 1')
            if ADP:
                R = S_DLA if nacc == 16 else S_DLC
                a(f's_add_u32 s{R}, s{R}, {ADP << ADS}')
                a(f's_min_u32 s{R}, s{R}, {ADM << ADS}')
            spin_guard(ok)
            body(False)
            a(f's_cbranch_vccnz {fix}')
            a(f's_branch {ok}')
        tails.append(tl)

    def halves(m):
        b = V_D + 8 * m
        a(f'v_pk_add_f32 {vr(b,2)}, {vr(b,2)}, {vr(b+2,2)}')
        a(f'v_pk_add_f32 {vr(b+2,2)}, {vr(b+4,2)}, {vr(b+6,2)}')
    S_MB2 = S_MHI
    def tpoll(off):
        T = S_PTR
        K = KA if off else KC
        so = S_MB2 if off else S_MBO
        if K == 2: a(f's_load_dwordx8 s[{T}:{T+7}], s[{S_WSP}:{S_WSP+1}], s{so} glc')
        elif K == 4: a(f's_load_dwordx16 s[{T}:{T+15}], s[{S_WSP}:{S_WSP+1}], s{so} glc')
        else: a(f's_load_dword s{T}, s[{S_WSP}:{S_WSP+1}], s{so} glc')
    def tickwait(off, extra):
        lp = a.newlabel('rec_tk'); ld = a.newlabel('rec_tkd'); lc = a.newlabel('rec_tkc')
        T = S_PTR
        K = KA if off else KC
        a(f's_branch {lc}')
        a.label(lp)
        tpoll(off)
        spin_guard(ld)
        a(f's_sleep {TPOS}' if TPOS else 's_nop 7')
        a.label(lc)
        if K == 4:
            a(f's_min_u32 s{S_T0}, s{T}, s{T+4}')
            a(f's_min_u32 s{S_T1}, s{T+8}, s{T+12}')
            a(f's_min_u32 s{S_T0}, s{S_T0}, s{S_T1}')
        elif K == 2: a(f's_min_u32 s{S_T0}, s{T}, s{T+4}')
        else: a(f's_mov_b32 s{S_T0}, s{T}')
        a(f's_cmp_lt_u32 s{S_T0}, s{S_TAG}')
        a(f's_cbranch_scc1 {lp}')
        a.label(ld)
        a(f's_add_u32 s{S_TAG}, s{S_TAG}, 1')
        if ADP:
            R = S_DLA if off else S_DLC
            lq = a.newlabel('rec_dl'); lz = a.newlabel('rec_dz')
            a(f's_lshr_b32 s{S_T0}, s{R}, {ADS}')
            a.label(lq)
            a(f's_sub_u32 s{S_T0}, s{S_T0}, 1')
            a(f's_cbranch_scc0 {lq}')
            a(f's_sub_u32 s{R}, s{R}, 1')
            a(f's_max_i32 s{R}, s{R}, {extra << ADS}')
        elif extra >= 10:
            for _ in range(extra - 10): a('s_nop 15')
        elif extra: a(f's_sleep {extra}')
    def vmfl():
        r = []
        for c in range(4):
            for t in (4, 5):
                f, b = wq_reg(c, t)
                r.append(f'v_smfmac_f32_16x16x64_bf16 {vr(V_D+4*t,4)}, {vr(V_MA+4*c,4)}, {f}[{b}:{b+7}], v{V_IDX}')
        return r
    def vmf():
        for m in vmfl(): a(m)
    def red4(n):
        for j in range(0, n, 2): a(f'v_pk_add_f32 {vr(V_R+j,2)}, {vr(V_R+j,2)}, {vr(V_R+n+j,2)}')
        for j in range(0, n, 2): a(f'v_pk_add_f32 {vr(V_R+2*n+j,2)}, {vr(V_R+2*n+j,2)}, {vr(V_R+3*n+j,2)}')
        for j in range(0, n, 2): a(f'v_pk_add_f32 {vr(V_R+j,2)}, {vr(V_R+j,2)}, {vr(V_R+2*n+j,2)}')

    LOOP = a.newlabel('rec_loop'); DONE = a.newlabel('rec_done')
    a.label(LOOP)
    a('s_barrier')
    stamp(11)
    ts(0)
    def loadA(c, r):
        if LOC & 2: a(f'buffer_load_dwordx4 {vr(r,4)}, v{V_AO[c]}, {WS}, s{S_SL0} offen sc1'); return
        if STG & 2: a(f'buffer_load_dwordx4 {vr(r,4)}, v{V_AOFF if c < 2 else V_AOFF2}, {WS}, s{S_SL0} offen offset:{(c&1)*1024} sc1')
        else: a(f'buffer_load_dwordx4 {vr(r,4)}, v{V_AOFF}, {WS}, s{S_SL0} offen offset:{c*1024} sc1')
    def mfA(c):
        r = []
        for t in range(4):
            f, b = wq_reg(c, t)
            r.append(f'v_smfmac_f32_16x16x64_bf16 {vr(V_D+4*t,4)}, {vr(V_MA+4*c,4)}, {f}[{b}:{b+7}], v{V_IDX}')
        return r
    def noiseA():
        a(f'buffer_store_dwordx4 {vr(V_FF,4)}, v{V_SCCL}, {WS}, s{S_SC} offen sc1')
    def preA():
        harvest()
        a(f'v_add_u32 v{V_T0}, s{S_KXB}, v{V_L16}')
        for t in range(2): a(f'ds_read_b128 {vr(V_KX+4*t,4)}, v{V_T0} offset:{t*1024}')
        for t in range(2): a(f'ds_read_b128 {vr(V_VX+4*t,4)}, v{V_T0} offset:{2048+t*1024}')
    gather('rec_ga', 4, loadA, mfA, 16, [], ILA, entry=ENTRY, pre=preA, E=EA)
    stamp(0)
    ts(2)
    for m in range(2):
        halves(m)
        va = V_QKW if m == 0 else V_QKW2
        a(f'ds_write2_b32 v{va}, v{V_D+8*m}, v{V_D+8*m+1} offset0:0 offset1:40')
        a(f'ds_write2_b32 v{va}, v{V_D+8*m+2}, v{V_D+8*m+3} offset0:16 offset1:56')
    LB2 = a.newlabel('rec_b2'); LW1 = a.newlabel('rec_w1')
    a(f's_cmp_lg_u32 s{S_W}, 0')
    a(f's_cbranch_scc1 {LW1}')
    a('s_waitcnt lgkmcnt(0)')
    a('s_barrier')
    ts(3)
    vm = vmfl()
    for w in range(4):
        for q in range(2):
            a(f'ds_read_b128 {vr(V_R+8*w+4*q,4)}, v{V_QKR} offset:{L_QK+w*2560+q*32}')
            a(vm.pop(0))
    a('s_waitcnt lgkmcnt(4)')
    for j in range(0, 8, 2): a(f'v_pk_add_f32 {vr(V_R+j,2)}, {vr(V_R+j,2)}, {vr(V_R+8+j,2)}')
    a('s_waitcnt lgkmcnt(2)')
    for j in range(0, 8, 2): a(f'v_pk_add_f32 {vr(V_R+j,2)}, {vr(V_R+j,2)}, {vr(V_R+16+j,2)}')
    a('s_waitcnt lgkmcnt(0)')
    for j in range(0, 8, 2): a(f'v_pk_add_f32 {vr(V_R+j,2)}, {vr(V_R+j,2)}, {vr(V_R+24+j,2)}')
    for j in range(4): a(f'v_cvt_pk_bf16_f32 v{V_X+j}, v{V_R+2*j}, v{V_R+2*j+1}')
    a(f'v_mfma_f32_16x16x32_bf16 {vr(V_S,4)}, {vr(V_KX,4)}, {vr(V_X,4)}, 0')
    a(f'v_mfma_f32_16x16x32_bf16 {vr(V_S+4,4)}, {vr(V_KX+4,4)}, {vr(V_X,4)}, 0')
    a(f'v_mfma_f32_16x16x32_bf16 {vr(V_S+8,4)}, {vr(V_X,4)}, {vr(V_X,4)}, 0')
    a(f's_cmp_lg_u32 s{S_FAST}, 0')
    halves(2)
    def scst(f):
        a(f's_mov_b64 exec, s[{S_MLO8}:{S_MLO8+1}]')
        a(f'buffer_store_dwordx4 {vr(V_S,4)}, v{V_SCST}, {WS}, s{S_SC} offen{f}')
        a(f'buffer_store_dwordx4 {vr(V_S+4,4)}, v{V_SCST}, {WS}, s{S_SC} offen offset:128{f}')
        a(f's_mov_b64 exec, s[{S_MHI8}:{S_MHI8+1}]')
        a(f'buffer_store_dwordx4 {vr(V_S+8,4)}, v{V_SCST2}, {WS}, s{S_SC} offen offset:1024{f}')
        a('s_mov_b64 exec, -1')
    lsl = a.newlabel('rec_slow'); lsr = a.newlabel('rec_slowr')
    a(f's_cbranch_scc1 {lsl}')
    scst('')
    a.label(lsr)
    tails.append(lambda: (a.label(lsl), scst(' sc1'), a(f's_branch {lsr}')))
    a(f'ds_write_b128 v{V_VW}, {vr(V_D+16,4)}')
    a(f'ds_write_b128 v{V_L16}, {vr(V_X,4)} offset:{L_X}')
    stamp(2)
    ts(4)
    LBR = a.newlabel('rec_gbr'); LBO = a.newlabel('rec_gbo'); LBW = a.newlabel('rec_gbw')
    V_Q = V_R + 20
    SETS = [V_LD, V_MA]
    def loadB(LD):
        a(f'buffer_load_dwordx4 {vr(LD+12,4)}, v{V_SCLM}, {WS}, s{S_SC} offen offset:1024 sc1')
        for k in range(3):
            a(f'buffer_load_dwordx4 {vr(LD+4*k,4)}, v{V_SCL[k]}, {WS}, s{S_SC} offen sc1')
    def sumB(LD, base):
        LM = LD + 12
        a(f's_waitcnt vmcnt({base+3})')
        a(f'v_permlane32_swap_b32 v{LM}, v{LM+2}')
        a(f'v_permlane32_swap_b32 v{LM+1}, v{LM+3}')
        a(f'v_pk_add_f32 {vr(V_Q+4,2)}, {vr(LM,2)}, {vr(LM+2,2)}')
        a(f's_waitcnt vmcnt({base+2})')
        for j in range(0, 4, 2): a(f'v_pk_add_f32 {vr(V_Q+j,2)}, {vr(V_S+j,2)}, {vr(LD+j,2)}')
        a(f'v_permlane16_swap_b32 v{V_Q+4}, v{V_Q+5}')
        a(f's_waitcnt vmcnt({base+1})')
        for j in range(0, 4, 2): a(f'v_pk_add_f32 {vr(V_Q+j,2)}, {vr(V_Q+j,2)}, {vr(LD+4+j,2)}')
        a(f'v_add_f32 v{V_Q+4}, v{V_Q+4}, v{V_Q+5}')
        a(f's_waitcnt vmcnt({base})')
        for j in range(0, 4, 2): a(f'v_pk_add_f32 {vr(V_Q+j,2)}, {vr(V_Q+j,2)}, {vr(LD+8+j,2)}')
        a(f'v_maximum3_f32 v{V_M}, v{V_Q}, v{V_Q+1}, v{V_Q+4}')
        a(f'v_maximum3_f32 v{V_M}, v{V_M}, v{V_Q+2}, v{V_Q+3}')
        a(f'v_cmp_u_f32 vcc, v{V_M}, v{V_M}')
        a(f'v_max_f32_dpp v{V_M}, v{V_M}, v{V_M} row_ror:8 row_mask:0xf bank_mask:0xf')
        a(f'v_mov_b32 v{V_M2}, v{V_M}')
    if DB == 0: loadB(SETS[0])
    a('s_waitcnt lgkmcnt(0)')
    a('s_barrier')
    if DB == 1: loadB(SETS[0])
    for w in range(4):
        for t in range(2):
            a(f'ds_read_b64 {vr(V_R+4*w+2*t,2)}, v{V_VR} offset:{w*1024+t*128}')
    for j in range(4): a(f'v_mov_b32_dpp v{V_S+j}, v{V_S+4+j} row_ror:8 row_mask:0xf bank_mask:0xc')
    if DB == 0: loadB(SETS[1])
    if DB == 2: loadB(SETS[0])
    a('s_waitcnt lgkmcnt(0)')
    red4(4)
    if DB == 1: loadB(SETS[1])
    for t in range(2): a(f'v_cvt_pk_bf16_f32 v{V_VM+2*t}, v{V_R+2*t}, v{V_R+2*t+1}')
    if DB == 2: a('s_nop 15'); loadB(SETS[1])
    a(f's_cmp_eq_u32 s{S_STEP}, {nsteps-1}')
    a(f's_cbranch_scc1 {LB2}')
    sumB(SETS[0], 4)
    a(f's_cbranch_vccnz {LBR}')
    a.label(LBO)
    def tlB():
        a.label(LBR)
        for k in range(2):
            LD = SETS[k]
            a(f'v_max3_u32 v{V_CK}, v{LD}, v{LD+1}, v{LD+2}')
            for j in range(3, 15, 2): a(f'v_max3_u32 v{V_CK}, v{V_CK}, v{LD+j}, v{LD+j+1}')
            a(f'v_max_u32 v{V_CK}, v{V_CK}, v{LD+15}')
            loadB(LD)
            a(f'v_cmp_eq_u32 vcc, -1, v{V_CK}')
            spin_guard(LBO)
            a(f's_cbranch_vccz {LBO}')
            sumB(SETS[k ^ 1], 4)
            a(f's_cbranch_vccz {LBO}')
        a(f's_branch {LBR}')
    tails.append(tlB)
    a(f'buffer_store_dword v{V_TG}, v{V_TKST}, {WS}, 0 offen sc1')
    stamp('b')
    ts(5)
    a(f'v_permlane16_swap_b32 v{V_M}, v{V_M2}')
    a(f'v_max_f32 v{V_M}, v{V_M}, v{V_M2}')
    a(f'v_mov_b32 v{V_M2}, v{V_M}')
    a(f'v_permlane32_swap_b32 v{V_M}, v{V_M2}')
    a(f'v_max_f32 v{V_M}, v{V_M}, v{V_M2}')
    a(f'v_mul_f32 v{V_M}, s{S_C}, v{V_M}')
    for j in (4, 0, 1, 2, 3): a(f'v_fma_f32 v{V_Q+j}, v{V_Q+j}, s{S_C}, -v{V_M}')
    for j in (4, 0, 1, 2, 3): a(f'v_exp_f32 v{V_Q+j}, v{V_Q+j}')
    a(f'v_mov_b32_dpp v{V_Q+5}, v{V_Q+4} row_ror:8 row_mask:0xf bank_mask:0xf')
    for j in range(2): a(f'v_cvt_pk_bf16_f32 v{V_P+j}, v{V_Q+2*j}, v{V_Q+2*j+1}')
    a(f'v_cvt_pk_bf16_f32 v{V_P+4}, v{V_Q+4}, v{V_Q+5}')
    for j in range(2): a(f'v_mov_b32_dpp v{V_P+2+j}, v{V_P+j} row_ror:8 row_mask:0xf bank_mask:0xf')
    V_O = V_R + 8
    a(f'v_mfma_f32_16x16x32_bf16 {vr(V_O+8,4)}, {vr(V_ONE,4)}, {vr(V_P+4,4)}, 0')
    a(f'v_mfma_f32_16x16x32_bf16 {vr(V_O+8,4)}, {vr(V_ONE,4)}, {vr(V_P,4)}, {vr(V_O+8,4)}')
    for t in range(2):
        a(f'v_mfma_f32_16x16x32_bf16 {vr(V_O+4*t,4)}, {vr(V_VX+4*t,4)}, {vr(V_P,4)}, 0')
        a(f'v_mfma_f32_16x16x32_bf16 {vr(V_O+4*t,4)}, {vr(V_VM+2*t,4)}, {vr(V_P+4,4)}, {vr(V_O+4*t,4)}')
    V_RC = V_R
    a(f'v_rcp_f32 v{V_RC}, v{V_O+8}')
    a(f'v_mov_b32 v{V_RC+1}, v{V_RC}')
    for j in range(0, 8, 2): a(f'v_pk_mul_f32 {vr(V_O+j,2)}, {vr(V_O+j,2)}, {vr(V_RC,2)}')
    for j in range(4): a(f'v_cvt_pk_bf16_f32 v{V_O+j}, v{V_O+2*j}, v{V_O+2*j+1}')
    for j in range(4): a(f'v_max_u32 v{V_O+j}, 1, v{V_O+j}')
    a(f's_mov_b64 exec, s[{S_MLO8}:{S_MLO8+1}]')
    a(f'buffer_store_dwordx4 {vr(V_O,4)}, v{V_OST}, {WS}, s{S_SL0} offen sc1')
    a('s_mov_b64 exec, -1')
    stamp(5)
    ts('o')
    for j in range(0, 24, 2): a(f'v_mov_b64 {vr(V_D+j,2)}, 0')
    LCS = a.newlabel('rec_cs')
    a.label(LCS)
    a('s_barrier')
    def w123():
        a.label(LW1)
        a('s_waitcnt lgkmcnt(0)')
        a('s_barrier')
        vmf()
        halves(2)
        a(f'ds_write_b128 v{V_VW}, {vr(V_D+16,4)}')
        a('s_waitcnt lgkmcnt(0)')
        a('s_barrier')
        if ZD: a(f's_sleep {ZD}')
        for j in range(0, 24, 2): a(f'v_mov_b64 {vr(V_D+j,2)}, 0')
        LW2 = a.newlabel('rec_w2'); LW3 = a.newlabel('rec_w3')
        a(f's_cmp_eq_u32 s{S_W}, 3')
        a(f's_cbranch_scc1 {LW3}')
        a(f's_cmp_eq_u32 s{S_W}, 2')
        a(f's_cbranch_scc1 {LW2}')
        a(f'ds_read_b128 {vr(V_NS,4)}, v{V_L16} offset:{L_X}')
        a(f's_branch {LB2}')
        a.label(LW2)
        for w in range(4): a(f'ds_read_b128 {vr(V_R+4*w,4)}, v{V_L16} offset:{L_V+w*1024}')
        a('s_waitcnt lgkmcnt(0)')
        red4(4)
        for j in range(2): a(f'v_cvt_pk_bf16_f32 v{V_NS+j}, v{V_R+2*j}, v{V_R+2*j+1}')
        for j in range(2): a(f'v_permlane32_swap_b32 v{V_NS+j}, v{V_NS+2+j}')
        for j in (0, 2): a(f'v_permlane16_swap_b32 v{V_NS+j}, v{V_NS+j+1}')
        a.label(LB2)
        a('s_waitcnt lgkmcnt(0)')
        a(f's_cmp_eq_u32 s{S_STEP}, {nsteps-1}')
        a(f's_cbranch_scc1 {DONE}')
        a(f's_branch {LCS}')
        a.label(LW3)
        a(f's_cmp_eq_u32 s{S_STEP}, {nsteps-1}')
        a(f's_cbranch_scc1 {DONE}')
        tickwait(0, DC)
        a(f's_branch {LCS}')
    tails.append(w123)
    stamp(7)
    ts(6)
    def loadC(c, r):
        if LOC & 1: a(f'buffer_load_dwordx4 {vr(r,4)}, v{V_CO[4+(c>>1)]}, {WS}, s{S_SL0} offen offset:{(c&1)*1024} sc1'); return
        if STG & 1: a(f'buffer_load_dwordx4 {vr(r,4)}, v{V_CO[c]}, {WS}, s{S_SL0} offen sc1'); return
        a(f'buffer_load_dwordx4 {vr(r,4)}, v{V_COFF if c < 4 else V_COFF2}, {WS}, s{S_SL0} offen offset:{(c&3)*1024} sc1')
    def mfC(c):
        r = []
        for sel in range(2):
            f, b = wo_reg(2 * c + sel)
            r.append(f'v_smfmac_f32_16x16x64_bf16 {vr(V_D+4*sel,4)}, {vr(V_MA+4*c,4)}, {f}[{b}:{b+7}], v{V_IDX}')
        return r
    def nC3():
        a(f's_add_u32 s{S_T0}, s{S_STEP}, 1')
        wait_kv(f's{S_T0}')
        a(f's_xor_b32 s{S_KXB}, s{S_KXB}, 4096')
        a(f's_add_u32 m0, s{S_KXB}, s{S_PFL}')
        if XP != 1: a(f's_add_u32 s{S_KV}, s{S_KV}, {256*1024}')
        a(f'buffer_load_dwordx4 v{V_PFG}, {WS}, s{S_KV} offen sc1 lds')
    noiseC = [nC3, lambda: a(f'buffer_load_dword v{V_T1}, v{V_PTG}, {WS}, s{S_SC} offen sc1')]
    st4 = [f'buffer_store_dwordx4 {vr(V_NS,4)}, v{V_NSA}, {WS}, s{S_NSO} offen sc1',
           f'buffer_store_dwordx4 {vr(V_NB,4)}, v{V_NBA}, {WS}, s{S_NBO} offen sc1']
    if NSP == 1: noiseC += [(lambda x=x: a(x)) for x in st4]
    def late_stores(pl=False, n=2):
        if not NSP:
            a('s_barrier')
            for k, x in enumerate(st4[:n]):
                if pl: tpoll(128)
                a(x)
        a(f's_add_u32 s{S_NBO}, s{S_NBO}, s{S_NBI}')
        if n == 2: a(f'v_add_u32 v{V_FRV}, s{S_MHI+1}, v{V_FRV}')
        if sync and ASY:
            lr = a.newlabel('rec_rf')
            a(f's_add_u32 s{S_T0}, s{S_STEP}, 3')
            a(f's_min_u32 s{S_T0}, s{S_T0}, {NSEG-1}')
            a(f's_cmp_gt_u32 s{S_SEEN}, s{S_T0}')
            a(f's_cbranch_scc1 {lr}')
            a(f's_load_dword s{S_SEEN}, s[{S_WSP}:{S_WSP+1}], s{S_FKV} glc')
            a.label(lr)
        a(f's_add_u32 s{S_NSO}, s{S_NSO}, s{S_NSI}')
        a(f's_cmp_eq_u32 s{S_W}, 3')
        a(f's_cselect_b32 s{S_NSO}, s{S_SL2}, s{S_NSO}')
    TKA = f'buffer_store_dword v{V_TG}, v{V_TKSA}, {WS}, 0 offen sc1'
    def postC():
        a(f's_add_u32 s{S_STEP}, s{S_STEP}, 1')
        a(f's_add_u32 s{S_T0}, s{S_STEP}, 2')
        a(f's_lshr_b32 s{S_T1}, s{S_T0}, 3')
        a(f's_lshr_b32 s{S_T1}, s{S_PAR}, s{S_T1}')
    gather('rec_gc', 8, loadC, mfC, 8, noiseC, ILC, post=postC, E=EC)
    if NSP == 2:
        for x in st4: a(x)
    if TA == 9: a(TKA)
    ts(8)
    a(f's_mov_b32 s{S_SL0}, s{S_SL1}')
    a(f's_mov_b32 s{S_SL1}, s{S_SL2}')
    stamp_c = True
    if prof == 1:
        a(f's_sub_u32 s{S_STEP}, s{S_STEP}, 1'); stamp(8); a(f's_add_u32 s{S_STEP}, s{S_STEP}, 1')
    a(f'v_pk_add_f32 {vr(V_D,2)}, {vr(V_D,2)}, {vr(V_D+2,2)}')
    for r1 in range(2): a(f'v_add_f32_dpp v{V_D+r1}, v{V_D+4+r1}, v{V_D+6+r1} quad_perm:[0,1,2,3] row_mask:0xc bank_mask:0xf')
    a(f'v_permlane32_swap_b32 v{V_D}, v{V_D+1}')
    a(f'v_add_f32 v{V_D}, v{V_D}, v{V_D+1}')
    a(f'ds_write_b32 v{V_OPW}, v{V_D}')
    S(S_SL2, [(S_T1, 0, 1, 13), (S_T0, 0, None, 18), (S_HB, 0, None, 0)])
    a(f's_add_u32 s{S_SC}, s{S_SC}, {128*2048}')
    LB4 = a.newlabel('rec_b4')
    a(f's_cmp_lg_u32 s{S_W}, 0')
    a(f's_cbranch_scc1 {LB4}')
    a('s_waitcnt lgkmcnt(0)')
    a('s_barrier')
    for w in range(4): a(f'ds_read_b64 {vr(V_R+2*w,2)}, v{V_OPR} offset:{w*256}')
    a(f'v_add_u32 v{V_TG}, 2, v{V_TG}')
    a('s_waitcnt lgkmcnt(0)')
    red4(2)
    a(f'v_cvt_pk_bf16_f32 v{V_R}, v{V_R}, v{V_R+1}')
    a(f'v_max_u32 v{V_R}, 1, v{V_R}')
    for j in range(1, 4): a(f'v_mov_b32_dpp v{V_R+j}, v{V_R} quad_perm:[{j},{j},{j},{j}] row_mask:0xf bank_mask:0xf')
    a('s_mov_b64 exec, 0x11111111')
    a(f'buffer_store_dwordx4 {vr(V_R,4)}, v{V_MEMST}, {WS}, s{S_SL0} offen sc1')
    a('s_mov_b64 exec, -1')
    stamp(10)
    ts(9)
    late_stores(False, 1)
    for j in range(0, 8, 2): a(f'v_mov_b64 {vr(V_D+j,2)}, 0')
    a('s_waitcnt vmcnt(2)')
    a(f's_branch {LOOP}')
    a.label(LB4)
    a('s_waitcnt lgkmcnt(0)')
    a('s_barrier')
    if not TA: a(TKA)
    L3B = a.newlabel('rec_w3b')
    a(f's_cmp_eq_u32 s{S_W}, 3')
    a(f's_cbranch_scc1 {L3B}')
    a(f'v_add_u32 v{V_TG}, 2, v{V_TG}')
    for j in range(0, 8, 2): a(f'v_mov_b64 {vr(V_D+j,2)}, 0')
    late_stores()
    a('s_waitcnt vmcnt(2)')
    a(f's_branch {LOOP}')
    a.label(L3B)
    a(f'v_add_u32 v{V_TG}, 2, v{V_TG}')
    for j in range(0, 8, 2): a(f'v_mov_b64 {vr(V_D+j,2)}, 0')
    tpoll(128)
    late_stores(True, 1)
    tpoll(128)
    a('s_waitcnt vmcnt(2)')
    tickwait(128, DA)
    a(f's_branch {LOOP}')
    for t in tails: t()
    a.label(DONE)
    if prof >= 3:
        a(f'v_writelane_b32 v{V_TR}, s100, 10'); a(f'v_writelane_b32 v{V_TR}, s101, 11'); a(f'v_writelane_b32 v{V_TR}, s{S_SPIN}, 12')
    if prof >= 4: pmark(0)
    a(f'buffer_store_dwordx4 {vr(V_NS,4)}, v{V_NSA}, {WS}, s{S_NSO} offen sc1')
    a('s_waitcnt vmcnt(0)')
    a('s_barrier')
    a(f'v_add_u32 v{V_FRV}, 1, v{V_FRV}')
    a(f'buffer_store_dword v{V_FRV}, v{V_FRA}, {WS}, 0 offen sc1')
    if prof and prof != 5:
        S(S_T0, [(S_RID, 0, None, 13), (S_W, 0, None, 11)], TRACE)
        a(f'v_lshlrev_b32 v{V_T0}, 2, v{V_L}')
        for e in range(8):
            a(f'buffer_store_dword v{V_TR+e}, v{V_T0}, {WS}, s{S_T0} offen offset:{e*256}')
```

```python
from asmlib import *
from layout import *
from rec import srd, lane, sexpr
import math, struct

G_WS = 4
G_W = 8
G_X = 12
G_W2 = 16
G_OUT = 20
G_ID, G_WV, G_SEG = 28, 29, 30
G_T0, G_T1, G_T2 = 31, 32, 33
G_LW = 34
G_XO = 35
G_PO = 36
G_PS = 37
G_WSO, G_WST = 38, 39
G_SPIN = 41
G_C = 42
G_SEEN = 43
G_J, G_R = 44, 45
G_KMO, G_OAO, G_OBO, G_OUO = 46, 47, 48, 49
G_FO = 50
G_END, G_XMAX = 51, 52
G_SA, G_SB, G_FA, G_FB, G_FR, G_C2 = 53, 54, 55, 56, 57, 58
G_PTR = 72
G_WSP = 90
G_DBG = 92
WS = f's[{G_WS}:{G_WS+3}]'
V_L, V_T0, V_T1, V_T2, V_L16 = 1, 2, 3, 4, 5
V_VAL = 31

def f32(x): return '0x%08x' % struct.unpack('<I', struct.pack('<f', x))[0]

class Gem:
    LATE = 96; TWO = 1; QTH = 96; TSL = 0; GV = 0; FS = 0; TSW = 0; OM = 0; XT = 1; BTH = 96; BSL = 0; OSL = 0; QL = 0; SR = 0; TC = 0
    def __init__(self, a, sync=True, prof=False):
        self.a = a; self.sync = sync; self.prof = prof; self.ost = ''
    def L(self, dst, terms, add=None): lane(self.a, dst, V_T2, V_L, terms, add)
    def S(self, dst, terms, const=0): sexpr(self.a, dst, G_T2, terms, const)
    def spin_guard(self, lgive):
        a = self.a
        a(f's_add_u32 s{G_SPIN}, s{G_SPIN}, 1')
        a(f's_cmp_ge_u32 s{G_SPIN}, 0x200000')
        a(f's_cbranch_scc1 {lgive}')
    def keep(self, reg, cond):
        a = self.a
        a(cond)
        a(f'v_mov_b32 v{V_T2}, {OOB}')
        a(f'v_cndmask_b32 v{reg}, v{V_T2}, v{reg}, vcc')

    def mark(self, k):
        if not self.prof: return
        a = self.a
        a(f's_memrealtime s[{G_PTR+14}:{G_PTR+15}]')
        a('s_waitcnt lgkmcnt(0)')
        a(f's_mov_b32 s{94+k}, s{G_PTR+14}')
        if False:
            a(f's_memtime s[{G_PTR+14}:{G_PTR+15}]')
            a('s_waitcnt lgkmcnt(0)')
            a(f's_mov_b32 s{98+k}, s{G_PTR+14}')
    def acc(self, k):
        if self.prof != 2: return
        a = self.a
        a(f's_memtime s[{G_PTR+14}:{G_PTR+15}]')
        a('s_waitcnt lgkmcnt(0)')
        if k is not None:
            a(f's_sub_u32 s{G_PTR+15}, s{G_PTR+14}, s60')
            a(f's_add_u32 s{61+k}, s{61+k}, s{G_PTR+15}')
        a(f's_mov_b32 s60, s{G_PTR+14}')
    def dump(self):
        if not self.prof: return
        a = self.a
        if self.prof == 5:
            a(f's_cmp_lt_u32 s{G_ID}, 96')
            a(f's_cselect_b32 s{G_T0}, 20, 44')
            a(f'v_mov_b32 v{V_T1}, s{G_T0}')
            a('s_mov_b64 exec, 1')
            for i, k in enumerate((1, 3, 6, 4, 5)):
                a(f'v_mov_b32 v{V_T0}, s{94+k}')
                a(f'global_atomic_umax v{V_T1}, v{V_T0}, s[{G_DBG}:{G_DBG+1}] offset:{4*i} sc1')
            return
        self.S(G_T0, [(G_ID, 0, None, 7), (G_WV, 0, None, 5)], TRACE + 4 * MB)
        a(f'v_mov_b32 v{V_T1}, 0')
        for k in range(8):
            a(f'v_mov_b32 v{V_T0}, s{94+k}')
            a(f'buffer_store_dword v{V_T0}, v{V_T1}, {WS}, s{G_T0} offen offset:{4*k}')
        a(f's_add_u32 s{G_T0}, s{G_T0}, {MB}')
        for k in range(8):
            a(f'v_mov_b32 v{V_T0}, s{61+k}')
            a(f'buffer_store_dword v{V_T0}, v{V_T1}, {WS}, s{G_T0} offen offset:{4*k}')

    def setup(self):
        a = self.a
        a(f's_load_dwordx2 s[{G_WSP}:{G_WSP+1}], s[0:1], {K_WS}')
        a(f's_load_dwordx2 s[{G_DBG}:{G_DBG+1}], s[0:1], {K_DBG}')
        a(f'v_and_b32 v{V_L}, 63, v0')
        a(f'v_lshrrev_b32 v{V_T0}, 6, v0')
        a(f'v_readfirstlane_b32 s{G_WV}, v{V_T0}')
        a(f'v_lshlrev_b32 v{V_L16}, 4, v{V_L}')
        a(f's_mov_b32 s{G_SPIN}, 0')
        a(f's_lshl_b32 s{G_LW}, s{G_WV}, 10')
        a('s_waitcnt lgkmcnt(0)')
        srd(a, G_WS, G_WSP, WS_BYTES)
        if self.sync and self.TSW:
            lw = a.newlabel('g_tw')
            P = G_PTR
            a(f's_cmp_lg_u32 s{G_WV}, 1')
            a(f's_cbranch_scc1 {lw}')
            a(f's_load_dwordx2 s[{P}:{P+1}], s[0:1], {K_WO}')
            self.S(G_T0, [(G_ID, 0, None, 16)])
            self.L(V_T0, [(3, 3, 13), (0, 3, 10)], f's{G_T0}')
            a('s_waitcnt lgkmcnt(0)')
            srd(a, G_OUT, P, 8 * MB)
            a(f's_sub_u32 s{G_T0}, 384, s{P}')
            a(f's_and_b32 s{G_T0}, s{G_T0}, 0x380')
            a(f'buffer_load_dword v119, v{V_T0}, s[{G_OUT}:{G_OUT+3}], s{G_T0} offen')
            a.label(lw)
        if self.sync:
            lv = a.newlabel('g_nv')
            a(f'v_mov_b32 v{V_VAL}, 0')
            a(f's_cmp_lt_u32 s{G_ID}, {self.LATE}')
            a(f's_cbranch_scc1 {lv}')
            P = G_PTR
            if self.TSL:
                a(f's_load_dwordx8 s[{P}:{P+7}], s[0:1], {K_WQ}')
                self.S(G_T0, [(G_ID, 0, 5, 18), (G_WV, 0, None, 16)])
                self.L(V_T0, [(3, 3, 13), (0, 3, 10)], f's{G_T0}')
                self.L(V_T1, [(0, 3, 13)], f's{G_T0}')
                a('s_waitcnt lgkmcnt(0)')
                SD = (G_W, G_X, G_W2, G_OUT)[:2+self.TSL]
                for m, sd in enumerate(SD):
                    srd(a, sd, P + 2 * m, 8 * MB)
                    a(f's_sub_u32 s{G_T0}, 384, s{P+2*m}')
                    a(f's_and_b32 s{G_T0}, s{G_T0}, 0x380')
                    a(f'buffer_load_dword v{120+m}, v{V_T0}, s[{sd}:{sd+3}], s{G_T0} offen')
                a('s_mov_b64 exec, 0xff')
                for m, sd in enumerate(SD):
                    a(f's_sub_u32 s{G_T0}, 8064, s{P+2*m}')
                    a(f's_and_b32 s{G_T0}, s{G_T0}, 0x1f80')
                    a(f'buffer_load_dword v{124+m}, v{V_T1}, s[{sd}:{sd+3}], s{G_T0} offen')
                a('s_mov_b64 exec, -1')
            validate(a, V_VAL, V_T0, G_DBG, G_SPIN, G_T0)
            a.label(lv)
        if self.prof:
            for k in range(8): a(f's_mov_b32 s{94+k}, 0'); a(f's_mov_b32 s{61+k}, 0')
        self.mark(0)

    def vote(self):
        a = self.a
        A0, R, M0, TA, TB, D = 60, 59, 62, 64, 66, 68
        self.S(R, [(G_ID, 0, 5, 2), (G_WV, 0, None, 0)])
        a(f's_sub_u32 s{G_T0}, 0, s{G_WSP}')
        a(f's_and_b32 s{G_T0}, s{G_T0}, {2*MB-1}')
        self.S(A0, [(R, 0, 3, 21), (R, 3, 1, 13), (R, 4, 3, 8), (G_T0, 0, None, 0)], HOFF + 15 * 16384)
        self.S(G_T1, [(R, 3, 1, 14)])
        a(f's_sub_u32 s{A0+1}, s{A0}, s{G_T1}')
        a(f's_add_u32 s{A0+1}, s{A0+1}, 8192')
        for k in range(2):
            a(f's_load_dword s{D+k}, s[{G_WSP}:{G_WSP+1}], s{A0+k} glc')
            a(f's_mov_b32 s{M0+k}, -1')
        for r in range(self.GV):
            for k in range(2):
                a('s_waitcnt lgkmcnt(0)')
                a(f's_memtime s[{TA}:{TA+1}]')
                a('s_waitcnt lgkmcnt(0)')
                a(f's_load_dword s{D}, s[{G_WSP}:{G_WSP+1}], s{A0+k} glc')
                a('s_waitcnt lgkmcnt(0)')
                a(f's_memtime s[{TB}:{TB+1}]')
                a('s_waitcnt lgkmcnt(0)')
                a(f's_sub_u32 s{G_T0}, s{TB}, s{TA}')
                a(f's_min_u32 s{M0+k}, s{M0+k}, s{G_T0}')
        a(f's_cmp_gt_u32 s{M0+1}, s{M0}')
        a(f's_cselect_b32 s{G_T0}, 1, 0')
        a(f's_lshr_b32 s{G_T1}, s{R}, 3')
        a(f's_xor_b32 s{G_T0}, s{G_T0}, s{G_T1}')
        a(f's_xor_b32 s{G_T0}, s{G_T0}, s{R}')
        self.S(G_T0, [(G_T0, 0, 1, VOTE_SH)])
        a(f's_add_u32 s{S_BAD}, s{S_BAD}, s{G_T0}')
        if self.prof:
            for k in range(8): a(f's_mov_b32 s{61+k}, 0')

    def late_arrive(self):
        a = self.a
        a('s_mov_b64 exec, -1')
        self.touch_wo()
        self.vote()
        self.mark(7)
        a(f's_waitcnt vmcnt({8 if self.TWO else 0})')
        a('s_mov_b64 exec, 1')
        self.arrive(False)

    def load_weights(self, jobs, hook=None, slow=0):
        a = self.a
        LB = G_T1
        a(f's_lshl_b32 s{LB}, s{G_WV}, 15')
        pairs = []
        for (sd, vg, n, reads, so0, sst) in jobs:
            for p in range(n): pairs.append((sd, vg, reads(p), so0 if p == 0 else None, sst))
        NSL = 16
        def issue(p):
            sd, vg, _, so0, sst = pairs[p]
            for j in range(2):
                a(f's_add_u32 m0, s{LB}, {(p % NSL) * 2048 + j * 1024}')
                if so0 is not None and j == 0: a(f's_mov_b32 s{G_WSO}, {so0}')
                else: a(f's_add_u32 s{G_WSO}, s{G_WSO}, {sst}')
                a(f'buffer_load_dwordx4 v{vg}, s[{sd}:{sd+3}], s{G_WSO} offen lds')
            if hook and self.BSL:
                l = a.newlabel('lw_s')
                a(f's_cbranch_vccz {l}')
                a(f's_sleep {self.BSL}')
                a.label(l)
            if slow: a(f's_sleep {slow}')
        if hook and self.BSL:
            a(f's_cmp_ge_u32 s{G_ID}, 96')
            a('s_cselect_b64 vcc, -1, 0')
        issued = 0
        for p in range(min(NSL, len(pairs))):
            issue(p); issued += 1
        for p in range(len(pairs)):
            a(f's_waitcnt vmcnt({2 * (issued - p - 1)})')
            if hook and p == 2:
                a(f'v_mov_b32 v{V_T0}, 0')
                a(f'global_load_dword v{V_VAL}, v{V_T0}, s[{G_DBG}:{G_DBG+1}] offset:{4*D_ROT} sc1')
            if hook and p == NSL + 1: hook(0)
            if hook and p == len(pairs) - 1: hook(1)
            for dst, va, off in pairs[p][2]:
                a(f'ds_read_b64_tr_b16 {dst}, v{va} offset:{(p % NSL) * 2048 + off}')
            if p >= 1 and issued < len(pairs):
                a(f's_waitcnt lgkmcnt({len(pairs[p][2])})')
                issue(issued); issued += 1
        a('s_waitcnt lgkmcnt(0)')

    def touch_wo(self):
        if not self.TWO: return
        a = self.a
        P = G_PTR
        lsk = a.newlabel('tw_skip')
        a(f's_cmp_lt_u32 s{G_ID}, 96')
        a(f's_cbranch_scc1 {lsk}')
        a(f's_load_dwordx2 s[{P}:{P+1}], s[0:1], {K_WO}')
        self.S(G_T0, [(G_ID, 0, 5, 13), (G_WV, 0, None, 21 if self.TWO == 1 else 18)])
        a(f'v_lshl_add_u32 v{V_T0}, v{V_L}, 7, s{G_T0}')
        a('s_waitcnt lgkmcnt(0)')
        srd(a, G_W, P, 8 * MB)
        for i in range(8):
            a(f's_mov_b32 s{G_T0}, {i * (262144 if self.TWO == 1 else MB)}')
            a(f'buffer_load_dword v{128+i}, v{V_T0}, s[{G_W}:{G_W+3}], s{G_T0} offen')
        a.label(lsk)

    def slab(self, LNEXT, **opt):
        a = self.a; L = self.L; S = self.S
        P = G_PTR
        V_G, V_TR, V_XG, V_ST, V_FL, V_FV = 6, 7, 8, 9, 10, 11
        V_RA = 12
        V_F = 32
        V_ACC = 64
        V_PK = 96
        lB = a.newlabel('sl_b'); lC = a.newlabel('sl_c')
        G_M = G_J
        a(f's_cmp_ge_u32 s{G_ID}, 96')
        a(f's_cbranch_scc1 {lB}')
        a(f's_lshr_b32 s{G_T0}, s{G_ID}, 5')
        a(f's_add_u32 s{G_T0}, s{G_T0}, 1')
        a(f's_cmp_eq_u32 s{G_T0}, 3')
        a(f's_cselect_b32 s{G_M}, 0, s{G_T0}')
        S(G_T0, [(G_M, 0, None, 3)], K_WQ)
        a(f's_load_dwordx2 s[{P}:{P+1}], s[0:1], s{G_T0}')
        a(f's_load_dwordx2 s[{P+2}:{P+3}], s[0:1], {K_AX}')
        a(f's_mov_b32 s{P+4}, {8*MB}')
        a(f's_mov_b32 s{G_WST}, 8192')
        S(G_T0, [(G_ID, 0, 5, 8)])
        S(G_PO, [(G_M, 0, None, 24), (G_ID, 0, 5, 13)], PA)
        a(f's_mov_b32 s{G_PS}, {256*1024}')
        S(G_FO, [(G_ID, 0, 5, 7), (G_M, 0, None, 2)], FLG + F_SLA)
        a(f's_branch {lC}')
        a.label(lB)
        a(f's_sub_u32 s{G_T1}, s{G_ID}, 96')
        a(f's_lshr_b32 s{G_M}, s{G_T1}, 3')
        a(f's_load_dwordx2 s[{P}:{P+1}], s[0:1], {K_WQKV}')
        a(f's_load_dwordx2 s[{P+2}:{P+3}], s[0:1], {K_BX}')
        a(f's_mov_b32 s{P+4}, {6*MB}')
        a(f's_mov_b32 s{G_WST}, 6144')
        S(G_T0, [(G_T1, 0, None, 8)])
        S(G_PO, [(G_M, 0, None, 22), (G_T1, 0, 3, 13)], PB)
        a(f's_mov_b32 s{G_PS}, {64*1024}')
        S(G_FO, [(G_T1, 0, 3, 7), (G_M, 0, None, 2)], FLG + F_SLB)
        a.label(lC)
        a('s_waitcnt lgkmcnt(0)')
        srd(a, G_W, P, f's{P+4}')
        srd(a, G_X, P + 2, 4 * MB)
        a(f's_mov_b64 s[{P+8}:{P+9}], s[{P}:{P+1}]')
        a(f's_mov_b32 s{G_R}, s{G_T0}')
        if self.sync:
            lg = a.newlabel('sl_go'); l2 = a.newlabel('sl_a2')
            a(f's_cmp_lt_u32 s{G_ID}, {self.LATE}')
            a(f's_cbranch_scc1 {lg}')
            if not self.GV:
                a(f's_cmp_lg_u32 s{G_WV}, 0')
                a(f's_cbranch_scc1 {l2}')
            a('s_mov_b64 exec, 1')
            a(f'v_mov_b32 v{V_T0}, 0')
            a(f'buffer_store_dword v{V_T0}, v{V_T0}, {WS}, s{G_FO} offen sc1')
            if self.GV: self.late_arrive()
            else: self.arrive()
            a.label(l2)
            if not self.GV: self.touch_wo()
            srd(a, G_W, P + 8, f's{P+4}')
            self.wait_start()
            a.label(lg)
        a(f'v_lshrrev_b32 v{V_T0}, 2, v{V_L}')
        a(f'v_mul_lo_u32 v{V_G}, v{V_T0}, s{G_WST}')
        S(G_T0, [(G_R, 0, None, 0), (G_WV, 0, None, 6)])
        L(V_T0, [(0, 2, 4)], f's{G_T0}')
        a(f'v_add_u32 v{V_G}, v{V_G}, v{V_T0}')
        a(f's_lshl_b32 s{G_WST}, s{G_WST}, 4')
        a(f's_mov_b32 s{G_SEG}, 0')
        a(f's_mov_b32 s{G_END}, {NSEG}')
        a(f's_mov_b32 s{G_XMAX}, {63*65536}')
        self.stream(LNEXT, [0, 1], **opt)

    def stream(self, LNEXT, variants, RD=6):
        a = self.a; L = self.L; S = self.S
        V_G, V_TR, V_XG, V_ST, V_FL, V_FV = 6, 7, 8, 9, 10, 11
        V_RA = 12
        V_F = 32
        V_ACC = 64
        V_PK = 96
        G_M = G_J
        ob = 2 in variants
        a(f's_lshl_b32 s{G_T0}, s{G_WV}, 15')
        if ob:
            L(V_TR, [(4, 2, 9), (2, 2, 6), (0, 2, 4)], f's{G_T0}')
        else:
            L(V_TR, [(4, 2, 9), (2, 2, 6), (1, 1, 5), (0, 1, 3)], f's{G_T0}')
        eo = 8 if ob else 16
        def wreads(p):
            return [(f'a[{8*p+4*et+2*q}:{8*p+4*et+2*q+1}]', V_TR, et * eo + q * 256) for et in range(2) for q in range(2)]
        def hook(k):
            li = a.newlabel('sl_ar')
            if k == 0: validate(a, V_VAL, V_T0, G_DBG, G_SPIN, G_T0)
            else: self.mark(7)
            if self.FS: return
            a(f's_cmp_lg_u32 s{G_WV}, 0')
            a(f's_cbranch_scc1 {li}')
            a(f's_cmp_ge_u32 s{G_ID}, {self.LATE}')
            a(f's_cbranch_scc1 {li}')
            a('s_mov_b64 exec, 1')
            if k == 0:
                a(f'v_mov_b32 v{V_T0}, 0')
                a(f'buffer_store_dword v{V_T0}, v{V_T0}, {WS}, s{G_FO} offen sc1')
                a('s_mov_b64 exec, -1')
            else: self.arrive(False)
            a.label(li)
        self.load_weights([(G_W, V_G, 32, wreads, '0', f's{G_WST}')], hook if (self.sync and not ob) else None)
        self.mark(4 if ob else 1)
        S(G_T0, [(G_WV, 1, 1, 2)])
        L(V_T0, [(4, 2, 0)], f's{G_T0}')
        a(f'v_and_b32 v{V_T1}, 7, v{V_L}')
        a(f'v_xor_b32 v{V_T0}, v{V_T0}, v{V_T1}')
        a(f's_lshl_b32 s{G_T0}, s{G_WV}, 14')
        L(V_XG, [(3, 3, 11)], f's{G_T0}')
        a(f'v_lshl_add_u32 v{V_XG}, v{V_T0}, 4, v{V_XG}')
        L(V_T0, [(1, 3, 0)])
        a(f'v_lshrrev_b32 v{V_T1}, 4, v{V_L}')
        a(f'v_xor_b32 v{V_T0}, v{V_T0}, v{V_T1}')
        L(V_T1, [(3, 1, 11), (0, 3, 7)])
        for j in range(2):
            a(f'v_xor_b32 v{V_RA+j}, {4*j}, v{V_T0}')
            a(f'v_lshl_add_u32 v{V_RA+j}, v{V_RA+j}, 4, v{V_T1}')
            a(f'v_add_u32 v{V_RA+2+j}, 65536, v{V_RA+j}')
        if ob:
            a(f's_lshl_b32 s{G_T0}, s{G_WV}, 6')
            L(V_ST, [(0, 4, 12), (4, 2, 4)], f's{G_T0}')
            a(f'v_add_u32 v{V_XG}, s{G_LW}, v{V_L16}')
            L(V_RA, [(4, 2, 9), (0, 4, 4)])
            a(f'v_add_u32 v{V_RA+2}, 65536, v{V_RA}')
            self.wait_dbg(D_INIT, NARR if self.GV else NWG)
            self.wait_lines(F_ATB, f's{G_END}')
        else:
            a(f's_lshl_b32 s{G_T0}, s{G_WV}, 11')
            L(V_ST, [(4, 2, 9), (3, 1, 8), (0, 3, 4)], f's{G_T0}')
            a(f'v_mov_b32 v{V_FL}, s{G_FO}')
            if self.SR:
                a(f's_add_u32 s{G_T0}, s{G_FO}, {F_SR - F_SLA - 8192}')
                a(f'v_lshl_add_u32 v{V_T0}, v{V_L}, 13, s{G_T0}')
                a(f'v_cmp_eq_u32 vcc, 0, v{V_L}')
                a(f'v_cndmask_b32 v{V_FL}, v{V_T0}, v{V_FL}, vcc')
            a(f's_cmp_lt_u32 s{G_ID}, {64 if self.SR else 0}')
            a(f's_cselect_b32 s{G_T0}, 7, 1')
            a(f's_cmp_eq_u32 s{G_WV}, 0')
            a('s_mov_b32 vcc_hi, 0')
            self.keep(V_FL, f's_cselect_b32 vcc_lo, s{G_T0}, 0')
            a(f'v_mov_b32 v{V_FV}, 0')
            a(f's_cmp_lt_u32 s{G_ID}, {self.LATE}')
            a(f's_cselect_b32 s{G_KMO}, s{G_WV}, 1')
            a(f's_min_u32 s{G_KMO}, s{G_KMO}, 1')
        a(f's_lshl_b32 s{G_XO}, s{G_SEG}, 16')
        a(f's_sub_u32 s{G_PO}, s{G_PO}, s{G_PS}')
        a('s_barrier')
        XS = f's[{G_X}:{G_X+3}]'
        SC = ' sc1' if ob else ''
        def dma(u, i, part=2):
            kb = (u & 1) * 8 + i
            if ob:
                if part != 1:
                    a(f's_add_u32 m0, s{G_LW}, {(u >> 1) * 65536 + kb * 4096}')
                    a(f's_add_u32 s{G_T1}, s{G_XO}, {kb * 4096}')
                if part != 0: a(f'buffer_load_dwordx4 v{V_XG}, {XS}, s{G_T1} offen sc1 lds')
                return
            if part != 1: a(f's_add_u32 m0, s{G_LW}, {(u >> 1) * 65536 + kb * 4096 - kb * 128}')
            if part != 0: a(f'buffer_load_dwordx4 v{V_XG}, {XS}, s{G_XO} offen offset:{kb*128} lds')
        for u in range(3):
            for i in range(8 if u < 2 else 4): dma(u, i)
            if u == 1: a(f's_add_u32 s{G_XO}, s{G_XO}, 65536')
        a('s_waitcnt vmcnt(12)')
        a('s_barrier')
        if not ob: self.mark(2)
        def rd(T):
            T %= 128
            p, t = T >> 6, T & 63
            ks, tt = t >> 1, t & 1
            if ob: a(f'ds_read_b128 {vr(V_F+4*(T%8),4)}, v{V_RA+2*p} offset:{ks*2048+tt*256}')
            else: a(f'ds_read_b128 {vr(V_F+4*(T%8),4)}, v{V_RA+2*p+(ks&1)} offset:{(ks>>1)*4096+tt*1024}')
        def epi(p, k, var):
            A = V_ACC + 16 * p
            if k < 8:
                o, inn, h = k >> 2, (k >> 1) & 1, k & 1
                tt, et = (inn, o) if var == 1 else (o, inn)
                r = A + 4 * (2 * tt + et) + 2 * h
                a(f'v_cvt_pk_bf16_f32 v{V_PK+k}, v{r}, v{r+1}')
            elif k == 8:
                if ob:
                    a(f'buffer_store_dwordx4 {vr(V_PK,4)}, v{V_ST}, s[{G_OUT}:{G_OUT+3}], s{G_PO} offen{self.ost}')
                    a(f's_add_u32 s{G_T0}, s{G_PO}, 65536')
                else: a(f'buffer_store_dwordx4 {vr(V_PK,4)}, v{V_ST}, {WS}, s{G_PO} offen sc1')
            elif k == 9:
                if ob: a(f'buffer_store_dwordx4 {vr(V_PK+4,4)}, v{V_ST}, s[{G_OUT}:{G_OUT+3}], s{G_T0} offen{self.ost}')
                else: a(f'buffer_store_dwordx4 {vr(V_PK+4,4)}, v{V_ST}, {WS}, s{G_PO} offen offset:128 sc1')
                a(f's_add_u32 s{G_PO}, s{G_PO}, s{G_PS}')
        for T in range(RD): rd(T)
        lV = a.newlabel('sl_v'); lE = a.newlabel('sl_e')
        a(f'v_add_u32 v{V_ST}, {OOB}, v{V_ST}')
        if len(variants) > 1:
            a(f's_cmp_eq_u32 s{G_M}, 2')
            a(f's_cbranch_scc1 {lV}')
        for var in variants:
            if var == 1: a.label(lV)
            lp = a.newlabel('sl_loop')
            a.label(lp)
            for T in range(128):
                p, t = T >> 6, T & 63
                u = T >> 5; tu = T & 31
                if tu == 16:
                    a('s_waitcnt vmcnt(8)')
                    a('s_barrier')
                if T % 2 == 0: a(f's_waitcnt lgkmcnt({RD-2})')
                A = V_ACC + 16 * p
                x = vr(V_F + 4 * (T % 8), 4)
                ks, tt = t >> 1, t & 1
                ph = (tu - 16) % 32
                isd = ph % 4 == 1
                if isd:
                    un = (u + 3) if tu >= 16 else (u + 2)
                    i = ph // 4
                for et in range(2):
                    w = f'a[{8*ks+4*et}:{8*ks+4*et+3}]'
                    D = vr(A + 4 * (2 * tt + et), 4)
                    c = D if ks else '0'
                    if var == 1: a(f'v_mfma_f32_16x16x32_bf16 {D}, {x}, {w}, {c}')
                    else: a(f'v_mfma_f32_16x16x32_bf16 {D}, {w}, {x}, {c}')
                    if et == 0:
                        rd(T + RD)
                        if isd: dma(un % 4, i, 0)
                    elif isd: dma(un % 4, i, 1)
                if isd and (un & 1) == 1 and i == 7:
                    a(f's_add_u32 s{G_XO}, s{G_XO}, 65536')
                    a(f's_min_u32 s{G_XO}, s{G_XO}, s{G_XMAX}')
                if tu == 18 and (u & 1) and not ob:
                    a(f'buffer_store_dword v{V_FV}, v{V_FL}, {WS}, 0 offen sc1')
                    a(f'v_add_u32 v{V_FV}, 1, v{V_FV}')
                    if u == 3 and self.FS and self.sync:
                        la = a.newlabel('sl_ar')
                        a(f's_cmp_lg_u32 s{G_SEG}, s{G_KMO}')
                        a(f's_cbranch_scc1 {la}')
                        a('s_mov_b64 exec, 1')
                        self.arrive(False)
                        a.label(la)
                if 4 <= t < 12: epi(p ^ 1, t - 4, var)
                if t == 11: epi(p ^ 1, 8, var)
                if t == 15: epi(p ^ 1, 9, var)
                if t == 20 and p == 0: a(f'v_and_b32 v{V_ST}, 0xffffff, v{V_ST}')
            a(f's_add_u32 s{G_SEG}, s{G_SEG}, 2')
            a(f's_cmp_lt_u32 s{G_SEG}, s{G_END}')
            a(f's_cbranch_scc1 {lp}')
            for k in range(8): epi(1, k, var)
            a(f's_branch {lE}')
        a.label(lE)
        for k in (8, 9): epi(1, k, 0)
        a('s_waitcnt vmcnt(0) lgkmcnt(0)')
        a('s_barrier')
        if not ob: a(f'buffer_store_dword v{V_FV}, v{V_FL}, {WS}, 0 offen sc1')
        self.mark(5 if ob else 3)
        a(f's_branch {LNEXT}')

    def outb(self, LNEXT):
        a = self.a; L = self.L; S = self.S
        P = G_PTR
        V_G = 6
        a(f's_load_dwordx4 s[{P}:{P+3}], s[0:1], {K_BWO}')
        a(f's_add_u32 s{P+4}, s{G_WSP}, {OB}')
        a(f's_addc_u32 s{P+5}, s{G_WSP+1}, 0')
        a(f's_sub_u32 s{G_T1}, s{G_ID}, 96')
        a(f's_lshr_b32 s{G_T1}, s{G_T1}, 3')
        a(f's_mul_i32 s{G_SEG}, s{G_T1}, 22')
        a(f's_add_u32 s{G_END}, s{G_SEG}, 22')
        a(f's_min_u32 s{G_END}, s{G_END}, {NSEG}')
        a(f's_sub_u32 s{G_XMAX}, s{G_END}, 1')
        a(f's_lshl_b32 s{G_XMAX}, s{G_XMAX}, 16')
        a('s_waitcnt lgkmcnt(0)')
        srd(a, G_W, P, 2 * MB)
        srd(a, G_OUT, P + 2, 8 * MB)
        srd(a, G_X, P + 4, 4 * MB)
        S(G_T0, [(G_ID, 0, 3, 8), (G_WV, 0, None, 6)])
        L(V_G, [(2, 4, 11), (0, 2, 4)], f's{G_T0}')
        a(f's_mov_b32 s{G_WST}, 32768')
        S(G_PO, [(G_SEG, 0, None, 17), (G_ID, 0, 3, 8)], 2048)
        a(f's_mov_b32 s{G_PS}, 131072')
        self.stream(LNEXT, [2])

    def wait_flags_s(self, off_sreg, nwords, idx, target, seen=None):
        a = self.a
        if not self.sync: return
        T = G_PTR
        lp = a.newlabel('g_wf'); ld = a.newlabel('g_wfd')
        if seen is not None:
            a(f's_cmp_ge_u32 s{seen}, {target}')
            a(f's_cbranch_scc1 {ld}')
        a.label(lp)
        a(f's_load_dwordx4 s[{T}:{T+3}], s[{G_WSP}:{G_WSP+1}], s{off_sreg} glc')
        self.spin_guard(ld)
        a('s_waitcnt lgkmcnt(0)')
        m = seen if seen is not None else T + 4
        a(f's_min_u32 s{m}, s{T+idx[0]}, s{T+idx[1]}')
        for i in idx[2:]: a(f's_min_u32 s{m}, s{m}, s{T+i}')
        a(f's_cmp_ge_u32 s{m}, {target}')
        a(f's_cbranch_scc1 {ld}')
        a('s_sleep 4')
        a(f's_branch {lp}')
        a.label(ld)
        a('s_waitcnt lgkmcnt(0)')

    def arrive(self, wait=True):
        a = self.a
        a(f'v_mov_b32 v{V_T2}, 0')
        a(f'v_mov_b32 v{V_T0}, 1')
        a(f'v_mov_b32 v{V_T1}, s{S_BAD}')
        if wait: a('s_waitcnt vmcnt(0)')
        a(f'global_atomic_add_x2 v{V_T2}, v[{V_T0}:{V_T1}], s[{G_DBG}:{G_DBG+1}] offset:{4*D_INIT} sc1')
        a('s_mov_b64 exec, -1')

    def wait_lines(self, fo, target, seen=None):
        a = self.a
        if not self.sync: return
        lp = a.newlabel('g_wl'); ld = a.newlabel('g_wld')
        self.L(V_T0, [(0, 5, 7)], FLG + fo)
        a(f's_cmp_lg_u32 s{G_WV}, 0')
        a(f's_cbranch_scc1 {ld}')
        a.label(lp)
        a(f'buffer_load_dword v{V_T1}, v{V_T0}, {WS}, 0 offen sc1')
        self.spin_guard(ld)
        a('s_waitcnt vmcnt(0)')
        a(f'v_cmp_gt_u32 vcc, {target}, v{V_T1}')
        a(f's_cbranch_vccz {ld}')
        a('s_sleep 8')
        a(f's_branch {lp}')
        a.label(ld)
        a('s_barrier')

    def wait_start(self):
        a = self.a
        a(f's_cmp_lt_u32 s{G_ID}, 96')
        a(f's_cselect_b32 s{G_T2}, {self.QTH}, {self.BTH}')
        self.wait_dbg(D_RDY, f's{G_T2}', G_PTR + 12)

    def wait_dbg(self, word, target, T=G_PTR):
        a = self.a
        if not self.sync: return
        lp = a.newlabel('g_wd'); ld = a.newlabel('g_wdd')
        a(f's_cmp_lg_u32 s{G_WV}, 0')
        a(f's_cbranch_scc1 {ld}')
        a.label(lp)
        a(f's_load_dword s{T}, s[{G_DBG}:{G_DBG+1}], {4*word} glc')
        self.spin_guard(ld)
        a('s_waitcnt lgkmcnt(0)')
        a(f's_cmp_ge_u32 s{T}, {target}')
        a(f's_cbranch_scc1 {ld}')
        a('s_sleep 32')
        a(f's_branch {lp}')
        a.label(ld)
        a('s_waitcnt lgkmcnt(0)')
        a('s_barrier')

    def softmax(self, regs, V_M, V_M2, V_SUM, G_C=G_C):
        a = self.a
        a(f'v_max3_f32 v{V_M}, v{regs[0]}, v{regs[1]}, v{regs[2]}')
        r = regs[3:]
        while len(r) >= 2:
            a(f'v_max3_f32 v{V_M}, v{V_M}, v{r[0]}, v{r[1]}'); r = r[2:]
        if r: a(f'v_max_f32 v{V_M}, v{V_M}, v{r[0]}')
        a(f'v_mov_b32 v{V_M2}, v{V_M}')
        a(f'v_permlane32_swap_b32 v{V_M}, v{V_M2}')
        a(f'v_max_f32 v{V_M}, v{V_M}, v{V_M2}')
        a(f'v_mul_f32 v{V_M}, s{G_C}, v{V_M}')
        for x in regs: a(f'v_fma_f32 v{x}, v{x}, s{G_C}, -v{V_M}')
        for x in regs: a(f'v_exp_f32 v{x}, v{x}')
        a(f'v_add_f32 v{V_SUM}, v{regs[0]}, v{regs[1]}')
        a(f'v_add_f32 v{V_M2}, v{regs[2]}, v{regs[3]}')
        for i in range(4, len(regs), 2):
            a(f'v_add_f32 v{V_SUM}, v{V_SUM}, v{regs[i]}')
            a(f'v_add_f32 v{V_M2}, v{V_M2}, v{regs[i+1]}')
        a(f'v_add_f32 v{V_SUM}, v{V_SUM}, v{V_M2}')
        a(f'v_mov_b32 v{V_M2}, v{V_SUM}')
        a(f'v_permlane32_swap_b32 v{V_SUM}, v{V_M2}')
        a(f'v_add_f32 v{V_SUM}, v{V_SUM}, v{V_M2}')
        a(f'v_rcp_f32 v{V_SUM}, v{V_SUM}')

    def att(self, LNEXT):
        a = self.a; L = self.L; S = self.S
        V_BL, V_BS, V_AL, V_KML, V_VML, V_D0, V_FLA, V_FLB = 6, 7, 8, 9, 10, 11, 12, 13
        V_M, V_M2, V_SUM = 14, 15, 26
        V_PP = 16
        V_PP = 28
        V_PM = 40
        V_PK = 208
        V_BC, V_BP, V_BA = 64, 80, 96
        V_SC, V_SP = 112, 128
        V_O = 144
        A_Q, A_K, A_KM, A_V, A_VM = 0, 32, 64, 96, 128
        B_Q, B_K, B_V, B_KP, B_VP, B_VC = 160, 168, 176, 184, 192, 196
        NEG = f32(-1e30)
        T = G_PTR
        a(f's_mov_b32 s{G_C}, {f32(128 ** -0.5 * math.log2(math.e))}')
        a(f's_mov_b32 s{G_C2}, {f32(32 ** -0.5 * math.log2(math.e))}')
        G_STR, G_AEND, G_S2 = G_PS, G_WSO, G_WST
        G_NX = G_OUO
        S(G_J, [(G_ID, 0, 3, 2), (G_WV, 0, None, 0)])
        a(f's_lshl_b32 s{G_T0}, s{G_J}, 11')
        a(f'v_add_u32 v{V_BL}, s{G_T0}, v{V_L16}')
        L(V_KML, [(5, 1, 7), (0, 3, 4)], f's{G_T0}')
        a(f's_add_u32 s{G_T0}, s{G_T0}, {VM - KM}')
        L(V_VML, [(0, 5, 4), (5, 1, 3)], f's{G_T0}')
        a(f's_lshl_b32 s{G_T0}, s{G_J}, 13')
        a(f'v_add_u32 v{V_AL}, s{G_T0}, v{V_L16}')
        a(f'v_mov_b32 v{V_BS}, v{V_AL}')
        S(G_FA, [(G_J, 0, None, 7)], FLG + F_SLA)
        S(G_FB, [(G_J, 2, None, 7)], FLG + F_SLB)
        S(G_FR, [(G_J, 0, None, 7)], FLG + F_REC)
        S(G_T0, [(G_J, 0, None, 7)], FLG)
        a(f'v_mov_b32 v{V_FLA}, s{G_T0}')
        a(f'v_lshl_add_u32 v{V_FLB}, v{V_L}, 12, s{G_T0}')
        self.keep(V_FLA, 's_mov_b64 vcc, 1')
        lhelp = a.newlabel('at_help'); lcom = a.newlabel('at_com')
        a(f's_cmp_lt_u32 s{G_ID}, 120')
        a(f's_cbranch_scc1 {lhelp}')
        a(f's_mov_b32 s{G_SA}, 0')
        a(f's_mov_b32 s{G_SB}, 0')
        a(f's_mov_b32 s{G_STR}, 1')
        a(f's_mov_b32 s{G_AEND}, {N0}')
        a(f's_mov_b32 s{G_S2}, {N1 + 2}')
        if self.sync:
            li = a.newlabel('at_i')
            a(f'v_mov_b32 v{V_T0}, 0')
            a(f's_mov_b32 s{G_T0}, {F_ATB}')
            a(f'buffer_store_dword v{V_T0}, v{V_FLA}, {WS}, s{G_T0} offen sc1')
            a(f's_mov_b32 s{G_T0}, {F_ATA}')
            a(f'buffer_store_dword v{V_T0}, v{V_FLB}, {WS}, s{G_T0} offen sc1')
            if not self.GV:
                a('s_waitcnt vmcnt(0)')
                a('s_barrier')
                a(f's_cmp_lg_u32 s{G_WV}, 0')
                a(f's_cbranch_scc1 {li}')
            if self.GV: self.late_arrive()
            else:
                self.mark(7)
                a('s_mov_b64 exec, 1')
                self.arrive()
            a.label(li)
        if not self.GV: self.touch_wo()
        a(f's_load_dwordx2 s[{T}:{T+1}], s[0:1], {K_AX}')
        a(f's_load_dwordx2 s[{T+2}:{T+3}], s[0:1], {K_BX}')
        a(f's_load_dwordx2 s[{T+4}:{T+5}], s[0:1], {K_BWO}')
        a('s_waitcnt lgkmcnt(0)')
        srd(a, G_W, T, 4 * MB)
        srd(a, G_X, T + 2, 4 * MB)
        srd(a, G_W2, T + 4, 2 * MB)
        a(f's_lshl_b32 s{G_T0}, s{G_J}, 13')
        a(f'v_lshl_add_u32 v{V_D0}, v{V_L}, 7, s{G_T0}')
        a(f'buffer_load_dword v{V_O}, v{V_D0}, s[{G_W}:{G_W+3}], 0 offen')
        self.wait_start()
        for i in range(16 if self.XT else 0):
            a(f's_mov_b32 s{G_T0}, {i * 262144}')
            a(f'buffer_load_dword v{V_O+2*i}, v{V_D0}, s[{G_W}:{G_W+3}], s{G_T0} offen')
            a(f'buffer_load_dword v{V_O+2*i+1}, v{V_D0}, s[{G_X}:{G_X+3}], s{G_T0} offen')
            if self.XT >= 2: a('s_waitcnt vmcnt(0)')
        for i in range(8 if self.XT & 1 else 0):
            if self.XT >= 2 and i % 2 == 0: a('s_waitcnt vmcnt(0)')
            a(f's_mov_b32 s{G_T0}, {i * 262144}')
            a(f'buffer_load_dword v{V_O+32+i}, v{V_D0}, s[{G_W2}:{G_W2+3}], s{G_T0} offen')
        a(f's_branch {lcom}')
        a.label(lhelp)
        S(G_SA, [(G_ID, 3, None, 0)], N0)
        a(f's_mov_b32 s{G_SB}, {NSEG}')
        a(f's_mov_b32 s{G_STR}, 12')
        a(f's_mov_b32 s{G_AEND}, {N1}')
        S(G_S2, [(G_ID, 3, 1, 0)], N1)
        a(f's_cmp_lt_u32 s{G_ID}, {NOUT}')
        a(f's_cselect_b32 s{G_S2}, {NSEG}, s{G_S2}')
        a.label(lcom)
        L(V_D0, [(0, 5, 0)])
        L(V_T1, [(5, 1, 2)])
        a(f'v_sub_u32 v{V_D0}, v{V_D0}, v{V_T1}')
        def bias(dst, add):
            a(f'v_mov_b32 v{V_M}, {NEG}')
            for j in range(16):
                a(f'v_add_u32 v{V_T1}, {add - (8*(j>>2)+(j&3))}, v{V_D0}')
                a(f'v_and_b32 v{V_T1}, 0xfffffff1, v{V_T1}')
                a(f'v_cmp_ne_u32 vcc, 0, v{V_T1}')
                a(f'v_cndmask_b32 v{dst+j}, 0, v{V_M}, vcc')
        bias(V_BC, 0)
        for j in range(16):
            a(f'v_cmp_gt_i32 vcc, {8*(j>>2)+(j&3)}, v{V_D0}')
            a(f'v_cndmask_b32 v{V_BA+j}, 0, v{V_M}, vcc')
        for j in range(16): a(f'v_mov_b32 v{V_BP+j}, {NEG}')
        for j in range(12): a(f'v_accvgpr_write_b32 a{B_KP+j}, 0')
        for j in range(16): a(f'v_accvgpr_write_b32 a{A_VM+j}, 0')
        for j in range(4): a(f'v_mov_b32 v{V_PM+j}, 0')
        self.wait_dbg(D_INIT, NARR if self.GV else NWG)
        top = a.newlabel('at_top'); la = a.newlabel('at_a'); lb = a.newlabel('at_b'); lend = a.newlabel('at_end'); lnb = a.newlabel('at_nb')
        lpoll = a.newlabel('at_poll'); lnf = a.newlabel('at_nf')
        G_DIRTY = G_SEEN
        def poll():
            if not self.sync: return
            a(f's_load_dwordx16 s[8:23], s[{G_WSP}:{G_WSP+1}], s{G_FR} glc')
            a(f's_load_dwordx4 s[{T+4}:{T+7}], s[{G_WSP}:{G_WSP+1}], s{G_FA} glc')
            a(f's_load_dwordx4 s[{T+8}:{T+11}], s[{G_WSP}:{G_WSP+1}], s{G_FB} glc')
        G_PV = G_R
        def post():
            a(f'v_mov_b32 v{V_T0}, s{G_PV}')
            a(f'buffer_store_dword v{V_T0}, v{V_FLA}, {WS}, s{G_DIRTY} offen sc1')
        def ld8(dst, base):
            for t in range(8):
                if t % 4 == 0: a(f's_add_u32 s{G_T0}, s{G_PO}, {base + t*1024}')
                a(f'buffer_load_dwordx4 {ar(dst+4*t,4)}, v{V_BS}, {WS}, s{G_T0} offen offset:{(t&3)*1024} sc1')
        def ldB(m, dst):
            a(f's_add_u32 s{G_T0}, s{G_XO}, {PB + m * PB_M}')
            for t in range(2): a(f'buffer_load_dwordx4 {ar(dst+4*t,4)}, v{V_BL}, {WS}, s{G_T0} offen offset:{t*1024} sc1')
        def nextseg():
            ln = a.newlabel('at_nx')
            a(f's_add_u32 s{G_NX}, s{G_SA}, s{G_STR}')
            a(f's_cmp_lt_u32 s{G_NX}, s{G_AEND}')
            a(f's_cbranch_scc1 {ln}')
            a(f's_max_u32 s{G_NX}, s{G_NX}, s{G_S2}')
            a(f's_cmp_eq_u32 s{G_AEND}, 255')
            a(f's_cselect_b32 s{G_NX}, s{G_NX}, s{G_S2}')
            a(f's_mov_b32 s{G_STR}, 3')
            a(f's_mov_b32 s{G_AEND}, 255')
            a.label(ln)
        nextseg()
        self.wait_flags_s(G_FB, 4, [0, 1, 2], 1)
        a(f's_mov_b32 s{G_XO}, 0')
        for m, dst in enumerate((B_Q, B_K, B_V)): ldB(m, dst)
        a(f's_add_u32 s{G_T1}, s{G_SA}, 1')
        self.wait_flags_s(G_FA, 4, [0, 1, 2], f's{G_T1}')
        a(f's_lshl_b32 s{G_PO}, s{G_SA}, 18')
        ld8(A_Q, PA); ld8(A_K, PA + PA_M); ld8(A_V, PA + 2 * PA_M)
        a(f's_mov_b32 s{G_DIRTY}, {F_DUM}')
        a(f's_mov_b32 s{G_PV}, 0')
        a(f's_mov_b32 s{G_END}, 0')
        a('s_waitcnt vmcnt(0)')
        self.acc(None)
        a.label(lpoll)
        poll()
        a.label(top)
        if self.sync:
            a('s_waitcnt lgkmcnt(0)')
            a(f's_min_u32 s{T}, s8, s12')
            for i in (16, 20): a(f's_min_u32 s{T}, s{T}, s{i}')
            for b in (4, 8):
                for i in (1, 2): a(f's_min_u32 s{T+b}, s{T+b}, s{T+b+i}')
            a(f's_min_u32 s{T+5}, s{G_NX}, {NSEG-1}')
            a(f's_cmp_gt_u32 s{T+4}, s{T+5}')
            a(f's_cselect_b32 s{T}, s{T}, 0')
            a(f's_min_u32 s{T}, s{T}, {NSEG}')
            a(f's_sub_u32 s{T+9}, s{T+8}, 1')
            a(f's_cmp_ge_u32 s{T+8}, {NSEG}')
            a(f's_cselect_b32 s{T+8}, {NSEG}, s{T+9}')
        else:
            a(f's_mov_b32 s{T}, {NSEG}'); a(f's_mov_b32 s{T+8}, {NSEG}')
        a(f's_cmp_lt_u32 s{G_SB}, s{T+8}')
        a(f's_cbranch_scc1 {lb}')
        a(f's_cmp_lt_u32 s{G_SA}, s{T}')
        a(f's_cbranch_scc1 {la}')
        a(f's_cmp_eq_u32 s{G_DIRTY}, {F_DUM}')
        a(f's_cbranch_scc1 {lnf}')
        a('s_waitcnt vmcnt(0)')
        post()
        a(f's_mov_b32 s{G_DIRTY}, {F_DUM}')
        a.label(lnf)
        a(f's_cmp_ge_u32 s{G_SA}, {NSEG}')
        a(f's_cselect_b32 s{G_T0}, s{G_SB}, 0')
        a(f's_cmp_ge_u32 s{G_T0}, {NSEG}')
        a(f's_cbranch_scc1 {lend}')
        self.spin_guard(lend)
        a('s_sleep 1')
        a(f's_branch {lpoll}')
        a.label(la)
        self.acc(0)
        G_KOK = G_END
        def ldkm():
            a('s_mov_b32 exec_lo, 0xff'); a('s_mov_b32 exec_hi, 0xff')
            for t in range(8): a(f'buffer_load_dwordx4 {ar(A_KM+4*t,4)}, v{V_KML}, {WS}, s{G_KMO} offen offset:{t*256} sc1')
            a('s_mov_b64 exec, -1')
        def ldvm():
            for e in range(4): a(f'buffer_load_dwordx2 {ar(A_VM+4*e,2)}, v{V_VML}, {WS}, s{G_KMO} offen offset:{e*512} sc1')
        lk1 = a.newlabel('at_k1'); lk2 = a.newlabel('at_k2'); lk3 = a.newlabel('at_k3'); lk4 = a.newlabel('at_k4')
        S(G_KMO, [(G_SA, 0, None, 16)], KM)
        a(f's_cmp_lg_u32 s{G_KOK}, 0')
        a(f's_cbranch_scc1 {lk1}')
        ldkm(); ldvm()
        a.label(lk1)
        S(G_OAO, [(G_SA, 0, None, 18)], OA)
        a(f's_cmp_lt_u32 s{G_NX}, s{T}')
        a(f's_cselect_b32 s{G_XMAX}, 1, 0')
        a(f's_cmp_lt_u32 s{G_NX}, {NSEG}')
        a(f's_cselect_b32 s{G_T1}, s{G_NX}, s{G_SA}')
        a(f's_cselect_b32 s{G_T0}, 0, {OOB}')
        a(f'v_or_b32 v{V_BS}, s{G_T0}, v{V_AL}')
        a(f's_lshl_b32 s{G_PO}, s{G_T1}, 18')
        S(G_KMO, [(G_T1, 0, None, 16)], KM)
        poll()
        for t in range(8):
            a(f'v_mfma_f32_32x32x16_bf16 {vr(V_SC,16)}, {ar(A_K+4*t,4)}, {ar(A_Q+4*t,4)}, {vr(V_SC if t else V_BA,16)}')
        a(f's_cmp_lg_u32 s{G_KOK}, 0')
        a(f's_cbranch_scc1 {lk2}')
        a('s_waitcnt vmcnt(4)')
        a.label(lk2)
        ld8(A_K, PA + PA_M)
        for t in range(8):
            a(f'v_mfma_f32_32x32x16_bf16 {vr(V_SP,16)}, {ar(A_KM+4*t,4)}, {ar(A_Q+4*t,4)}, {vr(V_SP,16) if t else 0}')
        self.acc(1)
        a(f's_mov_b32 s{G_KOK}, s{G_XMAX}')
        ld8(A_Q, PA)
        a(f's_cmp_eq_u32 s{G_KOK}, 0')
        a(f's_cbranch_scc1 {lk3}')
        ldkm()
        a.label(lk3)
        self.softmax([V_SC + j for j in range(16)] + [V_SP + j for j in range(4)], V_M, V_M2, V_SUM)
        for j in range(8): a(f'v_cvt_pk_bf16_f32 v{V_PP+j}, v{V_SC+2*j}, v{V_SC+2*j+1}')
        for j in range(2): a(f'v_cvt_pk_bf16_f32 v{V_PM+j}, v{V_SP+2*j}, v{V_SP+2*j+1}')
        def fin(e):
            O = V_O + 16 * e; PK = V_PK + 8 * e
            r = [f'v_mul_f32 v{O+j}, v{O+j}, v{V_SUM}' for j in range(16)]
            r += [f'v_cvt_pk_bf16_f32 v{PK+j}, v{O+2*j}, v{O+2*j+1}' for j in range(8)]
            return r
        def pv(e):
            O = vr(V_O + 16 * e, 16)
            return [f'v_mfma_f32_32x32x16_bf16 {O}, {ar(A_V+8*e,4)}, {vr(V_PP,4)}, 0',
                    f'v_mfma_f32_32x32x16_bf16 {O}, {ar(A_V+8*e+4,4)}, {vr(V_PP+4,4)}, {O}',
                    f'v_mfma_f32_32x32x16_bf16 {O}, {ar(A_VM+4*e,4)}, {vr(V_PM,4)}, {O}']
        a('s_waitcnt vmcnt(16)')
        post()
        for m in pv(0) + pv(1): a(m)
        q = fin(0) + fin(1)
        for m in pv(2) + pv(3):
            a(m)
            for _ in range(6): a(q.pop(0))
        ld8(A_V, PA + 2 * PA_M)
        a(f's_cmp_eq_u32 s{G_KOK}, 0')
        a(f's_cbranch_scc1 {lk4}')
        ldvm()
        a.label(lk4)
        for x in q + fin(2) + fin(3): a(x)
        for e in range(4):
            if e % 2 == 0: a(f's_add_u32 s{G_T0}, s{G_OAO}, {e*2048}')
            for t in range(2): a(f'buffer_store_dwordx4 {vr(V_PK+8*e+4*t,4)}, v{V_AL}, {WS}, s{G_T0} offen offset:{(e&1)*2048+t*1024} sc1')
        a(f's_mov_b32 s{G_PV}, 1')
        S(G_DIRTY, [(G_SA, 0, None, 12)], F_ATA)
        a(f's_mov_b32 s{G_SA}, s{G_NX}')
        nextseg()
        self.acc(2)
        a('s_waitcnt vmcnt(17)')
        self.acc(3)
        a(f's_branch {top}')
        a.label(lb)
        self.acc(0)
        poll()
        S(G_OBO, [(G_SB, 0, None, 16)], OB)
        a(f's_add_u32 s{G_T1}, s{G_SB}, 1')
        a(f's_min_u32 s{G_T1}, s{G_T1}, {NSEG-1}')
        a(f's_lshl_b32 s{G_XO}, s{G_T1}, 16')
        a(f'v_mfma_f32_32x32x16_bf16 {vr(V_SP,16)}, {ar(B_KP,4)}, {ar(B_Q,4)}, {vr(V_BP,16)}')
        a(f'v_mfma_f32_32x32x16_bf16 {vr(V_SP,16)}, {ar(B_KP+4,4)}, {ar(B_Q+4,4)}, {vr(V_SP,16)}')
        a(f'v_mfma_f32_32x32x16_bf16 {vr(V_SC,16)}, {ar(B_K,4)}, {ar(B_Q,4)}, {vr(V_BC,16)}')
        a(f'v_mfma_f32_32x32x16_bf16 {vr(V_SC,16)}, {ar(B_K+4,4)}, {ar(B_Q+4,4)}, {vr(V_SC,16)}')
        for j in range(8): a(f'v_accvgpr_mov_b32 a{B_KP+j}, a{B_K+j}')
        for j in range(8): a(f'v_accvgpr_mov_b32 a{B_VC+j}, a{B_V+j}')
        for m, dst in enumerate((B_Q, B_K, B_V)): ldB(m, dst)
        self.softmax([V_SP + 8 + j for j in range(8)] + [V_SC + j for j in range(16)], V_M, V_M2, V_SUM, G_C2)
        for j in range(8): a(f'v_cvt_pk_bf16_f32 v{V_PP+j}, v{V_SC+2*j}, v{V_SC+2*j+1}')
        for j in range(4): a(f'v_cvt_pk_bf16_f32 v{V_PP+8+j}, v{V_SP+8+2*j}, v{V_SP+8+2*j+1}')
        O = vr(V_O, 16)
        a(f'v_mfma_f32_32x32x16_bf16 {O}, {ar(B_VC,4)}, {vr(V_PP,4)}, 0')
        a(f'v_mfma_f32_32x32x16_bf16 {O}, {ar(B_VC+4,4)}, {vr(V_PP+4,4)}, {O}')
        a(f'v_mfma_f32_32x32x16_bf16 {O}, {ar(B_VP,4)}, {vr(V_PP+8,4)}, {O}')
        for j in range(4): a(f'v_accvgpr_mov_b32 a{B_VP+j}, a{B_VC+4+j}')
        self.acc(4)
        a('s_waitcnt vmcnt(6)')
        self.acc(5)
        post()
        a(f's_cmp_lg_u32 s{G_SB}, 0')
        a(f's_cbranch_scc1 {lnb}')
        bias(V_BP, 32)
        a.label(lnb)
        for j in range(16): a(f'v_mul_f32 v{V_O+j}, v{V_O+j}, v{V_SUM}')
        for j in range(8): a(f'v_cvt_pk_bf16_f32 v{V_PK+j}, v{V_O+2*j}, v{V_O+2*j+1}')
        for t in range(2):
            for j in range(2): a(f'v_permlane32_swap_b32 v{V_PK+4*t+j}, v{V_PK+4*t+2+j}')
        for t in range(2): a(f'buffer_store_dwordx4 {vr(V_PK+4*t,4)}, v{V_BL}, {WS}, s{G_OBO} offen offset:{t*1024} sc1')
        a(f's_add_u32 s{G_SB}, s{G_SB}, 1')
        a(f's_mov_b32 s{G_DIRTY}, {F_ATB}')
        a(f's_mov_b32 s{G_PV}, s{G_SB}')
        if self.prof:
            lm = a.newlabel('at_m')
            a(f's_cmp_lg_u32 s{G_SB}, {NSEG}')
            a(f's_cbranch_scc1 {lm}')
            self.mark(1)
            a.label(lm)
        self.acc(6)
        a('s_waitcnt vmcnt(3)')
        self.acc(7)
        a(f's_branch {top}')
        a.label(lend)
        a('s_waitcnt vmcnt(0) lgkmcnt(0)')
        self.mark(5)
        self.mark(6)
        a(f's_branch {LNEXT}')

    def out64(self, LNEXT, NF=16, SLP=10):
        a = self.a; L = self.L; S = self.S
        P = G_PTR
        NR = NOUT // 16
        V_G, V_TR, V_FA, V_RW, V_RR, V_OUT, V_FP, V_FR = 6, 7, 8, 9, 10, 11, 12, 13
        V_LW = 16
        V_AC = 32
        V_F = 64
        V_W = 128
        RB = 131072
        G_NXT, G_NOK, G_FSO = G_XO, G_END, G_XMAX
        a(f's_load_dwordx2 s[{P}:{P+1}], s[0:1], {K_WO}')
        a(f's_load_dwordx2 s[{P+2}:{P+3}], s[0:1], {K_OUT}')
        a(f's_mul_i32 s{G_J}, s{G_ID}, {-(-1024 // NR)}')
        a(f's_lshr_b32 s{G_J}, s{G_J}, 10')
        assert all((i * -(-1024 // NR)) >> 10 == i // NR for i in range(NOUT))
        a(f's_mul_i32 s{G_T0}, s{G_J}, {NR}')
        a(f's_sub_u32 s{G_SEG}, s{G_ID}, s{G_T0}')
        if self.OM:
            S(G_J, [(G_ID, 5, 1, 3), (G_ID, 0, 3, 0)])
            S(G_SEG, [(G_ID, 3, 2, 0)])
            a(f's_and_b32 s{G_T0}, s{G_ID}, 15')
            a(f's_cmp_lt_u32 s{G_ID}, 64')
            a(f's_cselect_b32 s{G_J}, s{G_J}, s{G_T0}')
            a(f's_cselect_b32 s{G_SEG}, s{G_SEG}, 4')
        LS = NSEG - 1 if self.QL else NSEG
        G_Q = G_OBO
        a(f's_add_u32 s{G_Q}, s{G_SEG}, {NR - (NSEG - 1) % NR}')
        a(f's_sub_u32 s{G_T0}, s{G_Q}, {NR}')
        a(f's_min_u32 s{G_Q}, s{G_Q}, s{G_T0}')
        a('s_waitcnt lgkmcnt(0)')
        srd(a, G_W, P, 8 * MB)
        srd(a, G_OUT, P + 2, 8 * MB)
        S(G_T0, [(G_WV, 0, None, 21), (G_J, 0, None, 7)])
        L(V_G, [(3, 3, 11), (0, 3, 4)], f's{G_T0}')
        a(f's_lshl_b32 s{G_T0}, s{G_WV}, 15')
        L(V_TR, [(5, 1, 9), (2, 2, 7), (4, 1, 5), (0, 2, 3)], f's{G_T0}')
        def wreg(t, tile):
            return f'a[{8*t+4*tile}:{8*t+4*tile+3}]' if t < 32 else vr(V_W + 8 * (t - 32) + 4 * tile, 4)
        def rds(p):
            if p >= 48: return []
            f, b = ('a', 8 * p) if p < 32 else ('v', V_W + 8 * (p - 32))
            return [(f'{f}[{b+4*tl+2*q}:{b+4*tl+2*q+1}]', V_TR, tl * 64 + q * 1024) for tl in range(2) for q in range(2)]
        self.load_weights([(G_W, V_G, 64, rds, '0', '16384')], slow=self.OSL)
        self.mark(4)
        a(f's_lshl_b32 s{G_T0}, s{G_WV}, 16')
        a(f'v_add_u32 v{V_FA}, s{G_T0}, v{V_L16}')
        S(G_T0, [(G_WV, 0, None, 13)], RB)
        a(f'v_add_u32 v{V_RW}, s{G_T0}, v{V_L16}')
        S(G_T0, [(G_WV, 0, None, 7)], RB)
        L(V_RR, [(1, 2, 10), (0, 1, 9), (3, 3, 4)], f's{G_T0}')
        S(G_T0, [(G_WV, 0, None, 15), (G_J, 0, None, 7)])
        L(V_OUT, [(3, 3, 12), (0, 3, 3)], f's{G_T0}')
        L(V_FP, [(0, 5, 7)], FLG)
        V_TC, V_FR2 = 14, 15
        G_N2, G_FS2 = G_SA, G_SB
        TC = self.TC
        S(G_T0, [(G_WV, 0, None, 16), (G_J, 0, 3, 13)])
        a(f'v_lshl_add_u32 v{V_TC}, v{V_L}, 7, s{G_T0}')
        def touch(base): a(f'buffer_load_dword v{V_T1}, v{V_TC}, {WS}, s{base} offen sc1')
        self.wait_dbg(D_INIT, NARR if self.GV else NWG)
        def flagoff(seg):
            S(G_FSO, [(seg, 0, 6, 12)], F_ATA)
        order = []
        for i in range(16): order += [3 * i, 3 * i + 1, 3 * i + 2, 48 + i]
        def ldA(n, base):
            t = order[n]
            a(f's_add_u32 s{G_T0}, s{base}, {t*1024}')
            a(f'buffer_load_dwordx4 {vr(V_F+4*(n%NF),4)}, v{V_FA}, {WS}, s{G_T0} offen sc1')
        def ldW(i, tls=(0, 1)):
            for tl in tls:
                for q in range(2):
                    r = V_LW + 8 * (i % 2) + 4 * tl + 2 * q
                    a(f'ds_read_b64_tr_b16 v[{r}:{r+1}], v{V_TR} offset:{i*2048+tl*64+q*1024}')
        lp = a.newlabel('o6_loop'); lgo = a.newlabel('o6_go'); lw = a.newlabel('o6_w'); lwd = a.newlabel('o6_wd')
        self.acc(None)
        a.label(lp)
        def start(slp):
            lw = a.newlabel('o6_w'); lwd = a.newlabel('o6_wd')
            S(G_OAO, [(G_SEG, 0, None, 18)], OA)
            flagoff(G_SEG)
            a.label(lw)
            a(f'buffer_load_dword v{V_FR}, v{V_FP}, {WS}, s{G_FSO} offen sc1')
            self.spin_guard(lwd)
            a('s_waitcnt vmcnt(0)')
            a(f'v_cmp_eq_u32 vcc, 0, v{V_FR}')
            a(f's_cbranch_vccz {lwd}')
            a(f's_sleep {slp}')
            a(f's_branch {lw}')
            a.label(lwd)
            if TC & 1: touch(G_OAO)
            for n in range(NF - 1): ldA(n, G_OAO)
        start(SLP)
        a.label(lgo)
        self.acc(0)
        a(f's_lshl_b32 s{G_OUO}, s{G_SEG}, 17')
        a(f's_add_u32 s{G_NXT}, s{G_SEG}, {NR}')
        flagoff(G_NXT)
        if TC & 2:
            a(f's_add_u32 s{G_N2}, s{G_SEG}, {2*NR}')
            S(G_FS2, [(G_N2, 0, 6, 12)], F_ATA)
        ldW(0)
        FL = 24
        for n in range(64):
            t = order[n]
            extra = (2 if TC & 2 else 1) if (FL < n <= FL + NF - 1) else 0
            a(f's_waitcnt vmcnt({NF - 2 + extra})')
            x = vr(V_F + 4 * (n % NF), 4)
            if t >= 48: a('s_waitcnt lgkmcnt(0)')
            for tl in range(2):
                w = wreg(t, tl) if t < 48 else vr(V_LW + 8 * ((t - 48) % 2) + 4 * tl, 4)
                D = vr(V_AC + 16 * tl, 16)
                a(f'v_mfma_f32_32x32x16_bf16 {D}, {w}, {x}, {D if n else 0}')
                if tl == 0:
                    m = n + NF - 1
                    if m == 64:
                        a(f'v_cmp_eq_u32 vcc, 0, v{V_FR}')
                        S(G_KMO, [(G_NXT, 0, None, 18)], OA)
                        a(f's_cmp_eq_u64 vcc, 0')
                        a(f's_cselect_b32 s{G_NOK}, 1, 0')
                        a(f's_cmp_ge_u32 s{G_NXT}, {LS}')
                        a(f's_cselect_b32 s{G_NOK}, 0, s{G_NOK}')
                        a(f's_cmp_eq_u32 s{G_NOK}, 0')
                        a(f's_cselect_b32 s{G_KMO}, s{G_OAO}, s{G_KMO}')
                    ldA(m % 64, G_OAO if m < 64 else G_KMO)
                    if n == FL:
                        if self.sync: a(f'buffer_load_dword v{V_FR}, v{V_FP}, {WS}, s{G_FSO} offen sc1')
                        else: a(f'buffer_load_dword v{V_T1}, v{V_FP}, {WS}, s{G_FSO} offen sc1'); a(f'v_mov_b32 v{V_FR}, 127')
                        if TC & 2: a(f'buffer_load_dword v{V_FR2}, v{V_FP}, {WS}, s{G_FS2} offen sc1')
                    if n == 60 and TC & 2:
                        a(f'v_cmp_eq_u32 vcc, 0, v{V_FR2}')
                        S(G_FS2, [(G_N2, 0, None, 18)], OA)
                        a(f's_cmp_eq_u64 vcc, 0')
                        a(f's_cselect_b32 s{G_FS2}, s{G_FS2}, s{G_OAO}')
                        a(f's_cmp_ge_u32 s{G_N2}, {NSEG}')
                        a(f's_cselect_b32 s{G_FS2}, s{G_OAO}, s{G_FS2}')
                    if n == 63 and TC & 2: touch(G_FS2)
                    if m == 64 and TC & 4: touch(G_KMO)
            if t >= 48 and t < 63: ldW(t - 48 + 1)
        self.acc(1)
        def reduce(hs):
            a('s_barrier')
            for b in range(8):
                if b // 4 in hs: a(f'ds_write_b128 v{V_RW}, {vr(V_AC+4*b,4)} offset:{b*1024}')
            a('s_waitcnt lgkmcnt(0)')
            a('s_barrier')
            for h in hs:
                for w in range(4): a(f'ds_read_b128 {vr(V_AC+16*h+4*w,4)}, v{V_RR} offset:{h*4096+w*8192}')
            for h in hs:
                R = V_AC + 16 * h
                a(f's_waitcnt lgkmcnt({4 * (hs[-1] - h)})')
                for j in (0, 2): a(f'v_pk_add_f32 {vr(R+j,2)}, {vr(R+j,2)}, {vr(R+4+j,2)}')
                for j in (0, 2): a(f'v_pk_add_f32 {vr(R+8+j,2)}, {vr(R+8+j,2)}, {vr(R+12+j,2)}')
                for j in (0, 2): a(f'v_pk_add_f32 {vr(R+j,2)}, {vr(R+j,2)}, {vr(R+8+j,2)}')
                for j in range(2): a(f'v_cvt_pk_bf16_f32 v{V_LW+8+2*h+j}, v{R+2*j}, v{R+2*j+1}')
                a(f'buffer_store_dwordx2 {vr(V_LW+8+2*h,2)}, v{V_OUT}, s[{G_OUT}:{G_OUT+3}], s{G_OUO} offen offset:{h*64}{self.ost}')
        reduce((0, 1))
        self.acc(2)
        a(f's_mov_b32 s{G_SEG}, s{G_NXT}')
        a(f's_mov_b32 s{G_OAO}, s{G_KMO}')
        a(f's_cmp_lg_u32 s{G_NOK}, 0')
        a(f's_cbranch_scc1 {lgo}')
        a(f's_cmp_lt_u32 s{G_SEG}, {LS}')
        a(f's_cbranch_scc1 {lp}')
        if self.QL:
            le = a.newlabel('o6_e'); lt1 = a.newlabel('o6_t1')
            a(f's_cmp_ge_u32 s{G_Q}, 4')
            a(f's_cbranch_scc1 {le}')
            a(f's_mov_b32 s{G_SEG}, {LS}')
            a(f's_lshl_b32 s{G_OUO}, s{G_SEG}, 17')
            a(f's_lshr_b32 s{G_T1}, s{G_Q}, 1')
            a(f'v_bfe_u32 v{V_T0}, v{V_L}, 4, 1')
            self.keep(V_FA, f'v_cmp_eq_u32 vcc, s{G_T1}, v{V_T0}')
            a(f's_lshr_b32 s{G_T0}, s{G_WV}, 1')
            a(f's_cmp_eq_u32 s{G_T0}, s{G_T1}')
            self.keep(V_OUT, 's_cselect_b64 vcc, -1, 0')
            start(self.QL)
            a(f's_bitcmp1_b32 s{G_Q}, 0')
            a(f's_cbranch_scc1 {lt1}')
            for tl in range(2):
                if tl: a.label(lt1)
                ldW(0, (tl,))
                for n in range(64):
                    t = order[n]
                    a(f's_waitcnt vmcnt({min(NF - 2, 63 - n)})')
                    if t >= 48: a('s_waitcnt lgkmcnt(0)')
                    w = wreg(t, tl) if t < 48 else vr(V_LW + 8 * ((t - 48) % 2) + 4 * tl, 4)
                    D = vr(V_AC + 16 * ((n & 1) ^ tl), 16)
                    a(f'v_mfma_f32_32x32x16_bf16 {D}, {w}, {vr(V_F + 4 * (n % NF), 4)}, {D if n > 1 else 0}')
                    if n + NF - 1 < 64: ldA(n + NF - 1, G_OAO)
                    if t >= 48 and t < 63: ldW(t - 48 + 1, (tl,))
                for j in range(0, 16, 2): a(f'v_pk_add_f32 {vr(V_AC+16*tl+j,2)}, {vr(V_AC+j,2)}, {vr(V_AC+16+j,2)}')
                reduce((tl,))
                if not tl: a(f's_branch {le}')
            a.label(le)
        self.mark(5)
        a(f's_branch {LNEXT}')
```

```python
MB = 1 << 20
NSEG = 64
PA = 0
PA_M = 16 * MB
PB = 48 * MB
PB_M = 4 * MB
OA = 64 * MB
OB = 80 * MB
KM = 84 * MB
VM = 88 * MB
SCB = 92 * MB
FLG = 110 * MB
HOFF = 112 * MB
NPAGE = 9
SLOT = 256 * 1024
WOF = 132 * MB
TRACE = 140 * MB
WS_BYTES = 268435456
K_AX, K_MEM0, K_WQ, K_WK, K_WV, K_WO, K_SEG, K_BX, K_WQKV, K_BWO, K_OUT, K_DBG, K_WS = [8 * i for i in range(13)]
OOB = 0x7f000000
D_INIT = 0
D_RDY = 32
F_SLA = 0
F_SLB = 4096
F_REC = 8192
F_ATB = 16384
F_DUM = 20480
F_ATA = 32768
F_SR = 294912
import os
if 'R' in os.environ.get('FV', ''): F_REC, F_DUM = F_DUM, F_REC
if 'S' in os.environ.get('FV', ''): F_SLA = 12288
if 'B' in os.environ.get('FV', ''): F_SLB, F_ATB = 24576, 28672
N0 = 6
N1 = 30
NOUT = 80
NWG = 256
NARR = 224 + 32 * 4
D_ROT = 48
S_ROT, S_BAD = 70, 71
VOTE_SH = 0
BAD_SH = 16
def validate(a, vreg, vz, dbg, spin, t0):
    lp = a.newlabel('val'); lc = a.newlabel('valc'); ok = a.newlabel('valok')
    a(f's_branch {lc}')
    a.label(lp)
    a(f'v_mov_b32 v{vz}, 0')
    a(f'global_load_dword v{vreg}, v{vz}, s[{dbg}:{dbg+1}] offset:{4*D_ROT} sc1')
    a(f's_add_u32 s{spin}, s{spin}, 1')
    a(f's_cmp_ge_u32 s{spin}, 0x80000')
    a('s_cbranch_scc1 L_end')
    a('s_waitcnt vmcnt(0)')
    a.label(lc)
    a(f'v_readfirstlane_b32 s{t0}, v{vreg}')
    a(f's_cmp_eq_u32 s{t0}, s{S_ROT}')
    a(f's_cbranch_scc1 {ok}')
    a(f's_cmp_eq_u32 s{t0}, 0')
    a(f's_cbranch_scc1 {lp}')
    a(f's_mov_b32 s{S_ROT}, s{t0}')
    a(f's_mov_b32 s{S_BAD}, {1 << BAD_SH}')
    a('s_waitcnt vmcnt(0) lgkmcnt(0)')
    a('s_barrier')
    a('s_branch L_role')
    a.label(ok)
```

```python
from asmlib import *
from layout import *
import math, struct

def srd(a, s, ptr, nbytes):
    a(f's_mov_b32 s{s}, s{ptr}')
    a(f's_and_b32 s{s+1}, s{ptr+1}, 0xffff')
    a(f's_mov_b32 s{s+2}, {nbytes}')
    a(f's_mov_b32 s{s+3}, 0x00020000')

def lane(a, dst, tmp, VL, terms, add=None):
    first = True
    for sh, w, out in terms:
        t = dst if first else tmp
        if sh + w >= 6: a(f'v_lshrrev_b32 v{t}, {sh}, v{VL}')
        elif sh == 0: a(f'v_and_b32 v{t}, {(1 << w) - 1}, v{VL}')
        else: a(f'v_bfe_u32 v{t}, v{VL}, {sh}, {w}')
        if first:
            if out: a(f'v_lshlrev_b32 v{dst}, {out}, v{dst}')
        else: a(f'v_lshl_add_u32 v{dst}, v{tmp}, {out}, v{dst}')
        first = False
    if add is not None: a(f'v_add_u32 v{dst}, {add}, v{dst}')

def sexpr(a, dst, tmp, terms, const=0):
    first = True
    for sreg, sh, w, out in terms:
        t = dst if first else tmp
        src = sreg
        if sh: a(f's_lshr_b32 s{t}, s{src}, {sh}'); src = t
        if w is not None: a(f's_and_b32 s{t}, s{src}, {(1 << w) - 1}'); src = t
        if out: a(f's_lshl_b32 s{t}, s{src}, {out}'); src = t
        if first:
            if src != dst: a(f's_mov_b32 s{dst}, s{src}')
        else: a(f's_add_u32 s{dst}, s{dst}, s{src}')
        first = False
    if const: a(f's_add_u32 s{dst}, s{dst}, {const}')

S_PFL = 3
S_WS = 4
S_WQ = 8
S_WO = 20
S_M0 = 24
S_RID, S_H, S_I, S_W, S_STEP = 28, 29, 30, 31, 32
S_SL0, S_SL1, S_SL2 = 33, 34, 35
S_SC, S_KV = 36, 37
S_T0, S_T1, S_T2 = 38, 39, 40
S_SPIN = 41
S_MLO8 = 42
S_MHI = 44
S_MHI8 = 46
S_PAR = 48
S_HB = 49
S_C = 50
S_KXB = 51
S_TS = 52
S_TAG = 54
S_MBO = 55
S_MK = 56
S_PTR = 72
S_NSO = 88
S_WSP = 90
S_DBG = 92
S_SEEN, S_FKV, S_FAST, S_FRO = 94, 95, 96, 97
S_NSI, S_NBO, S_NBI = 89, 98, 99

L_QK = 0
L_V = 10240
L_OP = 14336
L_X = 15360
L_KX = 131072

def gen_rec(a, prof=0, nsteps=NSEG, sync=False, DA=1, DB=2, DC=0, PLAINB=1, TPOS=1, TA=0, NEAR=1, ILA=4, ILC=4, SEP=0, ROT=0, OMAP=0, RDYP=26, MIX=0, TW=1, KC=2, KA=1, CJ=3, LB=1, RING=0, ASY=1, NSP=0, ZD=0, XP=0, PMK=0, TLBW=0, GV=0, STG=0, FS=0, POLP=38, WPF=0, ARP=18, WFL=0, QFL=0, LOC=0, ADP=0, ADS=2, ADM=8, EA=0, EC=0, SR=0, PSH=0):
    V_L, V_T0, V_T1, V_T2 = 1, 2, 3, 4
    V_IDX = 5
    V_MEMST, V_AOFF, V_COFF, V_COFF2 = 6, 7, 12, 13
    V_FF = 8
    V_QKW, V_QKW2, V_L16, V_VW, V_QKR, V_SCST, V_SCST2, V_SCLM = 14, 15, 16, 17, 18, 19, 20, 21
    V_SCL = [22, 23, 24]
    V_VR, V_VR2, V_OST, V_OPW, V_OPR, V_PFG, V_CK = 25, 26, 27, 28, 29, 30, 31
    V_ONE = 32
    V_MA = 36
    V_VX, V_KX = 52, 60
    V_D = 68
    V_S = 68
    V_PTG, V_NSA, V_SCCL, V_OCL = 92, 93, 94, 95
    V_X = 96
    V_R = 100
    V_TKST, V_TKSA, V_TG, V_M, V_M2 = 132, 133, 134, 135, 136
    V_VM = 138
    V_ZZ = 144
    V_TR = 148
    V_P = 156
    V_LD = 164
    V_NS = 180
    V_GQ, V_GO, V_TRQ, V_TRO = 184, 185, 186, 187
    V_FRA, V_NBA = 137, 26
    V_NB = 188
    V_FRV = V_NB
    V_CK2 = 4
    TRMAP = {0: 0, 2: 1, 5: 3, 8: 4, 10: 5, 'b': 2, 7: 6, 11: 7}
    TSR = [8, 10, 12, 14, 16, 18, 58, 20, 22, 24, 26, 56]
    def ts(k):
        if prof != 3: return
        r = 56 if k == 0 else (58 if k == 'o' else 8 + 2 * k)
        a(f's_memtime s[{r}:{r+1}]')
    def harvest():
        if prof != 3: return
        a('s_waitcnt lgkmcnt(0)')
        lh = a.newlabel('hv')
        a(f's_cmp_le_u32 s{S_STEP}, 3')
        a(f's_cbranch_scc1 {lh}')
        for k in range(1, 12):
            a(f's_sub_u32 s{S_TS}, s{TSR[k]}, s{TSR[k-1]}')
            a(f'v_readlane_b32 s{S_TS+1}, v{V_TR+1}, {k}')
            a(f's_add_u32 s{S_TS}, s{S_TS}, s{S_TS+1}')
            a(f'v_writelane_b32 v{V_TR+1}, s{S_TS}, {k}')
        a.label(lh)
        a('s_mov_b32 s8, s56')
    def stamp(k):
        if prof not in (1, 2): return
        e = TRMAP[k]
        if prof == 2 and k not in (5, 10, 7, 11): return
        lsk = a.newlabel('st')
        a(f's_cmp_eq_u32 s{S_W}, 3')
        a(f's_cbranch_scc1 {lsk}')
        a(f's_memrealtime s[{S_TS}:{S_TS+1}]')
        a('s_waitcnt lgkmcnt(0)')
        if k in (10, 11):
            a(f's_sub_u32 s{S_TS+1}, s{S_STEP}, 1')
            a(f's_mov_b32 m0, s{S_TS+1}')
        else:
            a(f's_mov_b32 m0, s{S_STEP}')
        a(f's_lshl_b32 s{S_TS}, s{S_TS}, 8')
        a(f's_and_b32 s{S_TS+1}, s{S_SPIN}, 0xff')
        a(f's_or_b32 s{S_TS}, s{S_TS}, s{S_TS+1}')
        a(f'v_writelane_b32 v{V_TR+e}, s{S_TS}, m0')
        a.label(lsk)
    def pmark(e, alt=0):
        if e in (2, 5, 6) and alt != PMK: return
        if prof == 5:
            if e in (2, 3, 7, 0):
                a(f's_memrealtime s[{S_TS}:{S_TS+1}]')
                a('s_waitcnt lgkmcnt(0)')
                a(f'v_mov_b32 v{V_TR}, s{S_TS}'); a(f'v_mov_b32 v{V_TR+1}, 0')
                a('s_mov_b64 exec, 1')
                a(f'global_atomic_umax v{V_TR+1}, v{V_TR}, s[{S_DBG}:{S_DBG+1}] offset:{4*{2: 1, 3: 2, 7: 3, 0: 4}[e]} sc1')
                a('s_mov_b64 exec, -1')
            return
        if not prof: return
        a(f's_memrealtime s[{S_TS}:{S_TS+1}]')
        a('s_waitcnt lgkmcnt(0)')
        a(f's_lshl_b32 s{S_TS}, s{S_TS}, 8')
        a(f'v_writelane_b32 v{V_TR+e}, s{S_TS}, 63')
    def L(dst, terms, add=None): lane(a, dst, V_T2, V_L, terms, add)
    def S(dst, terms, const=0): sexpr(a, dst, S_T2, terms, const)
    def spin_guard(lgive):
        a(f's_add_u32 s{S_SPIN}, s{S_SPIN}, 1')
        a(f's_cmp_ge_u32 s{S_SPIN}, 0x80000')
        a(f's_cbranch_scc1 {lgive}')
    def keep(reg, cond):
        a(cond)
        a(f'v_mov_b32 v{V_T2}, {OOB}')
        a(f'v_cndmask_b32 v{reg}, v{V_T2}, v{reg}, vcc')

    P = S_PTR
    a(f's_load_dwordx2 s[{P}:{P+1}], s[0:1], {K_MEM0}')
    a(f's_load_dwordx4 s[{P+4}:{P+7}], s[0:1], {K_WQ}')
    a(f's_load_dwordx4 s[{P+8}:{P+11}], s[0:1], {K_WV}')
    a(f's_load_dwordx2 s[{S_WSP}:{S_WSP+1}], s[0:1], {K_WS}')
    a(f's_load_dwordx2 s[{S_DBG}:{S_DBG+1}], s[0:1], {K_DBG}')
    a(f'v_and_b32 v{V_L}, 63, v0')
    a(f'v_lshrrev_b32 v{V_T0}, 6, v0')
    a(f'v_readfirstlane_b32 s{S_W}, v{V_T0}')
    a(f's_lshr_b32 s{S_H}, s{S_RID}, 2')
    a(f's_and_b32 s{S_I}, s{S_RID}, 3')
    a(f's_mov_b32 s{S_SPIN}, 0')
    if prof: a('s_mov_b32 s100, 0'); a('s_mov_b32 s101, 0')
    a('s_waitcnt lgkmcnt(0)')
    srd(a, S_M0, P, 16384)
    srd(a, S_WQ, P + 4, 8 * MB)
    srd(a, S_WQ + 4, P + 6, 8 * MB)
    srd(a, S_WQ + 8, P + 8, 8 * MB)
    srd(a, S_WO, P + 10, 8 * MB)
    srd(a, S_WS, S_WSP, WS_BYTES)
    WS = f's[{S_WS}:{S_WS+3}]'
    a(f's_sub_u32 s{S_HB}, 0, s{S_WSP}')
    a(f's_and_b32 s{S_HB}, s{S_HB}, {2*MB-1}')
    a(f's_add_u32 s{S_HB}, s{S_HB}, {HOFF}')

    if prof:
        for e in range(8): a(f'v_mov_b32 v{V_TR+e}, 0')
    lsk = a.newlabel('rec_cal')
    assert FS or not sync
    a(f's_mov_b32 s{S_PAR}, 0')
    cal0 = len(a.lines)
    a(f's_cmp_lg_u32 s{S_W}, 3')
    a(f's_cbranch_scc1 {lsk}')
    S(S_T0, [(S_RID, 0, 3, 21), (S_RID, 3, 1, 13), (S_RID, 4, 3, 8), (S_HB, 0, None, 0)], 15 * 16384)
    S(S_T1, [(S_RID, 3, 1, 14)])
    a(f's_sub_u32 s{S_T1}, s{S_T0}, s{S_T1}')
    a(f's_add_u32 s{S_T1}, s{S_T1}, 8192')
    a(f's_load_dword s{P+8}, s[{S_WSP}:{S_WSP+1}], s{S_T0} glc')
    a(f's_load_dword s{P+9}, s[{S_WSP}:{S_WSP+1}], s{S_T1} glc')
    for k in range(2):
        a('s_waitcnt lgkmcnt(0)')
        a(f's_memtime s[{P+4}:{P+5}]')
        a('s_waitcnt lgkmcnt(0)')
        a(f's_load_dword s{P+8}, s[{S_WSP}:{S_WSP+1}], s{S_T0+k} glc')
        a('s_waitcnt lgkmcnt(0)')
        a(f's_memtime s[{P+6}:{P+7}]')
        a('s_waitcnt lgkmcnt(0)')
        a(f's_sub_u32 s{P+k}, s{P+6}, s{P+4}')
    a(f's_cmp_lt_u32 s{P+1}, s{P}')
    a(f's_cselect_b32 s{S_T0}, 1, 0')
    a(f's_lshr_b32 s{S_T1}, s{S_RID}, 3')
    a(f's_xor_b32 s{S_T0}, s{S_T0}, s{S_T1}')
    a(f's_xor_b32 s{S_T0}, s{S_T0}, s{S_RID}')
    S(S_PAR, [(S_T0, 0, 1, VOTE_SH)])
    if GV: del a.lines[cal0:]
    a.label(lsk)
    pmark(2)
    S(S_T0, [(S_W, 0, None, 19 if LOC & 2 else 21), (S_RID, 0, None, 6)])
    L(V_GQ, [(2, 4, 13), (0, 2, 4)], f's{S_T0}')
    S(S_T0, [(S_W, 0, None, 19 if LOC & 1 else 21), (S_RID, 1, None, 5)])
    L(V_GO, [(1, 5, 11), (0, 1, 4)], f's{S_T0}')
    S_LB = S_SL0
    a(f's_lshl_b32 s{S_LB}, s{S_W}, 15')
    L(V_TRQ, [(4, 2, 9), (2, 2, 6), (0, 2, 3)], f's{S_LB}')
    L(V_TRO, [(4, 2, 8), (2, 2, 5), (0, 2, 3)], f's{S_LB}')
    pairs = []
    def wq_reg(kb, tile): return ('a', (kb * 6 + tile) * 8)
    def wo_reg(kb):
        return ('a', 192 + kb * 8) if kb < 8 else ('v', 192 + (kb - 8) * 8)
    for kb in range(4):
        for hf32 in range(2):
            for m in range(3):
                k0 = kb * (256 if LOC & 2 else 64) + hf32 * 32
                ld = [(S_WQ + 4 * m, V_GQ, (k0 + 16 * j) * 8192) for j in range(2)]
                rd = [[], [], [], []]
                for X in range(4):
                    for t in range(2):
                        f, b = wq_reg(kb ^ X ^ 3 if LOC & 2 else kb, m * 2 + t)
                        for q in range(2):
                            r0 = b + hf32 * 4 + q * 2
                            rd[X].append((f'{f}[{r0}:{r0+1}]', V_TRQ, t * 32 + q * 256))
                pairs.append((ld, rd))
    NW = 0
    wop = []
    for kb in range(16):
        ld = [(S_WO, V_GO, (kb * 64 + 32 * j) * 2048) for j in range(2)]
        if LOC & 1: ld = [(S_WO, V_GO, ((kb >> 2) * 1024 + (kb & 3) * 64 + 32 * j) * 2048) for j in range(2)]
        rd = [[], [], [], []]
        for X in range(4):
            f, b = wo_reg(kb ^ ((X ^ 3) << 2) if LOC & 1 else kb)
            for j in range(2):
                for q in range(2):
                    r0 = b + j * 4 + q * 2
                    rd[X].append((f'{f}[{r0}:{r0+1}]', V_TRO, j * 1024 + q * 128))
        wop.append((ld, rd))
    mix = []
    for g in range(8): mix += [wop[2*g], pairs[3*g], pairs[3*g+1], wop[2*g+1], pairs[3*g+2]]
    if MIX == 2: pairs = wop + pairs[0::3] + [x for i, x in enumerate(pairs) if i % 3]
    elif MIX == 4: pairs = wop + pairs
    elif MIX == 5:
        q = pairs; pairs = q[:8]
        for g in range(16): pairs += [wop[g], q[8+g]]
    elif MIX == 3: pairs = pairs[0::3] + wop + [x for i, x in enumerate(pairs) if i % 3]
    else: pairs = mix if MIX else pairs + wop
    NSL = 16
    def issue(p):
        ld, _ = pairs[p]
        for j, (sd, vo, so) in enumerate(ld):
            a(f's_add_u32 m0, s{S_LB}, {(p % NSL) * 2048 + j * 1024}')
            if (STG & 1) and sd == S_WO: a(f's_xor_b32 s{S_T0}, s{S_XO}, {so}')
            elif (STG & 2) and sd != S_WO: a(f's_xor_b32 s{S_T0}, s{S_XQ}, {so}')
            else: a(f's_mov_b32 s{S_T0}, {so}')
            fl = ['', ' nt', ' sc1', ' sc0 sc1', ' sc0 sc1 nt', ' sc1 nt'][WFL if sd == S_WO else QFL]
            a(f'buffer_load_dwordx4 v{vo}, s[{sd}:{sd+3}], s{S_T0} offen{fl} lds')
        ops[0] += 2; pos[p] = ops[0]
        if WPF and WPF <= p < WPF + 16:
            a(f's_mov_b32 s{S_T0}, {(p - WPF) * 64 * 2048}')
            a(f'buffer_load_dwordx4 v[252:255], v{V_X}, s[{S_WO}:{S_WO+3}], s{S_T0} offen')
            ops[0] += 1
    ops = [0]; pos = {}
    S(S_T0, [(S_W, 0, None, 21), (S_RID, 0, 3, 14), (S_RID, 3, None, 7)])
    L(V_X, [(3, 3, 11), (0, 3, 4)], f's{S_T0}')
    S_XO, S_XQ = 60, 61
    S(S_XO, [(S_RID, 0, 3, 18)])
    S(S_XQ, [(S_RID, 0, 1, 20)])
    if LOC:
        S(S_XO, [(S_RID, 5, 2, 21)])
        a(f's_xor_b32 s{S_XO}, s{S_XO}, {3 << 21}')
        a(f's_mov_b32 s{S_XQ}, s{S_XO}')
    issued = 0
    FB = NSL if NW else 6
    for p in range(FB):
        issue(p); issued += 1
    pmark(2, 2)
    L(V_T0, [(1, 1, 0)])
    a(f'v_mov_b32 v{V_T1}, 0xaaaa')
    a(f'v_mul_u32_u24 v{V_T0}, v{V_T0}, v{V_T1}')
    a(f'v_add_u32 v{V_IDX}, 0x4444, v{V_T0}')
    a(f'v_lshlrev_b32 v{V_L16}, 4, v{V_L}')
    BLK = 16384
    S(S_T0, [(S_RID, 6, None, 14), (S_RID, 0, 6, 7)], 8 * BLK)
    a(f'v_lshl_add_u32 v{V_MEMST}, v{V_L}, 2, s{S_T0}')
    S(S_T0, [(S_W, 0, None, 10)] if LOC & 2 else [(S_W, 1, None, 14), (S_W, 0, 1, 12)], 8 * BLK)
    a(f'v_add_u32 v{V_AOFF}, s{S_T0}, v{V_L16}')
    S(S_T0, [(S_RID, 0, 1, 16), (S_W, 0, None, 11 if LOC & 1 else 14)])
    a(f'v_add_u32 v{V_COFF}, s{S_T0}, v{V_L16}')
    a(f'v_add_u32 v{V_COFF2}, 4096, v{V_COFF}')
    a(f'v_lshrrev_b32 v{V_T0}, 4, v{V_L}')
    a(f'v_mul_u32_u24 v{V_T0}, 320, v{V_T0}')
    a(f'v_and_b32 v{V_T1}, 15, v{V_L}')
    a(f'v_lshl_add_u32 v{V_T0}, v{V_T1}, 2, v{V_T0}')
    a(f's_mul_i32 s{S_T0}, s{S_W}, 2560')
    a(f'v_add_u32 v{V_QKW}, s{S_T0}, v{V_T0}')
    a(f'v_add_u32 v{V_QKW2}, 1280, v{V_QKW}')
    S(S_T0, [(S_W, 0, None, 10)], L_V)
    a(f'v_add_u32 v{V_VW}, s{S_T0}, v{V_L16}')
    L(V_T0, [(0, 2, 1), (2, 1, 0)], 8)
    a(f'v_and_b32 v{V_T1}, 15, v{V_L}')
    a(f'v_cmp_gt_u32 vcc, 8, v{V_T1}')
    a(f'v_cndmask_b32 v{V_T1}, v{V_T0}, v{V_T1}, vcc')
    a(f'v_mul_u32_u24 v{V_T1}, 160, v{V_T1}')
    L(V_T0, [(5, 1, 6), (4, 1, 4)])
    a(f'v_add_u32 v{V_QKR}, v{V_T0}, v{V_T1}')
    a(f's_lshl_b32 s{S_T0}, s{S_RID}, 11')
    a(f'v_add_u32 v{V_SCST}, s{S_T0}, v{V_L16}')
    L(V_SCST2, [(4, 1, 7), (0, 3, 4)], f's{S_T0}')
    for k in range(3):
        a(f's_add_u32 s{S_T1}, s{S_I}, {k+1}')
        S(S_T0, [(S_T1, 0, 2, 11), (S_H, 0, None, 13)])
        a(f'v_add_u32 v{V_SCL[k]}, s{S_T0}, v{V_L16}')
    a(f's_lshl_b32 s{S_T0}, s{S_H}, 13')
    L(V_SCLM, [(4, 2, 11), (0, 4, 4)], f's{S_T0}')
    E0 = [(3, 1, 8), (1, 1, 6), (2, 1, 5), (0, 1, 4)]
    L(V_VR, [(4, 2, 8), (3, 1, 3)] + E0[1:], L_V)
    S(S_T0, [(S_RID, 0, None, 11), (S_W, 0, 1, 7)], PA + PA_M)
    L(V_T0, [(3, 1, 8), (0, 3, 4), (4, 1, 9), (5, 1, 10)], f's{S_T0}')
    a(f's_add_u32 s{S_T0}, s{S_T0}, {PA_M}')
    L(V_T1, E0 + [(4, 1, 9), (5, 1, 10)], f's{S_T0}')
    a(f's_cmp_lt_u32 s{S_W}, 2')
    a(f's_cselect_b64 vcc, -1, 0')
    a(f'v_cndmask_b32 v{V_PFG}, v{V_T1}, v{V_T0}, vcc')
    a(f's_lshl_b32 s{S_PFL}, s{S_W}, 10')
    S(S_T0, [(S_H, 3, None, 14), (S_H, 0, 3, 10), (S_I, 0, 1, 9), (S_I, 1, None, 7)])
    L(V_OST, [(2, 1, 16), (5, 1, 8), (1, 1, 6), (4, 1, 5), (0, 1, 4)], f's{S_T0}')
    S(S_T1, [(S_W, 1, None, 16), (S_W, 0, 1, 8), (S_T0, 0, None, 0)])
    a(f'v_add_u32 v{V_OCL}, s{S_T1}, v{V_L16}')
    keep(V_OCL, f'v_cmp_gt_u32 vcc, 8, v{V_L}')
    S(S_T0, [(S_W, 0, None, 8)], L_OP)
    a(f'v_lshl_add_u32 v{V_OPW}, v{V_L}, 2, s{S_T0}')
    L(V_OPR, [(2, 1, 7), (4, 1, 6), (0, 2, 4), (3, 1, 3)], L_OP)
    a(f's_mul_i32 s{S_T1}, s{S_W}, 320')
    S(S_T0, [(S_RID, 0, None, 11), (S_T1, 0, None, 0)])
    a(f'v_add_u32 v{V_SCCL}, s{S_T0}, v{V_L16}')
    keep(V_SCCL, f'v_cmp_gt_u32 vcc, 20, v{V_L}')
    a(f's_mul_i32 s{S_T0}, s{S_W}, 3')
    a(f'v_min_u32 v{V_T0}, 2, v{V_L}')
    a(f'v_add_u32 v{V_T0}, s{S_T0}, v{V_T0}')
    a(f'v_min_u32 v{V_T0}, 9, v{V_T0}')
    S(S_T0, [(S_RID, 0, None, 11)], 0 if RING else 128 * 2048)
    a(f'v_lshl_add_u32 v{V_PTG}, v{V_T0}, 7, s{S_T0}')
    lw = a.newlabel('rec_ns')
    a(f's_lshl_b32 s{S_T0}, s{S_RID}, 9')
    L(V_NSA, [(4, 2, 7), (0, 2, 5), (2, 1, 4)], f's{S_T0}')
    a('s_mov_b32 vcc_lo, 0xff00ff00'); a('s_mov_b32 vcc_hi, 0xff00ff00')
    a(f's_cmp_eq_u32 s{S_W}, 1')
    a(f's_cbranch_scc1 {lw}')
    a(f's_add_u32 s{S_T0}, s{S_T0}, {VM - KM}')
    a(f'v_add_u32 v{V_NSA}, s{S_T0}, v{V_L16}')
    a('s_mov_b32 vcc_lo, -1'); a('s_mov_b32 vcc_hi, 0')
    a(f's_cmp_eq_u32 s{S_W}, 2')
    a(f's_cbranch_scc1 {lw}')
    S(S_T0, [(S_RID, 6, None, 14), (S_RID, 0, 6, 7)], 8 * BLK)
    a(f'v_add_u32 v{V_NSA}, s{S_T0}, v{V_L16}')
    a(f's_cmp_eq_u32 s{S_W}, 3')
    a('s_cselect_b32 vcc_lo, 0xff, 0')
    a.label(lw)
    keep(V_NSA, 's_nop 0')
    for j in range(4): a(f'v_mov_b32 v{V_ONE+j}, 0x3f803f80')
    for j in range(4): a(f'v_mov_b32 v{V_FF+j}, -1')
    for j in range(4): a(f'v_mov_b32 v{V_ZZ+j}, 0')
    for j in range(4): a(f'v_mov_b32 v{V_NS+j}, 0')
    for j in range(5, 8): a(f'v_mov_b32 v{V_P+j}, 0')
    for j in range(6): a(f'v_mov_b32 v{V_VM+j}, 0')
    a(f's_mov_b32 s{S_MLO8}, 0x00ff00ff'); a(f's_mov_b32 s{S_MLO8+1}, 0x00ff00ff')
    a(f's_mov_b32 s{S_MHI}, 0'); a(f's_mov_b32 s{S_MHI+1}, -1')
    a(f's_mov_b32 s{S_MHI8}, 0'); a(f's_mov_b32 s{S_MHI8+1}, 0x00ff00ff')
    c = (128 ** -0.5) * math.log2(math.e)
    a(f's_mov_b32 s{S_C}, 0x{struct.unpack("<I", struct.pack("<f", c))[0]:08x}')
    a(f's_mov_b32 s{S_SC}, {SCB}')
    S_SCN, S_MSK = 64, 65
    assert SCB % (4 * MB) == 0
    if RING:
        a(f's_mov_b32 s{S_SCN}, {SCB + 128*2048}')
        a(f's_cmp_eq_u32 s{S_W}, 0')
        a(f's_cselect_b32 s{S_MSK}, {0xffffffff ^ (1 << 21)}, -1')
    a(f's_mov_b32 s{S_KV}, 0')
    a(f's_mov_b32 s{S_STEP}, 0')
    a(f's_mov_b32 s{S_KXB}, {L_KX}')
    a(f's_mov_b32 s{S_TAG}, 1')
    a(f's_min_u32 s{S_T0}, s{S_W}, 1')
    a(f's_add_u32 s{S_T0}, s{S_T0}, 1')
    a(f'v_mov_b32 v{V_TG}, s{S_T0}')

    S(S_FKV, [(S_H, 0, None, 7), (S_W, 1, None, 2)] + ([(S_W, 1, None, 12)] if SR >= 2 else []) + ([(S_I, 0, None, 14)] if SR == 3 else []), FLG + (F_SR if SR else F_SLA) + 4)
    S(S_FRO, [(S_H, 0, None, 7)], FLG + F_REC)
    S(S_T0, [(S_I, 0, None, 4), (S_FRO, 0, None, 0)])
    a(f'v_mov_b32 v{V_FRA}, s{S_T0}')
    a(f's_cmp_eq_u32 s{S_W}, 2')
    keep(V_FRA, 's_cselect_b64 vcc, 1, 0')
    a(f's_mov_b32 s{S_SEEN}, 0')
    def wait_kv(target):
        if not sync: return
        lp = a.newlabel('rec_kv'); ld = a.newlabel('rec_kvd')
        a(f's_cmp_gt_u32 s{S_SEEN}, {target}')
        a(f's_cbranch_scc0 {lp}')
        a.label(ld)
        def tl():
            a.label(lp)
            a(f's_load_dword s{S_SEEN}, s[{S_WSP}:{S_WSP+1}], s{S_FKV} glc')
            spin_guard(ld)
            a('s_waitcnt lgkmcnt(0)')
            a(f's_cmp_gt_u32 s{S_SEEN}, {target}')
            a(f's_cbranch_scc1 {ld}')
            a('s_sleep 2')
            a(f's_branch {lp}')
        tails.append(tl)
    tails = []
    PO = [8192 + 2*MB, 8192] if PSH else [0, 8192]
    for par in range(2):
        for sl in range(2):
            a(f's_add_u32 s{S_T0}, s{S_HB}, {PO[par] + sl*SLOT}')
            a(f'buffer_store_dwordx4 {vr(V_ZZ,4)}, v{V_OCL}, {WS}, s{S_T0} offen sc1')
    a(f'buffer_store_dwordx4 {vr(V_FF,4)}, v{V_SCCL}, {WS}, s{S_SC} offen sc1')
    a(f'v_add_u32 v{V_SCCL}, {128*2048}, v{V_SCCL}')
    a(f'buffer_store_dwordx4 {vr(V_FF,4)}, v{V_SCCL}, {WS}, s{S_SC} offen sc1')
    a(f'v_add_u32 v{V_SCCL}, {128*2048}, v{V_SCCL}')
    a(f'buffer_store_dwordx4 {vr(V_FF,4)}, v{V_SCCL}, {WS}, s{S_SC} offen sc1')
    a(f'buffer_store_dword v{V_ZZ}, v{V_FRA}, {WS}, 0 offen sc1')
    l3 = a.newlabel('rec_i3')
    a(f's_cmp_lg_u32 s{S_W}, 3')
    a(f's_cbranch_scc1 {l3}')
    for par in range(2):
        a(f's_add_u32 s{S_T0}, s{S_HB}, {PO[par] + SLOT}')
        a(f'buffer_store_dwordx4 {vr(V_ZZ,4)}, v{V_NSA}, {WS}, s{S_T0} offen sc1')
    S(S_T1, [(S_RID, 5, None, 14), (S_RID, 0, 5, 8), (S_HB, 0, None, 0)], 10 * BLK)
    a('s_mov_b64 exec, 0xffff')
    for par in range(2):
        a(f's_add_u32 s{S_T0}, s{S_T1}, {PO[par]}')
        a(f'buffer_store_dwordx4 {vr(V_ZZ,4)}, v{V_L16}, {WS}, s{S_T0} offen sc1')
    a('s_mov_b64 exec, -1')
    a.label(l3)
    a(f's_lshl_b32 s{S_T0}, s{S_W}, {7 if LOC & 2 else 9}')
    L(V_T0, [(2, 2, 12), (0, 1, 11), (4, 2, 5), (1, 1, 2)], f's{S_T0}')
    for c in range(4):
        if LOC & 2:
            a(f's_lshr_b32 s{S_T0}, s{S_XQ}, 12')
            a(f's_xor_b32 s{S_T0}, s{S_T0}, {c*512}')
        elif c % 2 == 0:
            a(f's_lshr_b32 s{S_T0}, s{S_XQ}, 12') if STG & 2 else a(f's_mov_b32 s{S_T0}, 0')
            a(f's_xor_b32 s{S_T0}, s{S_T0}, {c*128}')
        for p in range(4):
            a(f'buffer_load_dword v{V_MA+4*c+p}, v{V_T0}, s[{S_M0}:{S_M0+3}], s{S_T0} offen offset:{(0 if LOC & 2 else (c&1)*128)+p*8}')
    ops[0] += 24
    for p in range(FB, NSL):
        issue(p); issued += 1
    pmark(5, 2)
    NV = 4 if LOC else 1
    lv = [a.newlabel('rec_wv') for _ in range(NV)]; lvj = a.newlabel('rec_wj')
    for X in range(1, NV):
        a(f's_cmp_eq_u32 s{S_XO}, {(X ^ 3) << 21}')
        a(f's_cbranch_scc1 {lv[X]}')
    st0 = (issued, ops[0], dict(pos))
    for X in range(NV):
        a.label(lv[X])
        issued = st0[0]; ops[0] = st0[1]; pos.clear(); pos.update(st0[2])
        for p in range(NW, len(pairs)):
            if p == 1: pmark(6, 2)
            a(f's_waitcnt vmcnt({min(63, ops[0] - pos[p])})')
            if FS and p == ARP:
                srd(a, S_M0, S_DBG, 256)
                a(f's_add_u32 s{S_PAR}, s{S_PAR}, s{S_BAD}')
                a(f's_mov_b32 s{S_T0}, {OOB}')
                a(f's_cmp_eq_u32 s{S_W}, 0')
                a(f's_cselect_b32 s{S_T0}, {4*D_RDY}, s{S_T0}')
                a(f's_cselect_b32 s{S_T1}, 0, s{S_PAR}')
                a(f's_cmp_eq_u32 s{S_W}, 3')
                a(f's_cselect_b32 s{S_T0}, {4*D_INIT}, s{S_T0}')
                a(f'v_mov_b32 v{V_T2}, s{S_T0}')
                a(f'v_mov_b32 v{V_T0}, 1')
                a(f'v_mov_b32 v{V_T1}, s{S_T1}')
                a('s_mov_b64 exec, 1')
                a(f'buffer_atomic_add_x2 v[{V_T0}:{V_T1}], v{V_T2}, s[{S_M0}:{S_M0+3}], 0 offen sc1')
                a('s_mov_b64 exec, -1')
                ops[0] += 1
            if FS and p == POLP:
                a(f'global_load_dwordx2 {vr(V_X+2,2)}, v{V_ZZ}, s[{S_DBG}:{S_DBG+1}] offset:{4*D_INIT} sc1')
                ops[0] += 1
            if p in (0, 8, 28): pmark({0: 2, 8: 5, 28: 6}[p], 1)
            if p == TLBW and TLBW:
                a(f'v_lshlrev_b32 v{V_T0}, 21, v{V_L}')
                a(f'v_add_u32 v{V_T1}, {KM - 17*2*MB + 1920}, v{V_T0}')
                a(f'v_add_u32 v{V_T0}, {PA + PA_M + 1920}, v{V_T0}')
                a(f'v_cmp_gt_u32 vcc, 17, v{V_L}')
                a(f'v_cndmask_b32 v{V_T0}, v{V_T1}, v{V_T0}, vcc')
                keep(V_T0, f'v_cmp_gt_u32 vcc, {17 + (FLG - KM) // (2*MB)}, v{V_L}')
                a(f'buffer_load_dword v{V_CK}, v{V_T0}, {WS}, 0 offen sc1')
            if p == 2 and sync:
                a(f'global_load_dword v{V_CK}, v{V_ZZ}, s[{S_DBG}:{S_DBG+1}] offset:{4*D_ROT} sc1')
                ops[0] += 1
            if p == (NSL + 1 if sync else FB):
                lar = a.newlabel('rec_arr')
                if sync: validate(a, V_CK, V_T0, S_DBG, S_SPIN, S_T0)
                a('s_barrier')
                pmark(1)
                arr0 = len(a.lines)
                a(f's_cmp_lg_u32 s{S_W}, 3')
                a(f's_cbranch_scc1 {lar}')
                a(f'v_mov_b32 v{V_T0}, 0')
                if sync: a(f's_add_u32 s{S_PAR}, s{S_PAR}, s{S_BAD}')
                a(f'v_mov_b32 v{V_T1}, s{S_PAR}')
                a('s_mov_b64 exec, 1')
                a(f'global_atomic_add v{V_T0}, v{V_T1}, s[{S_DBG}:{S_DBG+1}] offset:{4*D_INIT} sc1')
                a('s_mov_b64 exec, -1')
                if FS: del a.lines[arr0:]
                a.label(lar)
            if p == RDYP and sync and not FS:
                lar = a.newlabel('rec_rdy')
                a(f's_cmp_lg_u32 s{S_W}, 0')
                a(f's_cbranch_scc1 {lar}')
                a(f'v_mov_b32 v{V_T0}, 0')
                a(f'v_mov_b32 v{V_T1}, 1')
                a('s_mov_b64 exec, 1')
                a(f'global_atomic_add v{V_T0}, v{V_T1}, s[{S_DBG}:{S_DBG+1}] offset:{4*D_RDY} sc1')
                a('s_mov_b64 exec, -1')
                a.label(lar)
            for dst, va, off in pairs[p][1][X]:
                a(f'ds_read_b64_tr_b16 {dst}, v{va} offset:{(p % NSL) * 2048 + off}')
            if p >= NW + 1 and issued < len(pairs):
                a('s_waitcnt lgkmcnt(4)')
                issue(issued); issued += 1
        if X < NV - 1: a(f's_branch {lvj}')
    a.label(lvj)
    a('s_waitcnt lgkmcnt(0)')

    pmark(3)
    V_CO = [V_COFF2, 184, 185, 186, 187, V_SCCL, V_OCL, V_COFF]
    V_AOFF2 = V_FF
    V_AO = [V_FF, V_FF + 1, V_FF + 2, V_AOFF]
    if LOC & 1:
        for c in range(4):
            a(f's_lshr_b32 s{S_T0}, s{S_XO}, 7')
            a(f's_xor_b32 s{S_T0}, s{S_T0}, {c << 14}')
            a(f'v_add_u32 v{V_CO[4+c]}, s{S_T0}, v{V_COFF}')
    if LOC & 2:
        for c in range(4):
            a(f's_lshr_b32 s{S_T1}, s{S_XQ}, 21')
            a(f's_xor_b32 s{S_T1}, s{S_T1}, {c}')
            S(S_T0, [(S_T1, 1, 1, 14), (S_T1, 0, 1, 12)])
            a(f'v_add_u32 v{V_AO[c]}, s{S_T0}, v{V_AOFF}')
    if STG & 1:
        for c in range(8):
            a(f's_lshr_b32 s{S_T0}, s{S_XO}, 8')
            a(f's_xor_b32 s{S_T0}, s{S_T0}, {c*1024}')
            a(f'v_add_u32 v{V_CO[c]}, s{S_T0}, v{V_COFF}')
    if STG & 2:
        a(f's_lshr_b32 s{S_T0}, s{S_XQ}, 9')
        a(f's_xor_b32 s{S_T1}, s{S_T0}, 2048')
        a(f'v_add_u32 v{V_AOFF2}, s{S_T1}, v{V_AOFF}')
        a(f'v_add_u32 v{V_AOFF}, s{S_T0}, v{V_AOFF}')
    for j in range(16): a(f'v_max_u32 v{V_MA+j}, 1, v{V_MA+j}')
    for j in range(24): a(f'v_mov_b32 v{V_D+j}, 0')
    for j in range(16): a(f's_mov_b32 s{P+j}, 0')
    lb = a.newlabel('rec_ib'); lbp = a.newlabel('rec_ibp'); lbq = a.newlabel('rec_ibq')
    a(f'v_mov_b32 v{V_T0}, 0')
    a(f's_branch {lbq}')
    a.label(lbp)
    a('s_sleep 16')
    if not FS: a.label(lbq)
    a(f'global_load_dwordx2 {vr(V_X+2,2)}, v{V_ZZ}, s[{S_DBG}:{S_DBG+1}] offset:{4*D_INIT} sc1')
    spin_guard(lb)
    if FS: a.label(lbq)
    a('s_waitcnt vmcnt(0)')
    a(f'v_readfirstlane_b32 s{S_T1}, v{V_X+2}')
    a(f'v_readfirstlane_b32 s{S_T0}, v{V_X+3}')
    a(f's_cmp_lt_u32 s{S_T1}, {(NARR if GV else NWG) if sync else 128}')
    a(f's_cbranch_scc1 {lbp}')
    a.label(lb)
    if FS:
        a(f's_mov_b32 s{S_SEEN}, 1')
        a(f's_add_u32 m0, s{S_KXB}, s{S_PFL}')
        a(f'buffer_load_dwordx4 v{V_PFG}, {WS}, s{S_KV} offen sc1 lds')
    a(f's_lshr_b32 s{S_FAST}, s{S_T0}, {BAD_SH}')
    a(f's_and_b32 s{S_T0}, s{S_T0}, 0xffff')
    a(f's_cmp_ge_u32 s{S_T0}, {64 if NEAR else 999}')
    if PSH:
        a(f's_cselect_b32 s{S_T0}, 0, {2*MB}')
        a(f's_add_u32 s{S_HB}, s{S_HB}, s{S_T0}')
        a(f's_mov_b32 s{S_PAR}, -1')
    else: a(f's_cselect_b32 s{S_PAR}, -1, 0')
    a(f's_xor_b32 s{S_PAR}, s{S_PAR}, 0xaaa')
    pmark(4)
    S(S_SL0, [(S_PAR, 0, 1, 13), (S_HB, 0, None, 0)])
    if SR:
        a(f's_add_u32 s{S_T0}, s{S_WSP}, s{S_FKV}')
        a(f's_add_u32 s{S_T1}, s{S_WSP}, s{S_SL0}')
        a(f's_xor_b32 s{S_T0}, s{S_T0}, s{S_T1}')
        a(f's_lshr_b32 s{S_T1}, s{S_T0}, 8')
        a(f's_xor_b32 s{S_T0}, s{S_T0}, s{S_T1}')
        a(f's_and_b32 s{S_T0}, s{S_T0}, 8192')
        a(f's_add_u32 s{S_FKV}, s{S_FKV}, s{S_T0}')
    a(f's_add_u32 s{S_SL1}, s{S_SL0}, {SLOT}')
    a(f's_add_u32 s{S_SL2}, s{S_SL0}, {2*SLOT}')
    S(S_T0, [(S_RID, 5, None, 4), (S_I, 0, None, 14), (S_SL0, 0, None, 0)], 10 * BLK)
    L(V_TKST, [(0, 5, 8)], f's{S_T0}')
    a(f's_and_b32 s{S_T1}, s{S_H}, { {4: 7, 2: 23, 1: 31}[KC] }')
    a(f's_cmp_eq_u32 s{S_T1}, {CJ}')
    a('s_mov_b32 vcc_hi, 0')
    keep(V_TKST, 's_cselect_b32 vcc_lo, -1, 0')
    a(f'v_add_u32 v{V_TKSA}, 128, v{V_TKST}')
    a(f's_and_b32 s{S_T1}, s{S_H}, { {4: 7, 2: 23, 1: 31}[KA] }')
    a(f's_cmp_eq_u32 s{S_T1}, {CJ}')
    a(f's_cselect_b32 s{S_T1}, s{S_W}, 99')
    a(f's_cmp_eq_u32 s{S_T1}, {TW}')
    keep(V_TKSA, 's_cselect_b64 vcc, -1, 0')
    S(S_MBO, [(S_RID, 5, None, 14), (S_RID, 0, 5, 8), (S_SL0, 0, None, 0)], 10 * BLK)
    a(f's_add_u32 s{S_MHI}, s{S_MBO}, 128')
    lq = a.newlabel('rec_gs'); lq1 = a.newlabel('rec_gs1'); lq2 = a.newlabel('rec_gs2'); lq3 = a.newlabel('rec_gs3')
    a(f'v_mov_b32 v{V_NBA}, {OOB}')
    a(f's_mov_b32 s{S_NBO}, 0'); a(f's_mov_b32 s{S_NBI}, 0')
    a(f's_mov_b32 s{S_NSO}, {KM}'); a(f's_mov_b32 s{S_NSI}, 65536')
    for j in range(4): a(f'v_mov_b32 v{V_NB+j}, 0')
    a(f's_cmp_eq_u32 s{S_W}, 1'); a(f's_cbranch_scc1 {lq1}')
    a(f's_cmp_eq_u32 s{S_W}, 2'); a(f's_cbranch_scc1 {lq2}')
    a(f's_cmp_eq_u32 s{S_W}, 3'); a(f's_cbranch_scc1 {lq3}')
    a(f'v_mov_b32 v{V_NSA}, v{V_SCST}')
    for j in range(4): a(f'v_mov_b32 v{V_NS+j}, -1')
    a(f's_mov_b32 s{S_NSO}, {SCB + 3*128*2048}'); a(f's_mov_b32 s{S_NSI}, {128*2048}')
    a(f's_branch {lq}')
    a.label(lq1)
    a(f'v_mov_b32 v{V_NBA}, v{V_SCST}')
    keep(V_NBA, 's_mov_b64 vcc, 0xffff')
    for j in range(4): a(f'v_mov_b32 v{V_NB+j}, -1')
    a(f's_mov_b32 s{S_NBO}, {SCB + 3*128*2048 + 1024}'); a(f's_mov_b32 s{S_NBI}, {128*2048}')
    a(f's_branch {lq}')
    a.label(lq2)
    a(f'v_mov_b32 v{V_NBA}, v{V_FRA}')
    a(f's_branch {lq}')
    a.label(lq3)
    S(S_T0, [(S_H, 3, None, 14), (S_H, 0, 3, 10), (S_I, 0, 1, 9), (S_I, 1, None, 7)])
    L(V_T0, [(4, 1, 16), (3, 1, 8), (0, 3, 4)], f's{S_T0}')
    a('s_mov_b32 vcc_lo, 0'); a('s_mov_b32 vcc_hi, -1')
    a(f'v_cndmask_b32 v{V_NSA}, v{V_NSA}, v{V_T0}, vcc')
    a(f's_mov_b32 s{S_NSO}, s{S_SL2}')
    a.label(lq)
    a(f's_cmp_eq_u32 s{S_W}, 2')
    a(f's_cselect_b32 s{S_MHI+1}, 1, 0')

    pmark(5)
    if not FS: a('s_barrier')
    pmark(6)
    if not PLAINB: a(f's_mov_b32 s{S_FAST}, 1')
    for j in range(16): a(f's_mov_b32 s{P+j}, 0')
    if not FS: wait_kv(0)
    pmark(7)
    if not FS:
        a(f's_add_u32 m0, s{S_KXB}, s{S_PFL}')
        a(f'buffer_load_dwordx4 v{V_PFG}, {WS}, s{S_KV} offen sc1 lds')
    a('s_waitcnt vmcnt(0)')
    a('s_barrier')
    S_DLA, S_DLC = 62, 63
    if ADP: a(f's_mov_b32 s{S_DLA}, {(DA + 2) << ADS}'); a(f's_mov_b32 s{S_DLC}, {(DC + 2) << ADS}')
    ENTRY = a.newlabel('rec_entry')
    ts(0)
    a(f's_branch {ENTRY}')

    def gather(name, n, load, mf, nacc, noise, ilv, entry=None, pre=None, post=None, E=0):
        ok = a.newlabel(name + 'ok'); fix = a.newlabel(name + 'fix'); efx = a.newlabel(name + 'efx')
        def chunk(c, k, cnt, early=False):
            b = V_MA + 4 * c
            a(f's_waitcnt vmcnt({cnt})')
            ms = mf(c)
            if k == 0: seq = [f'v_min_u32 v{V_CK}, v{b}, v{b+1}', f'v_min_u32 v{V_CK2}, v{b+2}, v{b+3}']
            elif k < n - 1: seq = [f'v_min3_u32 v{V_CK}, v{V_CK}, v{b}, v{b+1}', f'v_min3_u32 v{V_CK2}, v{V_CK2}, v{b+2}, v{b+3}']
            else:
                a(f'v_min3_u32 v{V_CK}, v{V_CK}, v{b}, v{b+1}')
                seq = [f'v_min3_u32 v{V_CK}, v{V_CK}, v{b+2}, v{b+3}', f'v_cmp_eq_u32 vcc, 0, v{V_CK}']
            if k == n - 2 or early: seq.append(f'v_min_u32 v{V_CK}, v{V_CK}, v{V_CK2}')
            if early:
                seq.append(f'v_cmp_eq_u32 vcc, 0, v{V_CK}')
                if len(ms) < 4: a(seq.pop(0)); a(seq.pop(0))
            j = 0
            for m in ms:
                a(m)
                if j < len(seq): a(seq[j]); j += 1
            while j < len(seq): a(seq[j]); j += 1
        def body(first):
            for c in range(n):
                load(c, V_MA + 4 * c)
                if first and ilv and c < n - 1: a(f's_nop {ilv-1}')
            if not first:
                for j in range(0, nacc, 2): a(f'v_mov_b64 {vr(V_D+j,2)}, 0')
            if first and entry: a.label(entry)
            if first and pre: pre()
            iss = 0
            for c in range(n):
                chunk(c, c, n - 1 - c + iss, first and c == E - 1)
                if first and c < len(noise): noise[c](); iss += 1
                if first and c == E - 1:
                    assert iss == len(noise)
                    a(f's_cbranch_vccnz {efx}')
            if first and post: post()
        def tle():
            a.label(efx)
            for c in range(E): load(c, V_MA + 4 * c)
            if prof: a(f's_add_u32 s{100 if nacc == 16 else 101}, s{100 if nacc == 16 else 101}, 256')
            a('s_nop 7')
            for j in range(0, nacc, 2): a(f'v_mov_b64 {vr(V_D+j,2)}, 0')
            for k in range(n):
                c = (k + E) % n
                chunk(c, k, n - 1 - k + (len(noise) if c >= E else 0))
            if post: post()
            a(f's_cbranch_vccnz {fix}')
            a(f's_branch {ok}')
        if E: tails.append(tle)
        body(True)
        a(f's_cbranch_vccnz {fix}')
        a.label(ok)
        def tl():
            a.label(fix)
            if prof: a(f's_add_u32 s{100 if nacc == 16 else 101}, s{100 if nacc == 16 else 101}, 1')
            if ADP:
                R = S_DLA if nacc == 16 else S_DLC
                a(f's_add_u32 s{R}, s{R}, {ADP << ADS}')
                a(f's_min_u32 s{R}, s{R}, {ADM << ADS}')
            spin_guard(ok)
            body(False)
            a(f's_cbranch_vccnz {fix}')
            a(f's_branch {ok}')
        tails.append(tl)

    def halves(m):
        b = V_D + 8 * m
        a(f'v_pk_add_f32 {vr(b,2)}, {vr(b,2)}, {vr(b+2,2)}')
        a(f'v_pk_add_f32 {vr(b+2,2)}, {vr(b+4,2)}, {vr(b+6,2)}')
    S_MB2 = S_MHI
    def tpoll(off):
        T = S_PTR
        K = KA if off else KC
        so = S_MB2 if off else S_MBO
        if K == 2: a(f's_load_dwordx8 s[{T}:{T+7}], s[{S_WSP}:{S_WSP+1}], s{so} glc')
        elif K == 4: a(f's_load_dwordx16 s[{T}:{T+15}], s[{S_WSP}:{S_WSP+1}], s{so} glc')
        else: a(f's_load_dword s{T}, s[{S_WSP}:{S_WSP+1}], s{so} glc')
    def tickwait(off, extra):
        lp = a.newlabel('rec_tk'); ld = a.newlabel('rec_tkd'); lc = a.newlabel('rec_tkc')
        T = S_PTR
        K = KA if off else KC
        a(f's_branch {lc}')
        a.label(lp)
        tpoll(off)
        spin_guard(ld)
        a(f's_sleep {TPOS}' if TPOS else 's_nop 7')
        a.label(lc)
        if K == 4:
            a(f's_min_u32 s{S_T0}, s{T}, s{T+4}')
            a(f's_min_u32 s{S_T1}, s{T+8}, s{T+12}')
            a(f's_min_u32 s{S_T0}, s{S_T0}, s{S_T1}')
        elif K == 2: a(f's_min_u32 s{S_T0}, s{T}, s{T+4}')
        else: a(f's_mov_b32 s{S_T0}, s{T}')
        a(f's_cmp_lt_u32 s{S_T0}, s{S_TAG}')
        a(f's_cbranch_scc1 {lp}')
        a.label(ld)
        a(f's_add_u32 s{S_TAG}, s{S_TAG}, 1')
        if ADP:
            R = S_DLA if off else S_DLC
            lq = a.newlabel('rec_dl'); lz = a.newlabel('rec_dz')
            a(f's_lshr_b32 s{S_T0}, s{R}, {ADS}')
            a.label(lq)
            a(f's_sub_u32 s{S_T0}, s{S_T0}, 1')
            a(f's_cbranch_scc0 {lq}')
            a(f's_sub_u32 s{R}, s{R}, 1')
            a(f's_max_i32 s{R}, s{R}, {extra << ADS}')
        elif extra >= 10:
            for _ in range(extra - 10): a('s_nop 15')
        elif extra: a(f's_sleep {extra}')
    def vmfl():
        r = []
        for c in range(4):
            for t in (4, 5):
                f, b = wq_reg(c, t)
                r.append(f'v_smfmac_f32_16x16x64_bf16 {vr(V_D+4*t,4)}, {vr(V_MA+4*c,4)}, {f}[{b}:{b+7}], v{V_IDX}')
        return r
    def vmf():
        for m in vmfl(): a(m)
    def red4(n):
        for j in range(0, n, 2): a(f'v_pk_add_f32 {vr(V_R+j,2)}, {vr(V_R+j,2)}, {vr(V_R+n+j,2)}')
        for j in range(0, n, 2): a(f'v_pk_add_f32 {vr(V_R+2*n+j,2)}, {vr(V_R+2*n+j,2)}, {vr(V_R+3*n+j,2)}')
        for j in range(0, n, 2): a(f'v_pk_add_f32 {vr(V_R+j,2)}, {vr(V_R+j,2)}, {vr(V_R+2*n+j,2)}')

    LOOP = a.newlabel('rec_loop'); DONE = a.newlabel('rec_done')
    a.label(LOOP)
    a('s_barrier')
    stamp(11)
    ts(0)
    def loadA(c, r):
        if LOC & 2: a(f'buffer_load_dwordx4 {vr(r,4)}, v{V_AO[c]}, {WS}, s{S_SL0} offen sc1'); return
        if STG & 2: a(f'buffer_load_dwordx4 {vr(r,4)}, v{V_AOFF if c < 2 else V_AOFF2}, {WS}, s{S_SL0} offen offset:{(c&1)*1024} sc1')
        else: a(f'buffer_load_dwordx4 {vr(r,4)}, v{V_AOFF}, {WS}, s{S_SL0} offen offset:{c*1024} sc1')
    def mfA(c):
        r = []
        for t in range(4):
            f, b = wq_reg(c, t)
            r.append(f'v_smfmac_f32_16x16x64_bf16 {vr(V_D+4*t,4)}, {vr(V_MA+4*c,4)}, {f}[{b}:{b+7}], v{V_IDX}')
        return r
    def noiseA():
        a(f'buffer_store_dwordx4 {vr(V_FF,4)}, v{V_SCCL}, {WS}, s{S_SC} offen sc1')
    def preA():
        harvest()
        a(f'v_add_u32 v{V_T0}, s{S_KXB}, v{V_L16}')
        for t in range(2): a(f'ds_read_b128 {vr(V_KX+4*t,4)}, v{V_T0} offset:{t*1024}')
        for t in range(2): a(f'ds_read_b128 {vr(V_VX+4*t,4)}, v{V_T0} offset:{2048+t*1024}')
    gather('rec_ga', 4, loadA, mfA, 16, [], ILA, entry=ENTRY, pre=preA, E=EA)
    stamp(0)
    ts(2)
    for m in range(2):
        halves(m)
        va = V_QKW if m == 0 else V_QKW2
        a(f'ds_write2_b32 v{va}, v{V_D+8*m}, v{V_D+8*m+1} offset0:0 offset1:40')
        a(f'ds_write2_b32 v{va}, v{V_D+8*m+2}, v{V_D+8*m+3} offset0:16 offset1:56')
    LB2 = a.newlabel('rec_b2'); LW1 = a.newlabel('rec_w1')
    a(f's_cmp_lg_u32 s{S_W}, 0')
    a(f's_cbranch_scc1 {LW1}')
    a('s_waitcnt lgkmcnt(0)')
    a('s_barrier')
    ts(3)
    vm = vmfl()
    for w in range(4):
        for q in range(2):
            a(f'ds_read_b128 {vr(V_R+8*w+4*q,4)}, v{V_QKR} offset:{L_QK+w*2560+q*32}')
            a(vm.pop(0))
    a('s_waitcnt lgkmcnt(4)')
    for j in range(0, 8, 2): a(f'v_pk_add_f32 {vr(V_R+j,2)}, {vr(V_R+j,2)}, {vr(V_R+8+j,2)}')
    a('s_waitcnt lgkmcnt(2)')
    for j in range(0, 8, 2): a(f'v_pk_add_f32 {vr(V_R+j,2)}, {vr(V_R+j,2)}, {vr(V_R+16+j,2)}')
    a('s_waitcnt lgkmcnt(0)')
    for j in range(0, 8, 2): a(f'v_pk_add_f32 {vr(V_R+j,2)}, {vr(V_R+j,2)}, {vr(V_R+24+j,2)}')
    for j in range(4): a(f'v_cvt_pk_bf16_f32 v{V_X+j}, v{V_R+2*j}, v{V_R+2*j+1}')
    a(f'v_mfma_f32_16x16x32_bf16 {vr(V_S,4)}, {vr(V_KX,4)}, {vr(V_X,4)}, 0')
    a(f'v_mfma_f32_16x16x32_bf16 {vr(V_S+4,4)}, {vr(V_KX+4,4)}, {vr(V_X,4)}, 0')
    a(f'v_mfma_f32_16x16x32_bf16 {vr(V_S+8,4)}, {vr(V_X,4)}, {vr(V_X,4)}, 0')
    a(f's_cmp_lg_u32 s{S_FAST}, 0')
    halves(2)
    def scst(f):
        a(f's_mov_b64 exec, s[{S_MLO8}:{S_MLO8+1}]')
        a(f'buffer_store_dwordx4 {vr(V_S,4)}, v{V_SCST}, {WS}, s{S_SC} offen{f}')
        a(f'buffer_store_dwordx4 {vr(V_S+4,4)}, v{V_SCST}, {WS}, s{S_SC} offen offset:128{f}')
        a(f's_mov_b64 exec, s[{S_MHI8}:{S_MHI8+1}]')
        a(f'buffer_store_dwordx4 {vr(V_S+8,4)}, v{V_SCST2}, {WS}, s{S_SC} offen offset:1024{f}')
        a('s_mov_b64 exec, -1')
    lsl = a.newlabel('rec_slow'); lsr = a.newlabel('rec_slowr')
    a(f's_cbranch_scc1 {lsl}')
    scst('')
    a.label(lsr)
    tails.append(lambda: (a.label(lsl), scst(' sc1'), a(f's_branch {lsr}')))
    a(f'ds_write_b128 v{V_VW}, {vr(V_D+16,4)}')
    a(f'ds_write_b128 v{V_L16}, {vr(V_X,4)} offset:{L_X}')
    stamp(2)
    ts(4)
    LBR = a.newlabel('rec_gbr'); LBO = a.newlabel('rec_gbo'); LBW = a.newlabel('rec_gbw')
    V_Q = V_R + 20
    SETS = [V_LD, V_MA]
    def loadB(LD):
        a(f'buffer_load_dwordx4 {vr(LD+12,4)}, v{V_SCLM}, {WS}, s{S_SC} offen offset:1024 sc1')
        for k in range(3):
            a(f'buffer_load_dwordx4 {vr(LD+4*k,4)}, v{V_SCL[k]}, {WS}, s{S_SC} offen sc1')
    def sumB(LD, base):
        LM = LD + 12
        a(f's_waitcnt vmcnt({base+3})')
        a(f'v_permlane32_swap_b32 v{LM}, v{LM+2}')
        a(f'v_permlane32_swap_b32 v{LM+1}, v{LM+3}')
        a(f'v_pk_add_f32 {vr(V_Q+4,2)}, {vr(LM,2)}, {vr(LM+2,2)}')
        a(f's_waitcnt vmcnt({base+2})')
        for j in range(0, 4, 2): a(f'v_pk_add_f32 {vr(V_Q+j,2)}, {vr(V_S+j,2)}, {vr(LD+j,2)}')
        a(f'v_permlane16_swap_b32 v{V_Q+4}, v{V_Q+5}')
        a(f's_waitcnt vmcnt({base+1})')
        for j in range(0, 4, 2): a(f'v_pk_add_f32 {vr(V_Q+j,2)}, {vr(V_Q+j,2)}, {vr(LD+4+j,2)}')
        a(f'v_add_f32 v{V_Q+4}, v{V_Q+4}, v{V_Q+5}')
        a(f's_waitcnt vmcnt({base})')
        for j in range(0, 4, 2): a(f'v_pk_add_f32 {vr(V_Q+j,2)}, {vr(V_Q+j,2)}, {vr(LD+8+j,2)}')
        a(f'v_maximum3_f32 v{V_M}, v{V_Q}, v{V_Q+1}, v{V_Q+4}')
        a(f'v_maximum3_f32 v{V_M}, v{V_M}, v{V_Q+2}, v{V_Q+3}')
        a(f'v_cmp_u_f32 vcc, v{V_M}, v{V_M}')
        a(f'v_max_f32_dpp v{V_M}, v{V_M}, v{V_M} row_ror:8 row_mask:0xf bank_mask:0xf')
        a(f'v_mov_b32 v{V_M2}, v{V_M}')
    if DB == 0: loadB(SETS[0])
    a('s_waitcnt lgkmcnt(0)')
    a('s_barrier')
    if DB == 1: loadB(SETS[0])
    for w in range(4):
        for t in range(2):
            a(f'ds_read_b64 {vr(V_R+4*w+2*t,2)}, v{V_VR} offset:{w*1024+t*128}')
    for j in range(4): a(f'v_mov_b32_dpp v{V_S+j}, v{V_S+4+j} row_ror:8 row_mask:0xf bank_mask:0xc')
    if DB == 0: loadB(SETS[1])
    if DB == 2: loadB(SETS[0])
    a('s_waitcnt lgkmcnt(0)')
    red4(4)
    if DB == 1: loadB(SETS[1])
    for t in range(2): a(f'v_cvt_pk_bf16_f32 v{V_VM+2*t}, v{V_R+2*t}, v{V_R+2*t+1}')
    if DB == 2: a('s_nop 15'); loadB(SETS[1])
    a(f's_cmp_eq_u32 s{S_STEP}, {nsteps-1}')
    a(f's_cbranch_scc1 {LB2}')
    sumB(SETS[0], 4)
    a(f's_cbranch_vccnz {LBR}')
    a.label(LBO)
    def tlB():
        a.label(LBR)
        for k in range(2):
            LD = SETS[k]
            a(f'v_max3_u32 v{V_CK}, v{LD}, v{LD+1}, v{LD+2}')
            for j in range(3, 15, 2): a(f'v_max3_u32 v{V_CK}, v{V_CK}, v{LD+j}, v{LD+j+1}')
            a(f'v_max_u32 v{V_CK}, v{V_CK}, v{LD+15}')
            loadB(LD)
            a(f'v_cmp_eq_u32 vcc, -1, v{V_CK}')
            spin_guard(LBO)
            a(f's_cbranch_vccz {LBO}')
            sumB(SETS[k ^ 1], 4)
            a(f's_cbranch_vccz {LBO}')
        a(f's_branch {LBR}')
    tails.append(tlB)
    a(f'buffer_store_dword v{V_TG}, v{V_TKST}, {WS}, 0 offen sc1')
    stamp('b')
    ts(5)
    a(f'v_permlane16_swap_b32 v{V_M}, v{V_M2}')
    a(f'v_max_f32 v{V_M}, v{V_M}, v{V_M2}')
    a(f'v_mov_b32 v{V_M2}, v{V_M}')
    a(f'v_permlane32_swap_b32 v{V_M}, v{V_M2}')
    a(f'v_max_f32 v{V_M}, v{V_M}, v{V_M2}')
    a(f'v_mul_f32 v{V_M}, s{S_C}, v{V_M}')
    for j in (4, 0, 1, 2, 3): a(f'v_fma_f32 v{V_Q+j}, v{V_Q+j}, s{S_C}, -v{V_M}')
    for j in (4, 0, 1, 2, 3): a(f'v_exp_f32 v{V_Q+j}, v{V_Q+j}')
    a(f'v_mov_b32_dpp v{V_Q+5}, v{V_Q+4} row_ror:8 row_mask:0xf bank_mask:0xf')
    for j in range(2): a(f'v_cvt_pk_bf16_f32 v{V_P+j}, v{V_Q+2*j}, v{V_Q+2*j+1}')
    a(f'v_cvt_pk_bf16_f32 v{V_P+4}, v{V_Q+4}, v{V_Q+5}')
    for j in range(2): a(f'v_mov_b32_dpp v{V_P+2+j}, v{V_P+j} row_ror:8 row_mask:0xf bank_mask:0xf')
    V_O = V_R + 8
    a(f'v_mfma_f32_16x16x32_bf16 {vr(V_O+8,4)}, {vr(V_ONE,4)}, {vr(V_P+4,4)}, 0')
    a(f'v_mfma_f32_16x16x32_bf16 {vr(V_O+8,4)}, {vr(V_ONE,4)}, {vr(V_P,4)}, {vr(V_O+8,4)}')
    for t in range(2):
        a(f'v_mfma_f32_16x16x32_bf16 {vr(V_O+4*t,4)}, {vr(V_VX+4*t,4)}, {vr(V_P,4)}, 0')
        a(f'v_mfma_f32_16x16x32_bf16 {vr(V_O+4*t,4)}, {vr(V_VM+2*t,4)}, {vr(V_P+4,4)}, {vr(V_O+4*t,4)}')
    V_RC = V_R
    a(f'v_rcp_f32 v{V_RC}, v{V_O+8}')
    a(f'v_mov_b32 v{V_RC+1}, v{V_RC}')
    for j in range(0, 8, 2): a(f'v_pk_mul_f32 {vr(V_O+j,2)}, {vr(V_O+j,2)}, {vr(V_RC,2)}')
    for j in range(4): a(f'v_cvt_pk_bf16_f32 v{V_O+j}, v{V_O+2*j}, v{V_O+2*j+1}')
    for j in range(4): a(f'v_max_u32 v{V_O+j}, 1, v{V_O+j}')
    a(f's_mov_b64 exec, s[{S_MLO8}:{S_MLO8+1}]')
    a(f'buffer_store_dwordx4 {vr(V_O,4)}, v{V_OST}, {WS}, s{S_SL0} offen sc1')
    a('s_mov_b64 exec, -1')
    stamp(5)
    ts('o')
    for j in range(0, 24, 2): a(f'v_mov_b64 {vr(V_D+j,2)}, 0')
    LCS = a.newlabel('rec_cs')
    a.label(LCS)
    a('s_barrier')
    def w123():
        a.label(LW1)
        a('s_waitcnt lgkmcnt(0)')
        a('s_barrier')
        vmf()
        halves(2)
        a(f'ds_write_b128 v{V_VW}, {vr(V_D+16,4)}')
        a('s_waitcnt lgkmcnt(0)')
        a('s_barrier')
        if ZD: a(f's_sleep {ZD}')
        for j in range(0, 24, 2): a(f'v_mov_b64 {vr(V_D+j,2)}, 0')
        LW2 = a.newlabel('rec_w2'); LW3 = a.newlabel('rec_w3')
        a(f's_cmp_eq_u32 s{S_W}, 3')
        a(f's_cbranch_scc1 {LW3}')
        a(f's_cmp_eq_u32 s{S_W}, 2')
        a(f's_cbranch_scc1 {LW2}')
        a(f'ds_read_b128 {vr(V_NS,4)}, v{V_L16} offset:{L_X}')
        a(f's_branch {LB2}')
        a.label(LW2)
        for w in range(4): a(f'ds_read_b128 {vr(V_R+4*w,4)}, v{V_L16} offset:{L_V+w*1024}')
        a('s_waitcnt lgkmcnt(0)')
        red4(4)
        for j in range(2): a(f'v_cvt_pk_bf16_f32 v{V_NS+j}, v{V_R+2*j}, v{V_R+2*j+1}')
        for j in range(2): a(f'v_permlane32_swap_b32 v{V_NS+j}, v{V_NS+2+j}')
        for j in (0, 2): a(f'v_permlane16_swap_b32 v{V_NS+j}, v{V_NS+j+1}')
        a.label(LB2)
        a('s_waitcnt lgkmcnt(0)')
        a(f's_cmp_eq_u32 s{S_STEP}, {nsteps-1}')
        a(f's_cbranch_scc1 {DONE}')
        a(f's_branch {LCS}')
        a.label(LW3)
        a(f's_cmp_eq_u32 s{S_STEP}, {nsteps-1}')
        a(f's_cbranch_scc1 {DONE}')
        tickwait(0, DC)
        a(f's_branch {LCS}')
    tails.append(w123)
    stamp(7)
    ts(6)
    def loadC(c, r):
        if LOC & 1: a(f'buffer_load_dwordx4 {vr(r,4)}, v{V_CO[4+(c>>1)]}, {WS}, s{S_SL0} offen offset:{(c&1)*1024} sc1'); return
        if STG & 1: a(f'buffer_load_dwordx4 {vr(r,4)}, v{V_CO[c]}, {WS}, s{S_SL0} offen sc1'); return
        a(f'buffer_load_dwordx4 {vr(r,4)}, v{V_COFF if c < 4 else V_COFF2}, {WS}, s{S_SL0} offen offset:{(c&3)*1024} sc1')
    def mfC(c):
        r = []
        for sel in range(2):
            f, b = wo_reg(2 * c + sel)
            r.append(f'v_smfmac_f32_16x16x64_bf16 {vr(V_D+4*sel,4)}, {vr(V_MA+4*c,4)}, {f}[{b}:{b+7}], v{V_IDX}')
        return r
    def nC3():
        a(f's_add_u32 s{S_T0}, s{S_STEP}, 1')
        wait_kv(f's{S_T0}')
        a(f's_xor_b32 s{S_KXB}, s{S_KXB}, 4096')
        a(f's_add_u32 m0, s{S_KXB}, s{S_PFL}')
        if XP != 1: a(f's_add_u32 s{S_KV}, s{S_KV}, {256*1024}')
        a(f'buffer_load_dwordx4 v{V_PFG}, {WS}, s{S_KV} offen sc1 lds')
    noiseC = [nC3, lambda: a(f'buffer_load_dword v{V_T1}, v{V_PTG}, {WS}, s{S_SCN if RING else S_SC} offen sc1')]
    st4 = [f'buffer_store_dwordx4 {vr(V_NS,4)}, v{V_NSA}, {WS}, s{S_NSO} offen sc1',
           f'buffer_store_dwordx4 {vr(V_NB,4)}, v{V_NBA}, {WS}, s{S_NBO} offen sc1']
    if NSP == 1: noiseC += [(lambda x=x: a(x)) for x in st4]
    def late_stores(pl=False, n=2):
        if not NSP:
            a('s_barrier')
            for k, x in enumerate(st4[:n]):
                if pl: tpoll(128)
                a(x)
        a(f's_add_u32 s{S_NBO}, s{S_NBO}, s{S_NBI}')
        if RING:
            a(f's_bitset0_b32 s{S_NBO}, 21')
            a(f's_add_u32 s{S_SCN}, s{S_SCN}, {128*2048}')
            a(f's_bitset0_b32 s{S_SCN}, 21')
        if n == 2: a(f'v_add_u32 v{V_FRV}, s{S_MHI+1}, v{V_FRV}')
        if sync and ASY:
            lr = a.newlabel('rec_rf')
            a(f's_add_u32 s{S_T0}, s{S_STEP}, 3')
            a(f's_min_u32 s{S_T0}, s{S_T0}, {NSEG-1}')
            a(f's_cmp_gt_u32 s{S_SEEN}, s{S_T0}')
            a(f's_cbranch_scc1 {lr}')
            a(f's_load_dword s{S_SEEN}, s[{S_WSP}:{S_WSP+1}], s{S_FKV} glc')
            a.label(lr)
        a(f's_add_u32 s{S_NSO}, s{S_NSO}, s{S_NSI}')
        if RING: a(f's_and_b32 s{S_NSO}, s{S_NSO}, s{S_MSK}')
        a(f's_cmp_eq_u32 s{S_W}, 3')
        a(f's_cselect_b32 s{S_NSO}, s{S_SL2}, s{S_NSO}')
    TKA = f'buffer_store_dword v{V_TG}, v{V_TKSA}, {WS}, 0 offen sc1'
    def postC():
        a(f's_add_u32 s{S_STEP}, s{S_STEP}, 1')
        a(f's_add_u32 s{S_T0}, s{S_STEP}, 2')
        a(f's_lshr_b32 s{S_T1}, s{S_T0}, 3')
        a(f's_lshr_b32 s{S_T1}, s{S_PAR}, s{S_T1}')
    gather('rec_gc', 8, loadC, mfC, 8, noiseC, ILC, post=postC, E=EC)
    if NSP == 2:
        for x in st4: a(x)
    if TA == 9: a(TKA)
    ts(8)
    a(f's_mov_b32 s{S_SL0}, s{S_SL1}')
    a(f's_mov_b32 s{S_SL1}, s{S_SL2}')
    stamp_c = True
    if prof == 1:
        a(f's_sub_u32 s{S_STEP}, s{S_STEP}, 1'); stamp(8); a(f's_add_u32 s{S_STEP}, s{S_STEP}, 1')
    a(f'v_pk_add_f32 {vr(V_D,2)}, {vr(V_D,2)}, {vr(V_D+2,2)}')
    for r1 in range(2): a(f'v_add_f32_dpp v{V_D+r1}, v{V_D+4+r1}, v{V_D+6+r1} quad_perm:[0,1,2,3] row_mask:0xc bank_mask:0xf')
    a(f'v_permlane32_swap_b32 v{V_D}, v{V_D+1}')
    a(f'v_add_f32 v{V_D}, v{V_D}, v{V_D+1}')
    a(f'ds_write_b32 v{V_OPW}, v{V_D}')
    S(S_SL2, [(S_T1, 0, 1, 13), (S_T0, 0, None, 18), (S_HB, 0, None, 0)])
    if RING: a(f's_mov_b32 s{S_SC}, s{S_SCN}')
    else: a(f's_add_u32 s{S_SC}, s{S_SC}, {128*2048}')
    LB4 = a.newlabel('rec_b4')
    a(f's_cmp_lg_u32 s{S_W}, 0')
    a(f's_cbranch_scc1 {LB4}')
    a('s_waitcnt lgkmcnt(0)')
    a('s_barrier')
    for w in range(4): a(f'ds_read_b64 {vr(V_R+2*w,2)}, v{V_OPR} offset:{w*256}')
    a(f'v_add_u32 v{V_TG}, 2, v{V_TG}')
    a('s_waitcnt lgkmcnt(0)')
    red4(2)
    a(f'v_cvt_pk_bf16_f32 v{V_R}, v{V_R}, v{V_R+1}')
    a(f'v_max_u32 v{V_R}, 1, v{V_R}')
    for j in range(1, 4): a(f'v_mov_b32_dpp v{V_R+j}, v{V_R} quad_perm:[{j},{j},{j},{j}] row_mask:0xf bank_mask:0xf')
    a('s_mov_b64 exec, 0x11111111')
    a(f'buffer_store_dwordx4 {vr(V_R,4)}, v{V_MEMST}, {WS}, s{S_SL0} offen sc1')
    a('s_mov_b64 exec, -1')
    stamp(10)
    ts(9)
    late_stores(False, 1)
    for j in range(0, 8, 2): a(f'v_mov_b64 {vr(V_D+j,2)}, 0')
    a('s_waitcnt vmcnt(2)')
    a(f's_branch {LOOP}')
    a.label(LB4)
    a('s_waitcnt lgkmcnt(0)')
    a('s_barrier')
    if not TA: a(TKA)
    L3B = a.newlabel('rec_w3b')
    a(f's_cmp_eq_u32 s{S_W}, 3')
    a(f's_cbranch_scc1 {L3B}')
    a(f'v_add_u32 v{V_TG}, 2, v{V_TG}')
    for j in range(0, 8, 2): a(f'v_mov_b64 {vr(V_D+j,2)}, 0')
    late_stores()
    a('s_waitcnt vmcnt(2)')
    a(f's_branch {LOOP}')
    a.label(L3B)
    a(f'v_add_u32 v{V_TG}, 2, v{V_TG}')
    for j in range(0, 8, 2): a(f'v_mov_b64 {vr(V_D+j,2)}, 0')
    tpoll(128)
    late_stores(True, 1)
    tpoll(128)
    a('s_waitcnt vmcnt(2)')
    tickwait(128, DA)
    a(f's_branch {LOOP}')
    for t in tails: t()
    a.label(DONE)
    if prof >= 3:
        a(f'v_writelane_b32 v{V_TR}, s100, 10'); a(f'v_writelane_b32 v{V_TR}, s101, 11'); a(f'v_writelane_b32 v{V_TR}, s{S_SPIN}, 12')
    if prof >= 4: pmark(0)
    a(f'buffer_store_dwordx4 {vr(V_NS,4)}, v{V_NSA}, {WS}, s{S_NSO} offen sc1')
    a('s_waitcnt vmcnt(0)')
    a('s_barrier')
    a(f'v_add_u32 v{V_FRV}, 1, v{V_FRV}')
    a(f'buffer_store_dword v{V_FRV}, v{V_FRA}, {WS}, 0 offen sc1')
    if prof and prof != 5:
        S(S_T0, [(S_RID, 0, None, 13), (S_W, 0, None, 11)], TRACE)
        a(f'v_lshlrev_b32 v{V_T0}, 2, v{V_L}')
        for e in range(8):
            a(f'buffer_store_dword v{V_TR+e}, v{V_T0}, {WS}, s{S_T0} offen offset:{e*256}')
```

```python
from asmlib import *
from layout import *
from rec import srd, lane, sexpr
import math, struct

G_WS = 4
G_W = 8
G_X = 12
G_W2 = 16
G_OUT = 20
G_ID, G_WV, G_SEG = 28, 29, 30
G_T0, G_T1, G_T2 = 31, 32, 33
G_LW = 34
G_XO = 35
G_PO = 36
G_PS = 37
G_WSO, G_WST = 38, 39
G_SPIN = 41
G_C = 42
G_SEEN = 43
G_J, G_R = 44, 45
G_KMO, G_OAO, G_OBO, G_OUO = 46, 47, 48, 49
G_FO = 50
G_END, G_XMAX = 51, 52
G_SA, G_SB, G_FA, G_FB, G_FR, G_C2 = 53, 54, 55, 56, 57, 58
G_PTR = 72
G_WSP = 90
G_DBG = 92
WS = f's[{G_WS}:{G_WS+3}]'
V_L, V_T0, V_T1, V_T2, V_L16 = 1, 2, 3, 4, 5
V_VAL = 31

def f32(x): return '0x%08x' % struct.unpack('<I', struct.pack('<f', x))[0]

class Gem:
    LATE = 96; TWO = 1; QTH = 96; TSL = 0; GV = 0; FS = 0; TSW = 0; OM = 0; XT = 1; BTH = 96; BSL = 0; OSL = 0; QL = 0; SR = 0; ASL = 1; TC = 0
    def __init__(self, a, sync=True, prof=False):
        self.a = a; self.sync = sync; self.prof = prof; self.ost = ''
    def L(self, dst, terms, add=None): lane(self.a, dst, V_T2, V_L, terms, add)
    def S(self, dst, terms, const=0): sexpr(self.a, dst, G_T2, terms, const)
    def spin_guard(self, lgive):
        a = self.a
        a(f's_add_u32 s{G_SPIN}, s{G_SPIN}, 1')
        a(f's_cmp_ge_u32 s{G_SPIN}, 0x200000')
        a(f's_cbranch_scc1 {lgive}')
    def keep(self, reg, cond):
        a = self.a
        a(cond)
        a(f'v_mov_b32 v{V_T2}, {OOB}')
        a(f'v_cndmask_b32 v{reg}, v{V_T2}, v{reg}, vcc')

    def mark(self, k):
        if not self.prof: return
        a = self.a
        a(f's_memrealtime s[{G_PTR+14}:{G_PTR+15}]')
        a('s_waitcnt lgkmcnt(0)')
        a(f's_mov_b32 s{94+k}, s{G_PTR+14}')
        if False:
            a(f's_memtime s[{G_PTR+14}:{G_PTR+15}]')
            a('s_waitcnt lgkmcnt(0)')
            a(f's_mov_b32 s{98+k}, s{G_PTR+14}')
    def acc(self, k):
        if self.prof != 2: return
        a = self.a
        a(f's_memtime s[{G_PTR+14}:{G_PTR+15}]')
        a('s_waitcnt lgkmcnt(0)')
        if k is not None:
            a(f's_sub_u32 s{G_PTR+15}, s{G_PTR+14}, s60')
            a(f's_add_u32 s{61+k}, s{61+k}, s{G_PTR+15}')
        a(f's_mov_b32 s60, s{G_PTR+14}')
    def dump(self):
        if not self.prof: return
        a = self.a
        if self.prof == 5:
            a(f's_cmp_lt_u32 s{G_ID}, 96')
            a(f's_cselect_b32 s{G_T0}, 20, 44')
            a(f'v_mov_b32 v{V_T1}, s{G_T0}')
            a('s_mov_b64 exec, 1')
            for i, k in enumerate((1, 3, 6, 4, 5)):
                a(f'v_mov_b32 v{V_T0}, s{94+k}')
                a(f'global_atomic_umax v{V_T1}, v{V_T0}, s[{G_DBG}:{G_DBG+1}] offset:{4*i} sc1')
            return
        self.S(G_T0, [(G_ID, 0, None, 7), (G_WV, 0, None, 5)], TRACE + 4 * MB)
        a(f'v_mov_b32 v{V_T1}, 0')
        for k in range(8):
            a(f'v_mov_b32 v{V_T0}, s{94+k}')
            a(f'buffer_store_dword v{V_T0}, v{V_T1}, {WS}, s{G_T0} offen offset:{4*k}')
        a(f's_add_u32 s{G_T0}, s{G_T0}, {MB}')
        for k in range(8):
            a(f'v_mov_b32 v{V_T0}, s{61+k}')
            a(f'buffer_store_dword v{V_T0}, v{V_T1}, {WS}, s{G_T0} offen offset:{4*k}')

    def setup(self):
        a = self.a
        a(f's_load_dwordx2 s[{G_WSP}:{G_WSP+1}], s[0:1], {K_WS}')
        a(f's_load_dwordx2 s[{G_DBG}:{G_DBG+1}], s[0:1], {K_DBG}')
        a(f'v_and_b32 v{V_L}, 63, v0')
        a(f'v_lshrrev_b32 v{V_T0}, 6, v0')
        a(f'v_readfirstlane_b32 s{G_WV}, v{V_T0}')
        a(f'v_lshlrev_b32 v{V_L16}, 4, v{V_L}')
        a(f's_mov_b32 s{G_SPIN}, 0')
        a(f's_lshl_b32 s{G_LW}, s{G_WV}, 10')
        a('s_waitcnt lgkmcnt(0)')
        srd(a, G_WS, G_WSP, WS_BYTES)
        if self.sync and self.TSW:
            lw = a.newlabel('g_tw')
            P = G_PTR
            a(f's_cmp_lg_u32 s{G_WV}, 1')
            a(f's_cbranch_scc1 {lw}')
            a(f's_load_dwordx2 s[{P}:{P+1}], s[0:1], {K_WO}')
            self.S(G_T0, [(G_ID, 0, None, 16)])
            self.L(V_T0, [(3, 3, 13), (0, 3, 10)], f's{G_T0}')
            a('s_waitcnt lgkmcnt(0)')
            srd(a, G_OUT, P, 8 * MB)
            a(f's_sub_u32 s{G_T0}, 384, s{P}')
            a(f's_and_b32 s{G_T0}, s{G_T0}, 0x380')
            a(f'buffer_load_dword v119, v{V_T0}, s[{G_OUT}:{G_OUT+3}], s{G_T0} offen')
            a.label(lw)
        if self.sync:
            lv = a.newlabel('g_nv')
            a(f'v_mov_b32 v{V_VAL}, 0')
            a(f's_cmp_lt_u32 s{G_ID}, {self.LATE}')
            a(f's_cbranch_scc1 {lv}')
            P = G_PTR
            if self.TSL:
                a(f's_load_dwordx8 s[{P}:{P+7}], s[0:1], {K_WQ}')
                self.S(G_T0, [(G_ID, 0, 5, 18), (G_WV, 0, None, 16)])
                self.L(V_T0, [(3, 3, 13), (0, 3, 10)], f's{G_T0}')
                self.L(V_T1, [(0, 3, 13)], f's{G_T0}')
                a('s_waitcnt lgkmcnt(0)')
                SD = (G_W, G_X, G_W2, G_OUT)[:2+self.TSL]
                for m, sd in enumerate(SD):
                    srd(a, sd, P + 2 * m, 8 * MB)
                    a(f's_sub_u32 s{G_T0}, 384, s{P+2*m}')
                    a(f's_and_b32 s{G_T0}, s{G_T0}, 0x380')
                    a(f'buffer_load_dword v{120+m}, v{V_T0}, s[{sd}:{sd+3}], s{G_T0} offen')
                a('s_mov_b64 exec, 0xff')
                for m, sd in enumerate(SD):
                    a(f's_sub_u32 s{G_T0}, 8064, s{P+2*m}')
                    a(f's_and_b32 s{G_T0}, s{G_T0}, 0x1f80')
                    a(f'buffer_load_dword v{124+m}, v{V_T1}, s[{sd}:{sd+3}], s{G_T0} offen')
                a('s_mov_b64 exec, -1')
            validate(a, V_VAL, V_T0, G_DBG, G_SPIN, G_T0)
            a.label(lv)
        if self.prof:
            for k in range(8): a(f's_mov_b32 s{94+k}, 0'); a(f's_mov_b32 s{61+k}, 0')
        self.mark(0)

    def vote(self):
        a = self.a
        A0, R, M0, TA, TB, D = 60, 59, 62, 64, 66, 68
        self.S(R, [(G_ID, 0, 5, 2), (G_WV, 0, None, 0)])
        a(f's_sub_u32 s{G_T0}, 0, s{G_WSP}')
        a(f's_and_b32 s{G_T0}, s{G_T0}, {2*MB-1}')
        self.S(A0, [(R, 0, 3, 21), (R, 3, 1, 13), (R, 4, 3, 8), (G_T0, 0, None, 0)], HOFF + 15 * 16384)
        self.S(G_T1, [(R, 3, 1, 14)])
        a(f's_sub_u32 s{A0+1}, s{A0}, s{G_T1}')
        a(f's_add_u32 s{A0+1}, s{A0+1}, 8192')
        for k in range(2):
            a(f's_load_dword s{D+k}, s[{G_WSP}:{G_WSP+1}], s{A0+k} glc')
            a(f's_mov_b32 s{M0+k}, -1')
        for r in range(self.GV):
            for k in range(2):
                a('s_waitcnt lgkmcnt(0)')
                a(f's_memtime s[{TA}:{TA+1}]')
                a('s_waitcnt lgkmcnt(0)')
                a(f's_load_dword s{D}, s[{G_WSP}:{G_WSP+1}], s{A0+k} glc')
                a('s_waitcnt lgkmcnt(0)')
                a(f's_memtime s[{TB}:{TB+1}]')
                a('s_waitcnt lgkmcnt(0)')
                a(f's_sub_u32 s{G_T0}, s{TB}, s{TA}')
                a(f's_min_u32 s{M0+k}, s{M0+k}, s{G_T0}')
        a(f's_cmp_gt_u32 s{M0+1}, s{M0}')
        a(f's_cselect_b32 s{G_T0}, 1, 0')
        a(f's_lshr_b32 s{G_T1}, s{R}, 3')
        a(f's_xor_b32 s{G_T0}, s{G_T0}, s{G_T1}')
        a(f's_xor_b32 s{G_T0}, s{G_T0}, s{R}')
        self.S(G_T0, [(G_T0, 0, 1, VOTE_SH)])
        a(f's_add_u32 s{S_BAD}, s{S_BAD}, s{G_T0}')
        if self.prof:
            for k in range(8): a(f's_mov_b32 s{61+k}, 0')

    def late_arrive(self):
        a = self.a
        a('s_mov_b64 exec, -1')
        self.touch_wo()
        self.vote()
        self.mark(7)
        a(f's_waitcnt vmcnt({8 if self.TWO else 0})')
        a('s_mov_b64 exec, 1')
        self.arrive(False)

    def load_weights(self, jobs, hook=None, slow=0):
        a = self.a
        LB = G_T1
        a(f's_lshl_b32 s{LB}, s{G_WV}, 15')
        pairs = []
        for (sd, vg, n, reads, so0, sst) in jobs:
            for p in range(n): pairs.append((sd, vg, reads(p), so0 if p == 0 else None, sst))
        NSL = 16
        def issue(p):
            sd, vg, _, so0, sst = pairs[p]
            for j in range(2):
                a(f's_add_u32 m0, s{LB}, {(p % NSL) * 2048 + j * 1024}')
                if so0 is not None and j == 0: a(f's_mov_b32 s{G_WSO}, {so0}')
                else: a(f's_add_u32 s{G_WSO}, s{G_WSO}, {sst}')
                a(f'buffer_load_dwordx4 v{vg}, s[{sd}:{sd+3}], s{G_WSO} offen lds')
            if hook and self.BSL:
                l = a.newlabel('lw_s')
                a(f's_cbranch_vccz {l}')
                a(f's_sleep {self.BSL}')
                a.label(l)
            if slow: a(f's_sleep {slow}')
        if hook and self.BSL:
            a(f's_cmp_ge_u32 s{G_ID}, 96')
            a('s_cselect_b64 vcc, -1, 0')
        issued = 0
        for p in range(min(NSL, len(pairs))):
            issue(p); issued += 1
        for p in range(len(pairs)):
            a(f's_waitcnt vmcnt({2 * (issued - p - 1)})')
            if hook and p == 2:
                a(f'v_mov_b32 v{V_T0}, 0')
                a(f'global_load_dword v{V_VAL}, v{V_T0}, s[{G_DBG}:{G_DBG+1}] offset:{4*D_ROT} sc1')
            if hook and p == NSL + 1: hook(0)
            if hook and p == len(pairs) - 1: hook(1)
            for dst, va, off in pairs[p][2]:
                a(f'ds_read_b64_tr_b16 {dst}, v{va} offset:{(p % NSL) * 2048 + off}')
            if p >= 1 and issued < len(pairs):
                a(f's_waitcnt lgkmcnt({len(pairs[p][2])})')
                issue(issued); issued += 1
        a('s_waitcnt lgkmcnt(0)')

    def touch_wo(self):
        if not self.TWO: return
        a = self.a
        P = G_PTR
        lsk = a.newlabel('tw_skip')
        a(f's_cmp_lt_u32 s{G_ID}, 96')
        a(f's_cbranch_scc1 {lsk}')
        a(f's_load_dwordx2 s[{P}:{P+1}], s[0:1], {K_WO}')
        self.S(G_T0, [(G_ID, 0, 5, 13), (G_WV, 0, None, 21 if self.TWO == 1 else 18)])
        a(f'v_lshl_add_u32 v{V_T0}, v{V_L}, 7, s{G_T0}')
        a('s_waitcnt lgkmcnt(0)')
        srd(a, G_W, P, 8 * MB)
        for i in range(8):
            a(f's_mov_b32 s{G_T0}, {i * (262144 if self.TWO == 1 else MB)}')
            a(f'buffer_load_dword v{128+i}, v{V_T0}, s[{G_W}:{G_W+3}], s{G_T0} offen')
        a.label(lsk)

    def slab(self, LNEXT, **opt):
        a = self.a; L = self.L; S = self.S
        P = G_PTR
        V_G, V_TR, V_XG, V_ST, V_FL, V_FV = 6, 7, 8, 9, 10, 11
        V_RA = 12
        V_F = 32
        V_ACC = 64
        V_PK = 96
        lB = a.newlabel('sl_b'); lC = a.newlabel('sl_c')
        G_M = G_J
        a(f's_cmp_ge_u32 s{G_ID}, 96')
        a(f's_cbranch_scc1 {lB}')
        a(f's_lshr_b32 s{G_T0}, s{G_ID}, 5')
        a(f's_add_u32 s{G_T0}, s{G_T0}, 1')
        a(f's_cmp_eq_u32 s{G_T0}, 3')
        a(f's_cselect_b32 s{G_M}, 0, s{G_T0}')
        S(G_T0, [(G_M, 0, None, 3)], K_WQ)
        a(f's_load_dwordx2 s[{P}:{P+1}], s[0:1], s{G_T0}')
        a(f's_load_dwordx2 s[{P+2}:{P+3}], s[0:1], {K_AX}')
        a(f's_mov_b32 s{P+4}, {8*MB}')
        a(f's_mov_b32 s{G_WST}, 8192')
        S(G_T0, [(G_ID, 0, 5, 8)])
        S(G_PO, [(G_M, 0, None, 24), (G_ID, 0, 5, 13)], PA)
        a(f's_mov_b32 s{G_PS}, {256*1024}')
        S(G_FO, [(G_ID, 0, 5, 7), (G_M, 0, None, 2)], FLG + F_SLA)
        a(f's_branch {lC}')
        a.label(lB)
        a(f's_sub_u32 s{G_T1}, s{G_ID}, 96')
        a(f's_lshr_b32 s{G_M}, s{G_T1}, 3')
        a(f's_load_dwordx2 s[{P}:{P+1}], s[0:1], {K_WQKV}')
        a(f's_load_dwordx2 s[{P+2}:{P+3}], s[0:1], {K_BX}')
        a(f's_mov_b32 s{P+4}, {6*MB}')
        a(f's_mov_b32 s{G_WST}, 6144')
        S(G_T0, [(G_T1, 0, None, 8)])
        S(G_PO, [(G_M, 0, None, 22), (G_T1, 0, 3, 13)], PB)
        a(f's_mov_b32 s{G_PS}, {64*1024}')
        S(G_FO, [(G_T1, 0, 3, 7), (G_M, 0, None, 2)], FLG + F_SLB)
        a.label(lC)
        a('s_waitcnt lgkmcnt(0)')
        srd(a, G_W, P, f's{P+4}')
        srd(a, G_X, P + 2, 4 * MB)
        a(f's_mov_b64 s[{P+8}:{P+9}], s[{P}:{P+1}]')
        a(f's_mov_b32 s{G_R}, s{G_T0}')
        if self.sync:
            lg = a.newlabel('sl_go'); l2 = a.newlabel('sl_a2')
            a(f's_cmp_lt_u32 s{G_ID}, {self.LATE}')
            a(f's_cbranch_scc1 {lg}')
            if not self.GV:
                a(f's_cmp_lg_u32 s{G_WV}, 0')
                a(f's_cbranch_scc1 {l2}')
            a('s_mov_b64 exec, 1')
            a(f'v_mov_b32 v{V_T0}, 0')
            a(f'buffer_store_dword v{V_T0}, v{V_T0}, {WS}, s{G_FO} offen sc1')
            if self.GV: self.late_arrive()
            else: self.arrive()
            a.label(l2)
            if not self.GV: self.touch_wo()
            srd(a, G_W, P + 8, f's{P+4}')
            self.wait_start()
            a.label(lg)
        a(f'v_lshrrev_b32 v{V_T0}, 2, v{V_L}')
        a(f'v_mul_lo_u32 v{V_G}, v{V_T0}, s{G_WST}')
        S(G_T0, [(G_R, 0, None, 0), (G_WV, 0, None, 6)])
        L(V_T0, [(0, 2, 4)], f's{G_T0}')
        a(f'v_add_u32 v{V_G}, v{V_G}, v{V_T0}')
        a(f's_lshl_b32 s{G_WST}, s{G_WST}, 4')
        a(f's_mov_b32 s{G_SEG}, 0')
        a(f's_mov_b32 s{G_END}, {NSEG}')
        a(f's_mov_b32 s{G_XMAX}, {63*65536}')
        self.stream(LNEXT, [0, 1], **opt)

    def stream(self, LNEXT, variants, RD=6):
        a = self.a; L = self.L; S = self.S
        V_G, V_TR, V_XG, V_ST, V_FL, V_FV = 6, 7, 8, 9, 10, 11
        V_RA = 12
        V_F = 32
        V_ACC = 64
        V_PK = 96
        G_M = G_J
        ob = 2 in variants
        a(f's_lshl_b32 s{G_T0}, s{G_WV}, 15')
        if ob:
            L(V_TR, [(4, 2, 9), (2, 2, 6), (0, 2, 4)], f's{G_T0}')
        else:
            L(V_TR, [(4, 2, 9), (2, 2, 6), (1, 1, 5), (0, 1, 3)], f's{G_T0}')
        eo = 8 if ob else 16
        def wreads(p):
            return [(f'a[{8*p+4*et+2*q}:{8*p+4*et+2*q+1}]', V_TR, et * eo + q * 256) for et in range(2) for q in range(2)]
        def hook(k):
            li = a.newlabel('sl_ar')
            if k == 0: validate(a, V_VAL, V_T0, G_DBG, G_SPIN, G_T0)
            else: self.mark(7)
            if self.FS: return
            a(f's_cmp_lg_u32 s{G_WV}, 0')
            a(f's_cbranch_scc1 {li}')
            a(f's_cmp_ge_u32 s{G_ID}, {self.LATE}')
            a(f's_cbranch_scc1 {li}')
            a('s_mov_b64 exec, 1')
            if k == 0:
                a(f'v_mov_b32 v{V_T0}, 0')
                a(f'buffer_store_dword v{V_T0}, v{V_T0}, {WS}, s{G_FO} offen sc1')
                a('s_mov_b64 exec, -1')
            else: self.arrive(False)
            a.label(li)
        self.load_weights([(G_W, V_G, 32, wreads, '0', f's{G_WST}')], hook if (self.sync and not ob) else None)
        self.mark(4 if ob else 1)
        S(G_T0, [(G_WV, 1, 1, 2)])
        L(V_T0, [(4, 2, 0)], f's{G_T0}')
        a(f'v_and_b32 v{V_T1}, 7, v{V_L}')
        a(f'v_xor_b32 v{V_T0}, v{V_T0}, v{V_T1}')
        a(f's_lshl_b32 s{G_T0}, s{G_WV}, 14')
        L(V_XG, [(3, 3, 11)], f's{G_T0}')
        a(f'v_lshl_add_u32 v{V_XG}, v{V_T0}, 4, v{V_XG}')
        L(V_T0, [(1, 3, 0)])
        a(f'v_lshrrev_b32 v{V_T1}, 4, v{V_L}')
        a(f'v_xor_b32 v{V_T0}, v{V_T0}, v{V_T1}')
        L(V_T1, [(3, 1, 11), (0, 3, 7)])
        for j in range(2):
            a(f'v_xor_b32 v{V_RA+j}, {4*j}, v{V_T0}')
            a(f'v_lshl_add_u32 v{V_RA+j}, v{V_RA+j}, 4, v{V_T1}')
            a(f'v_add_u32 v{V_RA+2+j}, 65536, v{V_RA+j}')
        if ob:
            a(f's_lshl_b32 s{G_T0}, s{G_WV}, 6')
            L(V_ST, [(0, 4, 12), (4, 2, 4)], f's{G_T0}')
            a(f'v_add_u32 v{V_XG}, s{G_LW}, v{V_L16}')
            L(V_RA, [(4, 2, 9), (0, 4, 4)])
            a(f'v_add_u32 v{V_RA+2}, 65536, v{V_RA}')
            self.wait_dbg(D_INIT, NARR if self.GV else NWG)
            self.wait_lines(F_ATB, f's{G_END}')
        else:
            a(f's_lshl_b32 s{G_T0}, s{G_WV}, 11')
            L(V_ST, [(4, 2, 9), (3, 1, 8), (0, 3, 4)], f's{G_T0}')
            a(f'v_mov_b32 v{V_FL}, s{G_FO}')
            if self.SR:
                if self.SR >= 2: S(G_T0, [(G_M, 1, 1, 12), (G_FO, 0, None, 0)], F_SR - F_SLA - 8192)
                else: a(f's_add_u32 s{G_T0}, s{G_FO}, {F_SR - F_SLA - 8192}')
                a(f'v_lshl_add_u32 v{V_T0}, v{V_L}, 13, s{G_T0}')
                a(f'v_cmp_eq_u32 vcc, 0, v{V_L}')
                a(f'v_cndmask_b32 v{V_FL}, v{V_T0}, v{V_FL}, vcc')
            a(f's_cmp_lt_u32 s{G_ID}, {64 if self.SR else 0}')
            a(f's_cselect_b32 s{G_T0}, {0x1ff if self.SR == 3 else 7}, 1')
            a(f's_cmp_eq_u32 s{G_WV}, 0')
            a('s_mov_b32 vcc_hi, 0')
            self.keep(V_FL, f's_cselect_b32 vcc_lo, s{G_T0}, 0')
            a(f'v_mov_b32 v{V_FV}, 0')
            a(f's_cmp_lt_u32 s{G_ID}, {self.LATE}')
            a(f's_cselect_b32 s{G_KMO}, s{G_WV}, 1')
            a(f's_min_u32 s{G_KMO}, s{G_KMO}, 1')
        a(f's_lshl_b32 s{G_XO}, s{G_SEG}, 16')
        a(f's_sub_u32 s{G_PO}, s{G_PO}, s{G_PS}')
        a('s_barrier')
        XS = f's[{G_X}:{G_X+3}]'
        SC = ' sc1' if ob else ''
        def dma(u, i, part=2):
            kb = (u & 1) * 8 + i
            if ob:
                if part != 1:
                    a(f's_add_u32 m0, s{G_LW}, {(u >> 1) * 65536 + kb * 4096}')
                    a(f's_add_u32 s{G_T1}, s{G_XO}, {kb * 4096}')
                if part != 0: a(f'buffer_load_dwordx4 v{V_XG}, {XS}, s{G_T1} offen sc1 lds')
                return
            if part != 1: a(f's_add_u32 m0, s{G_LW}, {(u >> 1) * 65536 + kb * 4096 - kb * 128}')
            if part != 0: a(f'buffer_load_dwordx4 v{V_XG}, {XS}, s{G_XO} offen offset:{kb*128} lds')
        for u in range(3):
            for i in range(8 if u < 2 else 4): dma(u, i)
            if u == 1: a(f's_add_u32 s{G_XO}, s{G_XO}, 65536')
        a('s_waitcnt vmcnt(12)')
        a('s_barrier')
        if not ob: self.mark(2)
        def rd(T):
            T %= 128
            p, t = T >> 6, T & 63
            ks, tt = t >> 1, t & 1
            if ob: a(f'ds_read_b128 {vr(V_F+4*(T%8),4)}, v{V_RA+2*p} offset:{ks*2048+tt*256}')
            else: a(f'ds_read_b128 {vr(V_F+4*(T%8),4)}, v{V_RA+2*p+(ks&1)} offset:{(ks>>1)*4096+tt*1024}')
        def epi(p, k, var):
            A = V_ACC + 16 * p
            if k < 8:
                o, inn, h = k >> 2, (k >> 1) & 1, k & 1
                tt, et = (inn, o) if var == 1 else (o, inn)
                r = A + 4 * (2 * tt + et) + 2 * h
                a(f'v_cvt_pk_bf16_f32 v{V_PK+k}, v{r}, v{r+1}')
            elif k == 8:
                if ob:
                    a(f'buffer_store_dwordx4 {vr(V_PK,4)}, v{V_ST}, s[{G_OUT}:{G_OUT+3}], s{G_PO} offen{self.ost}')
                    a(f's_add_u32 s{G_T0}, s{G_PO}, 65536')
                else: a(f'buffer_store_dwordx4 {vr(V_PK,4)}, v{V_ST}, {WS}, s{G_PO} offen sc1')
            elif k == 9:
                if ob: a(f'buffer_store_dwordx4 {vr(V_PK+4,4)}, v{V_ST}, s[{G_OUT}:{G_OUT+3}], s{G_T0} offen{self.ost}')
                else: a(f'buffer_store_dwordx4 {vr(V_PK+4,4)}, v{V_ST}, {WS}, s{G_PO} offen offset:128 sc1')
                a(f's_add_u32 s{G_PO}, s{G_PO}, s{G_PS}')
        for T in range(RD): rd(T)
        lV = a.newlabel('sl_v'); lE = a.newlabel('sl_e')
        a(f'v_add_u32 v{V_ST}, {OOB}, v{V_ST}')
        if len(variants) > 1:
            a(f's_cmp_eq_u32 s{G_M}, 2')
            a(f's_cbranch_scc1 {lV}')
        for var in variants:
            if var == 1: a.label(lV)
            lp = a.newlabel('sl_loop')
            a.label(lp)
            for T in range(128):
                p, t = T >> 6, T & 63
                u = T >> 5; tu = T & 31
                if tu == 16:
                    a('s_waitcnt vmcnt(8)')
                    a('s_barrier')
                if T % 2 == 0: a(f's_waitcnt lgkmcnt({RD-2})')
                A = V_ACC + 16 * p
                x = vr(V_F + 4 * (T % 8), 4)
                ks, tt = t >> 1, t & 1
                ph = (tu - 16) % 32
                isd = ph % 4 == 1
                if isd:
                    un = (u + 3) if tu >= 16 else (u + 2)
                    i = ph // 4
                for et in range(2):
                    w = f'a[{8*ks+4*et}:{8*ks+4*et+3}]'
                    D = vr(A + 4 * (2 * tt + et), 4)
                    c = D if ks else '0'
                    if var == 1: a(f'v_mfma_f32_16x16x32_bf16 {D}, {x}, {w}, {c}')
                    else: a(f'v_mfma_f32_16x16x32_bf16 {D}, {w}, {x}, {c}')
                    if et == 0:
                        rd(T + RD)
                        if isd: dma(un % 4, i, 0)
                    elif isd: dma(un % 4, i, 1)
                if isd and (un & 1) == 1 and i == 7:
                    a(f's_add_u32 s{G_XO}, s{G_XO}, 65536')
                    a(f's_min_u32 s{G_XO}, s{G_XO}, s{G_XMAX}')
                if tu == 18 and (u & 1) and not ob:
                    a(f'buffer_store_dword v{V_FV}, v{V_FL}, {WS}, 0 offen sc1')
                    a(f'v_add_u32 v{V_FV}, 1, v{V_FV}')
                    if u == 3 and self.FS and self.sync:
                        la = a.newlabel('sl_ar')
                        a(f's_cmp_lg_u32 s{G_SEG}, s{G_KMO}')
                        a(f's_cbranch_scc1 {la}')
                        a('s_mov_b64 exec, 1')
                        self.arrive(False)
                        a.label(la)
                if 4 <= t < 12: epi(p ^ 1, t - 4, var)
                if t == 11: epi(p ^ 1, 8, var)
                if t == 15: epi(p ^ 1, 9, var)
                if t == 20 and p == 0: a(f'v_and_b32 v{V_ST}, 0xffffff, v{V_ST}')
            a(f's_add_u32 s{G_SEG}, s{G_SEG}, 2')
            a(f's_cmp_lt_u32 s{G_SEG}, s{G_END}')
            a(f's_cbranch_scc1 {lp}')
            for k in range(8): epi(1, k, var)
            a(f's_branch {lE}')
        a.label(lE)
        for k in (8, 9): epi(1, k, 0)
        a('s_waitcnt vmcnt(0) lgkmcnt(0)')
        a('s_barrier')
        if not ob: a(f'buffer_store_dword v{V_FV}, v{V_FL}, {WS}, 0 offen sc1')
        self.mark(5 if ob else 3)
        a(f's_branch {LNEXT}')

    def outb(self, LNEXT):
        a = self.a; L = self.L; S = self.S
        P = G_PTR
        V_G = 6
        a(f's_load_dwordx4 s[{P}:{P+3}], s[0:1], {K_BWO}')
        a(f's_add_u32 s{P+4}, s{G_WSP}, {OB}')
        a(f's_addc_u32 s{P+5}, s{G_WSP+1}, 0')
        a(f's_sub_u32 s{G_T1}, s{G_ID}, 96')
        a(f's_lshr_b32 s{G_T1}, s{G_T1}, 3')
        a(f's_mul_i32 s{G_SEG}, s{G_T1}, 22')
        a(f's_add_u32 s{G_END}, s{G_SEG}, 22')
        a(f's_min_u32 s{G_END}, s{G_END}, {NSEG}')
        a(f's_sub_u32 s{G_XMAX}, s{G_END}, 1')
        a(f's_lshl_b32 s{G_XMAX}, s{G_XMAX}, 16')
        a('s_waitcnt lgkmcnt(0)')
        srd(a, G_W, P, 2 * MB)
        srd(a, G_OUT, P + 2, 8 * MB)
        srd(a, G_X, P + 4, 4 * MB)
        S(G_T0, [(G_ID, 0, 3, 8), (G_WV, 0, None, 6)])
        L(V_G, [(2, 4, 11), (0, 2, 4)], f's{G_T0}')
        a(f's_mov_b32 s{G_WST}, 32768')
        S(G_PO, [(G_SEG, 0, None, 17), (G_ID, 0, 3, 8)], 2048)
        a(f's_mov_b32 s{G_PS}, 131072')
        self.stream(LNEXT, [2])

    def wait_flags_s(self, off_sreg, nwords, idx, target, seen=None):
        a = self.a
        if not self.sync: return
        T = G_PTR
        lp = a.newlabel('g_wf'); ld = a.newlabel('g_wfd')
        if seen is not None:
            a(f's_cmp_ge_u32 s{seen}, {target}')
            a(f's_cbranch_scc1 {ld}')
        a.label(lp)
        a(f's_load_dwordx4 s[{T}:{T+3}], s[{G_WSP}:{G_WSP+1}], s{off_sreg} glc')
        self.spin_guard(ld)
        a('s_waitcnt lgkmcnt(0)')
        m = seen if seen is not None else T + 4
        a(f's_min_u32 s{m}, s{T+idx[0]}, s{T+idx[1]}')
        for i in idx[2:]: a(f's_min_u32 s{m}, s{m}, s{T+i}')
        a(f's_cmp_ge_u32 s{m}, {target}')
        a(f's_cbranch_scc1 {ld}')
        a('s_sleep 4')
        a(f's_branch {lp}')
        a.label(ld)
        a('s_waitcnt lgkmcnt(0)')

    def arrive(self, wait=True):
        a = self.a
        a(f'v_mov_b32 v{V_T2}, 0')
        a(f'v_mov_b32 v{V_T0}, 1')
        a(f'v_mov_b32 v{V_T1}, s{S_BAD}')
        if wait: a('s_waitcnt vmcnt(0)')
        a(f'global_atomic_add_x2 v{V_T2}, v[{V_T0}:{V_T1}], s[{G_DBG}:{G_DBG+1}] offset:{4*D_INIT} sc1')
        a('s_mov_b64 exec, -1')

    def wait_lines(self, fo, target, seen=None):
        a = self.a
        if not self.sync: return
        lp = a.newlabel('g_wl'); ld = a.newlabel('g_wld')
        self.L(V_T0, [(0, 5, 7)], FLG + fo)
        a(f's_cmp_lg_u32 s{G_WV}, 0')
        a(f's_cbranch_scc1 {ld}')
        a.label(lp)
        a(f'buffer_load_dword v{V_T1}, v{V_T0}, {WS}, 0 offen sc1')
        self.spin_guard(ld)
        a('s_waitcnt vmcnt(0)')
        a(f'v_cmp_gt_u32 vcc, {target}, v{V_T1}')
        a(f's_cbranch_vccz {ld}')
        a('s_sleep 8')
        a(f's_branch {lp}')
        a.label(ld)
        a('s_barrier')

    def wait_start(self):
        a = self.a
        a(f's_cmp_lt_u32 s{G_ID}, 96')
        a(f's_cselect_b32 s{G_T2}, {self.QTH}, {self.BTH}')
        self.wait_dbg(D_RDY, f's{G_T2}', G_PTR + 12)

    def wait_dbg(self, word, target, T=G_PTR):
        a = self.a
        if not self.sync: return
        lp = a.newlabel('g_wd'); ld = a.newlabel('g_wdd')
        a(f's_cmp_lg_u32 s{G_WV}, 0')
        a(f's_cbranch_scc1 {ld}')
        a.label(lp)
        a(f's_load_dword s{T}, s[{G_DBG}:{G_DBG+1}], {4*word} glc')
        self.spin_guard(ld)
        a('s_waitcnt lgkmcnt(0)')
        a(f's_cmp_ge_u32 s{T}, {target}')
        a(f's_cbranch_scc1 {ld}')
        a('s_sleep 32')
        a(f's_branch {lp}')
        a.label(ld)
        a('s_waitcnt lgkmcnt(0)')
        a('s_barrier')

    def softmax(self, regs, V_M, V_M2, V_SUM, G_C=G_C):
        a = self.a
        a(f'v_max3_f32 v{V_M}, v{regs[0]}, v{regs[1]}, v{regs[2]}')
        r = regs[3:]
        while len(r) >= 2:
            a(f'v_max3_f32 v{V_M}, v{V_M}, v{r[0]}, v{r[1]}'); r = r[2:]
        if r: a(f'v_max_f32 v{V_M}, v{V_M}, v{r[0]}')
        a(f'v_mov_b32 v{V_M2}, v{V_M}')
        a(f'v_permlane32_swap_b32 v{V_M}, v{V_M2}')
        a(f'v_max_f32 v{V_M}, v{V_M}, v{V_M2}')
        a(f'v_mul_f32 v{V_M}, s{G_C}, v{V_M}')
        for x in regs: a(f'v_fma_f32 v{x}, v{x}, s{G_C}, -v{V_M}')
        for x in regs: a(f'v_exp_f32 v{x}, v{x}')
        a(f'v_add_f32 v{V_SUM}, v{regs[0]}, v{regs[1]}')
        a(f'v_add_f32 v{V_M2}, v{regs[2]}, v{regs[3]}')
        for i in range(4, len(regs), 2):
            a(f'v_add_f32 v{V_SUM}, v{V_SUM}, v{regs[i]}')
            a(f'v_add_f32 v{V_M2}, v{V_M2}, v{regs[i+1]}')
        a(f'v_add_f32 v{V_SUM}, v{V_SUM}, v{V_M2}')
        a(f'v_mov_b32 v{V_M2}, v{V_SUM}')
        a(f'v_permlane32_swap_b32 v{V_SUM}, v{V_M2}')
        a(f'v_add_f32 v{V_SUM}, v{V_SUM}, v{V_M2}')
        a(f'v_rcp_f32 v{V_SUM}, v{V_SUM}')

    def att(self, LNEXT):
        a = self.a; L = self.L; S = self.S
        V_BL, V_BS, V_AL, V_KML, V_VML, V_D0, V_FLA, V_FLB = 6, 7, 8, 9, 10, 11, 12, 13
        V_M, V_M2, V_SUM = 14, 15, 26
        V_PP = 16
        V_PP = 28
        V_PM = 40
        V_PK = 208
        V_BC, V_BP, V_BA = 64, 80, 96
        V_SC, V_SP = 112, 128
        V_O = 144
        A_Q, A_K, A_KM, A_V, A_VM = 0, 32, 64, 96, 128
        B_Q, B_K, B_V, B_KP, B_VP, B_VC = 160, 168, 176, 184, 192, 196
        NEG = f32(-1e30)
        T = G_PTR
        a(f's_mov_b32 s{G_C}, {f32(128 ** -0.5 * math.log2(math.e))}')
        a(f's_mov_b32 s{G_C2}, {f32(32 ** -0.5 * math.log2(math.e))}')
        G_STR, G_AEND, G_S2 = G_PS, G_WSO, G_WST
        G_NX = G_OUO
        S(G_J, [(G_ID, 0, 3, 2), (G_WV, 0, None, 0)])
        a(f's_lshl_b32 s{G_T0}, s{G_J}, 11')
        a(f'v_add_u32 v{V_BL}, s{G_T0}, v{V_L16}')
        L(V_KML, [(5, 1, 7), (0, 3, 4)], f's{G_T0}')
        a(f's_add_u32 s{G_T0}, s{G_T0}, {VM - KM}')
        L(V_VML, [(0, 5, 4), (5, 1, 3)], f's{G_T0}')
        a(f's_lshl_b32 s{G_T0}, s{G_J}, 13')
        a(f'v_add_u32 v{V_AL}, s{G_T0}, v{V_L16}')
        a(f'v_mov_b32 v{V_BS}, v{V_AL}')
        S(G_FA, [(G_J, 0, None, 7)], FLG + F_SLA)
        S(G_FB, [(G_J, 2, None, 7)], FLG + F_SLB)
        S(G_FR, [(G_J, 0, None, 7)], FLG + F_REC)
        S(G_T0, [(G_J, 0, None, 7)], FLG)
        a(f'v_mov_b32 v{V_FLA}, s{G_T0}')
        a(f'v_lshl_add_u32 v{V_FLB}, v{V_L}, 12, s{G_T0}')
        self.keep(V_FLA, 's_mov_b64 vcc, 1')
        lhelp = a.newlabel('at_help'); lcom = a.newlabel('at_com')
        a(f's_cmp_lt_u32 s{G_ID}, 120')
        a(f's_cbranch_scc1 {lhelp}')
        a(f's_mov_b32 s{G_SA}, 0')
        a(f's_mov_b32 s{G_SB}, 0')
        a(f's_mov_b32 s{G_STR}, 1')
        a(f's_mov_b32 s{G_AEND}, {N0}')
        a(f's_mov_b32 s{G_S2}, {N1 + 2}')
        if self.sync:
            li = a.newlabel('at_i')
            a(f'v_mov_b32 v{V_T0}, 0')
            a(f's_mov_b32 s{G_T0}, {F_ATB}')
            a(f'buffer_store_dword v{V_T0}, v{V_FLA}, {WS}, s{G_T0} offen sc1')
            a(f's_mov_b32 s{G_T0}, {F_ATA}')
            a(f'buffer_store_dword v{V_T0}, v{V_FLB}, {WS}, s{G_T0} offen sc1')
            if not self.GV:
                a('s_waitcnt vmcnt(0)')
                a('s_barrier')
                a(f's_cmp_lg_u32 s{G_WV}, 0')
                a(f's_cbranch_scc1 {li}')
            if self.GV: self.late_arrive()
            else:
                self.mark(7)
                a('s_mov_b64 exec, 1')
                self.arrive()
            a.label(li)
        if not self.GV: self.touch_wo()
        a(f's_load_dwordx2 s[{T}:{T+1}], s[0:1], {K_AX}')
        a(f's_load_dwordx2 s[{T+2}:{T+3}], s[0:1], {K_BX}')
        a(f's_load_dwordx2 s[{T+4}:{T+5}], s[0:1], {K_BWO}')
        a('s_waitcnt lgkmcnt(0)')
        srd(a, G_W, T, 4 * MB)
        srd(a, G_X, T + 2, 4 * MB)
        srd(a, G_W2, T + 4, 2 * MB)
        a(f's_lshl_b32 s{G_T0}, s{G_J}, 13')
        a(f'v_lshl_add_u32 v{V_D0}, v{V_L}, 7, s{G_T0}')
        a(f'buffer_load_dword v{V_O}, v{V_D0}, s[{G_W}:{G_W+3}], 0 offen')
        self.wait_start()
        for i in range(16 if self.XT else 0):
            a(f's_mov_b32 s{G_T0}, {i * 262144}')
            a(f'buffer_load_dword v{V_O+2*i}, v{V_D0}, s[{G_W}:{G_W+3}], s{G_T0} offen')
            a(f'buffer_load_dword v{V_O+2*i+1}, v{V_D0}, s[{G_X}:{G_X+3}], s{G_T0} offen')
            if self.XT >= 2: a('s_waitcnt vmcnt(0)')
        for i in range(8 if self.XT & 1 else 0):
            if self.XT >= 2 and i % 2 == 0: a('s_waitcnt vmcnt(0)')
            a(f's_mov_b32 s{G_T0}, {i * 262144}')
            a(f'buffer_load_dword v{V_O+32+i}, v{V_D0}, s[{G_W2}:{G_W2+3}], s{G_T0} offen')
        a(f's_branch {lcom}')
        a.label(lhelp)
        S(G_SA, [(G_ID, 3, None, 0)], N0)
        a(f's_mov_b32 s{G_SB}, {NSEG}')
        a(f's_mov_b32 s{G_STR}, 12')
        a(f's_mov_b32 s{G_AEND}, {N1}')
        S(G_S2, [(G_ID, 3, 1, 0)], N1)
        a(f's_cmp_lt_u32 s{G_ID}, {NOUT}')
        a(f's_cselect_b32 s{G_S2}, {NSEG}, s{G_S2}')
        a.label(lcom)
        L(V_D0, [(0, 5, 0)])
        L(V_T1, [(5, 1, 2)])
        a(f'v_sub_u32 v{V_D0}, v{V_D0}, v{V_T1}')
        def bias(dst, add):
            a(f'v_mov_b32 v{V_M}, {NEG}')
            for j in range(16):
                a(f'v_add_u32 v{V_T1}, {add - (8*(j>>2)+(j&3))}, v{V_D0}')
                a(f'v_and_b32 v{V_T1}, 0xfffffff1, v{V_T1}')
                a(f'v_cmp_ne_u32 vcc, 0, v{V_T1}')
                a(f'v_cndmask_b32 v{dst+j}, 0, v{V_M}, vcc')
        bias(V_BC, 0)
        for j in range(16):
            a(f'v_cmp_gt_i32 vcc, {8*(j>>2)+(j&3)}, v{V_D0}')
            a(f'v_cndmask_b32 v{V_BA+j}, 0, v{V_M}, vcc')
        for j in range(16): a(f'v_mov_b32 v{V_BP+j}, {NEG}')
        for j in range(12): a(f'v_accvgpr_write_b32 a{B_KP+j}, 0')
        for j in range(16): a(f'v_accvgpr_write_b32 a{A_VM+j}, 0')
        for j in range(4): a(f'v_mov_b32 v{V_PM+j}, 0')
        self.wait_dbg(D_INIT, NARR if self.GV else NWG)
        top = a.newlabel('at_top'); la = a.newlabel('at_a'); lb = a.newlabel('at_b'); lend = a.newlabel('at_end'); lnb = a.newlabel('at_nb')
        lpoll = a.newlabel('at_poll'); lnf = a.newlabel('at_nf')
        G_DIRTY = G_SEEN
        def poll():
            if not self.sync: return
            a(f's_load_dwordx16 s[8:23], s[{G_WSP}:{G_WSP+1}], s{G_FR} glc')
            a(f's_load_dwordx4 s[{T+4}:{T+7}], s[{G_WSP}:{G_WSP+1}], s{G_FA} glc')
            a(f's_load_dwordx4 s[{T+8}:{T+11}], s[{G_WSP}:{G_WSP+1}], s{G_FB} glc')
        G_PV = G_R
        def post():
            a(f'v_mov_b32 v{V_T0}, s{G_PV}')
            a(f'buffer_store_dword v{V_T0}, v{V_FLA}, {WS}, s{G_DIRTY} offen sc1')
        def ld8(dst, base):
            for t in range(8):
                if t % 4 == 0: a(f's_add_u32 s{G_T0}, s{G_PO}, {base + t*1024}')
                a(f'buffer_load_dwordx4 {ar(dst+4*t,4)}, v{V_BS}, {WS}, s{G_T0} offen offset:{(t&3)*1024} sc1')
        def ldB(m, dst):
            a(f's_add_u32 s{G_T0}, s{G_XO}, {PB + m * PB_M}')
            for t in range(2): a(f'buffer_load_dwordx4 {ar(dst+4*t,4)}, v{V_BL}, {WS}, s{G_T0} offen offset:{t*1024} sc1')
        def nextseg():
            ln = a.newlabel('at_nx')
            a(f's_add_u32 s{G_NX}, s{G_SA}, s{G_STR}')
            a(f's_cmp_lt_u32 s{G_NX}, s{G_AEND}')
            a(f's_cbranch_scc1 {ln}')
            a(f's_max_u32 s{G_NX}, s{G_NX}, s{G_S2}')
            a(f's_cmp_eq_u32 s{G_AEND}, 255')
            a(f's_cselect_b32 s{G_NX}, s{G_NX}, s{G_S2}')
            a(f's_mov_b32 s{G_STR}, 3')
            a(f's_mov_b32 s{G_AEND}, 255')
            a.label(ln)
        nextseg()
        self.wait_flags_s(G_FB, 4, [0, 1, 2], 1)
        a(f's_mov_b32 s{G_XO}, 0')
        for m, dst in enumerate((B_Q, B_K, B_V)): ldB(m, dst)
        a(f's_add_u32 s{G_T1}, s{G_SA}, 1')
        self.wait_flags_s(G_FA, 4, [0, 1, 2], f's{G_T1}')
        a(f's_lshl_b32 s{G_PO}, s{G_SA}, 18')
        ld8(A_Q, PA); ld8(A_K, PA + PA_M); ld8(A_V, PA + 2 * PA_M)
        a(f's_mov_b32 s{G_DIRTY}, {F_DUM}')
        a(f's_mov_b32 s{G_PV}, 0')
        a(f's_mov_b32 s{G_END}, 0')
        a('s_waitcnt vmcnt(0)')
        self.acc(None)
        a.label(lpoll)
        poll()
        a.label(top)
        if self.sync:
            a('s_waitcnt lgkmcnt(0)')
            a(f's_min_u32 s{T}, s8, s12')
            for i in (16, 20): a(f's_min_u32 s{T}, s{T}, s{i}')
            for b in (4, 8):
                for i in (1, 2): a(f's_min_u32 s{T+b}, s{T+b}, s{T+b+i}')
            a(f's_min_u32 s{T+5}, s{G_NX}, {NSEG-1}')
            a(f's_cmp_gt_u32 s{T+4}, s{T+5}')
            a(f's_cselect_b32 s{T}, s{T}, 0')
            a(f's_min_u32 s{T}, s{T}, {NSEG}')
            a(f's_sub_u32 s{T+9}, s{T+8}, 1')
            a(f's_cmp_ge_u32 s{T+8}, {NSEG}')
            a(f's_cselect_b32 s{T+8}, {NSEG}, s{T+9}')
        else:
            a(f's_mov_b32 s{T}, {NSEG}'); a(f's_mov_b32 s{T+8}, {NSEG}')
        a(f's_cmp_lt_u32 s{G_SB}, s{T+8}')
        a(f's_cbranch_scc1 {lb}')
        a(f's_cmp_lt_u32 s{G_SA}, s{T}')
        a(f's_cbranch_scc1 {la}')
        a(f's_cmp_eq_u32 s{G_DIRTY}, {F_DUM}')
        a(f's_cbranch_scc1 {lnf}')
        a('s_waitcnt vmcnt(0)')
        post()
        a(f's_mov_b32 s{G_DIRTY}, {F_DUM}')
        a.label(lnf)
        a(f's_cmp_ge_u32 s{G_SA}, {NSEG}')
        a(f's_cselect_b32 s{G_T0}, s{G_SB}, 0')
        a(f's_cmp_ge_u32 s{G_T0}, {NSEG}')
        a(f's_cbranch_scc1 {lend}')
        self.spin_guard(lend)
        a(f's_sleep {self.ASL}')
        a(f's_branch {lpoll}')
        a.label(la)
        self.acc(0)
        G_KOK = G_END
        def ldkm():
            a('s_mov_b32 exec_lo, 0xff'); a('s_mov_b32 exec_hi, 0xff')
            for t in range(8): a(f'buffer_load_dwordx4 {ar(A_KM+4*t,4)}, v{V_KML}, {WS}, s{G_KMO} offen offset:{t*256} sc1')
            a('s_mov_b64 exec, -1')
        def ldvm():
            for e in range(4): a(f'buffer_load_dwordx2 {ar(A_VM+4*e,2)}, v{V_VML}, {WS}, s{G_KMO} offen offset:{e*512} sc1')
        lk1 = a.newlabel('at_k1'); lk2 = a.newlabel('at_k2'); lk3 = a.newlabel('at_k3'); lk4 = a.newlabel('at_k4')
        S(G_KMO, [(G_SA, 0, None, 16)], KM)
        a(f's_cmp_lg_u32 s{G_KOK}, 0')
        a(f's_cbranch_scc1 {lk1}')
        ldkm(); ldvm()
        a.label(lk1)
        S(G_OAO, [(G_SA, 0, None, 18)], OA)
        a(f's_cmp_lt_u32 s{G_NX}, s{T}')
        a(f's_cselect_b32 s{G_XMAX}, 1, 0')
        a(f's_cmp_lt_u32 s{G_NX}, {NSEG}')
        a(f's_cselect_b32 s{G_T1}, s{G_NX}, s{G_SA}')
        a(f's_cselect_b32 s{G_T0}, 0, {OOB}')
        a(f'v_or_b32 v{V_BS}, s{G_T0}, v{V_AL}')
        a(f's_lshl_b32 s{G_PO}, s{G_T1}, 18')
        S(G_KMO, [(G_T1, 0, None, 16)], KM)
        poll()
        for t in range(8):
            a(f'v_mfma_f32_32x32x16_bf16 {vr(V_SC,16)}, {ar(A_K+4*t,4)}, {ar(A_Q+4*t,4)}, {vr(V_SC if t else V_BA,16)}')
        a(f's_cmp_lg_u32 s{G_KOK}, 0')
        a(f's_cbranch_scc1 {lk2}')
        a('s_waitcnt vmcnt(4)')
        a.label(lk2)
        ld8(A_K, PA + PA_M)
        for t in range(8):
            a(f'v_mfma_f32_32x32x16_bf16 {vr(V_SP,16)}, {ar(A_KM+4*t,4)}, {ar(A_Q+4*t,4)}, {vr(V_SP,16) if t else 0}')
        self.acc(1)
        a(f's_mov_b32 s{G_KOK}, s{G_XMAX}')
        ld8(A_Q, PA)
        a(f's_cmp_eq_u32 s{G_KOK}, 0')
        a(f's_cbranch_scc1 {lk3}')
        ldkm()
        a.label(lk3)
        self.softmax([V_SC + j for j in range(16)] + [V_SP + j for j in range(4)], V_M, V_M2, V_SUM)
        for j in range(8): a(f'v_cvt_pk_bf16_f32 v{V_PP+j}, v{V_SC+2*j}, v{V_SC+2*j+1}')
        for j in range(2): a(f'v_cvt_pk_bf16_f32 v{V_PM+j}, v{V_SP+2*j}, v{V_SP+2*j+1}')
        def fin(e):
            O = V_O + 16 * e; PK = V_PK + 8 * e
            r = [f'v_mul_f32 v{O+j}, v{O+j}, v{V_SUM}' for j in range(16)]
            r += [f'v_cvt_pk_bf16_f32 v{PK+j}, v{O+2*j}, v{O+2*j+1}' for j in range(8)]
            return r
        def pv(e):
            O = vr(V_O + 16 * e, 16)
            return [f'v_mfma_f32_32x32x16_bf16 {O}, {ar(A_V+8*e,4)}, {vr(V_PP,4)}, 0',
                    f'v_mfma_f32_32x32x16_bf16 {O}, {ar(A_V+8*e+4,4)}, {vr(V_PP+4,4)}, {O}',
                    f'v_mfma_f32_32x32x16_bf16 {O}, {ar(A_VM+4*e,4)}, {vr(V_PM,4)}, {O}']
        a('s_waitcnt vmcnt(16)')
        post()
        for m in pv(0) + pv(1): a(m)
        q = fin(0) + fin(1)
        for m in pv(2) + pv(3):
            a(m)
            for _ in range(6): a(q.pop(0))
        ld8(A_V, PA + 2 * PA_M)
        a(f's_cmp_eq_u32 s{G_KOK}, 0')
        a(f's_cbranch_scc1 {lk4}')
        ldvm()
        a.label(lk4)
        for x in q + fin(2) + fin(3): a(x)
        for e in range(4):
            if e % 2 == 0: a(f's_add_u32 s{G_T0}, s{G_OAO}, {e*2048}')
            for t in range(2): a(f'buffer_store_dwordx4 {vr(V_PK+8*e+4*t,4)}, v{V_AL}, {WS}, s{G_T0} offen offset:{(e&1)*2048+t*1024} sc1')
        a(f's_mov_b32 s{G_PV}, 1')
        S(G_DIRTY, [(G_SA, 0, None, 12)], F_ATA)
        a(f's_mov_b32 s{G_SA}, s{G_NX}')
        nextseg()
        self.acc(2)
        a('s_waitcnt vmcnt(17)')
        self.acc(3)
        a(f's_branch {top}')
        a.label(lb)
        self.acc(0)
        poll()
        S(G_OBO, [(G_SB, 0, None, 16)], OB)
        a(f's_add_u32 s{G_T1}, s{G_SB}, 1')
        a(f's_min_u32 s{G_T1}, s{G_T1}, {NSEG-1}')
        a(f's_lshl_b32 s{G_XO}, s{G_T1}, 16')
        a(f'v_mfma_f32_32x32x16_bf16 {vr(V_SP,16)}, {ar(B_KP,4)}, {ar(B_Q,4)}, {vr(V_BP,16)}')
        a(f'v_mfma_f32_32x32x16_bf16 {vr(V_SP,16)}, {ar(B_KP+4,4)}, {ar(B_Q+4,4)}, {vr(V_SP,16)}')
        a(f'v_mfma_f32_32x32x16_bf16 {vr(V_SC,16)}, {ar(B_K,4)}, {ar(B_Q,4)}, {vr(V_BC,16)}')
        a(f'v_mfma_f32_32x32x16_bf16 {vr(V_SC,16)}, {ar(B_K+4,4)}, {ar(B_Q+4,4)}, {vr(V_SC,16)}')
        for j in range(8): a(f'v_accvgpr_mov_b32 a{B_KP+j}, a{B_K+j}')
        for j in range(8): a(f'v_accvgpr_mov_b32 a{B_VC+j}, a{B_V+j}')
        for m, dst in enumerate((B_Q, B_K, B_V)): ldB(m, dst)
        self.softmax([V_SP + 8 + j for j in range(8)] + [V_SC + j for j in range(16)], V_M, V_M2, V_SUM, G_C2)
        for j in range(8): a(f'v_cvt_pk_bf16_f32 v{V_PP+j}, v{V_SC+2*j}, v{V_SC+2*j+1}')
        for j in range(4): a(f'v_cvt_pk_bf16_f32 v{V_PP+8+j}, v{V_SP+8+2*j}, v{V_SP+8+2*j+1}')
        O = vr(V_O, 16)
        a(f'v_mfma_f32_32x32x16_bf16 {O}, {ar(B_VC,4)}, {vr(V_PP,4)}, 0')
        a(f'v_mfma_f32_32x32x16_bf16 {O}, {ar(B_VC+4,4)}, {vr(V_PP+4,4)}, {O}')
        a(f'v_mfma_f32_32x32x16_bf16 {O}, {ar(B_VP,4)}, {vr(V_PP+8,4)}, {O}')
        for j in range(4): a(f'v_accvgpr_mov_b32 a{B_VP+j}, a{B_VC+4+j}')
        self.acc(4)
        a('s_waitcnt vmcnt(6)')
        self.acc(5)
        post()
        a(f's_cmp_lg_u32 s{G_SB}, 0')
        a(f's_cbranch_scc1 {lnb}')
        bias(V_BP, 32)
        a.label(lnb)
        for j in range(16): a(f'v_mul_f32 v{V_O+j}, v{V_O+j}, v{V_SUM}')
        for j in range(8): a(f'v_cvt_pk_bf16_f32 v{V_PK+j}, v{V_O+2*j}, v{V_O+2*j+1}')
        for t in range(2):
            for j in range(2): a(f'v_permlane32_swap_b32 v{V_PK+4*t+j}, v{V_PK+4*t+2+j}')
        for t in range(2): a(f'buffer_store_dwordx4 {vr(V_PK+4*t,4)}, v{V_BL}, {WS}, s{G_OBO} offen offset:{t*1024} sc1')
        a(f's_add_u32 s{G_SB}, s{G_SB}, 1')
        a(f's_mov_b32 s{G_DIRTY}, {F_ATB}')
        a(f's_mov_b32 s{G_PV}, s{G_SB}')
        if self.prof:
            lm = a.newlabel('at_m')
            a(f's_cmp_lg_u32 s{G_SB}, {NSEG}')
            a(f's_cbranch_scc1 {lm}')
            self.mark(1)
            a.label(lm)
        self.acc(6)
        a('s_waitcnt vmcnt(3)')
        self.acc(7)
        a(f's_branch {top}')
        a.label(lend)
        a('s_waitcnt vmcnt(0) lgkmcnt(0)')
        self.mark(5)
        self.mark(6)
        a(f's_branch {LNEXT}')

    def out64(self, LNEXT, NF=16, SLP=10):
        a = self.a; L = self.L; S = self.S
        P = G_PTR
        NR = NOUT // 16
        V_G, V_TR, V_FA, V_RW, V_RR, V_OUT, V_FP, V_FR = 6, 7, 8, 9, 10, 11, 12, 13
        V_LW = 16
        V_AC = 32
        V_F = 64
        V_W = 128
        RB = 131072
        G_NXT, G_NOK, G_FSO = G_XO, G_END, G_XMAX
        a(f's_load_dwordx2 s[{P}:{P+1}], s[0:1], {K_WO}')
        a(f's_load_dwordx2 s[{P+2}:{P+3}], s[0:1], {K_OUT}')
        a(f's_mul_i32 s{G_J}, s{G_ID}, {-(-1024 // NR)}')
        a(f's_lshr_b32 s{G_J}, s{G_J}, 10')
        assert all((i * -(-1024 // NR)) >> 10 == i // NR for i in range(NOUT))
        a(f's_mul_i32 s{G_T0}, s{G_J}, {NR}')
        a(f's_sub_u32 s{G_SEG}, s{G_ID}, s{G_T0}')
        if self.OM:
            S(G_J, [(G_ID, 5, 1, 3), (G_ID, 0, 3, 0)])
            S(G_SEG, [(G_ID, 3, 2, 0)])
            a(f's_and_b32 s{G_T0}, s{G_ID}, 15')
            a(f's_cmp_lt_u32 s{G_ID}, 64')
            a(f's_cselect_b32 s{G_J}, s{G_J}, s{G_T0}')
            a(f's_cselect_b32 s{G_SEG}, s{G_SEG}, 4')
        LS = NSEG - 1 if self.QL else NSEG
        G_Q = G_OBO
        a(f's_add_u32 s{G_Q}, s{G_SEG}, {NR - (NSEG - 1) % NR}')
        a(f's_sub_u32 s{G_T0}, s{G_Q}, {NR}')
        a(f's_min_u32 s{G_Q}, s{G_Q}, s{G_T0}')
        a('s_waitcnt lgkmcnt(0)')
        srd(a, G_W, P, 8 * MB)
        srd(a, G_OUT, P + 2, 8 * MB)
        S(G_T0, [(G_WV, 0, None, 21), (G_J, 0, None, 7)])
        L(V_G, [(3, 3, 11), (0, 3, 4)], f's{G_T0}')
        a(f's_lshl_b32 s{G_T0}, s{G_WV}, 15')
        L(V_TR, [(5, 1, 9), (2, 2, 7), (4, 1, 5), (0, 2, 3)], f's{G_T0}')
        def wreg(t, tile):
            return f'a[{8*t+4*tile}:{8*t+4*tile+3}]' if t < 32 else vr(V_W + 8 * (t - 32) + 4 * tile, 4)
        def rds(p):
            if p >= 48: return []
            f, b = ('a', 8 * p) if p < 32 else ('v', V_W + 8 * (p - 32))
            return [(f'{f}[{b+4*tl+2*q}:{b+4*tl+2*q+1}]', V_TR, tl * 64 + q * 1024) for tl in range(2) for q in range(2)]
        self.load_weights([(G_W, V_G, 64, rds, '0', '16384')], slow=self.OSL)
        self.mark(4)
        a(f's_lshl_b32 s{G_T0}, s{G_WV}, 16')
        a(f'v_add_u32 v{V_FA}, s{G_T0}, v{V_L16}')
        S(G_T0, [(G_WV, 0, None, 13)], RB)
        a(f'v_add_u32 v{V_RW}, s{G_T0}, v{V_L16}')
        S(G_T0, [(G_WV, 0, None, 7)], RB)
        L(V_RR, [(1, 2, 10), (0, 1, 9), (3, 3, 4)], f's{G_T0}')
        S(G_T0, [(G_WV, 0, None, 15), (G_J, 0, None, 7)])
        L(V_OUT, [(3, 3, 12), (0, 3, 3)], f's{G_T0}')
        L(V_FP, [(0, 5, 7)], FLG)
        V_TC, V_FR2 = 14, 15
        G_N2, G_FS2 = G_SA, G_SB
        TC = self.TC
        S(G_T0, [(G_WV, 0, None, 16), (G_J, 0, 3, 13)])
        a(f'v_lshl_add_u32 v{V_TC}, v{V_L}, 7, s{G_T0}')
        def touch(base): a(f'buffer_load_dword v{V_T1}, v{V_TC}, {WS}, s{base} offen sc1')
        self.wait_dbg(D_INIT, NARR if self.GV else NWG)
        def flagoff(seg):
            S(G_FSO, [(seg, 0, 6, 12)], F_ATA)
        order = []
        for i in range(16): order += [3 * i, 3 * i + 1, 3 * i + 2, 48 + i]
        def ldA(n, base):
            t = order[n]
            a(f's_add_u32 s{G_T0}, s{base}, {t*1024}')
            a(f'buffer_load_dwordx4 {vr(V_F+4*(n%NF),4)}, v{V_FA}, {WS}, s{G_T0} offen sc1')
        def ldW(i, tls=(0, 1)):
            for tl in tls:
                for q in range(2):
                    r = V_LW + 8 * (i % 2) + 4 * tl + 2 * q
                    a(f'ds_read_b64_tr_b16 v[{r}:{r+1}], v{V_TR} offset:{i*2048+tl*64+q*1024}')
        lp = a.newlabel('o6_loop'); lgo = a.newlabel('o6_go'); lw = a.newlabel('o6_w'); lwd = a.newlabel('o6_wd')
        self.acc(None)
        a.label(lp)
        def start(slp):
            lw = a.newlabel('o6_w'); lwd = a.newlabel('o6_wd')
            S(G_OAO, [(G_SEG, 0, None, 18)], OA)
            flagoff(G_SEG)
            a.label(lw)
            a(f'buffer_load_dword v{V_FR}, v{V_FP}, {WS}, s{G_FSO} offen sc1')
            self.spin_guard(lwd)
            a('s_waitcnt vmcnt(0)')
            a(f'v_cmp_eq_u32 vcc, 0, v{V_FR}')
            a(f's_cbranch_vccz {lwd}')
            a(f's_sleep {slp}')
            a(f's_branch {lw}')
            a.label(lwd)
            if TC & 1: touch(G_OAO)
            for n in range(NF - 1): ldA(n, G_OAO)
        start(SLP)
        a.label(lgo)
        self.acc(0)
        a(f's_lshl_b32 s{G_OUO}, s{G_SEG}, 17')
        a(f's_add_u32 s{G_NXT}, s{G_SEG}, {NR}')
        flagoff(G_NXT)
        if TC & 2:
            a(f's_add_u32 s{G_N2}, s{G_SEG}, {2*NR}')
            S(G_FS2, [(G_N2, 0, 6, 12)], F_ATA)
        ldW(0)
        FL = 24
        for n in range(64):
            t = order[n]
            extra = (2 if TC & 2 else 1) if (FL < n <= FL + NF - 1) else 0
            a(f's_waitcnt vmcnt({NF - 2 + extra})')
            x = vr(V_F + 4 * (n % NF), 4)
            if t >= 48: a('s_waitcnt lgkmcnt(0)')
            for tl in range(2):
                w = wreg(t, tl) if t < 48 else vr(V_LW + 8 * ((t - 48) % 2) + 4 * tl, 4)
                D = vr(V_AC + 16 * tl, 16)
                a(f'v_mfma_f32_32x32x16_bf16 {D}, {w}, {x}, {D if n else 0}')
                if tl == 0:
                    m = n + NF - 1
                    if m == 64:
                        a(f'v_cmp_eq_u32 vcc, 0, v{V_FR}')
                        S(G_KMO, [(G_NXT, 0, None, 18)], OA)
                        a(f's_cmp_eq_u64 vcc, 0')
                        a(f's_cselect_b32 s{G_NOK}, 1, 0')
                        a(f's_cmp_ge_u32 s{G_NXT}, {LS}')
                        a(f's_cselect_b32 s{G_NOK}, 0, s{G_NOK}')
                        a(f's_cmp_eq_u32 s{G_NOK}, 0')
                        a(f's_cselect_b32 s{G_KMO}, s{G_OAO}, s{G_KMO}')
                    ldA(m % 64, G_OAO if m < 64 else G_KMO)
                    if n == FL:
                        if self.sync: a(f'buffer_load_dword v{V_FR}, v{V_FP}, {WS}, s{G_FSO} offen sc1')
                        else: a(f'buffer_load_dword v{V_T1}, v{V_FP}, {WS}, s{G_FSO} offen sc1'); a(f'v_mov_b32 v{V_FR}, 127')
                        if TC & 2: a(f'buffer_load_dword v{V_FR2}, v{V_FP}, {WS}, s{G_FS2} offen sc1')
                    if n == 60 and TC & 2:
                        a(f'v_cmp_eq_u32 vcc, 0, v{V_FR2}')
                        S(G_FS2, [(G_N2, 0, None, 18)], OA)
                        a(f's_cmp_eq_u64 vcc, 0')
                        a(f's_cselect_b32 s{G_FS2}, s{G_FS2}, s{G_OAO}')
                        a(f's_cmp_ge_u32 s{G_N2}, {NSEG}')
                        a(f's_cselect_b32 s{G_FS2}, s{G_OAO}, s{G_FS2}')
                    if n == 63 and TC & 2: touch(G_FS2)
                    if m == 64 and TC & 4: touch(G_KMO)
            if t >= 48 and t < 63: ldW(t - 48 + 1)
        self.acc(1)
        def reduce(hs):
            a('s_barrier')
            for b in range(8):
                if b // 4 in hs: a(f'ds_write_b128 v{V_RW}, {vr(V_AC+4*b,4)} offset:{b*1024}')
            a('s_waitcnt lgkmcnt(0)')
            a('s_barrier')
            for h in hs:
                for w in range(4): a(f'ds_read_b128 {vr(V_AC+16*h+4*w,4)}, v{V_RR} offset:{h*4096+w*8192}')
            for h in hs:
                R = V_AC + 16 * h
                a(f's_waitcnt lgkmcnt({4 * (hs[-1] - h)})')
                for j in (0, 2): a(f'v_pk_add_f32 {vr(R+j,2)}, {vr(R+j,2)}, {vr(R+4+j,2)}')
                for j in (0, 2): a(f'v_pk_add_f32 {vr(R+8+j,2)}, {vr(R+8+j,2)}, {vr(R+12+j,2)}')
                for j in (0, 2): a(f'v_pk_add_f32 {vr(R+j,2)}, {vr(R+j,2)}, {vr(R+8+j,2)}')
                for j in range(2): a(f'v_cvt_pk_bf16_f32 v{V_LW+8+2*h+j}, v{R+2*j}, v{R+2*j+1}')
                a(f'buffer_store_dwordx2 {vr(V_LW+8+2*h,2)}, v{V_OUT}, s[{G_OUT}:{G_OUT+3}], s{G_OUO} offen offset:{h*64}{self.ost}')
        reduce((0, 1))
        self.acc(2)
        a(f's_mov_b32 s{G_SEG}, s{G_NXT}')
        a(f's_mov_b32 s{G_OAO}, s{G_KMO}')
        a(f's_cmp_lg_u32 s{G_NOK}, 0')
        a(f's_cbranch_scc1 {lgo}')
        a(f's_cmp_lt_u32 s{G_SEG}, {LS}')
        a(f's_cbranch_scc1 {lp}')
        if self.QL:
            le = a.newlabel('o6_e'); lt1 = a.newlabel('o6_t1')
            a(f's_cmp_ge_u32 s{G_Q}, 4')
            a(f's_cbranch_scc1 {le}')
            a(f's_mov_b32 s{G_SEG}, {LS}')
            a(f's_lshl_b32 s{G_OUO}, s{G_SEG}, 17')
            a(f's_lshr_b32 s{G_T1}, s{G_Q}, 1')
            a(f'v_bfe_u32 v{V_T0}, v{V_L}, 4, 1')
            self.keep(V_FA, f'v_cmp_eq_u32 vcc, s{G_T1}, v{V_T0}')
            a(f's_lshr_b32 s{G_T0}, s{G_WV}, 1')
            a(f's_cmp_eq_u32 s{G_T0}, s{G_T1}')
            self.keep(V_OUT, 's_cselect_b64 vcc, -1, 0')
            start(self.QL)
            a(f's_bitcmp1_b32 s{G_Q}, 0')
            a(f's_cbranch_scc1 {lt1}')
            for tl in range(2):
                if tl: a.label(lt1)
                ldW(0, (tl,))
                for n in range(64):
                    t = order[n]
                    a(f's_waitcnt vmcnt({min(NF - 2, 63 - n)})')
                    if t >= 48: a('s_waitcnt lgkmcnt(0)')
                    w = wreg(t, tl) if t < 48 else vr(V_LW + 8 * ((t - 48) % 2) + 4 * tl, 4)
                    D = vr(V_AC + 16 * ((n & 1) ^ tl), 16)
                    a(f'v_mfma_f32_32x32x16_bf16 {D}, {w}, {vr(V_F + 4 * (n % NF), 4)}, {D if n > 1 else 0}')
                    if n + NF - 1 < 64: ldA(n + NF - 1, G_OAO)
                    if t >= 48 and t < 63: ldW(t - 48 + 1, (tl,))
                for j in range(0, 16, 2): a(f'v_pk_add_f32 {vr(V_AC+16*tl+j,2)}, {vr(V_AC+j,2)}, {vr(V_AC+16+j,2)}')
                reduce((tl,))
                if not tl: a(f's_branch {le}')
            a.label(le)
        self.mark(5)
        a(f's_branch {LNEXT}')
```

```python
MB = 1 << 20
NSEG = 64
PA = 0
PA_M = 16 * MB
PB = 48 * MB
PB_M = 4 * MB
OA = 64 * MB
OB = 80 * MB
KM = 84 * MB
VM = 88 * MB
SCB = 92 * MB
FLG = 110 * MB
HOFF = 112 * MB
NPAGE = 9
SLOT = 256 * 1024
WOF = 132 * MB
TRACE = 140 * MB
WS_BYTES = 268435456
K_AX, K_MEM0, K_WQ, K_WK, K_WV, K_WO, K_SEG, K_BX, K_WQKV, K_BWO, K_OUT, K_DBG, K_WS = [8 * i for i in range(13)]
OOB = 0x7f000000
D_INIT = 0
D_RDY = 32
F_SLA = 0
F_SLB = 4096
F_REC = 8192
F_ATB = 16384
F_DUM = 20480
F_ATA = 32768
F_SR = 294912
F_RC = F_SR + 65536
def rc_sel(a, d, t, wsp, sl0):
    a(f's_add_u32 s{d}, s{wsp}, {FLG + F_RC}')
    a(f's_add_u32 s{t}, s{wsp}, s{sl0}')
    a(f's_xor_b32 s{d}, s{d}, s{t}')
    a(f's_lshr_b32 s{t}, s{d}, 8')
    a(f's_xor_b32 s{d}, s{d}, s{t}')
    a(f's_and_b32 s{d}, s{d}, 8192')
import os
if 'R' in os.environ.get('FV', ''): F_REC, F_DUM = F_DUM, F_REC
if 'S' in os.environ.get('FV', ''): F_SLA = 12288
if 'B' in os.environ.get('FV', ''): F_SLB, F_ATB = 24576, 28672
N0 = 6
N1 = 30
NOUT = 80
NWG = 256
NARR = 224 + 32 * 4
D_ROT = 48
S_ROT, S_BAD = 70, 71
VOTE_SH = 0
BAD_SH = 16
def validate(a, vreg, vz, dbg, spin, t0):
    lp = a.newlabel('val'); lc = a.newlabel('valc'); ok = a.newlabel('valok')
    a(f's_branch {lc}')
    a.label(lp)
    a(f'v_mov_b32 v{vz}, 0')
    a(f'global_load_dword v{vreg}, v{vz}, s[{dbg}:{dbg+1}] offset:{4*D_ROT} sc1')
    a(f's_add_u32 s{spin}, s{spin}, 1')
    a(f's_cmp_ge_u32 s{spin}, 0x80000')
    a('s_cbranch_scc1 L_end')
    a('s_waitcnt vmcnt(0)')
    a.label(lc)
    a(f'v_readfirstlane_b32 s{t0}, v{vreg}')
    a(f's_cmp_eq_u32 s{t0}, s{S_ROT}')
    a(f's_cbranch_scc1 {ok}')
    a(f's_cmp_eq_u32 s{t0}, 0')
    a(f's_cbranch_scc1 {lp}')
    a(f's_mov_b32 s{S_ROT}, s{t0}')
    a(f's_mov_b32 s{S_BAD}, {1 << BAD_SH}')
    a('s_waitcnt vmcnt(0) lgkmcnt(0)')
    a('s_barrier')
    a('s_branch L_role')
    a.label(ok)
```
